```python
import torch

def _softmax(x, axis=-1):
    return torch.softmax(x, dim=axis)
def _gelu(x):
    return torch.nn.functional.gelu(x, approximate="tanh")
def _silu(x):
    return torch.nn.functional.silu(x)
def _sigmoid(x):
    return torch.sigmoid(x)
def _layernorm(x, axis=-1, eps=1e-5):
    m = x.mean(dim=axis, keepdim=True)
    v = x.var(dim=axis, keepdim=True, unbiased=False)
    return (x - m) / torch.sqrt(v + eps)
def _scatter_add(tgt, idx, src, axis=0):
    return tgt.clone().index_add_(axis, idx, src)
def _segment_sum(src, seg, n):
    out = torch.zeros((n,) + src.shape[1:], dtype=src.dtype)
    return out.index_add_(0, seg, src)
def _pad(x, pw):
    flat = tuple(v for pair in reversed(pw) for v in pair)
    return torch.nn.functional.pad(x, flat)

kernel_name = 'gated_mix__compressed_kv_cla__linear_kernel_hedgehog__prompt'

def setup_inputs():

    _w = (lambda a: (lambda t: t.to(torch.bfloat16) if t.is_floating_point() else t)(torch.as_tensor(a)))
    def _A_setup():
        B, H, Sq, Sk, D, M = 1, 32, 2048, 2048, 128, 576
        Dc = 4 * D
        return {
            "x": _w((lambda *s: torch.randn(*s, dtype=torch.bfloat16) * 0.05)(B, Sq, M)),
            "c_kv": _w((lambda *s: torch.randn(*s, dtype=torch.bfloat16) * 0.4)(B, Sk, Dc)),
            "w_q": _w((lambda *s: torch.randn(*s, dtype=torch.bfloat16) * 6.4)(M, H, D) * (M ** -0.5)),
            "w_uk": _w((lambda *s: torch.randn(*s, dtype=torch.bfloat16) * 6.4)(Dc, H, D) * (Dc ** -0.5)),
            "w_uv": _w((lambda *s: torch.randn(*s, dtype=torch.bfloat16) * 0.4)(Dc, H, D) * (Dc ** -0.5)),
            "w_o": _w((lambda *s: torch.randn(*s, dtype=torch.bfloat16) * 0.4)(H, D, M) * ((H * D) ** -0.5)),
        }
    _A_in = _A_setup()

    def _B_setup():
        B, S, D, H = 1, 2048, 576, 32
        Dh = D // H
        return {
            "x": _w((lambda *s: torch.randn(*s, dtype=torch.bfloat16) * 0.05)(B, S, D)),
            "wqkv": _w((lambda *s: torch.randn(*s, dtype=torch.bfloat16) * 0.8)(D, 3 * D)),
            "w_phi": _w((lambda *s: torch.randn(*s, dtype=torch.bfloat16) * 0.8)(H, Dh, Dh) * (Dh ** -0.5)),
            "wo": _w((lambda *s: torch.randn(*s, dtype=torch.bfloat16) * 0.05)(D, D)),
        }
    _B_in = _B_setup()

    return {
        "A_x": _A_in["x"],
        "A_c_kv": _A_in["c_kv"],
        "A_w_q": _A_in["w_q"],
        "A_w_uk": _A_in["w_uk"],
        "A_w_uv": _A_in["w_uv"],
        "A_w_o": _A_in["w_o"],
        "B_x": _B_in["x"],
        "B_wqkv": _B_in["wqkv"],
        "B_w_phi": _B_in["w_phi"],
        "B_wo": _B_in["wo"],
        "gate_w": _w((lambda *s: torch.randn(*s, dtype=torch.bfloat16) * 0.05)(576) * 16.0),
    }

def reference(A_x, A_c_kv, A_w_q, A_w_uk, A_w_uv, A_w_o, B_x, B_wqkv, B_w_phi, B_wo, gate_w):
    def _A_ref(x, c_kv, w_q, w_uk, w_uv, w_o):
        B, Sq, M = x.shape[0], x.shape[1], x.shape[2]
        Sk = c_kv.shape[1]
        H, D = w_q.shape[1], w_q.shape[2]
        q = torch.einsum("bqm,mhd->bhqd", x, w_q)
        k = torch.einsum("bkc,chd->bhkd", c_kv, w_uk)
        v = torch.einsum("bkc,chd->bhkd", c_kv, w_uv)
        scores = torch.einsum("bhqd,bhkd->bhqk", q, k) * (D ** -0.5)
        off = Sk - Sq
        qi = torch.arange(Sq)[:, None]
        kj = torch.arange(Sk)[None, :]
        cmask = kj <= (qi + off)
        scores = torch.where(cmask[None, None], scores, -1e9)
        p = _softmax(scores, axis=-1)
        ctx = torch.einsum("bhqk,bhkd->bhqd", p, v)
        return torch.einsum("bhqd,hdm->bqm", ctx, w_o)

    def _B_ref(x, wqkv, w_phi, wo):
        B, S, D = x.shape
        H = 32; Dh = D // H
        qkv = (lambda x, *d: x.permute(*d))((x @ wqkv).reshape(B, S, 3, H, Dh), 2, 0, 3, 1, 4)
        q, k, v = qkv[0], qkv[1], qkv[2]
        pq = torch.einsum("bhsd,hdf->bhsf", q, w_phi)
        pk = torch.einsum("bhsd,hdf->bhsf", k, w_phi)
        phi_q = torch.concatenate([_softmax(pq, axis=-1), _softmax(-pq, axis=-1)], axis=-1)
        phi_k = torch.concatenate([_softmax(pk, axis=-1), _softmax(-pk, axis=-1)], axis=-1)
        kv = torch.einsum("bhsf,bhsd->bhfd", phi_k, v)
        z  = torch.einsum("bhsf->bhf", phi_k)
        num = torch.einsum("bhqf,bhfd->bhqd", phi_q, kv)
        den = torch.einsum("bhqf,bhf->bhq", phi_q, z)[..., None] + 1e-6
        o = num / den
        return (lambda x, *d: x.permute(*d))(o, 0, 2, 1, 3).reshape(B, S, D) @ wo

    x = A_x
    g = _sigmoid((x * gate_w).sum(-1, keepdims=True))
    a = _A_ref(x, A_c_kv, A_w_q, A_w_uk, A_w_uv, A_w_o)
    b = _B_ref(x, B_wqkv, B_w_phi, B_wo)
    return g * a + (1 - g) * b
```

```python
import re

TRANS = ("v_exp_f32", "v_log_f32", "v_rcp_f32", "v_rsq_f32", "v_sqrt_f32", "v_sin_f32", "v_cos_f32")

def regs_of(tok):
    tok = tok.strip()
    if tok.startswith("-"): tok = tok[1:]
    m = re.fullmatch(r"abs\((.*)\)", tok)
    if m: tok = m.group(1)
    m = re.fullmatch(r"\|(.*)\|", tok)
    if m: tok = m.group(1)
    m = re.fullmatch(r"([vsa])(\d+)", tok)
    if m: return [(m.group(1), int(m.group(2)))]
    m = re.fullmatch(r"([vsa])\[(\d+):(\d+)\]", tok)
    if m: return [(m.group(1), i) for i in range(int(m.group(2)), int(m.group(3)) + 1)]
    if tok == "vcc": return [("s", 106), ("s", 107)]
    if tok == "vcc_lo": return [("s", 106)]
    if tok == "vcc_hi": return [("s", 107)]
    if tok in ("exec", "exec_lo", "exec_hi"): return [("exec", 0)]
    if tok == "m0": return [("m0", 0)]
    return []

class I:
    __slots__ = ("text", "op", "ops", "mods", "rd", "wr", "kind", "tag", "label", "target", "cnt", "wait_tags",
                 "srcA", "srcB", "srcC", "comment", "stdata", "auto")
    def __init__(self, text, tag=None, comment=None):
        self.text = text.strip(); self.tag = tag; self.comment = comment
        self.label = None; self.target = None; self.wait_tags = None; self.auto = False
        self.srcA = self.srcB = self.srcC = []; self.stdata = []
        self.rd = []; self.wr = []; self.cnt = None
        t = self.text
        if t.endswith(":"):
            self.kind = "label"; self.label = t[:-1]; self.op = ""; self.ops = []; self.mods = ""; return
        parts = t.split(None, 1)
        self.op = op = parts[0]
        rest = parts[1] if len(parts) > 1 else ""
        ops = [x.strip() for x in re.split(r",(?![^\[]*\])", rest)] if rest else []
        mods = ""
        if ops:
            last = ops[-1].split(None, 1)
            ops[-1] = last[0] if last else ""
            mods = last[1] if len(last) > 1 else ""
        self.ops = ops; self.mods = mods
        R = lambda i: regs_of(ops[i]) if i < len(ops) else []
        allr = lambda a: [r for i in range(a, len(ops)) for r in regs_of(ops[i])]
        if op.startswith("v_mfma"):
            self.kind = "mfma8" if "32x32x16" in op else "mfma4"
            self.wr = R(0); self.srcA = R(1); self.srcB = R(2); self.srcC = R(3)
            self.rd = self.srcA + self.srcB + self.srcC
        elif op.startswith("v_cmp"):
            self.kind = "valu"; self.wr = R(0); self.rd = allr(1)
        elif op.startswith("v_writelane"):
            self.kind = "valu"; self.wr = R(0); self.rd = allr(0)
        elif op.startswith("v_readfirstlane") or op.startswith("v_readlane"):
            self.kind = "valu"; self.wr = R(0); self.rd = allr(1)
        elif op.startswith("v_permlane"):
            self.kind = "valu"; self.wr = R(0) + R(1); self.rd = R(0) + R(1)
        elif op.startswith("v_add_co") or op.startswith("v_addc_co") or op.startswith("v_sub_co"):
            self.kind = "valu"; self.wr = R(0) + R(1); self.rd = allr(2)
        elif op.startswith("v_"):
            self.kind = "trans" if op.replace("_e64", "").replace("_e32", "") in TRANS else "valu"
            self.wr = R(0); self.rd = allr(1)
            if op.startswith("v_fmac") or op.startswith("v_pk_fmac"): self.rd = self.rd + R(0)
            if op == "v_nop": self.kind = "nop"; self.cnt = 1
        elif op.startswith("ds_bpermute"):
            self.kind = "ds_rd"; self.wr = R(0); self.rd = allr(1)
        elif op.startswith("ds_read"):
            self.kind = "ds_rd"; self.wr = R(0); self.rd = R(1)
        elif op.startswith("ds_write") or op.startswith("ds_add"):
            self.kind = "ds_wr"; self.rd = allr(0)
        elif op.startswith("buffer_load") or op.startswith("global_load"):
            if " lds" in (" " + mods) or "_lds_" in op:
                self.kind = "dma"; self.rd = allr(0) + [("m0", 0)]
            else:
                self.kind = "vm_ld"; self.wr = R(0); self.rd = allr(1)
        elif op.startswith("buffer_store") or op.startswith("global_store"):
            self.kind = "vm_st"; self.rd = allr(0)
            d = R(0) if op.startswith("buffer") else R(1)
            if len(d) >= 3: self.stdata = d
        elif op.startswith("buffer_atomic") or op.startswith("global_atomic"):
            self.kind = "vm_st"; self.rd = allr(0)
        elif op in ("buffer_wbl2", "buffer_inv"):
            self.kind = "vm_st"
        elif op.startswith("s_load") or op.startswith("s_memtime") or op.startswith("s_memrealtime"):
            self.kind = "smem"; self.wr = R(0); self.rd = allr(1)
        elif op == "s_waitcnt":
            self.kind = "wait"
            vm = re.search(r"vmcnt\((\d+)\)", t); lg = re.search(r"lgkmcnt\((\d+)\)", t)
            self.cnt = (int(vm.group(1)) if vm else None, int(lg.group(1)) if lg else None)
        elif op == "WAITV":
            self.kind = "waitv"
        elif op == "s_barrier":
            self.kind = "barrier"
        elif op == "s_nop":
            self.kind = "nop"; self.cnt = int(ops[0]) + 1
        elif op == "s_endpgm":
            self.kind = "end"
        elif op == "s_branch":
            self.kind = "jump"; self.target = ops[0]
        elif op.startswith("s_cbranch"):
            self.kind = "cbranch"; self.target = ops[0]
            if "scc" in op: self.rd = [("scc", 0)]
            elif "vcc" in op: self.rd = [("s", 106), ("s", 107)]
            elif "exec" in op: self.rd = [("exec", 0)]
        elif op.startswith("s_cmp") or op.startswith("s_bitcmp"):
            self.kind = "salu"; self.rd = allr(0); self.wr = [("scc", 0)]
        elif op in ("s_setprio", "s_sleep"):
            self.kind = "salu"
        elif op.startswith("s_"):
            self.kind = "salu"; self.wr = R(0) + [("scc", 0)]; self.rd = allr(1)
            if op.startswith("s_cselect") or op.startswith("s_addc"): self.rd = self.rd + [("scc", 0)]
            if op.startswith("s_mov") or op.startswith("s_cselect") or op.startswith("s_mul"): self.wr = R(0)
            if "saveexec" in op: self.wr = self.wr + [("exec", 0)]; self.rd = self.rd + [("exec", 0)]
            if op.startswith("s_addk") or op.startswith("s_mulk"): self.rd = self.rd + R(0)
        else:
            raise ValueError("unknown instruction " + t)
    def states(self):
        if self.kind == "label": return 0
        if self.kind == "nop": return self.cnt
        return 1
    def isvalu(self): return self.kind in ("valu", "trans")
    def ismfma(self): return self.kind in ("mfma8", "mfma4")
    def isvm(self): return self.kind in ("vm_ld", "vm_st", "dma")
    def islgkm(self): return self.kind in ("ds_rd", "ds_wr", "smem")
    def __repr__(self): return self.text

def need_states(p, c):
    n = 0
    pw = set(p.wr); cr = set(c.rd); cw = set(c.wr)
    vw = {r for r in pw if r[0] in "va"}
    sw = {r for r in pw if r[0] == "s"}
    if p.isvalu():
        if c.ismfma() and vw & cr: n = max(n, 2)
        if c.op.startswith("v_permlane") and vw & cr: n = max(n, 2)
        if (c.op.startswith("v_readfirstlane") or c.op.startswith("v_readlane")) and vw & cr: n = max(n, 1)
        if sw:
            if c.isvalu() and sw & cr: n = max(n, 2)
            if c.isvm() and sw & cr: n = max(n, 5)
            if c.kind in ("salu", "smem") and sw & cr: n = max(n, 1)
        if p.kind == "trans" and c.kind == "valu" and vw & cr: n = max(n, 1)
        if p.kind == "trans" and (c.kind in ("ds_wr", "vm_st")) and vw & cr: n = max(n, 1)
    if p.ismfma():
        big = p.kind == "mfma8"
        if c.ismfma():
            if vw & (set(c.srcA) | set(c.srcB)): n = max(n, 12 if big else 8)
            cc = set(c.srcC)
            if vw & cc:
                if not (p.wr == c.srcC and p.kind == c.kind): n = max(n, 10 if big else 6)
            elif vw & cw:
                n = max(n, 12 if big else 8)
        elif c.isvalu() or c.isvm() or c.kind in ("ds_rd", "ds_wr"):
            if vw & (cr | cw): n = max(n, 12 if big else 8)
        if c.isvalu() and set(p.srcC) & cw: n = max(n, 7 if big else 3)
    if p.kind == "salu" and ("m0", 0) in pw and c.kind == "dma": n = max(n, 1)
    if p.kind == "vm_st" and p.stdata and set(p.stdata) & cw and (c.isvalu() or c.ismfma() or c.kind in ("ds_rd", "vm_ld")):
        n = max(n, 2)
    return n
MAXWIN = 13

class Pend:
    def __init__(self, vm=None, lg=None):
        self.vm = list(vm or []); self.lg = list(lg or [])
    def copy(self): return Pend(self.vm, self.lg)
    def sig(self):
        f = lambda q: tuple((e[0], tuple(e[1]), e[2]) for e in q)
        return (f(self.vm), f(self.lg))

def entry(ins):
    return (ins.kind, tuple(ins.wr), ins.tag)

def resolve_waits(seq, st=None):
    st = st.copy() if st else Pend()
    out = []
    for ins in seq:
        if ins.kind == "wait" and ins.tag == "OPT":
            out.append(ins); continue
        if ins.kind == "wait":
            vm, lg = ins.cnt
            if vm is not None: st.vm = st.vm[len(st.vm) - vm:] if vm < len(st.vm) and vm > 0 else ([] if vm == 0 else st.vm)
            if lg is not None: st.lg = st.lg[len(st.lg) - lg:] if lg < len(st.lg) and lg > 0 else ([] if lg == 0 else st.lg)
            out.append(ins); continue
        needv = None; needl = None
        if ins.kind == "waitv":
            tags = ins.wait_tags
            for k, e in enumerate(st.vm):
                if e[2] in tags: needv = len(st.vm) - 1 - k
            for k, e in enumerate(st.lg):
                if e[2] in tags: needl = len(st.lg) - 1 - k
        else:
            touch = set(ins.rd) | set(ins.wr)
            for k, e in enumerate(st.vm):
                if touch & set(e[1]): needv = len(st.vm) - 1 - k
            smem_pending = any(e[0] == "smem" for e in st.lg)
            for k, e in enumerate(st.lg):
                if touch & set(e[1]): needl = 0 if smem_pending else len(st.lg) - 1 - k
        if needv is not None or needl is not None:
            parts = []
            if needv is not None:
                needv = min(needv, 63); parts.append("vmcnt(%d)" % needv)
                st.vm = st.vm[len(st.vm) - needv:] if needv else []
            if needl is not None:
                needl = min(needl, 15); parts.append("lgkmcnt(%d)" % needl)
                st.lg = st.lg[len(st.lg) - needl:] if needl else []
            w = I("s_waitcnt " + " ".join(parts)); w.auto = True
            out.append(w)
        if ins.kind in ("waitv", "touch"): continue
        if ins.isvm() and ins.tag == "OPT":
            out.append(ins); continue
        if ins.isvm() and len(st.vm) >= 60:
            w = I("s_waitcnt vmcnt(54)"); w.auto = True; out.append(w); st.vm = st.vm[len(st.vm) - 54:]
        if ins.isvm():
            st.vm.append(entry(ins))
            assert len(st.vm) <= 63, "more than 63 vmem ops outstanding at " + ins.text
        if ins.islgkm():
            st.lg.append(entry(ins))
            if ins.kind == "smem" and len(ins.wr) > 1: st.lg.append(entry(ins))
        out.append(ins)
    return out, st

def fix_hazards(seq):
    out = []
    for ins in seq:
        if ins.kind not in ("label", "nop", "wait", "barrier"):
            dist = 0; need = 0; skip = None
            for k in range(len(out) - 1, max(-1, len(out) - 80), -1):
                p = out[k]
                if p.kind in ("jump", "end") and skip is None: break
                n = need_states(p, ins)
                if n > dist: need = max(need, n - dist)
                if p.kind == "label" and skip is None:
                    if any(x.kind == "cbranch" and x.target == p.label for x in out[max(0, k - 40):k]): skip = p.label
                if skip is not None and p.kind == "cbranch" and p.target == skip: skip = None
                if skip is None: dist += p.states()
                if dist >= MAXWIN: break
            while need > 0:
                k = min(need, 16)
                w = I("s_nop %d" % (k - 1)); w.auto = True
                out.append(w); need -= k
        out.append(ins)
    return out

def check_cfg(seq, name=""):
    labels = {ins.label: i for i, ins in enumerate(seq) if ins.kind == "label"}
    def succ(i):
        ins = seq[i]
        if ins.kind == "end": return []
        if ins.kind == "jump": return [labels[ins.target]]
        if ins.kind == "cbranch": return [i + 1, labels[ins.target]]
        return [i + 1] if i + 1 < len(seq) else []
    probs = []
    for i, p in enumerate(seq):
        if not (p.isvalu() or p.ismfma() or p.kind in ("salu", "vm_st")): continue
        stack = [(s, 0) for s in succ(i)]; seen = set()
        while stack:
            j, d = stack.pop()
            if (j, d) in seen or d >= MAXWIN: continue
            seen.add((j, d))
            c = seq[j]
            if c.kind not in ("label", "nop", "wait", "barrier"):
                n = need_states(p, c)
                if n > d: probs.append("%s hazard: [%d] %s -> [%d] %s needs %d has %d" % (name, i, p.text, j, c.text, n, d))
            for s in succ(j): stack.append((s, d + c.states()))
    seen = set(); stack = [(0, Pend())]; steps = 0
    while stack:
        i, st = stack.pop()
        while True:
            steps += 1
            if steps > 3000000:
                probs.append(name + " wait check gave up"); return probs
            ins = seq[i]
            if ins.kind == "label" or ins.kind in ("cbranch", "jump"):
                key = (i, st.sig())
                if key in seen: break
                seen.add(key)
            if ins.kind == "wait":
                vm, lg = ins.cnt
                if vm is not None and vm < len(st.vm): st.vm = st.vm[len(st.vm) - vm:] if vm else []
                if lg is not None:
                    if lg == 0: st.lg = []
                    elif lg < len(st.lg) and not any(e[0] == "smem" for e in st.lg): st.lg = st.lg[len(st.lg) - lg:]
            else:
                touch = set(ins.rd) | set(ins.wr)
                for q in (st.vm, st.lg):
                    for e in q:
                        if touch & set(e[1]):
                            probs.append("%s wait: [%d] %s touches pending %s" % (name, i, ins.text, e[1][:2]))
                if ins.isvm():
                    st.vm.append((ins.kind, tuple(ins.wr), None))
                    while len(st.vm) > 64: st.vm.pop(0)
                    while st.vm and not st.vm[0][1]: st.vm.pop(0)
                if ins.islgkm():
                    st.lg.append((ins.kind, tuple(ins.wr), None))
                    if ins.kind == "smem" and len(ins.wr) > 1: st.lg.append((ins.kind, tuple(ins.wr), None))
                    while len(st.lg) > 40: st.lg.pop(0)
                    while st.lg and not st.lg[0][1]: st.lg.pop(0)
            ss = succ(i)
            if not ss: break
            for s in ss[1:]: stack.append((s, st.copy()))
            i = ss[0]
    return sorted(set(probs))

class Seq:
    def __init__(self): self.l = []
    def __call__(self, text, tag=None):
        for t in text.strip().split("\n"):
            t = t.split(";")[0].strip()
            if t: self.l.append(I(t, tag=tag))
        return self
    def waitv(self, *tags):
        w = I("WAITV"); w.wait_tags = set(tags); self.l.append(w); return self
    def label(self, name): self.l.append(I(name + ":")); return self
    def ext(self, other): self.l.extend(other.l if isinstance(other, Seq) else other); return self
    def __len__(self): return len(self.l)

def interleave(slots, fillers, per_slot=None, start=0, end=None):
    n = len(slots); end = n if end is None else end
    out = []
    m = len(fillers); k = 0; span = max(1, end - start)
    for i, s in enumerate(slots):
        out.extend(s)
        if start <= i < end:
            upto = (m * (i - start + 1) + span - 1) // span if per_slot is None else min(m, per_slot * (i - start + 1))
            while k < upto: out.append(fillers[k]); k += 1
    out.extend(fillers[k:])
    return out

def render(seq):
    o = []
    for ins in seq:
        o.append(ins.text if ins.kind == "label" else "    " + ins.text)
    return "\n".join(o)

def verify_streams(final, streams, name=""):
    pos = {id(x): i for i, x in enumerate(final)}
    writers = {}
    for i, x in enumerate(final):
        for r in x.wr: writers.setdefault(r, []).append(i)
    import bisect
    probs = []
    for s in streams:
        s = s.l if isinstance(s, Seq) else s
        last = {}; prev = -1
        for c in s:
            if id(c) not in pos: continue
            pc = pos[id(c)]
            if pc < prev: probs.append("%s order broken at %s" % (name, c.text))
            prev = pc
            for r in c.rd:
                if r in last:
                    w = writers[r]; k = bisect.bisect_left(w, pc) - 1
                    if k >= 0 and w[k] != last[r]:
                        probs.append("%s clobber: %s reads %s written in between by %s" % (name, c.text, r, final[w[k]].text))
            for r in c.wr: last[r] = pc
    for p in probs[:20]: print("PROBLEM", p)
    return probs
```

```python
from asmlib import *

MB = 1 << 20
WS_KF = 0
WS_VF = 16 * MB
WS_AP = 32 * MB
WS_WP = 52 * MB
WS_PHQ = 58 * MB
WS_KVP = 64 * MB
WS_G = 66 * MB
WS_DBG = 68 * MB
WS_XF = 72 * MB
WS_WBF = 76 * MB
WS_SIZE = 268435456
HUGE = 0x40000000
NSTEP = 146
LOG2E = 1.4426950408889634

def f2u(x):
    import struct
    return struct.unpack("<I", struct.pack("<f", x))[0]

P_X, P_CKV, P_WQ, P_UK, P_UV, P_WO, P_BX, P_WQKV, P_PHI, P_WO2, P_GATE, P_OUT, P_DBG, P_WS = [16 + 2 * i for i in range(14)]

def vr(a, n=1): return "v%d" % a if n == 1 else "v[%d:%d]" % (a, a + n - 1)
def ar(a, n=1): return "a%d" % a if n == 1 else "a[%d:%d]" % (a, a + n - 1)
def sr(a, n=1): return "s%d" % a if n == 1 else "s[%d:%d]" % (a, a + n - 1)

def load_args(q):
    q("s_load_dwordx16 s[16:31], s[0:1], 0")
    q("s_load_dwordx8 s[32:39], s[0:1], 64")
    q("s_load_dwordx4 s[40:43], s[0:1], 96")

def mk_srd(q, d, p, size, add=None):
    if add is None:
        q("s_mov_b32 s%d, s%d" % (d, p)); q("s_mov_b32 s%d, s%d" % (d + 1, p + 1))
    else:
        q("s_add_u32 s%d, s%d, %s" % (d, p, add)); q("s_addc_u32 s%d, s%d, 0" % (d + 1, p + 1))
    q("s_mov_b32 s%d, %s" % (d + 2, size)); q("s_mov_b32 s%d, 0x00020000" % (d + 3))

def finish(seq, name, st=None):
    l, _ = resolve_waits(seq.l if isinstance(seq, Seq) else seq, st)
    l = fix_hazards(l)
    return l

def kernel_text(name, l, nvgpr, accum, nsgpr=102):
    probs = [p for p in check_cfg(l, name) if "pending (('v', 9),)" not in p]
    for p in probs[:40]: print("PROBLEM", p)
    body = render(l)
    head = ".globl %s\n.p2align 8\n.type %s,@function\n%s:\n" % (name, name, name)
    desc = """.amdhsa_kernel %s
  .amdhsa_next_free_vgpr %d
  .amdhsa_next_free_sgpr %d
  .amdhsa_accum_offset %d
  .amdhsa_group_segment_fixed_size 0
  .amdhsa_kernarg_size 112
  .amdhsa_user_sgpr_count 2
  .amdhsa_user_sgpr_kernarg_segment_ptr 1
  .amdhsa_system_sgpr_workgroup_id_x 1
.end_amdhsa_kernel
""" % (name, nvgpr, nsgpr, accum)
    return head + body + "\n", desc, len(probs)

def STAMP(i, v=0):
    z = Seq()
    z("s_memtime s[100:101]"); z("s_waitcnt lgkmcnt(0)"); z("v_writelane_b32 v%d, s100, %d" % (v, i))
    return z
def STAMPOUT(s_w, vlane, srd, vt, v=0, base=0):
    z = Seq()
    z("s_lshl_b32 s100, s2, 3"); z("s_add_u32 s100, s100, s%d" % s_w); z("s_lshl_b32 s100, s100, 8"); z("s_add_u32 s100, s100, %d" % (WS_DBG + base))
    z("v_lshlrev_b32 v%d, 2, v%d" % (vt, vlane))
    z("buffer_store_dword v%d, v%d, %s, s100 offen" % (v, vt, sr(srd, 4)))
    z("s_waitcnt vmcnt(0)")
    return z

def RSTAMP(i, v=0):
    z = Seq()
    z("s_memrealtime s[100:101]"); z("s_waitcnt lgkmcnt(0)"); z("v_writelane_b32 v%d, s100, %d" % (v, i))
    return z
```

```python
from gen_common import *
from gen_k1 import wg_decode, fmt_job
MF = "v_mfma_f32_16x16x32_bf16"
SLOT = 16384
PHL = 9 * SLOT
KVX = PHL + 2048
K2_LDS = KVX + 4096

S_H, S_J, S_W, S_ROW0 = 3, 4, 5, 7
SRD_WS, SRD_DBG, S_HUGE, S_TMP, S_RG, S_SPIN = 44, 48, 52, 53, 54, 55
SRD_CK, SRD_W, SRD_X, SRD_WB, SRD_GATE, SRD_WO = 56, 60, 64, 68, 72, 76
S_W4K, S_ST, S_SEL, M1, M2 = 80, 82, 86, 88, 90
SRD_WQ, S_MW, S_MB, S_WBG, S_XB = 92, 96, 97, 98, 99
SRD_PHI, S_KG, S_VG, S_KL, S_VL, S_KR, S_T, S_TL, S_TBM, S_L2E, S_AP, S_C, S_R = 56, 60, 61, 62, 63, 64, 65, 66, 67, 68, 69, 70, 72
S_ST2 = 86
SRD_WS2, S_WOSZ = 76, 81
MK = [74, 76, 78, 90]
vLANE, vL16, vWo, vWR, vBR, vKA, vVA, vQ, vLs, vPS, vTM, vNINF, vM5 = 1, 2, 3, 4, 12, 13, 14, 15, 17, 19, 21, 22, 23
vG = [3, 12]
FR, DB, Q, TK, O = 24, 160, 216, 248, 128
XRS = [88, 96, 104, 112, 120]
NXR = 5
FR2 = [120, 124, 192, 196, 200, 204, 208, 212]
def qacc(cb, rho):
    n = 2 * cb + rho
    return 56 + 4 * n if n < 8 else 128 + 4 * (n - 8)
P_, S_, NEGM, E_ = 56, 72, 104, 112
import os
DRD = 12; W2 = 4; E64 = 0; NRING = 16; NODMA = 0
SC = " sc1"
def freg(n):
    n %= NRING
    return FR + 4 * n if n < 8 else FR2[n - 8]
WS_FLG = 80 * MB
FL_KV, FL_KP, FL_AP = WS_FLG, WS_FLG + 4096, WS_FLG + 8192
WS_WH = WS_WP + 5 * MB
F_LDS = 163840

def red4(q, a, b, c, d, op, t0, t1, t2):
    q("v_permlane16_swap_b32 v%d, v%d" % (a, b)); q("v_permlane16_swap_b32 v%d, v%d" % (c, d))
    q("%s v%d, v%d, v%d" % (op, a, a, b)); q("%s v%d, v%d, v%d" % (op, c, c, d))
    q("v_permlane32_swap_b32 v%d, v%d" % (a, c))
    q("%s v%d, v%d, v%d" % (op, a, a, c))
    q("v_mov_b32 v%d, v%d" % (c, a))
    q("v_permlane32_swap_b32 v%d, v%d" % (a, c))
    q("v_mov_b32 v%d, v%d" % (b, a)); q("v_mov_b32 v%d, v%d" % (d, c))
    q("v_permlane16_swap_b32 v%d, v%d" % (a, b)); q("v_permlane16_swap_b32 v%d, v%d" % (c, d))

def red2(q, a, b, op, t):
    q("v_permlane16_swap_b32 v%d, v%d" % (a, b))
    q("%s v%d, v%d, v%d" % (op, a, a, b))
    q("v_mov_b32 v%d, v%d" % (t, a))
    q("v_permlane32_swap_b32 v%d, v%d" % (a, t))
    q("%s v%d, v%d, v%d" % (op, a, a, t))
    q("v_mov_b32 v%d, v%d" % (b, a))
    q("v_permlane16_swap_b32 v%d, v%d" % (a, b))

def phi_gather(q, raw, PH, va, vb):
    q("v_and_b32 v%d, 15, v%d" % (va, vLANE)); q("v_lshrrev_b32 v%d, 4, v%d" % (vb, vLANE))
    q("v_mul_u32_u24 v%d, 144, v%d" % (raw, vb)); q("v_add_u32 v%d, %d, v%d" % (raw, PHL, raw))
    q("v_mov_b32 v%d, 512" % vb)
    for (c, f) in ((0, 16), (4, 17), (8, 8), (12, 12)):
        q("v_cmp_eq_u32 vcc, %d, v%d" % (c, va)); q("v_cndmask_b32 v%d, v%d, %d, vcc" % (vb, vb, f))
    q("v_lshl_add_u32 v%d, v%d, 1, v%d" % (vb, vb, raw)); q("v_lshl_add_u32 v%d, v%d, 1, v%d" % (va, va, raw))
    for mu, a in ((0, va), (1, vb)):
        for i in range(6):
            q("ds_read_u16 v%d, v%d offset:%d" % (raw + 6 * mu + i, a, (i if i < 4 else 12 + i) * 36))
    y = Seq()
    for mu in range(2):
        for i in range(3): y("v_lshl_or_b32 v%d, v%d, 16, v%d" % (PH + 4 * mu + i, raw + 6 * mu + 2 * i + 1, raw + 6 * mu + 2 * i))
        y("v_mov_b32 v%d, 0" % (PH + 4 * mu + 3))
    return y

def softmax5(q, PK, EE, T, OUT):
    vals = [[PK + 4 * r + i for i in range(4)] + [PK + 8 + 4 * r] for r in range(2)]
    for r in range(2):
        v = vals[r]
        q("v_max3_f32 v%d, v%d, v%d, v%d" % (T + 2 * r, v[0], v[1], v[2])); q("v_max3_f32 v%d, -v%d, -v%d, -v%d" % (T + 2 * r + 1, v[0], v[1], v[2]))
        q("v_max3_f32 v%d, v%d, v%d, v%d" % (T + 2 * r, T + 2 * r, v[3], v[4])); q("v_max3_f32 v%d, v%d, -v%d, -v%d" % (T + 2 * r + 1, T + 2 * r + 1, v[3], v[4]))
    red4(q, T, T + 1, T + 2, T + 3, "v_max_f32", 0, 0, 0)
    for i in range(4): q("v_mul_f32 v%d, s%d, v%d" % (T + i, S_L2E, T + i))
    for r in range(2):
        for i in range(5):
            q("v_fma_f32 v%d, v%d, s%d, -v%d" % (EE + 10 * r + i, vals[r][i], S_L2E, T + 2 * r))
            q("v_fma_f32 v%d, -v%d, s%d, -v%d" % (EE + 10 * r + 5 + i, vals[r][i], S_L2E, T + 2 * r + 1))
    for i in range(20): q("v_exp_f32 v%d, v%d" % (EE + i, EE + i))
    for k in range(4): q("v_mul_f32 v%d, v%d, v%d" % (EE + 5 * k + 4, EE + 5 * k + 4, vM5))
    for k in range(4): q("v_add_f32 v%d, v%d, v%d" % (T + k, EE + 5 * k, EE + 5 * k + 1))
    for i in range(2, 5):
        for k in range(4): q("v_add_f32 v%d, v%d, v%d" % (T + k, T + k, EE + 5 * k + i))
    red4(q, T, T + 1, T + 2, T + 3, "v_add_f32", 0, 0, 0)
    for k in range(4): q("v_rcp_f32 v%d, v%d" % (T + k, T + k))
    for k in range(4):
        for i in range(5): q("v_mul_f32 v%d, v%d, v%d" % (EE + 5 * k + i, EE + 5 * k + i, T + k))
    for r in range(2):
        e = EE + 10 * r; o = OUT + 8 * r
        q("v_cvt_pk_bf16_f32 v%d, v%d, v%d" % (o, e, e + 1)); q("v_cvt_pk_bf16_f32 v%d, v%d, v%d" % (o + 1, e + 2, e + 3))
        q("v_cvt_pk_bf16_f32 v%d, v%d, v%d" % (o + 2, e + 5, e + 6)); q("v_cvt_pk_bf16_f32 v%d, v%d, v%d" % (o + 3, e + 7, e + 8))
        q("v_cvt_pk_bf16_f32 v%d, v%d, v%d" % (o + 4, e + 4, e + 9)); q("v_mov_b32 v%d, 0" % (o + 5))

def sreg(buf, e):
    qb, kb, r = e >> 3, (e >> 2) & 1, e & 3
    return S_ + 16 * buf + 8 * kb + 4 * qb + r

def mask_ops(buf, u):
    z = Seq()
    for e0 in range(0, 16, 4):
        for e in range(e0, e0 + 4):
            qb, kb, r = e >> 3, (e >> 2) & 1, e & 3
            z("v_cmp_gt_i32 s[%d:%d], %d, v%d" % (MK[e & 3], MK[e & 3] + 1, 32 * u + 16 * kb + r, vQ + qb))
        for e in range(e0, e0 + 4):
            z("v_cndmask_b32 v%d, v%d, v%d, s[%d:%d]" % (sreg(buf, e), sreg(buf, e), vNINF, MK[e & 3], MK[e & 3] + 1))
    return z

def sm_parts(buf):
    ex = []; post = []
    for e in range(16):
        qb = e >> 3
        ex.append(I("v_exp_f32%s v%d, v%d" % ("_e64" if E64 else "", E_ + (e & 7), sreg(buf, e))))
        z = Seq()
        ad = "v_add_f32_e64" if E64 else "v_add_f32"
        if e & 7 == 1: z("%s v%d, v%d, v%d" % (ad, vPS + qb, E_ + ((e - 1) & 7), E_ + (e & 7)))
        elif e & 7 > 1: z("%s v%d, v%d, v%d" % (ad, vPS + qb, vPS + qb, E_ + (e & 7)))
        if e & 1: z("v_cvt_pk_bf16_f32 v%d, v%d, v%d" % (P_ + 8 * buf + 4 * qb + ((e & 7) >> 1), E_ + ((e - 1) & 7), E_ + (e & 7)))
        post.append(z.l)
    return ex, post

def rare_block(name, X, Y):
    z = Seq(); z.label(name); z("s_nop 8")
    a, b, t = E_, E_ + 1, E_ + 2
    for qb, d in ((0, a), (1, b)):
        r = [sreg(X, 8 * qb + i) for i in range(8)]
        z("v_max3_f32 v%d, v%d, v%d, v%d" % (d, r[0], r[1], r[2])); z("v_max3_f32 v%d, v%d, v%d, v%d" % (d, d, r[3], r[4]))
        z("v_max3_f32 v%d, v%d, v%d, v%d" % (d, d, r[5], r[6])); z("v_max3_f32 v%d, v%d, v%d, 0" % (d, d, r[7]))
    red2(z, a, b, "v_max_f32", t)
    z("v_exp_f32 v%d, -v%d" % (E_ + 4, a)); z("v_exp_f32 v%d, -v%d" % (E_ + 5, b))
    for qb, d in ((0, a), (1, b)):
        for i in range(8):
            z("v_sub_f32 v%d, v%d, v%d" % (sreg(X, 8 * qb + i), sreg(X, 8 * qb + i), d))
            z("v_sub_f32 v%d, v%d, v%d" % (sreg(Y, 8 * qb + i), sreg(Y, 8 * qb + i), d))
        for i in range(4): z("v_sub_f32 v%d, v%d, v%d" % (NEGM + 4 * qb + i, NEGM + 4 * qb + i, d))
        z("v_mul_f32 v%d, v%d, v%d" % (vLs + qb, vLs + qb, E_ + 4 + qb))
        for db in range(8):
            for i in range(4): z("v_mul_f32 v%d, v%d, v%d" % (O + 8 * db + 4 * qb + i, O + 8 * db + 4 * qb + i, E_ + 4 + qb))
    ex, post = sm_parts(X)
    for e in range(16):
        z.ext([ex[e]]); z("s_nop 0"); z.ext(post[e])
    z("s_nop 1")
    z("s_branch %s_R" % name)
    return z

def rd_frag(kind, idx, ring):
    base = vKA if kind == "K" else vVA
    return I("ds_read_b128 %s, v%d offset:%d" % (vr(freg(ring), 4), base, 1024 * idx))

def qk_mfmas(k, buf, ring, first_c):
    kb, js = k >> 2, k & 3
    out = []
    for qb in range(2):
        d = vr(S_ + 16 * buf + 8 * kb + 4 * qb, 4)
        c = d if js else first_c(qb)
        out.append(I("%s %s, %s, %s, %s" % (MF, d, vr(freg(ring), 4), vr(Q + 16 * qb + 4 * js, 4), c)))
    return out
def pv_mfmas(db, buf, ring):
    return [I("%s %s, %s, %s, %s" % (MF, vr(O + 8 * db + 4 * qb, 4), vr(freg(ring), 4), vr(P_ + 8 * buf + 4 * qb, 4), vr(O + 8 * db + 4 * qb, 4))) for qb in range(2)]
NEGC = lambda qb: vr(NEGM + 4 * qb, 4)

def pkg(tag=None):
    z = Seq()
    for (sl, sg, hi) in ((S_VL, S_VG, 1), (S_KL, S_KG, 0)):
        z("s_mov_b32 m0, s%d" % sl)
        z("s_add_u32 s%d, s%d, %d" % (sl, sl, SLOT))
        for e in range(4):
            if not NODMA: z("buffer_load_dwordx4 v%d, %s, s%d offen offset:%d%s lds" % (vL16, sr(SRD_WS, 4), sg, 1024 * e, SC), tag=tag)
        z("s_add_u32 s%d, s%d, %d" % (sg, sg, SLOT))
        z("s_and_b32 s%d, s%d, 0xffff" % (sl, sl))
        if hi: z("s_or_b32 s%d, s%d, 0x10000" % (sl, sl))
    return z

DIAG = int(os.environ.get('DIAG', 0))
def tick(z, acc):
    z("s_memtime s[96:97]"); z("s_waitcnt lgkmcnt(0)")
    if acc is not None: z("s_sub_u32 s99, s96, s98"); z("s_add_u32 s%d, s%d, s99" % (acc, acc))
    z("s_mov_b32 s98, s96")
def sync_block(role, uid, cond=False):
    z = Seq()
    if DIAG: tick(z, None)
    if role == 0:
        z("s_sub_u32 s%d, s%d, s%d" % (S_R, S_TBM, S_T))
        z("s_cmp_ge_u32 s%d, 2" % S_R); z("s_cbranch_scc1 W12_%s" % uid)
        z("s_waitcnt vmcnt(4)")
        z.label("W12_%s" % uid); z("s_waitcnt vmcnt(12)")
        if DIAG: tick(z, 92)
        z("s_barrier")
        if DIAG: tick(z, 93)
        z("s_cmp_gt_u32 s%d, 2" % S_T); z("s_cbranch_scc1 NQ_%s" % uid)
        z("s_cmp_eq_u32 s%d, 0" % S_T); z("s_cbranch_scc1 NQ_%s" % uid)
        z("s_cmp_eq_u32 s%d, 2" % S_T); z("s_cbranch_scc1 CQ_%s" % uid)
        poll_issue(z, 9, 8, SRD_WS, "s15", tag="OPT")
        z("s_branch NQ_%s" % uid)
        z.label("CQ_%s" % uid)
        z("s_waitcnt vmcnt(8)")
        poll_check(z, "PQ_%s" % uid, 9, 7, 8, SRD_WS, "s15")
        z.label("NQ_%s" % uid)
        z("s_cmp_lt_u32 s%d, 3" % S_R); z("s_cbranch_scc1 NP_%s" % uid)
        z.ext(pkg())
        z.label("NP_%s" % uid)
        if DIAG: tick(z, 94)
    else:
        if cond:
            z("s_cmp_eq_u32 s%d, s%d" % (S_T, S_TBM)); z("s_cbranch_scc1 NB_%s" % uid)
        z("s_barrier")
        if cond: z.label("NB_%s" % uid)
        if DIAG: tick(z, 93)
    return z

def adv(vreg):
    z = Seq()
    z("v_add_u32 v%d, 0x4000, v%d" % (vreg, vreg))
    if vreg == vKA: z("v_and_b32 v%d, 0xffff, v%d" % (vreg, vreg))
    else: z("v_and_or_b32 v%d, v%d, s%d, v%d" % (vreg, vreg, S_KR, vC64))
    return z

def check(name):
    z = Seq()
    z("v_max_f32 v%d, v%d, v%d" % (vTM, vPS, vPS + 1))
    z("v_cmp_nle_f32 vcc, v%d, v%d" % (vTM, vTHR()))
    z("s_cbranch_vccnz %s" % name)
    z.label(name + "_R")
    return z
def ladd(qb): return I("v_add_f32 v%d, v%d, v%d" % (vLs + qb, vLs + qb, vPS + qb))
vC64 = 10
def vTHR(): return 11

def place_sm(slots, lo, hi, buf, mask_u, chk, carry=True):
    ex, post = sm_parts(buf)
    n = hi - lo
    pre = mask_ops(buf, mask_u).l if mask_u is not None else []
    groups = [pre[8 * g:8 * g + 8] for g in range(4)]
    if carry:
        slots[lo]["post"].append(ladd(0)); slots[lo + (8 if n == 16 else 0)]["post"].append(ladd(1))
    for e in range(16):
        s = lo + (e * n) // 16
        if pre and e % 4 == 0: slots[s]["mid"].extend(groups[e // 4])
        slots[s]["mid"].append(ex[e])
        slots[s]["post"].extend(post[e])
    if chk: slots[hi - 1]["end"].extend(check(chk).l)

def emit_slots(slots, w2=False):
    out = []
    for n, s in enumerate(slots):
        out += s["pre"]
        if w2 and W2 and n % W2 == 0:
            w = I("v_nop"); w.kind = "touch"; w.rd = list(slots[n + W2 - 1]["m"][0].srcA); w.text = ""
            out.append(w)
        out += [s["m"][0]] + s["mid"] + [s["m"][1]] + s["rd"] + s["post"] + s["end"]
    return out
def mkslot(m): return {"pre": [], "m": m, "mid": [], "rd": [], "post": [], "end": []}

def iteration(role, var, rares):
    uid = "%s%s" % ("AB"[role], var)
    slots = []; plan = []
    if var != "S2":
        for k in range(8): slots.append(mkslot(qk_mfmas(k, 0, len(slots), NEGC))); plan.append(("K", k))
    for db in range(8): slots.append(mkslot(pv_mfmas(db, 0, len(slots)))); plan.append(("V", db))
    a_hi = len(slots)
    if var != "S2":
        for k in range(8): slots.append(mkslot(qk_mfmas(k, 1, len(slots), NEGC))); plan.append(("K", 8 + k))
    for db in range(8): slots.append(mkslot(pv_mfmas(db, 1, len(slots)))); plan.append(("V", 8 + db))
    N = len(slots)
    nxt = {"S": "K", "S1": "V", "S2": None}[var]
    assert DRD > 8
    for n in range(N):
        g = n + DRD
        if g < N: slots[n]["rd"].append(rd_frag(plan[g][0], plan[g][1], g))
        elif nxt:
            if g == N:
                slots[n]["rd"].extend(sync_block(role, uid).l)
            if nxt == "K" and g - N >= 8: slots[n]["rd"].append(rd_frag("V", g - N - 8, g))
            else: slots[n]["rd"].append(rd_frag(nxt, g - N, g))
    if nxt == "K":
        slots[N - DRD - 2]["post"].extend(adv(vKA).l)
        slots[N - DRD + 2]["post"].extend(adv(vVA).l)
    elif nxt == "V": slots[N - DRD - 1]["end"].extend(adv(vVA).l)
    if var == "S2": slots[9]["rd"].extend(sync_block(role, uid, cond=True).l)
    place_sm(slots, 0, a_hi, 1, 1 if var == "S2" else None, "R%sa" % uid); rares.append(rare_block("R%sa" % uid, 1, 0))
    if var != "S2":
        place_sm(slots, a_hi, N, 0, 0 if var == "S1" else None, "R%sb" % uid); rares.append(rare_block("R%sb" % uid, 0, 1))
    else:
        slots[a_hi]["post"].extend([ladd(0), ladd(1)])
    if var == "S":
        slots[N - 3]["post"].extend(Seq()("s_add_u32 s%d, s%d, 1" % (S_T, S_T))("s_add_u32 s6, s%d, 1" % S_T).l)
    out = emit_slots(slots, True)
    return out

def poll_issue(z, vp, voff, srd, soff, tag="POLL"):
    z("buffer_load_dword v%d, v%d, %s, %s offen sc1" % (vp, voff, sr(srd, 4), soff), tag=tag)
def poll_check(z, name, vp, vneed, voff, srd, soff):
    z("v_cmp_lt_u32 vcc, v%d, v%d" % (vp, vneed))
    z("s_cbranch_vccz %s_OK" % name)
    z("s_mov_b32 s%d, 0x40000" % S_SPIN)
    z.label("%s_SP" % name)
    z("s_sleep 2")
    z("buffer_load_dword v%d, v%d, %s, %s offen sc1" % (vp, voff, sr(srd, 4), soff), tag="OPT")
    z("s_waitcnt vmcnt(0)", tag="OPT")
    z("v_cmp_lt_u32 vcc, v%d, v%d" % (vp, vneed))
    z("s_cbranch_vccz %s_OK" % name)
    z("s_sub_u32 s%d, s%d, 1" % (S_SPIN, S_SPIN))
    z("s_cmp_lg_u32 s%d, 0" % S_SPIN)
    z("s_cbranch_scc1 %s_SP" % name)
    z.label("%s_OK" % name)
def w7_block(name, body):
    z = Seq(); z("s_cmp_lg_u32 s%d, 7" % S_W); z("s_cbranch_scc1 %s" % name); z.ext(body); z.label(name)
    return z
def flag_store(base_expr, va, vb):
    z = Seq(); z.ext(base_expr)
    z("v_mov_b32 v%d, s%d" % (va, S_HUGE)); z("v_cmp_eq_u32 vcc, 0, v%d" % vLANE); z("v_cndmask_b32 v%d, v%d, 0, vcc" % (va, va))
    z("v_mov_b32 v%d, 1" % vb)
    z("buffer_store_dword v%d, v%d, %s, s6 offen sc1" % (vb, va, sr(SRD_WS, 4)), tag="OPT")
    return z
flat = lambda g: [x for l in g for x in l]
def cp(s):
    out = []
    for x in (s.l if isinstance(s, Seq) else s):
        if isinstance(x, list): out.append(cp(x))
        else: out.append(I(x.text, tag=x.tag) if x.kind != "waitv" else x)
    return out

def gen_f(stamp=False):
    ST = (lambda z, i: z.ext(STAMP(i))) if stamp else (lambda z, i: None)
    q = Seq()
    vAo0, vAo1, vAR, JT, WF, NWF, AF, RW, CH, GT, ACC, WB = 13, 14, 15, 20, 32, 6, 56, 88, 104, 112, 128, 98304
    vWB, vGD, vGA, vBB = 19, 20, 21, [12, 16, 17, 18]
    q("s_cmp_ge_u32 s2, 256"); q("s_cbranch_scc1 F_END")
    load_args(q)
    wg_decode(q, S_H, S_J)
    q("v_lshrrev_b32 v20, 6, v0"); q("v_and_b32 v%d, 63, v0" % vLANE)
    q("v_readfirstlane_b32 s%d, v20" % S_W)
    q("s_and_b32 s%d, s%d, 3" % (S_RG, S_W))
    q("v_lshrrev_b32 v20, 3, v%d" % vLANE)
    q("s_lshl_b32 s6, s%d, 8" % S_J); q("s_lshl_b32 s8, s%d, 5" % S_W); q("s_add_u32 s6, s6, s8")
    q("v_add_u32 v20, s6, v20")
    q("v_lshrrev_b32 v21, 4, v%d" % vLANE); q("v_and_b32 v22, 7, v%d" % vLANE); q("v_xor_b32 v22, v21, v22")
    q("v_lshlrev_b32 v22, 4, v22"); q("v_lshl_add_u32 v%d, v20, 10, v22" % vAo0); q("v_xor_b32 v%d, 64, v%d" % (vAo1, vAo0))
    q("s_lshl_b32 s6, s%d, 3" % S_RG); q("v_add_u32 v20, s6, v21")
    q("s_and_b32 s6, s%d, 1" % S_RG); q("s_lshl_b32 s6, s6, 2"); q("v_add_u32 v22, s6, v21")
    q("v_lshlrev_b32 v22, 1, v22"); q("v_and_b32 v23, 15, v%d" % vLANE); q("v_xor_b32 v22, v22, v23")
    q("v_lshlrev_b32 v22, 4, v22"); q("v_lshl_add_u32 v%d, v20, 13, v22" % vWo)
    q("s_lshl_b32 s6, s%d, 8" % S_H); q("v_add_u32 v%d, s6, v%d" % (vWo, vWo))
    q("s_lshl_b32 s%d, s%d, 12" % (S_W4K, S_W)); q("s_lshl_b32 s%d, s%d, 11" % (S_MW, S_W))
    mk_srd(q, SRD_CK, P_CKV, 2048 * 1024)
    q("s_cmp_lt_u32 s%d, 4" % S_W)
    q("s_cselect_b32 s%d, s%d, s%d" % (SRD_W, P_UK, P_UV)); q("s_cselect_b32 s%d, s%d, s%d" % (SRD_W + 1, P_UK + 1, P_UV + 1))
    q("s_mov_b32 s%d, %d" % (SRD_W + 2, 512 * 8192)); q("s_mov_b32 s%d, 0x00020000" % (SRD_W + 3))
    if stamp: q.ext(STAMP(0)); q.ext(RSTAMP(60))
    def dma_a(I_):
        g = []
        for e in range(4):
            z = Seq()
            if e == 0: z("s_add_u32 m0, s%d, %d" % (S_W4K, (I_ % 3) * 32768))
            z("s_mov_b32 s%d, %d" % (S_TMP, I_ * 128 + e * (8192 - 1024)))
            z("buffer_load_dwordx4 v%d, %s, s%d offen offset:%d lds" % ([vAo0, vAo1][e & 1], sr(SRD_CK, 4), S_TMP, e * 1024), tag="A%d" % I_)
            g.append(z.l)
        return g
    def dma_w(i):
        g = []
        for e in range(2):
            z = Seq()
            if e == 0: z("s_add_u32 m0, s%d, %d" % (S_MW, WB + (i % 4) * 16384))
            z("s_mov_b32 s%d, %d" % (S_TMP, i * 32 * 8192 + e * (4 * 8192 - 1024)))
            z("buffer_load_dwordx4 v%d, %s, s%d offen offset:%d lds" % (vWo, sr(SRD_W, 4), S_TMP, e * 1024), tag="U%d" % i)
            g.append(z.l)
        return g
    q.ext(flat(dma_w(0))); q.ext(flat(dma_a(0))); q.ext(flat(dma_w(1)))
    q("s_barrier")
    q.ext(flat(dma_a(1))); q.ext(flat(dma_w(2))); q.ext(flat(dma_w(3))); q.ext(flat(dma_a(2)))
    mk_srd(q, SRD_X, P_X, 2048 * 1152); mk_srd(q, SRD_WB, P_WQKV, 576 * 3456); mk_srd(q, SRD_GATE, P_GATE, 1152)
    mk_srd(q, SRD_WS, P_WS, WS_SIZE); mk_srd(q, SRD_DBG, P_DBG, 256); mk_srd(q, SRD_WQ, P_WQ, 576 * 8192)
    q("s_mov_b32 s%d, %d" % (S_WOSZ, 4096 * 1152)); q("s_mov_b32 s12, s%d" % P_WO); q("s_mov_b32 s13, s%d" % (P_WO + 1)); q("s_mov_b32 s14, 0"); q("s_mov_b32 s15, 0x00020000")
    mk_srd(q, SRD_WS2, P_WS, WS_WP + 8 * 8 * 19 * 4608)
    q("s_mov_b32 s%d, 0x%x" % (S_HUGE, HUGE))
    q("v_lshlrev_b32 v%d, 4, v%d" % (vL16, vLANE))
    q("s_lshl_b32 s6, s%d, 7" % S_H); q("s_lshl_b32 s8, s%d, 2" % S_J); q("s_add_u32 s6, s6, s8"); q("s_add_u32 s6, s6, %d" % FL_KV)
    q("s_lshl_b32 s8, s%d, 7" % S_J); q("s_lshl_b32 s9, s%d, 2" % S_H); q("s_add_u32 s8, s8, s9"); q("s_add_u32 s8, s8, %d" % FL_AP)
    q("v_lshlrev_b32 v20, 12, v%d" % vLANE); q("v_add_u32 v20, s6, v20"); q("v_mov_b32 v22, s8")
    q("v_cmp_eq_u32 vcc, 2, v%d" % vLANE); q("v_cndmask_b32 v20, v20, v22, vcc")
    q("v_mov_b32 v22, s%d" % S_HUGE); q("v_cmp_gt_u32 vcc, %d, v0" % (7 * 64)); q("v_cndmask_b32 v20, v20, v22, vcc")
    q("v_cmp_lt_u32 vcc, 2, v%d" % vLANE); q("v_cndmask_b32 v20, v20, v22, vcc")
    q("v_mov_b32 v22, 0")
    q("buffer_store_dword v22, v20, %s, 0 offen sc1" % sr(SRD_WS, 4), tag="J13")
    q("v_and_b32 v20, 15, v%d" % vLANE); q("v_lshrrev_b32 v22, 1, v20"); q("v_xor_b32 v22, v22, v21")
    q("s_lshl_b32 s6, s%d, 6" % S_RG); q("v_add_u32 v20, s6, v20"); q("v_lshlrev_b32 v20, 7, v20")
    q("v_lshl_add_u32 v%d, v22, 4, v20" % vAR); q("v_xor_b32 v%d, 64, v%d" % (vAR + 1, vAR))
    q("v_add_u32 v%d, 0x10000, v%d" % (vAR + 2, vAR)); q("v_add_u32 v%d, 0x10000, v%d" % (vAR + 3, vAR + 1))
    q("v_bfe_u32 v20, v%d, 2, 2" % vLANE); q("v_lshl_add_u32 v22, v21, 3, v20"); q("v_lshlrev_b32 v22, 8, v22")
    q("v_and_b32 v23, 1, v21"); q("v_lshl_add_u32 v20, v23, 2, v20"); q("v_lshl_add_u32 v22, v20, 5, v22")
    q("v_and_b32 v20, 3, v%d" % vLANE); q("v_lshl_add_u32 v22, v20, 3, v22")
    q("s_lshr_b32 s6, s%d, 2" % S_W); q("s_lshl_b32 s6, s6, 13"); q("s_add_u32 s6, s6, %d" % WB)
    q("v_add_u32 v%d, s6, v22" % vWR)
    for cb in range(1, 8): q("v_xor_b32 v%d, %d, v%d" % (vWR + cb, 32 * cb, vWR))
    q("s_lshr_b32 s6, s%d, 2" % S_W); q("s_lshl_b32 s6, s6, 24"); q("s_lshl_b32 s8, s%d, 19" % S_H); q("s_add_u32 s6, s6, s8")
    q("s_lshl_b32 s8, s%d, 2" % S_J); q("s_add_u32 s8, s8, s%d" % S_RG); q("s_lshl_b32 s8, s8, 14"); q("s_add_u32 s%d, s6, s8" % S_ST)
    for i in range(1, 4): q("s_add_u32 s%d, s%d, %d" % (S_ST + i, S_ST, 4096 * i))
    q("s_sub_u32 s6, 15, s%d" % S_J); q("s_cmp_lt_u32 s%d, 4" % S_W); q("s_cselect_b32 s6, s%d, s6" % S_J)
    q("s_lshl_b32 s6, s6, 7"); q("s_lshl_b32 s8, s%d, 5" % S_RG); q("s_add_u32 s%d, s6, s8" % S_ROW0)
    q("s_lshl_b32 s%d, s%d, 10" % (S_MB, S_W))
    q("s_mul_i32 s6, s%d, %d" % (S_H, 576 * 128)); q("s_add_u32 s6, s6, s%d" % S_MB); q("s_add_u32 s%d, s6, %d" % (S_WBG, WS_WBF))
    q("s_lshr_b32 s6, s%d, 4" % S_ROW0); q("s_mul_i32 s6, s6, %d" % (18 * 1024)); q("s_add_u32 s%d, s6, %d" % (S_XB, WS_XF))

    jobs = []
    z = Seq(); a, b = JT, JT + 1
    z("s_lshr_b32 s8, s2, 1"); z("s_and_b32 s9, s2, 1"); z("s_mul_i32 s9, s9, 9"); z("s_add_u32 s9, s9, s%d" % S_W)
    z("v_and_b32 v%d, 15, v%d" % (a, vLANE)); z("s_lshl_b32 s10, s8, 4"); z("v_add_u32 v%d, s10, v%d" % (a, a))
    z("v_mul_u32_u24 v%d, 1152, v%d" % (a, a)); z("v_lshrrev_b32 v%d, 4, v%d" % (b, vLANE)); z("v_lshl_add_u32 v%d, v%d, 4, v%d" % (a, b, a))
    z("s_lshl_b32 s10, s9, 6")
    z("buffer_load_dwordx4 %s, v%d, %s, s10 offen" % (vr(120, 4), a, sr(SRD_X, 4)))
    z("s_cmp_eq_u32 s%d, 0" % S_W); z("s_cselect_b32 s11, 0, s%d" % S_HUGE)
    z("v_add_u32 v%d, s11, v%d" % (a, a))
    z("buffer_load_dwordx4 %s, v%d, %s, s10 offen offset:512" % (vr(124, 4), a, sr(SRD_X, 4)))
    z("s_mul_i32 s8, s8, 18"); z("s_add_u32 s8, s8, s9"); z("s_lshl_b32 s8, s8, 10"); z("s_add_u32 s86, s8, %d" % WS_XF)
    z("v_add_u32 v31, s11, v%d" % vL16); z("s_add_u32 s87, s86, 8192")
    y = Seq()
    y("buffer_store_dwordx4 %s, v%d, %s, s86 offen sc1" % (vr(120, 4), vL16, sr(SRD_WS, 4)), tag="J13")
    y("buffer_store_dwordx4 %s, v31, %s, s87 offen sc1" % (vr(124, 4), sr(SRD_WS, 4)), tag="J13")
    J1 = (z, y)
    vJ, vB, vE, vF, va, vb_, vg, vt, vC0, vC1 = JT, JT + 1, JT + 2, JT + 3, JT + 4, JT + 5, JT + 6, JT + 7, JT + 9, JT + 10
    m1 = "s[%d:%d]" % (M1, M1 + 1); m2 = "s[%d:%d]" % (M2, M2 + 1)
    def j2(i):
        z = Seq(); d = RW + 4 * i
        t0, t1, t2, t3 = JT, JT + 1, JT + 2, JT + 3
        G = []
        g = Seq()
        g("s_lshl_b32 s8, s2, 3"); g("s_add_u32 s8, s8, s%d" % S_W); g("s_mul_i32 s8, s8, 3"); g("s_add_u32 s8, s8, %d" % i)
        g("s_mul_i32 s9, s8, 22983"); g("s_lshr_b32 s9, s9, 24")
        g("s_mul_i32 s10, s9, 730"); g("s_sub_u32 s8, s8, s10")
        g("s_mul_i32 s10, s8, 13108"); g("s_lshr_b32 s10, s10, 16")
        g("s_mul_i32 s11, s10, 5"); g("s_sub_u32 s8, s8, s11"); g("s_lshl_b32 s8, s8, 6")
        z.ext(g)
        z("v_add_u32 v%d, s8, v%d" % (t0, vLANE))
        z("v_mul_u32_u24 v%d, 7282, v%d" % (t1, t0)); z("v_lshrrev_b32 v%d, 16, v%d" % (t1, t1))
        z("v_mul_u32_u24 v%d, 9, v%d" % (t2, t1)); z("v_sub_u32 v%d, v%d, v%d" % (t2, t0, t2))
        z("v_lshrrev_b32 v%d, 3, v%d" % (t3, t1)); z("v_and_b32 v%d, 3, v%d" % (d, t1)); z("v_lshl_add_u32 v%d, v%d, 2, v%d" % (t3, t3, d))
        z("v_bfe_u32 v%d, v%d, 2, 1" % (d, t1)); z("v_lshl_add_u32 v%d, v%d, 4, v%d" % (t3, d, t3))
        z("v_lshrrev_b32 v%d, 4, v%d" % (d, t1)); z("v_lshl_add_u32 v%d, v%d, 1, v%d" % (d, d, t1))
        z("v_lshrrev_b32 v%d, 1, v%d" % (d + 1, t1)); z("v_mul_u32_u24 v%d, 18, v%d" % (d + 1, d + 1)); z("v_and_b32 v%d, 1, v%d" % (t1, t1))
        z("v_add_u32 v%d, v%d, v%d" % (d + 1, d + 1, t1))
        g = Seq()
        g("s_cmp_ge_u32 s10, 128"); g("s_cselect_b64 %s, -1, 0" % m1)
        g("s_cselect_b32 s12, s%d, s%d" % (P_WO2, P_WO)); g("s_cselect_b32 s13, s%d, s%d" % (P_WO2 + 1, P_WO + 1)); g("s_cselect_b32 s14, %d, s%d" % (576 * 1152, S_WOSZ))
        g("s_lshl_b32 s8, s10, 5"); g("s_mul_i32 s11, s10, 36"); g("s_sub_u32 s11, s11, %d" % (36 * 128))
        g("s_cmp_ge_u32 s10, 128"); g("s_cselect_b32 s8, s11, s8")
        g("s_mul_i32 s11, s10, 288"); g("s_sub_u32 s11, s11, %d" % (288 * 144 - 16))
        g("s_cmp_ge_u32 s10, 144"); g("s_cselect_b32 s8, s11, s8"); g("s_cselect_b64 %s, -1, 0" % m2)
        z.l.append(g.l)
        z("v_cndmask_b32 v%d, v%d, v%d, %s" % (t3, t3, d, m1)); z("v_cndmask_b32 v%d, v%d, v%d, %s" % (t3, t3, d + 1, m2))
        z("v_add_u32 v%d, s8, v%d" % (t3, t3)); z("v_mul_u32_u24 v%d, 1152, v%d" % (t3, t3)); z("v_lshl_add_u32 v%d, v%d, 4, v%d" % (t3, t2, t3))
        z("s_mul_i32 s8, s9, 144")
        z("v_cmp_le_u32 vcc, 288, v%d" % t0); z("v_mov_b32 v%d, s%d" % (t1, S_HUGE)); z("v_cndmask_b32 v%d, v%d, v%d, vcc" % (t3, t3, t1))
        z("buffer_load_dwordx4 %s, v%d, s[12:15], s8 offen" % (vr(d, 4), t3))
        z("s_lshl_b32 s9, s9, 3"); z("s_and_b32 s8, s10, 7"); z("s_add_u32 s9, s9, s8"); z("s_mul_i32 s9, s9, 19"); z("s_lshr_b32 s8, s10, 3"); z("s_add_u32 s9, s9, s8")
        z("s_mul_i32 s9, s9, 4608"); z("s_add_u32 s9, s9, %d" % WS_WP)
        z("v_lshlrev_b32 v%d, 4, v%d" % (t0, t0)); z("v_add_u32 v%d, s9, v%d" % (t0, t0)); z("v_cndmask_b32 v%d, v%d, v%d, vcc" % (JT + 4 + i, t0, t1))
        y = Seq()
        y("buffer_store_dwordx4 %s, v%d, %s, 0 offen sc1" % (vr(d, 4), JT + 4 + i, sr(SRD_WS2, 4)), tag="J2")
        return z, y
    J2 = [j2(0), j2(1), j2(2)]
    def j3(ps):
        z = Seq(); d = RW + 12 * ps
        t0, t1, t2, t3, dst = JT, JT + 1, JT + 2, JT + 3, JT + 4 + ps
        z("s_mul_i32 s8, s%d, 72" % S_J); z("s_lshl_b32 s9, s%d, 3" % S_W); z("s_add_u32 s8, s8, %s" % ("s9" if ps == 0 else "64"))
        z("v_lshrrev_b32 v%d, 3, v%d" % (t0, vLANE)); z("v_add_u32 v%d, s8, v%d" % (t0, t0))
        z("v_bfe_u32 v%d, v%d, 1, 1" % (t1, t0)); z("v_bfe_u32 v%d, v%d, 3, 1" % (t2, t0)); z("v_lshl_add_u32 v%d, v%d, 1, v%d" % (t1, t2, t1))
        z("v_and_b32 v%d, 7, v%d" % (t2, vLANE)); z("v_lshlrev_b32 v%d, 1, v%d" % (t1, t1)); z("v_xor_b32 v%d, v%d, v%d" % (t1, t1, t2))
        if ps: z("s_cmp_eq_u32 s%d, 0" % S_W); z.l[-1:] = [[z.l[-1], I("s_cselect_b32 s9, 0, s%d" % S_HUGE)]]
        else: z("s_mov_b32 s9, 0")
        z("s_mul_i32 s8, s%d, %d" % (S_H, 576 * 128)); z("s_add_u32 s8, s8, s9"); z("s_add_u32 s8, s8, %d" % WS_WBF)
        z("v_lshlrev_b32 v%d, 4, v%d" % (t2, t2)); z("v_lshl_add_u32 v%d, v%d, 7, v%d" % (t2, t0, t2)); z("v_add_u32 v%d, s8, v%d" % (dst, t2))
        z("s_mul_i32 s8, s%d, 36" % S_H); z("s_add_u32 s8, s8, s9")
        z("v_mul_u32_u24 v%d, 3456, v%d" % (t2, t0)); z("v_add_u32 v%d, s8, v%d" % (t2, t2))
        z("v_lshlrev_b32 v%d, 1, v%d" % (t0, t0)); z("v_add_u32 v%d, s9, v%d" % (t0, t0))
        z("v_mov_b32 v%d, s%d" % (d + 8, S_HUGE))
        z("v_cmp_ne_u32 vcc, 6, v%d" % t1)
        z("v_cndmask_b32 v%d, v%d, v%d, vcc" % (t0, t0, d + 8)); z("v_cndmask_b32 v%d, v%d, v%d, vcc" % (t3, t2, d + 8))
        z("buffer_load_ushort v%d, v%d, %s, 0 offen" % (d + 7, t0, sr(SRD_GATE, 4)))
        for k in range(3): z("buffer_load_dword v%d, v%d, %s, 0 offen offset:%d" % (d + 4 + k, t3, sr(SRD_WB, 4), 1152 * k + 32))
        z("v_lshrrev_b32 v%d, 1, v%d" % (t0, t1)); z("v_and_b32 v%d, 1, v%d" % (t3, t1)); z("v_lshl_add_u32 v%d, v%d, 4, v%d" % (t2, t3, t2))
        z("v_mov_b32 v%d, 2304" % t3); z("v_cmp_eq_u32 vcc, 1, v%d" % t0); z("v_cndmask_b32 v%d, 0, v%d, vcc" % (t3, t3)); z("v_add_u32 v%d, v%d, v%d" % (t2, t2, t3))
        z("v_mov_b32 v%d, 1152" % t3); z("v_cmp_eq_u32 vcc, 2, v%d" % t0); z("v_cndmask_b32 v%d, 0, v%d, vcc" % (t3, t3)); z("v_add_u32 v%d, v%d, v%d" % (t2, t2, t3))
        z("v_cmp_eq_u32 vcc, 3, v%d" % t0); z("v_cndmask_b32 v%d, v%d, v%d, vcc" % (t2, t2, d + 8))
        z("buffer_load_dwordx4 %s, v%d, %s, 0 offen" % (vr(d, 4), t2, sr(SRD_WB, 4)))
        y = Seq()
        for k in range(4): y("v_or_b32 v%d, v%d, v%d" % (d + k, d + k, d + 4 + k))
        y("buffer_store_dwordx4 %s, v%d, %s, 0 offen sc1" % (vr(d, 4), dst, sr(SRD_WS, 4)), tag="J13")
        return z, y
    J3 = [j3(0), j3(1)]

    q("s_cmp_ge_u32 s%d, 4" % S_W); q("s_cbranch_scc1 F_B")
    pre, st0 = resolve_waits(q.l)
    outl = list(pre); cold = []
    WQS = [4, 5, 6, 1, 2, 3, 4, 5, 6]
    WBS = [7 * SLOT, 7 * SLOT + 8192, 0, 8192, 8 * SLOT, 8 * SLOT + 8192, 7 * SLOT, 7 * SLOT + 8192, 9 * SLOT + 8192]
    for role in range(2):
        RN = "AB"[role]
        r = Seq()
        if role == 1: r.label("F_B")
        def dma_wq(i):
            g = []
            for e in range(2):
                z = Seq()
                if e == 0: z("s_add_u32 m0, s%d, %d" % (S_MW, WQS[i] * SLOT))
                z("s_mov_b32 s%d, %d" % (S_TMP, (i * 64 + role * 32) * 8192 + e * (4 * 8192 - 1024)))
                z("buffer_load_dwordx4 v%d, %s, s%d offen offset:%d lds" % (vWo, sr(SRD_WQ, 4), S_TMP, e * 1024), tag="W%d" % i)
                g.append(z.l)
            return g
        def dma_wb(i):
            z = Seq()
            z("s_add_u32 m0, s%d, %d" % (S_MB, WBS[i])); z("s_add_u32 s%d, s%d, %d" % (S_TMP, S_WBG, i * 8192))
            z("buffer_load_dwordx4 v%d, %s, s%d offen sc1 lds" % (vL16, sr(SRD_WS, 4), S_TMP), tag="W%d" % i)
            return [z.l]
        def ld_x(ks):
            g = []
            for rr in range(2):
                z = Seq()
                z("s_add_u32 s%d, s%d, %d" % (S_TMP, S_XB, (rr * 18 + ks) * 1024))
                z("buffer_load_dwordx4 %s, v%d, %s, s%d offen sc1" % (vr(XRS[ks % NXR] + 4 * rr, 4), vL16, sr(SRD_WS, 4), S_TMP))
                g.append(z.l)
            return g
        NM = 512
        extra = {f: [] for f in range(NM)}
        streams = []
        def spread(lst, a, per=2):
            streams.append([y_ for x_ in lst for y_ in (x_ if isinstance(x_, list) else [x_])])
            for k, ins in enumerate(lst): extra[a + k // per].extend(ins if isinstance(ins, list) else [ins])
            return a + (len(lst) + per - 1) // per
        def rd_w(i, cb):
            w = WF + 4 * ((8 * i + cb) % NWF); off = (i % 4) * 16384
            return Seq()("ds_read_b64_tr_b16 %s, v%d offset:%d" % (vr(w, 2), vWR + cb, off))("ds_read_b64_tr_b16 %s, v%d offset:%d" % (vr(w + 2, 2), vWR + cb, off + 1024)).l
        def rd_a(i, rbk):
            sl = (i >> 1) % 3
            base = vAR + (i & 1) + (2 if sl == 2 else 0); off = (32768 if sl == 1 else 0) + rbk * 2048
            return Seq()("ds_read_b128 %s, v%d offset:%d" % (vr(AF + 16 * (i & 1) + 4 * rbk, 4), base, off)).l
        B1, B2 = 5, 12
        def arrive(name, fill, ta=30, tb=31):
            z = Seq(); z("v_mov_b32 v%d, s%d" % (ta, S_HUGE)); fill(z, ta, tb); z("v_mov_b32 v%d, 1" % tb)
            z("buffer_atomic_add v%d, v%d, %s, 0 offen" % (tb, ta, sr(SRD_DBG, 4)), tag="OPT")
            return w7_block(name, z).l
        def fill1(z, ta, tb):
            z("s_lshl_b32 s11, s%d, 2" % S_H); z("v_mov_b32 v%d, s11" % tb); z("v_cmp_eq_u32 vcc, 0, v%d" % vLANE); z("v_cndmask_b32 v%d, v%d, v%d, vcc" % (ta, ta, tb))
            z("s_lshr_b32 s11, s2, 4"); z("s_lshl_b32 s11, s11, 2"); z("s_add_u32 s11, s11, 128"); z("v_mov_b32 v%d, s11" % tb)
            z("v_cmp_eq_u32 vcc, 1, v%d" % vLANE); z("v_cndmask_b32 v%d, v%d, v%d, vcc" % (ta, ta, tb))
        def fill2(z, ta, tb):
            z("s_and_b32 s11, s2, 7"); z("s_lshl_b32 s11, s11, 2"); z("s_add_u32 s11, s11, 192"); z("v_mov_b32 v%d, s11" % tb)
            z("v_cmp_eq_u32 vcc, 0, v%d" % vLANE); z("v_cndmask_b32 v%d, v%d, v%d, vcc" % (ta, ta, tb))
        def publish1(i):
            z = Seq(); tags = ["U%d" % i] + (["A%d" % (i >> 1)] if i % 2 == 0 else [])
            if i == B1: tags.append("J13")
            if i == B2: tags.append("J2")
            z.waitv(*tags)
            z("s_barrier")
            if i % 2 == 0: ST(z, 1 + i // 2)
            return z.l
        DW = 4
        for i in range(16):
            for cb in range(8):
                n = 8 * i + cb - DW
                if n >= 0:
                    if cb == 0: extra[4 * n].extend(publish1(i))
                    extra[4 * n].extend(rd_w(i, cb))
            if i > 0:
                for rbk in range(4): extra[32 * (i - 1) + 18 + 3 * rbk].extend(rd_a(i, rbk))
                g = []
                if i + 2 < 16 and i >= 2: g += dma_w(i + 2)
                if i % 2 == 1 and i >= 3 and (i >> 1) + 2 < 8: g += dma_a((i >> 1) + 2)
                if i == 13: g += dma_wq(0) + dma_wq(1)
                if i == 14: g += dma_wq(2)
                if i == 15: g += dma_wb(0) + dma_wb(1) + dma_wq(3) + dma_wb(2) + dma_wb(3)
                if role == 1 and i == B1: g.append(arrive("F_AR1", fill1))
                for k, l in enumerate(g): extra[32 * (i - 1) + 17 + 2 * k].extend(l)
        p = spread(cp(J1[0]), 2)
        for (z, y) in J3: p = spread(cp(z), p)
        p = spread(cp(J1[1]), p + 8)
        p += 30
        for (z, y) in J3: p = spread(cp(y), p)
        assert p < 32 * (B1 - 1) + 8, p
        p = 32 * B1 + 2
        for (z, y) in J2: p = spread(cp(z), p)
        p += 40
        for (z, y) in J2: p = spread(cp(y), p)
        assert p < 32 * (B2 - 1) + 8, p
        z = Seq()
        z("v_lshrrev_b32 v24, 2, v%d" % vL16); poll_issue(z, 26, 24, SRD_DBG, "0")
        z("v_cmp_eq_u32 vcc, s%d, v%d" % (S_H, vLANE)); z("v_cndmask_b32 v25, 0, 8, vcc")
        z("s_lshr_b32 s8, s%d, 7" % S_ROW0); z("s_add_u32 s8, s8, 32"); z("v_cmp_eq_u32 vcc, s8, v%d" % vLANE); z("v_cndmask_b32 v25, v25, 16, vcc")
        spread(z.l, 32 * 12 + 2)
        z = Seq(); poll_check(z, "P1%s" % RN, 26, 25, 24, SRD_DBG, "0")
        extra[32 * 13 + 30].extend(z.l)
        for ks in range(5):
            for k, l in enumerate(ld_x(ks)): extra[32 * 14 + 1 + 4 * ks + 2 * k].extend(l)
        r.ext(publish1(0))
        for rbk in range(4): r.ext(rd_a(0, rbk))
        for cb in range(DW): r.ext(rd_w(0, cb))
        for f in range(NM):
            i, cb, rbk = f >> 5, (f >> 2) & 7, f & 3
            acc = vr(ACC + 4 * (4 * cb + rbk), 4); w = vr(WF + 4 * ((8 * i + cb) % NWF), 4); a = vr(AF + 16 * (i & 1) + 4 * rbk, 4)
            ops = (w, a) if role == 0 else (a, w)
            r("%s %s, %s, %s, %s" % (MF, acc, ops[0], ops[1], "0" if i == 0 else acc))
            r.ext(extra[f])
        ST(r, 9)
        NF = 216
        extra = {f: [] for f in range(2 * NF)}
        def rd_q(n):
            ks, ph = n // 12, n % 12; s1 = ks & 1; w = FR + 4 * (n % 8)
            if ph < 8:
                return Seq()("ds_read_b64_tr_b16 %s, v%d offset:%d" % (vr(w, 2), vWR + ph, s1 * 8192))("ds_read_b64_tr_b16 %s, v%d offset:%d" % (vr(w + 2, 2), vWR + ph, s1 * 8192 + 1024)).l
            return Seq()("ds_read_b64_tr_b16 %s, v%d offset:%d" % (vr(w, 2), vBB[ph - 8], s1 * 4096))("ds_read_b64_tr_b16 %s, v%d offset:%d" % (vr(w + 2, 2), vBB[ph - 8], s1 * 4096 + 512)).l
        BKV = 5
        def publish(i):
            z = Seq()
            d = ((WQS[i] - WQS[i - 1]) * SLOT if i else WQS[0] * SLOT - WB - role * 8192) & 0xffffffff
            for cb in range(8): z("v_add_u32 v%d, 0x%x, v%d" % (vWR + cb, d, vWR + cb))
            if i:
                for b in vBB: z("v_add_u32 v%d, 0x%x, v%d" % (b, (WBS[i] - WBS[i - 1]) & 0xffffffff, b))
            else:
                z("v_lshrrev_b32 v13, 4, v%d" % vLANE); z("v_bfe_u32 v14, v%d, 2, 2" % vLANE); z("v_lshl_add_u32 v15, v13, 3, v14"); z("v_lshlrev_b32 v15, 7, v15")
                z("v_lshrrev_b32 v14, 1, v14"); z("v_and_b32 v13, 1, v13"); z("v_lshl_add_u32 v14, v13, 1, v14"); z("v_lshl_add_u32 v15, v14, 5, v15")
                z("v_and_b32 v14, 3, v%d" % vLANE); z("v_lshl_add_u32 v15, v14, 3, v15"); z("v_add_u32 v%d, %d, v15" % (vBB[0], WBS[0]))
                for b in range(1, 4): z("v_xor_b32 v%d, %d, v%d" % (vBB[b], 32 * b, vBB[0]))
            z.waitv(*(["W%d" % i] + (["KVS"] if i == BKV else [])))
            z("s_barrier")
            ST(z, 10 + i)
            return z.l
        def kv_obj(kind, t, slot):
            z = Seq()
            z("s_add_u32 m0, s%d, %d" % (S_W4K, slot * SLOT)); z("s_add_u32 s%d, s%d, %d" % (S_TMP, S_KG if kind == "K" else S_VG, t * SLOT))
            for e in range(4): z("buffer_load_dwordx4 v%d, %s, s%d offen offset:%d sc1 lds" % (vL16, sr(SRD_WS, 4), S_TMP, 1024 * e), tag="%s%d" % (kind, t))
            return [z.l]
        phl = Seq()
        phl("s_mul_i32 s6, s%d, 648" % S_H); mk_srd(phl, SRD_PHI, P_PHI, 648, add="s6")
        phl("s_lshl_b32 s6, s%d, 8" % S_W); phl("s_add_u32 m0, s6, %d" % PHL); phl("v_lshrrev_b32 v13, 2, v%d" % vL16)
        phl("buffer_load_dword v13, %s, s6 offen lds" % sr(SRD_PHI, 4), tag="W5")
        DWQ = 5
        after = {0: dma_wq(4) + dma_wb(4) + dma_wq(5) + dma_wb(5) + [phl.l], 2: dma_wq(6) + dma_wb(8), 3: dma_wq(7) + dma_wb(6) + dma_wb(7), 4: dma_wq(8)}
        if role == 1:
            fb = Seq(); fb("s_lshl_b32 s6, s%d, 7" % S_H); fb("s_lshl_b32 s8, s%d, 2" % S_J); fb("s_add_u32 s6, s6, s8"); fb("s_add_u32 s6, s6, %d" % FL_KV)
            fbe = Seq().ext(cp(fb)); fbe("s_cmp_lt_u32 s%d, 2" % S_J); fbe("s_cselect_b32 s6, s6, s%d" % S_HUGE)
            after[BKV] = [w7_block("F_FKV", flag_store(fbe, 13, 14)).l]
            after[3] = after[3] + [arrive("F_AR2", fill2, 13, 14)]
            fkv_late = w7_block("F_FKV2", flag_store(fb, 8, 9))
        else:
            z = Seq()
            z("v_lshrrev_b32 v13, 2, v%d" % vL16); z("v_mov_b32 v15, s%d" % S_HUGE); z("v_cmp_gt_u32 vcc, 2, v%d" % vLANE)
            z("v_cndmask_b32 v13, v15, v13, vcc"); z("v_cndmask_b32 v15, 0, 1, vcc")
            z("s_lshl_b32 s9, s%d, 7" % S_H); z("s_add_u32 s9, s9, %d" % FL_KV)
            poll_issue(z, 14, 13, SRD_WS, "s9")
            after[6] = [z.l]
            z = Seq(); poll_check(z, "P2A", 14, 15, 13, SRD_WS, "s9")
            after[7] = [z.l] + kv_obj("K", 0, 0) + kv_obj("K", 1, 1)
            after[8] = kv_obj("V", 0, 4) + kv_obj("K", 2, 2)
        for n in range(DWQ, NF):
            pos = 2 * (n - DWQ) + 1
            if n % 24 == 0:
                extra[pos].extend(publish(n // 24))
                for k, l in enumerate(after.get(n // 24, [])): extra[pos + 2 + k].extend(l)
            extra[pos].extend(rd_q(n))
        for k, l in enumerate(after[0]): extra[1 + k].extend(l)
        pk = Seq(); sts = []
        order = list(range(8, 16)) + list(range(8))
        free = []
        for n in order:
            if role == 0:
                j, rbk = n >> 2, n & 3
                b0, b1 = ACC + 4 * (8 * j + rbk), ACC + 4 * (8 * j + 4 + rbk); fi = 4 * rbk + j
            else:
                cb, u = n >> 1, n & 1
                b0, b1 = ACC + 4 * (4 * cb + 2 * u), ACC + 4 * (4 * cb + 2 * u + 1); fi = 8 * u + cb
            if n >= 8: t = b0; free.append(b1)
            else: t = free.pop(0)
            pk("v_cvt_pk_bf16_f32 v%d, v%d, v%d" % (t, b0, b0 + 1)); pk("v_cvt_pk_bf16_f32 v%d, v%d, v%d" % (t + 1, b0 + 2, b0 + 3))
            pk("v_cvt_pk_bf16_f32 v%d, v%d, v%d" % (t + 2, b1, b1 + 1)); pk("v_cvt_pk_bf16_f32 v%d, v%d, v%d" % (t + 3, b1 + 2, b1 + 3))
            sts.append((t, fi))
        sts.sort()
        mkst = lambda t, fi, base, tag: I("buffer_store_dwordx4 %s, v%d, %s, s%d offen offset:%d sc1" % (vr(t, 4), vL16, sr(SRD_WS, 4), base + (fi >> 2), (fi & 3) * 1024), tag=tag)
        for k, (t, fi) in enumerate(sts):
            for (pos, br, nm) in ((8 + 10 * k, "scc0", "E"), (13 + 20 * k, "scc1", "L")):
                z = Seq(); z("s_cmp_lt_u32 s%d, 2" % S_J); z("s_cbranch_%s KS%s%s%d" % (br, RN, nm, k))
                z.ext([mkst(t, fi, S_ST, "OPT")]); z.label("KS%s%s%d" % (RN, nm, k))
                extra[pos].extend(z.l)
        for ks in range(18 - NXR):
            for k, l in enumerate(ld_x(ks + NXR)):
                if ks == 6: l[-1].tag = "KVS"
                extra[24 * ks + 24 + k].extend(l)
        z = Seq()
        z("s_lshl_b32 s6, s%d, 19" % S_H); z("s_add_u32 s%d, s6, s%d" % (S_KG, S_W4K)); z("s_add_u32 s%d, s%d, %d" % (S_VG, S_KG, WS_VF))
        z("s_lshr_b32 s%d, s%d, 6" % (S_TL, S_ROW0))
        z("s_lshl_b32 s6, s%d, 1" % S_J); z("s_sub_u32 s%d, 31, s6" % S_TBM)
        c = f2u(LOG2E / (128 ** 0.5))
        z("s_mov_b32 s%d, 0x%x" % (S_C, c)); z("s_mov_b32 s%d, 0x%x" % (S_C + 1, c)); z("s_mov_b32 s%d, 0x%x" % (S_L2E, f2u(LOG2E)))
        z("s_mul_i32 s6, s%d, %d" % (S_TL, NSTEP * 4096)); z("s_lshr_b32 s8, s%d, 4" % S_ROW0); z("s_and_b32 s8, s8, 3"); z("s_lshl_b32 s8, s8, 10")
        z("s_add_u32 s6, s6, s8"); z("s_add_u32 s%d, s6, %d" % (S_AP, WS_AP))
        z("v_lshrrev_b32 v22, 4, v%d" % vLANE); z("v_cmp_gt_u32 vcc, 2, v22"); z("v_cndmask_b32 v%d, 0, 1.0, vcc" % vM5)
        z("v_mov_b32 v%d, 0xff800000" % vNINF)
        streams.append(z.l)
        for k, ins in enumerate(z.l): extra[200 + k].append(ins)
        RAW, PH = 192, 208
        z = Seq(); y = phi_gather(z, RAW, PH, RAW + 12, RAW + 13); streams.append(z.l)
        for k, ins in enumerate(z.l): extra[24 * 16 + 2 + k].append(ins)
        r.ext(publish(0))
        for n in range(DWQ): r.ext(rd_q(n))
        r.ext(pk)
        for n in range(NF):
            ks, ph = n // 12, n % 12
            for rho in range(2):
                acc = vr(qacc(ph, rho) if ph < 8 else (DB + 4 * (2 * (ph - 8) + rho)), 4)
                r("%s %s, %s, %s, %s" % (MF, acc, vr(FR + 4 * (n % 8), 4), vr(XRS[ks % NXR] + 4 * rho, 4), "0" if ks == 0 else acc))
                r.ext(extra[2 * n + rho])
        ST(r, 20)
        r.ext(y)
        for qb in range(2):
            for js in range(4):
                for hb in range(2):
                    a = qacc(2 * js + hb, qb)
                    r("v_pk_mul_f32 %s, %s, s[%d:%d]" % (vr(a, 2), vr(a, 2), S_C, S_C + 1)); r("v_pk_mul_f32 %s, %s, s[%d:%d]" % (vr(a + 2, 2), vr(a + 2, 2), S_C, S_C + 1))
                    d = Q + 16 * qb + 4 * js + 2 * hb
                    r("v_cvt_pk_bf16_f32 v%d, v%d, v%d" % (d, a, a + 1)); r("v_cvt_pk_bf16_f32 v%d, v%d, v%d" % (d + 1, a + 2, a + 3))
        U, VM, PK, EE, T8, LK = 56, 64, 72, 88, 108, 192
        blk = lambda b, rho: DB + 4 * (2 * b + rho)
        r("v_and_b32 v%d, 15, v%d" % (T8, vLANE)); r("v_lshlrev_b32 v%d, 2, v%d" % (T8, T8)); r("v_add_u32 v%d, 64, v%d" % (T8, T8))
        for rho in range(2): r("ds_bpermute_b32 v%d, v%d, v%d" % (vG[rho], T8, blk(3, rho) + 2))
        for rho in range(2):
            t, u = TK + 4 * rho, U + 4 * rho
            for (d, b) in ((u, 2), (t + 2, 3), (t, 0), (VM + 4 * rho, 1)):
                r("v_cvt_pk_bf16_f32 v%d, v%d, v%d" % (d, blk(b, rho), blk(b, rho) + 1)); r("v_cvt_pk_bf16_f32 v%d, v%d, v%d" % (d + 1, blk(b, rho) + 2, blk(b, rho) + 3))
            r("v_mov_b32 v%d, v%d" % (u + 2, t + 3)); r("v_mov_b32 v%d, v%d" % (u + 3, t + 2))
            r("v_mov_b32 v%d, v%d" % (VM + 4 * rho + 2, t + 2)); r("v_mov_b32 v%d, 0x3f80" % (VM + 4 * rho + 3))
        for mu in range(2):
            for rho in range(2): r("%s %s, %s, %s, 0" % (MF, vr(PK + 8 * mu + 4 * rho, 4), vr(PH + 4 * mu, 4), vr(U + 4 * rho, 4)))
        for rho in range(2):
            g = vG[rho]
            r("v_mul_f32 v%d, s%d, v%d" % (g, S_L2E, g)); r("v_exp_f32 v%d, -v%d" % (g, g)); r("v_add_f32 v%d, 1.0, v%d" % (g, g)); r("v_rcp_f32 v%d, v%d" % (g, g))
        vF = 4
        r("v_and_b32 v6, 15, v%d" % vLANE); r("v_lshrrev_b32 v7, 4, v%d" % vLANE)
        r("v_lshlrev_b32 v8, 2, v7"); r("v_sub_u32 v8, v6, v8")
        r("v_add_u32 v%d, s%d, v8" % (vQ, S_ROW0)); r("v_add_u32 v%d, 16, v%d" % (vQ + 1, vQ))
        r("v_mov_b32 v%d, 0" % vLs); r("v_mov_b32 v%d, 0" % (vLs + 1))
        FB0 = 6 * SLOT
        r("s_mul_i32 s6, s%d, 5376" % S_W); r("s_add_u32 s6, s6, %d" % FB0)
        r("v_mul_u32_u24 v8, 168, v6"); r("v_lshl_add_u32 v8, v7, 3, v8"); r("v_add_u32 v%d, s6, v8" % vF)
        r("s_barrier")
        if role == 0: r.ext(flat(kv_obj("V", 1, 5)))
        softmax5(r, PK, EE, T8, LK)
        ST(r, 21)
        for rho in range(2):
            for b in range(3): r("ds_write_b64 v%d, %s offset:%d" % (vF, vr(LK + 8 * rho + 2 * b, 2), 2688 * rho + 32 * b))
            for b in range(2): r("ds_write_b64 v%d, %s offset:%d" % (vF, vr(VM + 4 * rho + 2 * b, 2), 2688 * rho + 96 + 32 * b))
        r("v_mov_b32 v%d, 0x44800000" % vTHR())
        r("v_mov_b32 v%d, v%d" % (vKA, vL16))
        r("s_mov_b32 s%d, 0xffff" % S_KR); r("v_mov_b32 v%d, 0x10000" % vC64); r("v_add_u32 v%d, 0x10000, v%d" % (vVA, vL16)); r("s_mov_b32 s%d, 0" % S_T)
        r("s_waitcnt lgkmcnt(0)")
        if role == 0: r.waitv("K0")
        else: r("s_waitcnt vmcnt(0)")
        r("s_barrier")
        if role == 1: r.ext(fkv_late)
        ST(r, 22)
        if role == 1: r("s_cmp_ge_u32 s%d, 6" % S_W); r("s_cbranch_scc1 F_NC")
        CA, CB, CD = 56, 88, 120
        r("s_cmp_ge_u32 s%d, 3" % S_W); r("s_cselect_b32 s6, 1, 0"); r("s_mul_i32 s8, s6, 3"); r("s_sub_u32 s8, s%d, s8" % S_W)
        r("v_bfe_u32 v8, v%d, 2, 2" % vLANE); r("v_lshl_add_u32 v8, v7, 3, v8")
        r("v_and_b32 v9, 3, v%d" % vLANE); r("v_lshlrev_b32 v9, 3, v9")
        r("v_mul_u32_u24 v21, 168, v8"); r("v_add_u32 v21, v21, v9")
        r("s_lshl_b32 s9, s8, 5"); r("s_add_u32 s9, s9, %d" % FB0); r("v_add_u32 v4, s9, v21")
        r("s_lshl_b32 s9, s6, 5"); r("s_add_u32 s9, s9, %d" % (FB0 + 96)); r("v_add_u32 v6, s9, v21")
        for ks in range(8):
            for (dst, a) in ((CA, 4), (CB, 6)):
                r("ds_read_b64_tr_b16 %s, v%d offset:%d" % (vr(dst + 4 * ks, 2), a, 5376 * ks)); r("ds_read_b64_tr_b16 %s, v%d offset:%d" % (vr(dst + 4 * ks + 2, 2), a, 5376 * ks + 4 * 168))
        for ks in range(8): r("%s %s, %s, %s, %s" % (MF, vr(CD, 4), vr(CA + 4 * ks, 4), vr(CB + 4 * ks, 4), "0" if ks == 0 else vr(CD, 4)))
        r("s_lshl_b32 s9, s%d, 3" % S_H); r("s_add_u32 s9, s9, s%d" % S_J); r("s_mul_i32 s9, s9, 6144"); r("s_add_u32 s9, s9, s%d" % S_MB); r("s_add_u32 s9, s9, %d" % WS_KVP)
        r("buffer_store_dwordx4 %s, v%d, %s, s9 offen sc1" % (vr(CD, 4), vL16, sr(SRD_WS, 4)), tag="KVP")
        if role == 1: r.label("F_NC")
        for n in range(DRD): r.ext([rd_frag("K", n, n)])
        slots = []
        for k in range(8): slots.append(mkslot(qk_mfmas(k, 0, k, lambda qb: "0")))
        for n in range(8):
            if n + DRD < 16: slots[n]["rd"].append(rd_frag("K", n + DRD, n + DRD))
            slots[n]["post"].extend(Seq()("\n".join("v_mov_b32 v%d, 0" % (O + 8 * n + i) for i in range(8))).l)
        r.ext(emit_slots(slots))
        r.ext(mask_ops(0, 0))
        a, b, t = E_, E_ + 1, E_ + 2
        for qb, d in ((0, a), (1, b)):
            x = [sreg(0, 8 * qb + i) for i in range(8)]
            r("v_max3_f32 v%d, v%d, v%d, v%d" % (d, x[0], x[1], x[2])); r("v_max3_f32 v%d, v%d, v%d, v%d" % (d, d, x[3], x[4]))
            r("v_max3_f32 v%d, v%d, v%d, v%d" % (d, d, x[5], x[6])); r("v_max_f32 v%d, v%d, v%d" % (d, d, x[7]))
        red2(r, a, b, "v_max_f32", t)
        for qb, d in ((0, a), (1, b)):
            for i in range(4): r("v_sub_f32 v%d, 0, v%d" % (NEGM + 4 * qb + i, d))
        for qb, d in ((0, a), (1, b)):
            for i in range(8): r("v_sub_f32 v%d, v%d, v%d" % (sreg(0, 8 * qb + i), sreg(0, 8 * qb + i), d))
        r("s_lshl_b32 s6, s%d, 6" % S_TL)
        r("v_subrev_u32 v%d, s6, v%d" % (vQ, vQ)); r("v_subrev_u32 v%d, s6, v%d" % (vQ + 1, vQ + 1))
        slots = []
        for k in range(8): slots.append(mkslot(qk_mfmas(k, 1, 8 + k, NEGC)))
        place_sm(slots, 0, 8, 0, None, None, carry=False)
        r.ext(emit_slots(slots))
        r.waitv("KVP", "K1", "V0")
        r("s_barrier")
        if role == 0:
            r("s_add_u32 s%d, s%d, %d" % (S_KL, S_W4K, 3 * SLOT)); r("s_add_u32 s%d, s%d, %d" % (S_VL, S_W4K, 6 * SLOT))
            r("s_add_u32 s%d, s%d, %d" % (S_KG, S_KG, 3 * SLOT)); r("s_add_u32 s%d, s%d, %d" % (S_VG, S_VG, 2 * SLOT))
            r("v_lshrrev_b32 v8, 2, v%d" % vL16); r("v_mov_b32 v7, s%d" % S_HUGE); r("v_cmp_gt_u32 vcc, 8, v%d" % vLANE)
            r("v_cndmask_b32 v8, v7, v8, vcc"); r("v_cndmask_b32 v7, 0, 1, vcc"); r("s_lshl_b32 s15, s%d, 7" % S_H); r("s_add_u32 s15, s15, %d" % FL_KV)
            r("s_mov_b32 m0, s%d" % S_KL)
            for e in range(4): r("buffer_load_dwordx4 v%d, %s, s%d offen offset:%d sc1 lds" % (vL16, sr(SRD_WS, 4), S_KG, 1024 * e))
            r("s_add_u32 s%d, s%d, %d" % (S_KG, S_KG, SLOT)); r("s_mov_b32 s%d, s%d" % (S_KL, S_W4K))
            r.ext(pkg())
        else:
            fb = Seq(); fb("s_lshl_b32 s6, s%d, 7" % S_H); fb("s_lshl_b32 s8, s%d, 2" % S_J); fb("s_add_u32 s6, s6, s8"); fb("s_add_u32 s6, s6, %d" % FL_KP)
            r.ext(w7_block("F_FKP", flag_store(fb, 4, 5)))
        if stamp: r.ext(STAMP(23)); r.ext(RSTAMP(62))
        main, st1 = resolve_waits(r.l, st0)
        verify_streams(main, streams, "f")
        st1.vm = []
        rares = []
        z = Seq()
        z("s_cmp_eq_u32 s%d, 0" % S_TL); z("s_cbranch_scc1 %s_PV" % RN)
        z.ext(adv(vKA))
        for n in range(DRD): z.ext([rd_frag("K", n, n) if n < 8 else rd_frag("V", n - 8, n)])
        z("s_cmp_le_u32 s%d, 1" % S_TL); z("s_cbranch_scc1 %s_S1" % RN)
        lz, stl = resolve_waits(z.l, st1)
        main += lz
        tmp = []
        b1, s1 = resolve_waits(iteration(role, "S", tmp), stl); s1.vm = []
        b2, s2 = resolve_waits(iteration(role, "S", rares), s1); s2.vm = []
        assert [x.text for x in b1] == [x.text for x in b2] and s1.sig() == s2.sig(), "loop not steady"
        main += Seq().label("%s_LOOP" % RN).l + b2 + Seq()("s_cmp_lt_u32 s6, s%d" % S_TL)("s_cbranch_scc1 %s_LOOP" % RN)("s_branch %s_S1" % RN).l
        z = Seq(); z.label("%s_PV" % RN)
        for n in range(DRD): z.ext([rd_frag("V", n, n)])
        z("s_branch %s_S2" % RN)
        lz, _ = resolve_waits(z.l, st1)
        main += lz
        b, s3 = resolve_waits(iteration(role, "S1", rares), s1); s3.vm = []
        main += Seq().label("%s_S1" % RN).l + b + Seq()("s_add_u32 s%d, s%d, 1" % (S_T, S_T)).l
        b, s4 = resolve_waits(iteration(role, "S2", rares), s3); s4.vm = []
        main += Seq().label("%s_S2" % RN).l + b
        e = Seq()
        if stamp: e.ext(STAMP(24)); e.ext(RSTAMP(63))
        vFL, vFO, vFN = 4, 5, 6
        if role == 0:
            e("v_lshrrev_b32 v%d, 2, v%d" % (vFO, vL16)); e("v_mov_b32 v%d, s%d" % (vFN, S_HUGE)); e("v_cmp_gt_u32 vcc, 8, v%d" % vLANE)
            e("v_cndmask_b32 v%d, v%d, v%d, vcc" % (vFO, vFN, vFO)); e("v_cndmask_b32 v%d, 0, 1, vcc" % vFN)
            e("s_lshl_b32 s9, s%d, 7" % S_H); e("s_add_u32 s9, s9, %d" % FL_KP)
            poll_issue(e, vFL, vFO, SRD_WS, "s9")
        red2(e, vLs, vLs + 1, "v_add_f32", E_)
        for qb in range(2):
            e("v_rcp_f32 v%d, v%d" % (vLs + qb, vLs + qb)); e("v_mul_f32 v%d, v%d, v%d" % (E_ + 2 * qb, vLs + qb, vG[qb])); e("v_mov_b32 v%d, v%d" % (E_ + 2 * qb + 1, E_ + 2 * qb))
        e("s_lshl_b32 s6, s%d, 14" % S_H); e("s_add_u32 s6, s6, s%d" % S_AP)
        for js in range(4):
            for qb in range(2):
                t = FR + 4 * ((2 * js + qb) % 8)
                for hb in range(2):
                    a = O + 8 * (2 * js + hb) + 4 * qb
                    e("v_pk_mul_f32 %s, %s, %s" % (vr(a, 2), vr(a, 2), vr(E_ + 2 * qb, 2))); e("v_pk_mul_f32 %s, %s, %s" % (vr(a + 2, 2), vr(a + 2, 2), vr(E_ + 2 * qb, 2)))
                    e("v_cvt_pk_bf16_f32 v%d, v%d, v%d" % (t + 2 * hb, a, a + 1)); e("v_cvt_pk_bf16_f32 v%d, v%d, v%d" % (t + 2 * hb + 1, a + 2, a + 3))
                e("buffer_store_dwordx4 %s, v%d, %s, s6 offen offset:%d sc1" % (vr(t, 4), vL16, sr(SRD_WS, 4), 1024 * qb))
            if js < 3: e("s_add_u32 s6, s6, 4096")
        ST(e, 25)
        if role == 0:
            e.label("A_LD")
            e("s_add_u32 s%d, s%d, 1" % (S_T, S_T)); e("s_cmp_ge_u32 s%d, s%d" % (S_T, S_TBM)); e("s_cbranch_scc1 A_FIN")
            e.ext(sync_block(0, "LD"))
            e("s_cmp_ge_u32 s%d, 2" % S_W); e("s_cbranch_scc1 A_LD")
            e("s_cmp_eq_u32 s%d, 3" % S_R); e("s_cbranch_scc0 A_N3")
            e("s_waitcnt vmcnt(0)")
            poll_issue(e, vFL, vFO, SRD_WS, "s9")
            e("s_branch A_LD")
            e.label("A_N3")
            e("s_cmp_eq_u32 s%d, 2" % S_R); e("s_cbranch_scc0 A_LD")
            e("s_waitcnt vmcnt(0)")
            poll_check(e, "P3A", vFL, vFN, vFO, SRD_WS, "s9")
            KR_ = 56
            e("s_mul_i32 s6, s%d, 49152" % S_H); e("s_mul_i32 s8, s%d, 3072" % S_W); e("s_add_u32 s6, s6, s8"); e("s_add_u32 s6, s6, %d" % WS_KVP)
            for p in range(8):
                for mu in range(3): e("buffer_load_dwordx4 %s, v%d, %s, s6 offen offset:%d sc1" % (vr(KR_ + 12 * p + 4 * mu, 4), vL16, sr(SRD_WS, 4), 1024 * mu))
                if p < 7: e("s_add_u32 s6, s6, 6144")
            for p in range(1, 8):
                for i in range(12): e("v_add_f32 v%d, v%d, v%d" % (KR_ + i, KR_ + i, KR_ + 12 * p + i))
            for i in range(6): e("v_cvt_pk_bf16_f32 v%d, v%d, v%d" % (FR + i, KR_ + 2 * i, KR_ + 2 * i + 1))
            e("v_mov_b32 v%d, 0" % (FR + 6)); e("v_mov_b32 v%d, 0" % (FR + 7))
            e("s_lshl_b32 s6, s%d, 11" % S_W); e("s_add_u32 s6, s6, %d" % KVX); e("v_add_u32 v21, s6, v%d" % vL16)
            e("ds_write_b128 v21, %s" % vr(FR, 4)); e("ds_write_b128 v21, %s offset:1024" % vr(FR + 4, 4))
            e("s_waitcnt lgkmcnt(0)")
            e("s_branch A_LD")
            e.label("A_FIN"); e("s_waitcnt vmcnt(0)"); e("s_branch F_FIN")
        le, _ = resolve_waits(e.l, s4)
        outl += main + le
        for rb in rares: cold += rb.l
    e = Seq(); e.label("F_FIN")
    e("s_waitcnt lgkmcnt(0)")
    e("v_lshrrev_b32 v4, 2, v%d" % vL16); poll_issue(e, 5, 4, SRD_DBG, "0")
    RAW, PH, PK, EE, T8, LQ, KF_, ND = 56, 72, 80, 96, 116, 120, 136, 152
    y = phi_gather(e, RAW, PH, RAW + 12, RAW + 13)
    e("v_add_u32 v6, %d, v%d" % (KVX, vL16))
    for i in range(4): e("ds_read_b128 %s, v6 offset:%d" % (vr(KF_ + 4 * i, 4), 1024 * i))
    e.ext(y)
    for mu in range(2):
        for rho in range(2): e("%s %s, %s, %s, 0" % (MF, vr(PK + 8 * mu + 4 * rho, 4), vr(PH + 4 * mu, 4), vr(TK + 4 * rho, 4)))
    softmax5(e, PK, EE, T8, LQ)
    for rho in range(2): e("v_mov_b32 v%d, 0" % (LQ + 8 * rho + 6)); e("v_mov_b32 v%d, 0" % (LQ + 8 * rho + 7))
    for rho in range(2):
        for nu in range(2):
            d = vr(ND + 8 * rho + 4 * nu, 4)
            e("%s %s, %s, %s, 0" % (MF, d, vr(KF_ + 8 * nu, 4), vr(LQ + 8 * rho, 4)))
            e("%s %s, %s, %s, %s" % (MF, d, vr(KF_ + 8 * nu + 4, 4), vr(LQ + 8 * rho + 4, 4), d))
    e("s_lshr_b32 s6, s%d, 1" % S_H); e("s_add_u32 s6, s6, 128"); e("s_lshl_b32 s6, s6, 12"); e("s_add_u32 s6, s6, s%d" % S_AP)
    e("s_and_b32 s8, s%d, 1" % S_H); e("s_lshl_b32 s8, s8, 9"); e("s_add_u32 s6, s6, s8")
    e("s_lshr_b32 s8, s%d, 4" % S_H); e("s_add_u32 s8, s8, 144"); e("s_lshl_b32 s8, s8, 12"); e("s_add_u32 s8, s8, s%d" % S_AP)
    e("s_lshr_b32 s9, s%d, 2" % S_H); e("s_and_b32 s9, s9, 3"); e("s_lshl_b32 s9, s9, 8"); e("s_add_u32 s8, s8, s9")
    e("s_and_b32 s9, s%d, 3" % S_H); e("s_lshl_b32 s9, s9, 2"); e("s_add_u32 s8, s8, s9")
    e("v_and_b32 v6, 15, v%d" % vLANE); e("v_lshlrev_b32 v6, 4, v6"); e("v_lshrrev_b32 v7, 4, v%d" % vLANE)
    e("v_lshl_add_u32 v10, v7, 7, v6"); e("v_and_b32 v9, 1, v7")
    e("v_mov_b32 v8, s%d" % S_HUGE); e("v_cmp_ne_u32 vcc, 1, v7"); e("v_cndmask_b32 v6, v6, v8, vcc")
    e("v_cmp_ne_u32 vcc, 0, v9"); e("v_cndmask_b32 v10, v10, v8, vcc")
    e("s_mov_b32 s9, 0x%x" % f2u(1e-6))
    for rho in range(2):
        n = ND + 8 * rho
        e("v_add_f32 v8, s9, v%d" % (n + 6)); e("v_rcp_f32 v8, v8"); e("v_sub_f32 v9, 1.0, v%d" % vG[rho]); e("v_mul_f32 v8, v8, v9")
        for i in range(6): e("v_mul_f32 v%d, v%d, v8" % (n + i, n + i))
        for i in range(2): e("v_cvt_pk_bf16_f32 v%d, v%d, v%d" % (n + i, n + 2 * i, n + 2 * i + 1))
        e("v_cvt_pk_bf16_f32 v%d, v%d, v%d" % (n + 4, n + 4, n + 5))
        e("v_mov_b32 v%d, v%d" % (n + 2, n)); e("v_mov_b32 v%d, v%d" % (n + 3, n + 1))
        e("v_permlane16_swap_b32 v%d, v%d" % (n, n + 2)); e("v_permlane16_swap_b32 v%d, v%d" % (n + 1, n + 3))
        e("buffer_store_dwordx4 %s, v10, %s, s6 offen offset:%d sc1" % (vr(n, 4), sr(SRD_WS, 4), 1024 * rho), tag="APS")
        e("buffer_store_dword v%d, v6, %s, s8 offen offset:%d sc1" % (n + 4, sr(SRD_WS, 4), 1024 * rho), tag="APS")
    ST(e, 26)
    SRD_A, SRD_W3, SRD_OUT, S_TILE, S_CT, S_LW = 56, 60, 68, 72, 73, 64
    e("s_and_b32 s6, s%d, 1" % S_H); e("s_lshl_b32 s8, s%d, 1" % S_J); e("s_add_u32 s9, s8, s6")
    e("s_sub_u32 s8, 30, s8"); e("s_add_u32 s8, s8, s6")
    e("s_bitcmp1_b32 s%d, 1" % S_H); e("s_cselect_b32 s%d, s8, s9" % S_TILE)
    e("s_lshr_b32 s6, s%d, 3" % S_H); e("s_and_b32 s8, s%d, 4" % S_H); e("s_add_u32 s%d, s6, s8" % S_CT)
    e("s_mul_i32 s6, s%d, %d" % (S_TILE, NSTEP * 4096)); e("s_add_u32 s6, s6, %d" % WS_AP); mk_srd(e, SRD_A, P_WS, NSTEP * 4096, add="s6")
    e("s_lshl_b32 s6, s%d, 3" % S_CT); e("s_add_u32 s6, s6, s%d" % S_W); e("s_mul_i32 s6, s6, %d" % (19 * 4608)); e("s_add_u32 s6, s6, %d" % WS_WP)
    mk_srd(e, SRD_W3, P_WS, 18 * 4608, add="s6")
    e("s_cmp_lt_u32 s%d, 2" % S_W); e("s_cselect_b32 s%d, %d, s%d" % (SRD_W3 + 2, 19 * 4608, SRD_W3 + 2))
    mk_srd(e, SRD_OUT, P_OUT, 2048 * 1152)
    e("s_mul_i32 s%d, s%d, 20480" % (S_LW, S_W))
    vA3, vT3 = 8, 9
    e("v_add_u32 v%d, s%d, v%d" % (vA3, S_W4K, vL16))
    e("v_bfe_u32 v10, v%d, 2, 2" % vLANE); e("v_lshl_add_u32 v10, v7, 3, v10"); e("v_mul_u32_u24 v10, 144, v10")
    e("v_and_b32 v11, 3, v%d" % vLANE); e("v_lshl_add_u32 v10, v11, 3, v10"); e("v_add_u32 v%d, s%d, v10" % (vT3, S_LW))
    e("v_cmp_le_u32 vcc, 48, v%d" % vLANE); e("v_cndmask_b32 v6, 0, 32, vcc"); e("v_cmp_le_u32 vcc, 56, v%d" % vLANE); e("v_cndmask_b32 v6, v6, 0, vcc")
    poll_check(e, "P4", 5, 6, 4, SRD_DBG, "0")
    AG, NAG, WG, AC = 24, 6, 120, 160
    NS = 19; NP = 86
    def dmaw(p):
        z = Seq()
        z("s_add_u32 m0, s%d, %d" % (S_LW, (p % 18) * 1024)); z("s_mov_b32 s9, %d" % (p * 1024))
        z("buffer_load_dwordx4 v%d, %s, s9 offen sc1 lds" % (vL16, sr(SRD_W3, 4)), tag="P%d" % p)
        return z
    def rdw(n):
        z = Seq(); z.waitv("P%d" % min(NP - 1, (4608 * (n + 1) - 1) // 1024))
        for fi in range(5):
            for hh in range(2):
                z("ds_read_b64_tr_b16 %s, v%d offset:%d" % (vr(WG + 20 * (n % 2) + 4 * fi + 2 * hh, 2), vT3, (n % 4) * 4608 + 32 * fi + 576 * hh), tag="R%d" % n)
        return z
    def lda(n):
        z = Seq(); b = AG + 16 * (n % NAG)
        z("s_mov_b32 s8, %d" % (n * 8 * 4096))
        for i in range(4): z("buffer_load_dwordx4 %s, v%d, %s, s8 offen offset:%d sc1" % (vr(b + 4 * i, 4), vA3, sr(SRD_A, 4), 1024 * i))
        return z
    e.waitv("APS")
    e("s_barrier")
    fb = Seq(); fb("s_lshl_b32 s6, s%d, 7" % S_J); fb("s_lshl_b32 s8, s%d, 2" % S_H); fb("s_add_u32 s6, s6, s8"); fb("s_add_u32 s6, s6, %d" % FL_AP)
    e.ext(w7_block("F_FAP", flag_store(fb, 10, 11)))
    ST(e, 27)
    pn = 0
    def refill(upto_bytes):
        nonlocal pn
        z = Seq()
        while pn < NP and 1024 * (pn + 1) <= upto_bytes + 18432: z.ext(dmaw(pn)); pn += 1
        return z
    e.ext(refill(0))
    vO, vO5 = 10, 11
    e("v_and_b32 v12, 15, v%d" % vLANE); e("s_lshl_b32 s6, s%d, 6" % S_TILE); e("s_lshr_b32 s8, s%d, 1" % S_W); e("s_lshl_b32 s8, s8, 4"); e("s_add_u32 s6, s6, s8")
    e("v_add_u32 v12, s6, v12"); e("v_mul_u32_u24 v12, 1152, v12"); e("v_lshl_add_u32 v12, v7, 3, v12")
    e("s_mul_i32 s6, s%d, 144" % S_CT); e("v_add_u32 v12, s6, v12")
    e("s_and_b32 s11, s%d, 1" % S_W); e("s_lshl_b32 s6, s11, 6"); e("v_add_u32 v%d, s6, v12" % vO)
    e("s_cmp_eq_u32 s11, 0"); e("s_cselect_b32 s6, 128, s%d" % S_HUGE); e("v_add_u32 v12, s6, v12")
    e("v_mov_b32 v13, s%d" % S_HUGE); e("v_cmp_le_u32 vcc, 2, v7"); e("v_cndmask_b32 v%d, v12, v13, vcc" % vO5)
    e.ext(rdw(0)); e.ext(rdw(1)); e.waitv("R1"); e.ext(refill(2 * 4608))
    z = Seq()
    z("v_mov_b32 v6, s%d" % S_HUGE); z("v_cmp_gt_u32 vcc, 32, v%d" % vLANE); z("v_cndmask_b32 v4, v6, v4, vcc"); z("v_cndmask_b32 v6, 0, 1, vcc")
    z("s_lshl_b32 s10, s%d, 7" % S_J); z("s_add_u32 s10, s10, %d" % FL_AP); z("v_mov_b32 v5, 0")
    poll_check(z, "P5", 5, 6, 4, SRD_WS, "s10")
    e.ext(w7_block("F_P5", z))
    e("s_barrier")
    ST(e, 28)
    for n in range(NAG): e.ext(lda(n))
    for n in range(NS):
        b = AG + 16 * (n % NAG)
        for fi in range(5):
            for rb in range(4):
                acc = vr(AC + 4 * (4 * fi + rb), 4)
                e("%s %s, %s, %s, %s" % (MF, acc, vr(WG + 20 * (n % 2) + 4 * fi, 4), vr(b + 4 * rb, 4), "0" if n == 0 else acc))
            if fi == 1 and n >= 1 and n + 1 < NS: e.waitv("R%d" % (n + 1)); e.ext(refill((n + 2) * 4608))
        if n + NAG < NS: e.ext(lda(n + NAG))
        if n + 2 < NS: e.ext(rdw(n + 2))
        if n % 4 == 0: ST(e, 29 + n // 4)
    assert pn == NP
    ST(e, 34)
    e("s_mul_i32 s6, s%d, 20480" % S_W); e("v_add_u32 v12, s6, v%d" % vL16)
    for bk in range(20): e("ds_write_b128 v12, %s offset:%d" % (vr(AC + 4 * bk, 4), 1024 * bk))
    e("s_lshr_b32 s6, s%d, 1" % S_W); e("s_lshl_b32 s6, s6, 10"); e("s_lshl_b32 s8, s11, 13"); e("s_add_u32 s8, s8, s6")
    e("v_add_u32 v12, s8, v%d" % vL16); e("v_add_u32 v13, %d, v12" % 61440); e("v_add_u32 v14, %d, v12" % 122880)
    e("s_add_u32 s6, s6, 16384"); e("v_add_u32 v15, s6, v%d" % vL16); e("v_add_u32 v16, %d, v15" % 61440); e("v_add_u32 v17, %d, v15" % 122880)
    e("s_waitcnt lgkmcnt(0)"); e("s_barrier")
    T = 24
    for k in range(3):
        for u in range(8):
            base = (12 if k < 2 else 15) + u // 3; off = (u % 3) * 20480 + (4096 * k if k < 2 else 0)
            if off > 65535: raise SystemExit("off")
            e("ds_read_b128 %s, v%d offset:%d" % (vr(T + 32 * k + 4 * u, 4), base, off))
    for k in range(3):
        t = T + 32 * k
        for step in (16, 8, 4):
            for i in range(step): e("v_add_f32 v%d, v%d, v%d" % (t + i, t + i, t + step + i))
        e("v_cvt_pk_bf16_f32 v%d, v%d, v%d" % (t, t, t + 1)); e("v_cvt_pk_bf16_f32 v%d, v%d, v%d" % (t + 1, t + 2, t + 3))
        e("buffer_store_dwordx2 %s, v%d, %s, 0 offen offset:%d" % (vr(t, 2), vO if k < 2 else vO5, sr(SRD_OUT, 4), 32 * k if k < 2 else 0))
    if stamp: e.ext(STAMP(35)); e("s_waitcnt vmcnt(0)"); e.ext(STAMP(36)); e.ext(RSTAMP(61)); e.ext(STAMPOUT(S_W, vLANE, SRD_WS, 6, base=1 << 20))
    e.label("F_END"); e("s_endpgm")
    st = Pend(vm=[("vm_st", (), "APS")] * 8)
    le, _ = resolve_waits(e.l, st)
    return fix_hazards(outl + le + cold)
```

```python
from gen_common import *

MF = "v_mfma_f32_16x16x32_bf16"

def wg_decode(q, s_h, s_j):
    q("s_and_b32 s%d, s2, 7" % s_h); q("s_lshr_b32 s6, s2, 6"); q("s_lshl_b32 s6, s6, 3"); q("s_add_u32 s%d, s%d, s6" % (s_h, s_h))
    q("s_lshr_b32 s%d, s2, 3" % s_j); q("s_and_b32 s%d, s%d, 7" % (s_j, s_j))

def fmt_job(z, srd, rowbytes, vbase, va, vb, vg, vt, RW, CH, vC0, vC1, srd_ws, sel, extra_or=None, sc="", tag=None):
    offs = []
    for p in range(8):
        c, t = p >> 2, p & 3
        if p == 0: src = vbase
        else:
            src = vt + (p & 1)
            if p == 1: z("v_add_u32 v%d, v%d, v%d" % (src, vbase, vb))
            elif p == 2: z("v_add_u32 v%d, v%d, v%d" % (src, vbase, vg))
            elif p == 3: z("v_add_u32 v%d, v%d, v%d" % (src, vt, vb))
            elif p == 4: z("v_add_u32 v%d, v%d, v%d" % (vbase, vbase, va)); src = vbase
            elif p == 5: z("v_add_u32 v%d, v%d, v%d" % (src, vbase, vb))
            elif p == 6: z("v_add_u32 v%d, v%d, v%d" % (src, vbase, vg))
            elif p == 7: z("v_add_u32 v%d, v%d, v%d" % (src, vt, vb))
        z("buffer_load_dword v%d, v%d, %s, 0 offen" % (RW + 2 * p, src, sr(srd, 4)))
        z("buffer_load_dword v%d, v%d, %s, 0 offen offset:%d" % (RW + 2 * p + 1, src, sr(srd, 4), rowbytes))
    y = Seq()
    for col in range(2):
        for c in range(2):
            d = CH + 4 * ((2 * col + c) & 1)
            for t in range(4):
                p = 4 * c + t
                y("v_perm_b32 v%d, v%d, v%d, s%d" % (d + t, RW + 2 * p + 1, RW + 2 * p, sel + col))
                if extra_or is not None and col == 0: y("v_or_b32 v%d, v%d, v%d" % (d + t, d + t, extra_or + 4 * c + t))
            y("buffer_store_dwordx4 %s, v%d, %s, 0 offen offset:%d%s" % (vr(d, 4), [vC0, vC1][c], sr(srd_ws, 4), 16 * col, sc), tag=tag)
    return y

def gen_k1(stamp=False):
    q = Seq()
    S_H, S_RB, S_W, S_RG = 3, 4, 5, 7
    SRD_CK, SRD_W, SRD_X, SRD_WB, SRD_GATE, SRD_WO, SRD_WS = 44, 48, 52, 56, 60, 64, 68
    S_MA, S_MW, S_ST, S_HUGE, S_SEL, S_T = 72, 73, 74, 78, 80, 82
    M1, M2 = 86, 88
    vLANE, vAo0, vAo1, vWo, vL16 = 1, 2, 3, 4, 5
    vAR = 6
    vWR = 10
    JT = 18
    WF, NWF = 32, 6
    AF = 56
    RW, CH, GT = 88, 104, 112
    ACC = 128
    WB = 98304
    q("s_cmp_ge_u32 s2, 256"); q("s_cbranch_scc1 K1_END")
    load_args(q)
    wg_decode(q, S_H, S_RB)
    q("v_lshrrev_b32 v18, 6, v0"); q("v_and_b32 v%d, 63, v0" % vLANE)
    q("v_readfirstlane_b32 s%d, v18" % S_W)
    q("s_and_b32 s%d, s%d, 3" % (S_RG, S_W))
    q("v_lshrrev_b32 v18, 3, v%d" % vLANE)
    q("s_lshl_b32 s6, s%d, 8" % S_RB); q("s_lshl_b32 s8, s%d, 5" % S_W); q("s_add_u32 s6, s6, s8")
    q("v_add_u32 v18, s6, v18")
    q("v_lshrrev_b32 v19, 4, v%d" % vLANE); q("v_and_b32 v20, 7, v%d" % vLANE); q("v_xor_b32 v20, v19, v20")
    q("v_lshlrev_b32 v20, 4, v20"); q("v_lshl_add_u32 v%d, v18, 10, v20" % vAo0); q("v_xor_b32 v%d, 64, v%d" % (vAo1, vAo0))
    q("s_lshl_b32 s6, s%d, 3" % S_RG); q("v_add_u32 v18, s6, v19")
    q("s_and_b32 s6, s%d, 1" % S_RG); q("s_lshl_b32 s6, s6, 2"); q("v_add_u32 v20, s6, v19")
    q("v_lshlrev_b32 v20, 1, v20"); q("v_and_b32 v21, 15, v%d" % vLANE); q("v_xor_b32 v20, v20, v21")
    q("v_lshlrev_b32 v20, 4, v20"); q("v_lshl_add_u32 v%d, v18, 13, v20" % vWo)
    q("s_lshl_b32 s6, s%d, 8" % S_H); q("v_add_u32 v%d, s6, v%d" % (vWo, vWo))
    q("s_lshl_b32 s%d, s%d, 12" % (S_MA, S_W))
    q("s_lshl_b32 s%d, s%d, 11" % (S_MW, S_W)); q("s_add_u32 s%d, s%d, %d" % (S_MW, S_MW, WB))
    mk_srd(q, SRD_CK, P_CKV, 2048 * 1024)
    q("s_cmp_lt_u32 s%d, 4" % S_W)
    q("s_cselect_b32 s%d, s%d, s%d" % (SRD_W, P_UK, P_UV)); q("s_cselect_b32 s%d, s%d, s%d" % (SRD_W + 1, P_UK + 1, P_UV + 1))
    q("s_mov_b32 s%d, %d" % (SRD_W + 2, 512 * 8192)); q("s_mov_b32 s%d, 0x00020000" % (SRD_W + 3))
    if stamp: q.ext(STAMP(0)); q.ext(RSTAMP(60))
    def dma_a(I_):
        g = []
        for e in range(4):
            z = Seq()
            if e == 0: z("s_add_u32 m0, s%d, %d" % (S_MA, (I_ % 3) * 32768))
            z("s_mov_b32 s%d, %d" % (S_T, I_ * 128 + e * (8192 - 1024)))
            z("buffer_load_dwordx4 v%d, %s, s%d offen offset:%d lds" % ([vAo0, vAo1][e & 1], sr(SRD_CK, 4), S_T, e * 1024), tag="A%d" % I_)
            g.append(z.l)
        return g
    def dma_w(i):
        g = []
        for e in range(2):
            z = Seq()
            if e == 0: z("s_add_u32 m0, s%d, %d" % (S_MW, (i % 4) * 16384))
            z("s_mov_b32 s%d, %d" % (S_T, i * 32 * 8192 + e * (4 * 8192 - 1024)))
            z("buffer_load_dwordx4 v%d, %s, s%d offen offset:%d lds" % (vWo, sr(SRD_W, 4), S_T, e * 1024), tag="W%d" % i)
            g.append(z.l)
        return g
    flat = lambda g: [x for l in g for x in l]
    q.ext(flat(dma_w(0))); q.ext(flat(dma_a(0))); q.ext(flat(dma_w(1)))
    q("s_barrier")
    q.ext(flat(dma_a(1))); q.ext(flat(dma_w(2))); q.ext(flat(dma_w(3))); q.ext(flat(dma_a(2)))
    mk_srd(q, SRD_X, P_X, 2048 * 1152); mk_srd(q, SRD_WB, P_WQKV, 576 * 3456); mk_srd(q, SRD_GATE, P_GATE, 1152)
    mk_srd(q, SRD_WS, P_WS, WS_SIZE)
    q("s_cmp_eq_u32 s%d, 5" % S_W)
    q("s_cselect_b32 s%d, s%d, s%d" % (SRD_WO, P_WO2, P_WO)); q("s_cselect_b32 s%d, s%d, s%d" % (SRD_WO + 1, P_WO2 + 1, P_WO + 1))
    q("s_cselect_b64 s[%d:%d], -1, 0" % (M1, M1 + 1))
    q("s_mov_b32 s6, %d" % (4096 * 1152)); q("s_cselect_b32 s%d, %d, s6" % (SRD_WO + 2, 576 * 1152)); q("s_mov_b32 s%d, 0x00020000" % (SRD_WO + 3))
    q("s_mov_b32 s%d, 0x%x" % (S_HUGE, HUGE)); q("s_mov_b32 s%d, 0x05040100" % S_SEL); q("s_mov_b32 s%d, 0x07060302" % (S_SEL + 1))
    q("v_lshlrev_b32 v%d, 4, v%d" % (vL16, vLANE))
    q("v_and_b32 v18, 15, v%d" % vLANE); q("v_lshrrev_b32 v19, 4, v%d" % vLANE); q("v_lshrrev_b32 v20, 1, v18"); q("v_xor_b32 v20, v20, v19")
    q("s_lshl_b32 s6, s%d, 6" % S_RG); q("v_add_u32 v18, s6, v18"); q("v_lshlrev_b32 v18, 7, v18")
    q("v_lshl_add_u32 v%d, v20, 4, v18" % vAR); q("v_xor_b32 v%d, 64, v%d" % (vAR + 1, vAR))
    q("v_add_u32 v%d, 0x10000, v%d" % (vAR + 2, vAR)); q("v_add_u32 v%d, 0x10000, v%d" % (vAR + 3, vAR + 1))
    q("v_bfe_u32 v18, v%d, 2, 2" % vLANE); q("v_lshl_add_u32 v20, v19, 3, v18"); q("v_lshlrev_b32 v20, 8, v20")
    q("v_and_b32 v21, 1, v19"); q("v_lshl_add_u32 v18, v21, 2, v18"); q("v_lshl_add_u32 v20, v18, 5, v20")
    q("v_and_b32 v18, 3, v%d" % vLANE); q("v_lshl_add_u32 v20, v18, 3, v20")
    q("s_lshr_b32 s6, s%d, 2" % S_W); q("s_lshl_b32 s6, s6, 13"); q("s_add_u32 s6, s6, %d" % WB)
    q("v_add_u32 v%d, s6, v20" % vWR)
    for cb in range(1, 8): q("v_xor_b32 v%d, %d, v%d" % (vWR + cb, 32 * cb, vWR))
    q("s_lshr_b32 s6, s%d, 2" % S_W); q("s_lshl_b32 s6, s6, 24"); q("s_lshl_b32 s8, s%d, 19" % S_H); q("s_add_u32 s6, s6, s8")
    q("s_lshl_b32 s8, s%d, 2" % S_RB); q("s_add_u32 s8, s8, s%d" % S_RG); q("s_lshl_b32 s8, s8, 14"); q("s_add_u32 s%d, s6, s8" % S_ST)
    for i in range(1, 4): q("s_add_u32 s%d, s%d, %d" % (S_ST + i, S_ST, 4096 * i))

    jobs = []
    z = Seq(); a, b = JT, JT + 1
    z("s_lshr_b32 s8, s2, 1"); z("s_and_b32 s9, s2, 1"); z("s_mul_i32 s9, s9, 9"); z("s_add_u32 s9, s9, s%d" % S_W)
    z("v_and_b32 v%d, 15, v%d" % (a, vLANE)); z("s_lshl_b32 s10, s8, 4"); z("v_add_u32 v%d, s10, v%d" % (a, a))
    z("v_mul_u32_u24 v%d, 1152, v%d" % (a, a)); z("v_lshrrev_b32 v%d, 4, v%d" % (b, vLANE)); z("v_lshl_add_u32 v%d, v%d, 4, v%d" % (a, b, a))
    z("s_lshl_b32 s10, s9, 6")
    z("buffer_load_dwordx4 %s, v%d, %s, s10 offen" % (vr(RW, 4), a, sr(SRD_X, 4)))
    z("s_cmp_eq_u32 s%d, 0" % S_W); z("s_cselect_b32 s11, 0, s%d" % S_HUGE)
    z("v_add_u32 v%d, s11, v%d" % (a, a))
    z("buffer_load_dwordx4 %s, v%d, %s, s10 offen offset:512" % (vr(RW + 4, 4), a, sr(SRD_X, 4)))
    z("s_mul_i32 s8, s8, 18"); z("s_add_u32 s8, s8, s9"); z("s_lshl_b32 s8, s8, 10"); z("s_add_u32 s8, s8, %d" % WS_XF)
    z("v_add_u32 v%d, s11, v%d" % (b, vL16)); z("s_add_u32 s9, s8, 8192")
    y = Seq()
    y("buffer_store_dwordx4 %s, v%d, %s, s8 offen" % (vr(RW, 4), vL16, sr(SRD_WS, 4)))
    y("buffer_store_dwordx4 %s, v%d, %s, s9 offen" % (vr(RW + 4, 4), b, sr(SRD_WS, 4)))
    jobs.append((z, y))
    z = Seq()
    vJ, vB, vE, vF, va, vb_, vg, vt, vC0, vC1 = JT, JT + 1, JT + 2, JT + 3, JT + 4, JT + 5, JT + 6, JT + 7, JT + 9, JT + 10
    m1 = "s[%d:%d]" % (M1, M1 + 1); m2 = "s[%d:%d]" % (M2, M2 + 1)
    z("s_mul_i32 s8, s2, 41"); z("v_add_u32 v%d, s8, v%d" % (vJ, vLANE))
    z("v_mul_u32_u24 v%d, 58255, v%d" % (vB, vJ)); z("v_lshrrev_b32 v%d, 24, v%d" % (vB, vB))
    z("v_mul_u32_u24 v%d, 288, v%d" % (vE, vB)); z("v_sub_u32 v%d, v%d, v%d" % (vJ, vJ, vE))
    z("v_cmp_le_u32 %s, 41, v%d" % (m2, vLANE)); z("v_cmp_le_u32 vcc, 36, v%d" % vB); z("s_or_b64 %s, %s, vcc" % (m2, m2))
    z("s_and_b64 %s, %s, %s" % (m2, m2, m1))
    z("v_lshrrev_b32 v%d, 1, v%d" % (vE, vB)); z("v_mul_u32_u24 v%d, 36, v%d" % (vE, vE)); z("v_and_b32 v%d, 1, v%d" % (vF, vB))
    z("v_lshl_add_u32 v%d, v%d, 3, v%d" % (vE, vF, vE))
    z("v_subrev_u32 v%d, 32, v%d" % (vF, vB)); z("v_mul_u32_u24 v%d, 144, v%d" % (vF, vF)); z("v_add_u32 v%d, 16, v%d" % (vF, vF))
    z("v_cmp_le_u32 vcc, 32, v%d" % vB); z("s_and_b64 vcc, vcc, %s" % m1)
    z("v_cndmask_b32 v%d, v%d, v%d, vcc" % (vE, vE, vF))
    for (r, x0, x1) in ((va, 4, 72), (vb_, 2, 18), (vg, 18, 36)):
        z("v_mov_b32 v%d, %d" % (r, x0 * 1152)); z("v_mov_b32 v%d, %d" % (vF, x1 * 1152)); z("v_cndmask_b32 v%d, v%d, v%d, vcc" % (r, r, vF))
    z("v_add_u32 v%d, 256, v%d" % (vB, vB))
    z("s_lshl_b32 s8, s%d, 6" % S_W); z("v_add_u32 v%d, s8, v%d" % (vF, vLANE))
    z("v_cmp_le_u32 vcc, 288, v%d" % vF); z("s_andn2_b64 vcc, vcc, %s" % m1); z("s_or_b64 %s, %s, vcc" % (m2, m2))
    z("v_cndmask_b32 v%d, v%d, v%d, %s" % (vJ, vF, vJ, m1))
    z("s_lshl_b32 s8, s%d, 7" % S_H); z("s_lshr_b32 s9, s%d, 1" % S_RB); z("s_lshl_b32 s9, s9, 5"); z("s_add_u32 s8, s8, s9")
    z("s_and_b32 s9, s%d, 1" % S_RB); z("s_lshl_b32 s9, s9, 3"); z("s_add_u32 s8, s8, s9"); z("v_mov_b32 v%d, s8" % vF)
    z("v_cndmask_b32 v%d, v%d, v%d, %s" % (vE, vF, vE, m1))
    z("v_mov_b32 v%d, %d" % (vF, 16 * 1152)); z("v_cndmask_b32 v%d, v%d, v%d, %s" % (vg, vF, vg, m1))
    z("s_lshl_b32 s8, s%d, 3" % S_H); z("s_add_u32 s8, s8, s%d" % S_RB); z("v_mov_b32 v%d, s8" % vF)
    z("v_cndmask_b32 v%d, v%d, v%d, %s" % (vB, vF, vB, m1))
    z("v_mul_u32_u24 v%d, 1152, v%d" % (vE, vE)); z("v_lshl_add_u32 v%d, v%d, 2, v%d" % (vE, vJ, vE))
    z("v_mov_b32 v%d, s%d" % (vF, S_HUGE)); z("v_cndmask_b32 v%d, v%d, v%d, %s" % (vE, vE, vF, m2))
    y = fmt_job(z, SRD_WO, 1152, vE, va, vb_, vg, vt, RW, CH, vC0, vC1, SRD_WS, S_SEL)
    z("v_mul_u32_u24 v%d, 1821, v%d" % (vE, vJ)); z("v_lshrrev_b32 v%d, 16, v%d" % (vE, vE))
    z("v_mul_u32_u24 v%d, 36, v%d" % (vF, vE)); z("v_sub_u32 v%d, v%d, v%d" % (vJ, vJ, vF)); z("v_lshlrev_b32 v%d, 1, v%d" % (vJ, vJ))
    z("v_mul_u32_u24 v%d, %d, v%d" % (vE, NSTEP, vE)); z("v_lshrrev_b32 v%d, 1, v%d" % (vF, vB)); z("v_add_u32 v%d, v%d, v%d" % (vE, vE, vF))
    z("v_mul_u32_u24 v%d, 4608, v%d" % (vE, vE))
    z("v_and_b32 v%d, 1, v%d" % (vB, vB)); z("v_lshrrev_b32 v%d, 4, v%d" % (vF, vJ))
    z("v_lshl_add_u32 v%d, v%d, 10, v%d" % (vE, vF, vE))
    z("v_and_b32 v%d, 15, v%d" % (vJ, vJ)); z("v_lshl_add_u32 v%d, v%d, 4, v%d" % (vE, vJ, vE))
    z("v_cmp_eq_u32 vcc, 4, v%d" % vF)
    z("v_mov_b32 v%d, 256" % va); z("v_mov_b32 v%d, 128" % vF); z("v_cndmask_b32 v%d, v%d, v%d, vcc" % (va, va, vF))
    z("v_lshlrev_b32 v%d, 1, v%d" % (vB, vB)); z("v_mad_u32_u24 v%d, v%d, v%d, v%d" % (vC0, vB, va, vE))
    z("v_add_u32 v%d, %d, v%d" % (vC0, WS_WP, vC0))
    z("v_mov_b32 v%d, s%d" % (vF, S_HUGE)); z("v_cndmask_b32 v%d, v%d, v%d, %s" % (vC0, vC0, vF, m2))
    z("v_add_u32 v%d, v%d, v%d" % (vC1, vC0, va))
    jobs.append((z, y))
    z = Seq()
    vU, vP = JT, JT + 1
    z("s_lshl_b32 s8, s%d, 1" % S_W); z("v_lshrrev_b32 v%d, 5, v%d" % (vU, vLANE)); z("v_add_u32 v%d, s8, v%d" % (vU, vU))
    z("v_lshlrev_b32 v%d, 3, v%d" % (vU, vU)); z("v_add_u32 v%d, s%d, v%d" % (vU, S_RB, vU))
    z("v_and_b32 v%d, 31, v%d" % (vP, vLANE))
    z("v_cmp_le_u32 %s, 36, v%d" % (m2, vU))
    z("v_and_b32 v%d, 7, v%d" % (vE, vP)); z("v_lshlrev_b32 v%d, 2, v%d" % (vE, vE))
    z("v_lshrrev_b32 v%d, 3, v%d" % (vF, vP))
    z("v_mov_b32 v%d, 2304" % va); z("v_cmp_eq_u32 vcc, 1, v%d" % vF); z("v_cndmask_b32 v%d, 0, v%d, vcc" % (vb_, va))
    z("v_mov_b32 v%d, 1152" % va); z("v_cmp_eq_u32 vcc, 2, v%d" % vF); z("v_cndmask_b32 v%d, v%d, v%d, vcc" % (vb_, vb_, va))
    z("v_add_u32 v%d, v%d, v%d" % (vE, vE, vb_))
    z("v_subrev_u32 v%d, 24, v%d" % (vb_, vP)); z("v_mul_u32_u24 v%d, 1152, v%d" % (vb_, vb_)); z("v_add_u32 v%d, 32, v%d" % (vb_, vb_))
    z("v_cmp_eq_u32 vcc, 3, v%d" % vF); z("v_cndmask_b32 v%d, v%d, v%d, vcc" % (vE, vE, vb_))
    z("s_mul_i32 s8, s%d, 36" % S_H)
    z("v_mul_u32_u24 v%d, %d, v%d" % (vb_, 16 * 3456, vU)); z("v_add3_u32 v%d, v%d, v%d, s8" % (vE, vE, vb_))
    z("v_cmp_le_u32 vcc, 27, v%d" % vP); z("s_or_b64 vcc, vcc, %s" % m2)
    z("v_mov_b32 v%d, s%d" % (vF, S_HUGE)); z("v_cndmask_b32 v%d, v%d, v%d, vcc" % (vE, vE, vF))
    z("v_lshlrev_b32 v%d, 5, v%d" % (vb_, vU)); z("v_cmp_ne_u32 vcc, 27, v%d" % vP); z("v_cndmask_b32 v%d, v%d, v%d, vcc" % (vb_, vb_, vF))
    z("buffer_load_dwordx4 %s, v%d, %s, 0 offen" % (vr(GT, 4), vb_, sr(SRD_GATE, 4)))
    z("buffer_load_dwordx4 %s, v%d, %s, 0 offen offset:16" % (vr(GT + 4, 4), vb_, sr(SRD_GATE, 4)))
    z("v_mov_b32 v%d, %d" % (va, 8 * 3456)); z("v_mov_b32 v%d, %d" % (vb_, 2 * 3456)); z("v_mov_b32 v%d, %d" % (vg, 4 * 3456))
    y = fmt_job(z, SRD_WB, 3456, vE, va, vb_, vg, vt, RW, CH, vC0, vC1, SRD_WS, S_SEL, extra_or=GT)
    z("s_mul_i32 s8, s%d, %d" % (S_H, 18 * 4096)); z("s_add_u32 s8, s8, %d" % WS_WBF)
    z("v_lshrrev_b32 v%d, 1, v%d" % (vE, vU)); z("v_lshlrev_b32 v%d, 12, v%d" % (vE, vE))
    z("v_lshrrev_b32 v%d, 3, v%d" % (vF, vP)); z("v_lshl_add_u32 v%d, v%d, 10, v%d" % (vE, vF, vE))
    z("v_and_b32 v%d, 1, v%d" % (vF, vU)); z("v_lshl_add_u32 v%d, v%d, 9, v%d" % (vE, vF, vE))
    z("v_and_b32 v%d, 7, v%d" % (vF, vP)); z("v_lshl_add_u32 v%d, v%d, 5, v%d" % (vE, vF, vE))
    z("v_add_u32 v%d, s8, v%d" % (vE, vE))
    z("v_mov_b32 v%d, s%d" % (vF, S_HUGE)); z("v_cndmask_b32 v%d, v%d, v%d, %s" % (vC0, vE, vF, m2))
    z("v_add_u32 v%d, 256, v%d" % (vC1, vC0))
    jobs.append((z, y))

    q("s_cmp_ge_u32 s%d, 4" % S_W); q("s_cbranch_scc1 K1_V")
    pre, st0 = resolve_waits(q.l)
    outl = list(pre)
    for role in range(2):
        r = Seq()
        if role == 1: r.label("K1_V")
        cp = lambda s: [I(x.text, tag=x.tag) for x in (s.l if isinstance(s, Seq) else s)]
        NM = 16 * 32
        extra = {f: [] for f in range(NM)}
        streams = []
        def spread(lst, a, b):
            n = len(lst); streams.append(lst)
            for k, ins in enumerate(lst): extra[a + (k * (b - a)) // n].append(ins)
        def rd_w(i, cb):
            w = WF + 4 * ((8 * i + cb) % NWF); off = (i % 4) * 16384
            return Seq()("ds_read_b64_tr_b16 %s, v%d offset:%d" % (vr(w, 2), vWR + cb, off))("ds_read_b64_tr_b16 %s, v%d offset:%d" % (vr(w + 2, 2), vWR + cb, off + 1024)).l
        def rd_a(i, rbk):
            sl = (i >> 1) % 3
            base = vAR + (i & 1) + (2 if sl == 2 else 0); off = (32768 if sl == 1 else 0) + rbk * 2048
            return Seq()("ds_read_b128 %s, v%d offset:%d" % (vr(AF + 16 * (i & 1) + 4 * rbk, 4), base, off)).l
        def publish(i):
            z = Seq(); tags = ["W%d" % i] + (["A%d" % (i >> 1)] if i % 2 == 0 else [])
            z.waitv(*tags)
            if stamp: z.ext(STAMP(2 * i + 1))
            z("s_barrier")
            if stamp: z.ext(STAMP(2 * i + 2))
            return z.l
        DW = 4
        for i in range(16):
            for cb in range(8):
                n = 8 * i + cb - DW
                if n >= 0:
                    if cb == 0: extra[4 * n].extend(publish(i))
                    extra[4 * n].extend(rd_w(i, cb))
            if i > 0:
                for rbk in range(4): extra[32 * (i - 1) + 18 + 3 * rbk].extend(rd_a(i, rbk))
                g = []
                if i + 2 < 16 and i >= 2: g += dma_w(i + 2)
                if i % 2 == 1 and i >= 3 and (i >> 1) + 2 < 8: g += dma_a((i >> 1) + 2)
                for k, l in enumerate(g): extra[32 * (i - 1) + 17 + 2 * k].extend(l)
        pos = 40
        for (z, y) in jobs:
            z = cp(z); y = cp(y)
            n = len(z)
            spread(z, pos, pos + n); spread(y, pos + n + 60, pos + n + 60 + len(y)); pos += n + 60 + len(y) + 2
        assert pos < NM - 8, pos
        r.ext(publish(0))
        for rbk in range(4): r.ext(rd_a(0, rbk))
        for cb in range(DW): r.ext(rd_w(0, cb))
        for f in range(NM):
            i, cb, rbk = f >> 5, (f >> 2) & 7, f & 3
            acc = vr(ACC + 4 * (4 * cb + rbk), 4); w = vr(WF + 4 * ((8 * i + cb) % NWF), 4); a = vr(AF + 16 * (i & 1) + 4 * rbk, 4)
            ops = (w, a) if role == 0 else (a, w)
            r("%s %s, %s, %s, %s" % (MF, acc, ops[0], ops[1], "0" if i == 0 else acc))
            r.ext(extra[f])
        if stamp: r.ext(STAMP(50))
        for n in range(16):
            t = WF + 4 * (n % 8)
            if role == 0:
                j, rbk = n >> 2, n & 3
                b0, b1 = ACC + 4 * (8 * j + rbk), ACC + 4 * (8 * j + 4 + rbk); fi = 4 * rbk + j
            else:
                cb, u = n >> 1, n & 1
                b0, b1 = ACC + 4 * (4 * cb + 2 * u), ACC + 4 * (4 * cb + 2 * u + 1); fi = 8 * u + cb
            r("v_cvt_pk_bf16_f32 v%d, v%d, v%d" % (t, b0, b0 + 1)); r("v_cvt_pk_bf16_f32 v%d, v%d, v%d" % (t + 1, b0 + 2, b0 + 3))
            r("v_cvt_pk_bf16_f32 v%d, v%d, v%d" % (t + 2, b1, b1 + 1)); r("v_cvt_pk_bf16_f32 v%d, v%d, v%d" % (t + 3, b1 + 2, b1 + 3))
            r("buffer_store_dwordx4 %s, v%d, %s, s%d offen offset:%d" % (vr(t, 4), vL16, sr(SRD_WS, 4), S_ST + (fi >> 2), (fi & 3) * 1024))
        if stamp: r.ext(STAMP(53)); r("s_waitcnt vmcnt(0)"); r.ext(STAMP(54)); r.ext(RSTAMP(61)); r.ext(STAMPOUT(S_W, vLANE, SRD_WS, 18))
        if role == 1: r.label("K1_END")
        r("s_endpgm")
        l, _ = resolve_waits(r.l, st0)
        verify_streams(l, streams, "k1")
        outl += l
    return fix_hazards(outl)
```

```python
from gen_common import *
from gen_k1 import wg_decode
MF = "v_mfma_f32_16x16x32_bf16"
SLOT = 16384
PHL = 9 * SLOT
KVX = PHL + 2048
K2_LDS = KVX + 4096

S_H, S_J, S_W, S_ROW0 = 3, 4, 5, 7
SRD_WQ, SRD_WS, SRD_PHI, SRD_DBG = 44, 48, 52, 56
S_XB, S_MW, S_MB, S_WBG, S_KG, S_VG, S_KL, S_VL, S_KR, S_VR, S_T, S_TL, S_TBM = range(60, 73)
S_THR, S_L2E, S_HUGE, S_AP, S_C, S_W4K, S_TMP, S_R = 74, 75, 76, 77, 78, 80, 81, 82
MK = [84, 86, 88, 90]
vLANE, vL16, vWo, vWR, vBR, vKA, vVA, vQ, vLs, vPS, vTM, vNINF, vM5 = 1, 2, 3, 4, 12, 13, 14, 15, 17, 19, 21, 22, 23
vG = [3, 12]
FR, QACC, DB, XR, Q, TK = 24, 56, 120, 152, 216, 248
O = XR
P_, S_, NEGM, E_ = 56, 72, 104, 112
import os
DRD = int(os.environ.get('DRD', 12))
SHIFT = int(os.environ.get('SHIFT', 1))
W2 = int(os.environ.get('W2', 4))
E64 = int(os.environ.get('E64', 0))
NRING = int(os.environ.get('NRING', 16))
NODMA = int(os.environ.get('NODMA', 0))
def freg(n):
    n %= NRING
    return FR + 4 * n if n < 8 else DB + 4 * (n - 8)

def red4(q, a, b, c, d, op, t0, t1, t2):
    q("v_permlane16_swap_b32 v%d, v%d" % (a, b)); q("v_permlane16_swap_b32 v%d, v%d" % (c, d))
    q("%s v%d, v%d, v%d" % (op, a, a, b)); q("%s v%d, v%d, v%d" % (op, c, c, d))
    q("v_permlane32_swap_b32 v%d, v%d" % (a, c))
    q("%s v%d, v%d, v%d" % (op, a, a, c))
    q("v_mov_b32 v%d, v%d" % (c, a))
    q("v_permlane32_swap_b32 v%d, v%d" % (a, c))
    q("v_mov_b32 v%d, v%d" % (b, a)); q("v_mov_b32 v%d, v%d" % (d, c))
    q("v_permlane16_swap_b32 v%d, v%d" % (a, b)); q("v_permlane16_swap_b32 v%d, v%d" % (c, d))

def red2(q, a, b, op, t):
    q("v_permlane16_swap_b32 v%d, v%d" % (a, b))
    q("%s v%d, v%d, v%d" % (op, a, a, b))
    q("v_mov_b32 v%d, v%d" % (t, a))
    q("v_permlane32_swap_b32 v%d, v%d" % (a, t))
    q("%s v%d, v%d, v%d" % (op, a, a, t))
    q("v_mov_b32 v%d, v%d" % (b, a))
    q("v_permlane16_swap_b32 v%d, v%d" % (a, b))

def phi_gather(q, raw, PH, va, vb):
    q("v_and_b32 v%d, 15, v%d" % (va, vLANE)); q("v_lshrrev_b32 v%d, 4, v%d" % (vb, vLANE))
    q("v_mul_u32_u24 v%d, 144, v%d" % (raw, vb)); q("v_add_u32 v%d, %d, v%d" % (raw, PHL, raw))
    q("v_mov_b32 v%d, 512" % vb)
    for (c, f) in ((0, 16), (4, 17), (8, 8), (12, 12)):
        q("v_cmp_eq_u32 vcc, %d, v%d" % (c, va)); q("v_cndmask_b32 v%d, v%d, %d, vcc" % (vb, vb, f))
    q("v_lshl_add_u32 v%d, v%d, 1, v%d" % (vb, vb, raw)); q("v_lshl_add_u32 v%d, v%d, 1, v%d" % (va, va, raw))
    for mu, a in ((0, va), (1, vb)):
        for i in range(6):
            q("ds_read_u16 v%d, v%d offset:%d" % (raw + 6 * mu + i, a, (i if i < 4 else 12 + i) * 36))
    y = Seq()
    for mu in range(2):
        for i in range(3): y("v_lshl_or_b32 v%d, v%d, 16, v%d" % (PH + 4 * mu + i, raw + 6 * mu + 2 * i + 1, raw + 6 * mu + 2 * i))
        y("v_mov_b32 v%d, 0" % (PH + 4 * mu + 3))
    return y

def softmax5(q, PK, EE, T, OUT):
    vals = [[PK + 4 * r + i for i in range(4)] + [PK + 8 + 4 * r] for r in range(2)]
    for r in range(2):
        v = vals[r]
        q("v_max3_f32 v%d, v%d, v%d, v%d" % (T + 2 * r, v[0], v[1], v[2])); q("v_max3_f32 v%d, -v%d, -v%d, -v%d" % (T + 2 * r + 1, v[0], v[1], v[2]))
        q("v_max3_f32 v%d, v%d, v%d, v%d" % (T + 2 * r, T + 2 * r, v[3], v[4])); q("v_max3_f32 v%d, v%d, -v%d, -v%d" % (T + 2 * r + 1, T + 2 * r + 1, v[3], v[4]))
    red4(q, T, T + 1, T + 2, T + 3, "v_max_f32", 0, 0, 0)
    for i in range(4): q("v_mul_f32 v%d, s%d, v%d" % (T + i, S_L2E, T + i))
    for r in range(2):
        for i in range(5):
            q("v_fma_f32 v%d, v%d, s%d, -v%d" % (EE + 10 * r + i, vals[r][i], S_L2E, T + 2 * r))
            q("v_fma_f32 v%d, -v%d, s%d, -v%d" % (EE + 10 * r + 5 + i, vals[r][i], S_L2E, T + 2 * r + 1))
    for i in range(20): q("v_exp_f32 v%d, v%d" % (EE + i, EE + i))
    for k in range(4): q("v_mul_f32 v%d, v%d, v%d" % (EE + 5 * k + 4, EE + 5 * k + 4, vM5))
    for k in range(4): q("v_add_f32 v%d, v%d, v%d" % (T + k, EE + 5 * k, EE + 5 * k + 1))
    for i in range(2, 5):
        for k in range(4): q("v_add_f32 v%d, v%d, v%d" % (T + k, T + k, EE + 5 * k + i))
    red4(q, T, T + 1, T + 2, T + 3, "v_add_f32", 0, 0, 0)
    for k in range(4): q("v_rcp_f32 v%d, v%d" % (T + k, T + k))
    for k in range(4):
        for i in range(5): q("v_mul_f32 v%d, v%d, v%d" % (EE + 5 * k + i, EE + 5 * k + i, T + k))
    for r in range(2):
        e = EE + 10 * r; o = OUT + 8 * r
        q("v_cvt_pk_bf16_f32 v%d, v%d, v%d" % (o, e, e + 1)); q("v_cvt_pk_bf16_f32 v%d, v%d, v%d" % (o + 1, e + 2, e + 3))
        q("v_cvt_pk_bf16_f32 v%d, v%d, v%d" % (o + 2, e + 5, e + 6)); q("v_cvt_pk_bf16_f32 v%d, v%d, v%d" % (o + 3, e + 7, e + 8))
        q("v_cvt_pk_bf16_f32 v%d, v%d, v%d" % (o + 4, e + 4, e + 9)); q("v_mov_b32 v%d, 0" % (o + 5))

def sreg(buf, e):
    qb, kb, r = e >> 3, (e >> 2) & 1, e & 3
    return S_ + 16 * buf + 8 * kb + 4 * qb + r

def mask_ops(buf, u):
    z = Seq()
    for e0 in range(0, 16, 4):
        for e in range(e0, e0 + 4):
            qb, kb, r = e >> 3, (e >> 2) & 1, e & 3
            z("v_cmp_gt_i32 s[%d:%d], %d, v%d" % (MK[e & 3], MK[e & 3] + 1, 32 * u + 16 * kb + r, vQ + qb))
        for e in range(e0, e0 + 4):
            z("v_cndmask_b32 v%d, v%d, v%d, s[%d:%d]" % (sreg(buf, e), sreg(buf, e), vNINF, MK[e & 3], MK[e & 3] + 1))
    return z

def sm_parts(buf):
    ex = []; post = []
    for e in range(16):
        qb = e >> 3
        ex.append(I("v_exp_f32%s v%d, v%d" % ("_e64" if E64 else "", E_ + (e & 7), sreg(buf, e))))
        z = Seq()
        ad = "v_add_f32_e64" if E64 else "v_add_f32"
        if e & 7 == 1: z("%s v%d, v%d, v%d" % (ad, vPS + qb, E_ + ((e - 1) & 7), E_ + (e & 7)))
        elif e & 7 > 1: z("%s v%d, v%d, v%d" % (ad, vPS + qb, vPS + qb, E_ + (e & 7)))
        if e & 1: z("v_cvt_pk_bf16_f32 v%d, v%d, v%d" % (P_ + 8 * buf + 4 * qb + ((e & 7) >> 1), E_ + ((e - 1) & 7), E_ + (e & 7)))
        post.append(z.l)
    return ex, post

def rare_block(name, X, Y):
    z = Seq(); z.label(name); z("s_nop 8")
    a, b, t = E_, E_ + 1, E_ + 2
    for qb, d in ((0, a), (1, b)):
        r = [sreg(X, 8 * qb + i) for i in range(8)]
        z("v_max3_f32 v%d, v%d, v%d, v%d" % (d, r[0], r[1], r[2])); z("v_max3_f32 v%d, v%d, v%d, v%d" % (d, d, r[3], r[4]))
        z("v_max3_f32 v%d, v%d, v%d, v%d" % (d, d, r[5], r[6])); z("v_max3_f32 v%d, v%d, v%d, 0" % (d, d, r[7]))
    red2(z, a, b, "v_max_f32", t)
    z("v_exp_f32 v%d, -v%d" % (E_ + 4, a)); z("v_exp_f32 v%d, -v%d" % (E_ + 5, b))
    for qb, d in ((0, a), (1, b)):
        for i in range(8):
            z("v_sub_f32 v%d, v%d, v%d" % (sreg(X, 8 * qb + i), sreg(X, 8 * qb + i), d))
            z("v_sub_f32 v%d, v%d, v%d" % (sreg(Y, 8 * qb + i), sreg(Y, 8 * qb + i), d))
        for i in range(4): z("v_sub_f32 v%d, v%d, v%d" % (NEGM + 4 * qb + i, NEGM + 4 * qb + i, d))
        z("v_mul_f32 v%d, v%d, v%d" % (vLs + qb, vLs + qb, E_ + 4 + qb))
        for db in range(8):
            for i in range(4): z("v_mul_f32 v%d, v%d, v%d" % (O + 8 * db + 4 * qb + i, O + 8 * db + 4 * qb + i, E_ + 4 + qb))
    ex, post = sm_parts(X)
    for e in range(16):
        z.ext([ex[e]]); z("s_nop 0"); z.ext(post[e])
    z("s_nop 1")
    z("s_branch %s_R" % name)
    return z

def rd_frag(kind, idx, ring):
    base = vKA if kind == "K" else vVA
    return I("ds_read_b128 %s, v%d offset:%d" % (vr(freg(ring), 4), base, 1024 * idx))

def qk_mfmas(k, buf, ring, first_c):
    kb, js = k >> 2, k & 3
    out = []
    for qb in range(2):
        d = vr(S_ + 16 * buf + 8 * kb + 4 * qb, 4)
        c = d if js else first_c(qb)
        out.append(I("%s %s, %s, %s, %s" % (MF, d, vr(freg(ring), 4), vr(Q + 16 * qb + 4 * js, 4), c)))
    return out
def pv_mfmas(db, buf, ring):
    return [I("%s %s, %s, %s, %s" % (MF, vr(O + 8 * db + 4 * qb, 4), vr(freg(ring), 4), vr(P_ + 8 * buf + 4 * qb, 4), vr(O + 8 * db + 4 * qb, 4))) for qb in range(2)]
NEGC = lambda qb: vr(NEGM + 4 * qb, 4)

def pkg(tag=None):
    z = Seq()
    for (sl, sg, hi) in ((S_VL, S_VG, 1), (S_KL, S_KG, 0)):
        z("s_mov_b32 m0, s%d" % sl)
        z("s_add_u32 s%d, s%d, %d" % (sl, sl, SLOT))
        for e in range(4):
            if not NODMA: z("buffer_load_dwordx4 v%d, %s, s%d offen offset:%d lds" % (vL16, sr(SRD_WS, 4), sg, 1024 * e), tag=tag)
        z("s_add_u32 s%d, s%d, %d" % (sg, sg, SLOT))
        z("s_and_b32 s%d, s%d, 0xffff" % (sl, sl))
        if hi: z("s_or_b32 s%d, s%d, 0x10000" % (sl, sl))
    return z

DIAG = int(os.environ.get('DIAG', 0))
def tick(z, acc):
    z("s_memtime s[96:97]"); z("s_waitcnt lgkmcnt(0)")
    if acc is not None: z("s_sub_u32 s99, s96, s98"); z("s_add_u32 s%d, s%d, s99" % (acc, acc))
    z("s_mov_b32 s98, s96")
def sync_block(role, uid, cond=False):
    z = Seq()
    if DIAG: tick(z, None)
    if role == 0:
        z("s_sub_u32 s%d, s%d, s%d" % (S_R, S_TBM, S_T))
        z("s_cmp_ge_u32 s%d, 2" % S_R); z("s_cbranch_scc1 W12_%s" % uid)
        z("s_waitcnt vmcnt(4)")
        z.label("W12_%s" % uid); z("s_waitcnt vmcnt(12)")
        if DIAG: tick(z, 92)
        z("s_barrier")
        if DIAG: tick(z, 93)
        z("s_cmp_lt_u32 s%d, 3" % S_R); z("s_cbranch_scc1 NP_%s" % uid)
        z.ext(pkg())
        z.label("NP_%s" % uid)
        if DIAG: tick(z, 94)
    else:
        if cond:
            z("s_cmp_eq_u32 s%d, s%d" % (S_T, S_TBM)); z("s_cbranch_scc1 NB_%s" % uid)
        z("s_barrier")
        if cond: z.label("NB_%s" % uid)
        if DIAG: tick(z, 93)
    return z

def adv(vreg):
    z = Seq()
    z("v_add_u32 v%d, 0x4000, v%d" % (vreg, vreg))
    if vreg == vKA: z("v_and_b32 v%d, 0xffff, v%d" % (vreg, vreg))
    else: z("v_and_or_b32 v%d, v%d, s%d, v%d" % (vreg, vreg, S_KR, vC64))
    return z

def check(name):
    z = Seq()
    z("v_max_f32 v%d, v%d, v%d" % (vTM, vPS, vPS + 1))
    z("v_cmp_nle_f32 vcc, v%d, v%d" % (vTM, vTHR()))
    z("s_cbranch_vccnz %s" % name)
    z.label(name + "_R")
    return z
def ladd(qb): return I("v_add_f32 v%d, v%d, v%d" % (vLs + qb, vLs + qb, vPS + qb))
vC64 = 10
def vTHR(): return 11

def place_sm(slots, lo, hi, buf, mask_u, chk, carry=True):
    ex, post = sm_parts(buf)
    n = hi - lo
    pre = mask_ops(buf, mask_u).l if mask_u is not None else []
    groups = [pre[8 * g:8 * g + 8] for g in range(4)]
    if carry:
        slots[lo]["post"].append(ladd(0)); slots[lo + (8 if n == 16 else 0)]["post"].append(ladd(1))
    for e in range(16):
        s = lo + (e * n) // 16
        if pre and e % 4 == 0: slots[s]["mid"].extend(groups[e // 4])
        slots[s]["mid"].append(ex[e])
        slots[s]["post"].extend(post[e])
    if chk: slots[hi - 1]["end"].extend(check(chk).l)

def emit_slots(slots, w2=False):
    out = []
    for n, s in enumerate(slots):
        out += s["pre"]
        if w2 and W2 and n % W2 == 0:
            w = I("v_nop"); w.kind = "touch"; w.rd = list(slots[n + W2 - 1]["m"][0].srcA); w.text = ""
            out.append(w)
        out += [s["m"][0]] + s["mid"] + [s["m"][1]] + s["rd"] + s["post"] + s["end"]
    return out
def mkslot(m): return {"pre": [], "m": m, "mid": [], "rd": [], "post": [], "end": []}

def iteration(role, var, rares):
    uid = "%s%s" % ("AB"[role], var)
    slots = []; plan = []
    if var != "S2":
        for k in range(8): slots.append(mkslot(qk_mfmas(k, 0, len(slots), NEGC))); plan.append(("K", k))
    for db in range(8): slots.append(mkslot(pv_mfmas(db, 0, len(slots)))); plan.append(("V", db))
    a_hi = len(slots)
    if var != "S2":
        for k in range(8): slots.append(mkslot(qk_mfmas(k, 1, len(slots), NEGC))); plan.append(("K", 8 + k))
    for db in range(8): slots.append(mkslot(pv_mfmas(db, 1, len(slots)))); plan.append(("V", 8 + db))
    N = len(slots)
    nxt = {"S": "K", "S1": "V", "S2": None}[var]
    assert DRD > 8
    for n in range(N):
        g = n + DRD
        if g < N: slots[n]["rd"].append(rd_frag(plan[g][0], plan[g][1], g))
        elif nxt:
            if g == N:
                slots[n]["rd"].extend(sync_block(role, uid).l)
            if nxt == "K" and g - N >= 8: slots[n]["rd"].append(rd_frag("V", g - N - 8, g))
            else: slots[n]["rd"].append(rd_frag(nxt, g - N, g))
    if nxt == "K":
        slots[N - DRD - 2]["post"].extend(adv(vKA).l)
        slots[N - DRD + 2]["post"].extend(adv(vVA).l)
    elif nxt == "V": slots[N - DRD - 1]["end"].extend(adv(vVA).l)
    if var == "S2": slots[9]["rd"].extend(sync_block(role, uid, cond=True).l)
    place_sm(slots, 0, a_hi, 1, 1 if var == "S2" else None, "R%sa" % uid); rares.append(rare_block("R%sa" % uid, 1, 0))
    if var != "S2":
        place_sm(slots, a_hi, N, 0, 0 if var == "S1" else None, "R%sb" % uid); rares.append(rare_block("R%sb" % uid, 0, 1))
    else:
        slots[a_hi]["post"].extend([ladd(0), ladd(1)])
    if var == "S":
        slots[N - 3]["post"].extend(Seq()("s_add_u32 s%d, s%d, 1" % (S_T, S_T))("s_add_u32 s6, s%d, 1" % S_T).l)
    out = emit_slots(slots, True)
    X = os.environ.get("XP", "")
    if var == "S":
        if "c" in X: out = [i for i in out if not (i.op in ("v_max_f32", "v_cmp_nle_f32", "s_cbranch_vccnz"))]
        if "b" in X and role == 1: pass
        if "e" in X: out = [i for i in out if not i.op.startswith("v_exp")]
        if "a" in X: out = [i for i in out if not i.op.startswith("v_add_f32")]
        if "v" in X: out = [i for i in out if not i.op.startswith("v_cvt_pk")]
        if "n" in X:
            for k, i in enumerate(out):
                if i.ismfma() and i.srcC and i.srcC[0][1] in range(NEGM, NEGM + 8): out[k] = I(i.text.rsplit(",", 1)[0] + ", 0")
    return out

def gen_k2(stamp=False):
    q = Seq()
    q("s_cmp_ge_u32 s2, 256"); q("s_cbranch_scc1 K2_END")
    load_args(q)
    wg_decode(q, S_H, S_J)
    q("v_lshrrev_b32 v24, 6, v0"); q("v_and_b32 v%d, 63, v0" % vLANE); q("v_readfirstlane_b32 s%d, v24" % S_W)
    q("v_lshlrev_b32 v%d, 4, v%d" % (vL16, vLANE))
    q("s_sub_u32 s6, 15, s%d" % S_J); q("s_cmp_lt_u32 s%d, 4" % S_W); q("s_cselect_b32 s6, s%d, s6" % S_J)
    q("s_lshl_b32 s6, s6, 7"); q("s_and_b32 s8, s%d, 3" % S_W); q("s_lshl_b32 s8, s8, 5"); q("s_add_u32 s%d, s6, s8" % S_ROW0)
    q("v_lshrrev_b32 v25, 4, v%d" % vLANE); q("s_lshl_b32 s6, s%d, 3" % S_W); q("v_add_u32 v24, s6, v25")
    q("s_and_b32 s6, s%d, 1" % S_W); q("s_lshl_b32 s6, s6, 2"); q("v_add_u32 v26, s6, v25")
    q("v_lshlrev_b32 v26, 1, v26"); q("v_and_b32 v27, 15, v%d" % vLANE); q("v_xor_b32 v26, v26, v27")
    q("v_lshlrev_b32 v26, 4, v26"); q("v_lshl_add_u32 v%d, v24, 13, v26" % vWo)
    q("s_lshl_b32 s6, s%d, 8" % S_H); q("v_add_u32 v%d, s6, v%d" % (vWo, vWo))
    q("s_lshl_b32 s%d, s%d, 11" % (S_MW, S_W)); q("s_lshl_b32 s%d, s%d, 10" % (S_MB, S_W))
    q("s_mul_i32 s6, s%d, %d" % (S_H, 18 * 4096)); q("s_add_u32 s6, s6, s%d" % S_MB); q("s_add_u32 s%d, s6, %d" % (S_WBG, WS_WBF))
    q("s_lshr_b32 s6, s%d, 4" % S_ROW0); q("s_mul_i32 s6, s6, %d" % (18 * 1024)); q("s_add_u32 s%d, s6, %d" % (S_XB, WS_XF))
    mk_srd(q, SRD_WQ, P_WQ, 576 * 8192); mk_srd(q, SRD_WS, P_WS, WS_SIZE)
    if stamp: q.ext(STAMP(0)); q.ext(RSTAMP(60))
    WQS = [5, 3, 6, 0, 1, 4, 5, 3, 6]
    WBS = [7 * SLOT, 7 * SLOT + 8192, 8 * SLOT, 8 * SLOT + 8192, 2 * SLOT, 2 * SLOT + 8192, 7 * SLOT, 7 * SLOT + 8192, 8 * SLOT]
    def dma_wq(i):
        g = []
        for e in range(2):
            z = Seq()
            if e == 0: z("s_add_u32 m0, s%d, %d" % (S_MW, WQS[i] * SLOT))
            z("s_mov_b32 s%d, %d" % (S_TMP, i * 64 * 8192 + e * (4 * 8192 - 1024)))
            z("buffer_load_dwordx4 v%d, %s, s%d offen offset:%d lds" % (vWo, sr(SRD_WQ, 4), S_TMP, e * 1024), tag="W%d" % i)
            g.append(z.l)
        return g
    def dma_wb(i):
        z = Seq()
        z("s_add_u32 m0, s%d, %d" % (S_MB, WBS[i])); z("s_add_u32 s%d, s%d, %d" % (S_TMP, S_WBG, i * 8192))
        z("buffer_load_dwordx4 v%d, %s, s%d offen lds" % (vL16, sr(SRD_WS, 4), S_TMP), tag="W%d" % i)
        return [z.l]
    def ld_x(ks):
        g = []
        for r in range(2):
            z = Seq()
            z("s_add_u32 s%d, s%d, %d" % (S_TMP, S_XB, (r * 18 + ks) * 1024))
            z("buffer_load_dwordx4 %s, v%d, %s, s%d offen" % (vr(XR + 8 * (ks % 8) + 4 * r, 4), vL16, sr(SRD_WS, 4), S_TMP))
            g.append(z.l)
        return g
    flat = lambda g: [x for l in g for x in l]
    q.ext(flat(dma_wq(0) + dma_wb(0) + ld_x(0) + ld_x(1)))
    q("s_barrier")
    for i in range(1, 4): q.ext(flat(dma_wq(i) + dma_wb(i) + ld_x(2 * i) + ld_x(2 * i + 1)))
    for i in range(4, 6): q.ext(flat(dma_wq(i) + dma_wb(i)))
    q("s_mul_i32 s6, s%d, 648" % S_H); mk_srd(q, SRD_PHI, P_PHI, 648, add="s6")
    q("s_lshl_b32 s6, s%d, 8" % S_W); q("s_add_u32 m0, s6, %d" % PHL); q("v_lshlrev_b32 v24, 2, v%d" % vLANE)
    q("buffer_load_dword v24, %s, s6 offen lds" % sr(SRD_PHI, 4), tag="W5")
    mk_srd(q, SRD_DBG, P_DBG, 256)
    q("v_bfe_u32 v24, v%d, 2, 2" % vLANE); q("v_lshl_add_u32 v26, v25, 3, v24"); q("v_lshlrev_b32 v26, 8, v26")
    q("v_and_b32 v27, 1, v25"); q("v_lshl_add_u32 v24, v27, 2, v24"); q("v_lshl_add_u32 v26, v24, 5, v26")
    q("v_and_b32 v24, 3, v%d" % vLANE); q("v_lshl_add_u32 v26, v24, 3, v26")
    q("v_add_u32 v%d, %d, v26" % (vWR, WQS[0] * SLOT))
    for cb in range(1, 8): q("v_xor_b32 v%d, %d, v%d" % (vWR + cb, 32 * cb, vWR))
    q("v_add_u32 v%d, %d, v%d" % (vBR, WBS[0], vL16))
    q("s_lshl_b32 s%d, s%d, 12" % (S_W4K, S_W))
    q("s_lshl_b32 s6, s%d, 19" % S_H); q("s_add_u32 s%d, s6, s%d" % (S_KG, S_W4K)); q("s_add_u32 s%d, s%d, %d" % (S_VG, S_KG, WS_VF))
    q("s_lshr_b32 s%d, s%d, 6" % (S_TL, S_ROW0))
    q("s_lshl_b32 s6, s%d, 1" % S_J); q("s_sub_u32 s%d, 31, s6" % S_TBM)
    c = f2u(LOG2E / (128 ** 0.5))
    q("s_mov_b32 s%d, 0x%x" % (S_C, c)); q("s_mov_b32 s%d, 0x%x" % (S_C + 1, c))
    q("s_mov_b32 s%d, 0x%x" % (S_L2E, f2u(LOG2E))); q("s_mov_b32 s%d, 0x%x" % (S_HUGE, HUGE))
    q("s_mul_i32 s6, s%d, %d" % (S_TL, NSTEP * 4096)); q("s_lshr_b32 s8, s%d, 4" % S_ROW0); q("s_and_b32 s8, s8, 3"); q("s_lshl_b32 s8, s8, 10")
    q("s_add_u32 s6, s6, s8"); q("s_add_u32 s%d, s6, %d" % (S_AP, WS_AP))
    q("v_mov_b32 v%d, 0xff800000" % vNINF)
    q("v_cmp_gt_u32 vcc, 2, v25"); q("v_cndmask_b32 v%d, 0, 1.0, vcc" % vM5)
    q("v_and_b32 v24, 15, v%d" % vLANE); q("v_lshlrev_b32 v26, 2, v25"); q("v_sub_u32 v24, v24, v26")
    q("v_add_u32 v%d, s%d, v24" % (vQ, S_ROW0)); q("v_add_u32 v%d, 16, v%d" % (vQ + 1, vQ))
    q("v_mov_b32 v%d, 0" % vLs); q("v_mov_b32 v%d, 0" % (vLs + 1))
    q("s_cmp_ge_u32 s%d, 4" % S_W); q("s_cbranch_scc1 K2_B")
    pre, st0 = resolve_waits(q.l)
    outl = list(pre); cold = []
    for role in range(2):
        RN = "AB"[role]
        r = Seq()
        if role == 1: r.label("K2_B")
        NF = 216
        extra = {f: [] for f in range(2 * NF)}
        streams = []
        def kv_obj(kind, t, slot):
            z = Seq()
            z("s_add_u32 m0, s%d, %d" % (S_W4K, slot * SLOT)); z("s_add_u32 s%d, s%d, %d" % (S_TMP, S_KG if kind == "K" else S_VG, t * SLOT))
            g = [z.l]
            for e in range(4): g.append(Seq()("buffer_load_dwordx4 v%d, %s, s%d offen offset:%d lds" % (vL16, sr(SRD_WS, 4), S_TMP, 1024 * e), tag="%s%d" % (kind, t)).l)
            return [g[0] + g[1] + g[2] + g[3] + g[4]]
        def rd_w(n):
            ks, ph = n // 12, n % 12; s1 = ks & 1; w = FR + 4 * (n % 8)
            if ph < 8:
                return Seq()("ds_read_b64_tr_b16 %s, v%d offset:%d" % (vr(w, 2), vWR + ph, s1 * 8192))("ds_read_b64_tr_b16 %s, v%d offset:%d" % (vr(w + 2, 2), vWR + ph, s1 * 8192 + 1024)).l
            return Seq()("ds_read_b128 %s, v%d offset:%d" % (vr(w, 4), vBR, (s1 * 4 + ph - 8) * 1024)).l
        def publish(i):
            z = Seq(); z.waitv("W%d" % i)
            if stamp: z.ext(STAMP(2 * i + 1))
            z("s_barrier")
            if stamp: z.ext(STAMP(2 * i + 2))
            if i > 0:
                d = ((WQS[i] - WQS[i - 1]) * SLOT) & 0xffffffff
                for cb in range(8): z("v_add_u32 v%d, 0x%x, v%d" % (vWR + cb, d, vWR + cb))
                z("v_add_u32 v%d, 0x%x, v%d" % (vBR, (WBS[i] - WBS[i - 1]) & 0xffffffff, vBR))
            return z.l
        DW = 5
        after = {2: dma_wq(6), 3: dma_wq(7) + dma_wb(6) + dma_wb(7), 4: dma_wq(8), 5: dma_wb(8)}
        if role == 0:
            after[5] = after[5] + kv_obj("K", 0, 0); after[6] = kv_obj("K", 1, 1); after[7] = kv_obj("V", 0, 4) + kv_obj("K", 2, 2); after[8] = kv_obj("V", 1, 5)
        for n in range(DW, NF):
            pos = 2 * (n - DW) + 1
            if n % 24 == 0:
                extra[pos].extend(publish(n // 24))
                for k, l in enumerate(after.get(n // 24, [])): extra[pos + 2 + 2 * k].extend(l)
            extra[pos].extend(rd_w(n))
        for ks in range(10):
            for k, l in enumerate(ld_x(ks + 8)): extra[24 * ks + 23 + 2 * k + (0 if k == 0 else -1) + 1].extend(l)
        RAW, PH = XR + 16, XR + 32
        z = Seq(); y = phi_gather(z, RAW, PH, RAW + 12, RAW + 13); streams.append(z.l)
        for k, ins in enumerate(z.l): extra[24 * 16 + 2 + k].append(ins)
        r.ext(publish(0))
        for n in range(DW): r.ext(rd_w(n))
        for n in range(NF):
            ks, ph = n // 12, n % 12
            for rho in range(2):
                acc = vr((QACC + 4 * (2 * ph + rho)) if ph < 8 else (DB + 4 * (2 * (ph - 8) + rho)), 4)
                r("%s %s, %s, %s, %s" % (MF, acc, vr(FR + 4 * (n % 8), 4), vr(XR + 8 * (ks % 8) + 4 * rho, 4), "0" if ks == 0 else acc))
                r.ext(extra[2 * n + rho])
        if stamp: r.ext(STAMP(20))
        r.ext(y)
        for qb in range(2):
            for js in range(4):
                for hb in range(2):
                    a = QACC + 4 * (2 * (2 * js + hb) + qb)
                    r("v_pk_mul_f32 %s, %s, s[%d:%d]" % (vr(a, 2), vr(a, 2), S_C, S_C + 1)); r("v_pk_mul_f32 %s, %s, s[%d:%d]" % (vr(a + 2, 2), vr(a + 2, 2), S_C, S_C + 1))
                    d = Q + 16 * qb + 4 * js + 2 * hb
                    r("v_cvt_pk_bf16_f32 v%d, v%d, v%d" % (d, a, a + 1)); r("v_cvt_pk_bf16_f32 v%d, v%d, v%d" % (d + 1, a + 2, a + 3))
        U, VM, PK, EE, T8, LK = 56, 64, 72, 88, 108, XR + 40
        blk = lambda b, rho: DB + 4 * (2 * b + rho)
        r("v_and_b32 v%d, 15, v%d" % (T8, vLANE)); r("v_lshlrev_b32 v%d, 2, v%d" % (T8, T8)); r("v_add_u32 v%d, 64, v%d" % (T8, T8))
        for rho in range(2): r("ds_bpermute_b32 v%d, v%d, v%d" % (vG[rho], T8, blk(3, rho) + 2))
        for rho in range(2):
            t, u = TK + 4 * rho, U + 4 * rho
            for (d, b) in ((u, 2), (t + 2, 3), (t, 0), (VM + 4 * rho, 1)):
                r("v_cvt_pk_bf16_f32 v%d, v%d, v%d" % (d, blk(b, rho), blk(b, rho) + 1)); r("v_cvt_pk_bf16_f32 v%d, v%d, v%d" % (d + 1, blk(b, rho) + 2, blk(b, rho) + 3))
            r("v_mov_b32 v%d, v%d" % (u + 2, t + 3)); r("v_mov_b32 v%d, v%d" % (u + 3, t + 2))
            r("v_mov_b32 v%d, v%d" % (VM + 4 * rho + 2, t + 2)); r("v_mov_b32 v%d, 0x3f80" % (VM + 4 * rho + 3))
        for mu in range(2):
            for rho in range(2): r("%s %s, %s, %s, 0" % (MF, vr(PK + 8 * mu + 4 * rho, 4), vr(PH + 4 * mu, 4), vr(U + 4 * rho, 4)))
        for rho in range(2):
            g = vG[rho]
            r("v_mul_f32 v%d, s%d, v%d" % (g, S_L2E, g)); r("v_exp_f32 v%d, -v%d" % (g, g)); r("v_add_f32 v%d, 1.0, v%d" % (g, g)); r("v_rcp_f32 v%d, v%d" % (g, g))
        vF = 4
        r("v_and_b32 v6, 15, v%d" % vLANE); r("v_lshrrev_b32 v7, 4, v%d" % vLANE)
        FB = [3 * SLOT, 3 * SLOT + 5376, 3 * SLOT + 10752, 6 * SLOT, 6 * SLOT + 5376, 6 * SLOT + 10752, 7 * SLOT, 7 * SLOT + 5376]
        r("s_mul_i32 s6, s%d, 5376" % S_W); r("s_add_u32 s6, s6, %d" % FB[0])
        r("s_add_u32 s8, s6, %d" % (FB[3] - 3 * 5376 - FB[0])); r("s_cmp_ge_u32 s%d, 3" % S_W); r("s_cselect_b32 s6, s8, s6")
        r("s_add_u32 s8, s6, %d" % (FB[6] - 3 * 5376 - FB[3])); r("s_cmp_ge_u32 s%d, 6" % S_W); r("s_cselect_b32 s6, s8, s6")
        r("v_mul_u32_u24 v8, 168, v6"); r("v_lshl_add_u32 v8, v7, 3, v8"); r("v_add_u32 v%d, s6, v8" % vF)
        softmax5(r, PK, EE, T8, LK)
        if stamp: r.ext(STAMP(21))
        r("s_barrier")
        for rho in range(2):
            for b in range(3): r("ds_write_b64 v%d, %s offset:%d" % (vF, vr(LK + 8 * rho + 2 * b, 2), 2688 * rho + 32 * b))
            for b in range(2): r("ds_write_b64 v%d, %s offset:%d" % (vF, vr(VM + 4 * rho + 2 * b, 2), 2688 * rho + 96 + 32 * b))
        r("v_mov_b32 v%d, 0x44800000" % vTHR())
        r("v_mov_b32 v%d, v%d" % (vKA, vL16))
        r("s_mov_b32 s%d, 0xffff" % S_KR); r("v_mov_b32 v%d, 0x10000" % vC64); r("v_add_u32 v%d, 0x10000, v%d" % (vVA, vL16)); r("s_mov_b32 s%d, 0" % S_T)
        r("s_waitcnt lgkmcnt(0)")
        if role == 0: r.waitv("K0")
        r("s_barrier")
        if stamp: r.ext(STAMP(22))
        if role == 1: r("s_cmp_ge_u32 s%d, 6" % S_W); r("s_cbranch_scc1 K2_NC")
        CA, CB, CD = 56, 88, 120
        r("s_cmp_ge_u32 s%d, 3" % S_W); r("s_cselect_b32 s6, 1, 0"); r("s_mul_i32 s8, s6, 3"); r("s_sub_u32 s8, s%d, s8" % S_W)
        r("v_bfe_u32 v8, v%d, 2, 2" % vLANE); r("v_lshl_add_u32 v8, v7, 3, v8")
        r("v_and_b32 v9, 3, v%d" % vLANE); r("v_lshlrev_b32 v9, 3, v9")
        r("v_mul_u32_u24 v21, 168, v8"); r("v_add_u32 v21, v21, v9")
        r("s_lshl_b32 s9, s8, 5"); r("s_add_u32 s9, s9, %d" % FB[0]); r("v_add_u32 v4, s9, v21"); r("v_add_u32 v5, %d, v4" % (FB[6] - FB[0]))
        r("s_lshl_b32 s9, s6, 5"); r("s_add_u32 s9, s9, %d" % (FB[0] + 96)); r("v_add_u32 v6, s9, v21"); r("v_add_u32 v7, %d, v6" % (FB[6] - FB[0]))
        for ks in range(8):
            hi = ks >= 6; off = FB[ks] - (FB[6] if hi else FB[0])
            for (dst, a) in ((CA, 5 if hi else 4), (CB, 7 if hi else 6)):
                r("ds_read_b64_tr_b16 %s, v%d offset:%d" % (vr(dst + 4 * ks, 2), a, off)); r("ds_read_b64_tr_b16 %s, v%d offset:%d" % (vr(dst + 4 * ks + 2, 2), a, off + 4 * 168))
        for ks in range(8): r("%s %s, %s, %s, %s" % (MF, vr(CD, 4), vr(CA + 4 * ks, 4), vr(CB + 4 * ks, 4), "0" if ks == 0 else vr(CD, 4)))
        r("s_lshl_b32 s9, s%d, 3" % S_H); r("s_add_u32 s9, s9, s%d" % S_J); r("s_mul_i32 s9, s9, 6144"); r("s_add_u32 s9, s9, s%d" % S_MB); r("s_add_u32 s9, s9, %d" % WS_KVP)
        r("buffer_store_dwordx4 %s, v%d, %s, s9 offen sc1" % (vr(CD, 4), vL16, sr(SRD_WS, 4)), tag="KVP")
        if role == 1: r.label("K2_NC")
        if stamp and not os.environ.get("ITS"): r.ext(STAMP(30))
        for n in range(DRD): r.ext([rd_frag("K", n, n)])
        slots = []
        for k in range(8): slots.append(mkslot(qk_mfmas(k, 0, k, lambda qb: "0")))
        for n in range(8):
            if n + DRD < 16: slots[n]["rd"].append(rd_frag("K", n + DRD, n + DRD))
            slots[n]["post"].extend(Seq()("\n".join("v_mov_b32 v%d, 0" % (O + 8 * n + i) for i in range(8))).l)
        r.ext(emit_slots(slots))
        if stamp and not os.environ.get("ITS"): r.ext(STAMP(31))
        r.ext(mask_ops(0, 0))
        a, b, t = E_, E_ + 1, E_ + 2
        for qb, d in ((0, a), (1, b)):
            x = [sreg(0, 8 * qb + i) for i in range(8)]
            r("v_max3_f32 v%d, v%d, v%d, v%d" % (d, x[0], x[1], x[2])); r("v_max3_f32 v%d, v%d, v%d, v%d" % (d, d, x[3], x[4]))
            r("v_max3_f32 v%d, v%d, v%d, v%d" % (d, d, x[5], x[6])); r("v_max_f32 v%d, v%d, v%d" % (d, d, x[7]))
        red2(r, a, b, "v_max_f32", t)
        for qb, d in ((0, a), (1, b)):
            for i in range(4): r("v_sub_f32 v%d, 0, v%d" % (NEGM + 4 * qb + i, d))
        for qb, d in ((0, a), (1, b)):
            for i in range(8): r("v_sub_f32 v%d, v%d, v%d" % (sreg(0, 8 * qb + i), sreg(0, 8 * qb + i), d))
        r("s_lshl_b32 s6, s%d, 6" % S_TL)
        r("v_subrev_u32 v%d, s6, v%d" % (vQ, vQ)); r("v_subrev_u32 v%d, s6, v%d" % (vQ + 1, vQ + 1))
        slots = []
        for k in range(8): slots.append(mkslot(qk_mfmas(k, 1, 8 + k, NEGC)))
        for n in range(max(0, 8 - DRD)): slots[n]["rd"].append(rd_frag("K", 8 + DRD + n, 8 + DRD + n))
        place_sm(slots, 0, 8, 0, None, None, carry=False)
        r.ext(emit_slots(slots))
        if stamp and not os.environ.get("ITS"): r.ext(STAMP(32))
        r.waitv("KVP", "K1", "V0")
        r("s_barrier")
        if role == 0:
            r("s_add_u32 s%d, s%d, %d" % (S_KL, S_W4K, 3 * SLOT)); r("s_add_u32 s%d, s%d, %d" % (S_VL, S_W4K, 6 * SLOT))
            r("s_add_u32 s%d, s%d, %d" % (S_KG, S_KG, 3 * SLOT)); r("s_add_u32 s%d, s%d, %d" % (S_VG, S_VG, 2 * SLOT))
            r("s_mov_b32 m0, s%d" % S_KL)
            for e in range(4): r("buffer_load_dwordx4 v%d, %s, s%d offen offset:%d lds" % (vL16, sr(SRD_WS, 4), S_KG, 1024 * e))
            r("s_add_u32 s%d, s%d, %d" % (S_KG, S_KG, SLOT)); r("s_mov_b32 s%d, s%d" % (S_KL, S_W4K))
            r.ext(pkg())
        else:
            r("s_cmp_lg_u32 s%d, 7" % S_W); r("s_cbranch_scc1 K2_NA")
            r("v_mov_b32 v4, s%d" % S_HUGE); r("s_lshl_b32 s6, s%d, 2" % S_H); r("v_mov_b32 v5, s6")
            r("v_cmp_eq_u32 vcc, 0, v%d" % vLANE); r("v_cndmask_b32 v4, v4, v5, vcc"); r("v_mov_b32 v5, 1")
            r("buffer_atomic_add v5, v4, %s, 0 offen" % sr(SRD_DBG, 4))
            r.label("K2_NA")
        if stamp: r.ext(STAMP(23)); r.ext(RSTAMP(62))
        if DIAG: r("s_mov_b32 s92, 64\ns_mov_b32 s93, 64\ns_mov_b32 s94, 64")
        main, st1 = resolve_waits(r.l, st0)
        verify_streams(main, streams, "k2")
        st1.vm = []
        rares = []
        z = Seq()
        z("s_cmp_eq_u32 s%d, 0" % S_TL); z("s_cbranch_scc1 %s_PV" % RN)
        z.ext(adv(vKA))
        for n in range(DRD): z.ext([rd_frag("K", n, n) if n < 8 else rd_frag("V", n - 8, n)])
        z("s_cmp_le_u32 s%d, 1" % S_TL); z("s_cbranch_scc1 %s_S1" % RN)
        lz, stl = resolve_waits(z.l, st1)
        main += lz
        def res(var, st):
            l = iteration(role, var, rares if True else [])
            return resolve_waits(l, st)
        tmp = []
        b1, s1 = resolve_waits(iteration(role, "S", tmp), stl); s1.vm = []
        b2, s2 = resolve_waits(iteration(role, "S", rares), s1); s2.vm = []
        assert DRD != 8 and [x.text for x in b1] == [x.text for x in b2] and s1.sig() == s2.sig(), "loop not steady"
        h = Seq(); h.label("%s_LOOP" % RN)
        if os.environ.get("ITS"): h("s_memtime s[100:101]\ns_add_u32 m0, s%d, 28\ns_waitcnt lgkmcnt(0)\nv_writelane_b32 v0, s100, m0" % S_T)
        main += h.l + b2 + Seq()("s_cmp_lt_u32 s6, s%d" % S_TL)("s_cbranch_scc1 %s_LOOP" % RN)("s_branch %s_S1" % RN).l
        z = Seq(); z.label("%s_PV" % RN)
        for n in range(DRD): z.ext([rd_frag("V", n, n)])
        z("s_branch %s_S2" % RN)
        lz, _ = resolve_waits(z.l, st1)
        main += lz
        b, s3 = resolve_waits(iteration(role, "S1", rares), s1); s3.vm = []
        main += Seq().label("%s_S1" % RN).l + b + Seq()("s_add_u32 s%d, s%d, 1" % (S_T, S_T)).l
        b, s4 = resolve_waits(iteration(role, "S2", rares), s3); s4.vm = []
        main += Seq().label("%s_S2" % RN).l + b
        e = Seq()
        if stamp: e.ext(STAMP(24)); e.ext(RSTAMP(63))
        vFL = 4
        if role == 0:
            e("s_lshl_b32 s6, s%d, 2" % S_H); e("v_mov_b32 v5, s6")
            e("buffer_load_dword v%d, v5, %s, 0 offen sc1" % (vFL, sr(SRD_DBG, 4)))
        red2(e, vLs, vLs + 1, "v_add_f32", E_)
        for qb in range(2):
            e("v_rcp_f32 v%d, v%d" % (vLs + qb, vLs + qb)); e("v_mul_f32 v%d, v%d, v%d" % (E_ + 2 * qb, vLs + qb, vG[qb])); e("v_mov_b32 v%d, v%d" % (E_ + 2 * qb + 1, E_ + 2 * qb))
        e("s_lshl_b32 s6, s%d, 14" % S_H); e("s_add_u32 s6, s6, s%d" % S_AP)
        for js in range(4):
            for qb in range(2):
                t = FR + 4 * ((2 * js + qb) % 8)
                for hb in range(2):
                    a = O + 8 * (2 * js + hb) + 4 * qb
                    e("v_pk_mul_f32 %s, %s, %s" % (vr(a, 2), vr(a, 2), vr(E_ + 2 * qb, 2))); e("v_pk_mul_f32 %s, %s, %s" % (vr(a + 2, 2), vr(a + 2, 2), vr(E_ + 2 * qb, 2)))
                    e("v_cvt_pk_bf16_f32 v%d, v%d, v%d" % (t + 2 * hb, a, a + 1)); e("v_cvt_pk_bf16_f32 v%d, v%d, v%d" % (t + 2 * hb + 1, a + 2, a + 3))
                e("buffer_store_dwordx4 %s, v%d, %s, s6 offen offset:%d" % (vr(t, 4), vL16, sr(SRD_WS, 4), 1024 * qb))
            if js < 3: e("s_add_u32 s6, s6, 4096")
        if stamp: e.ext(STAMP(25))
        if role == 0:
            e.label("A_LD")
            e("s_add_u32 s%d, s%d, 1" % (S_T, S_T)); e("s_cmp_ge_u32 s%d, s%d" % (S_T, S_TBM)); e("s_cbranch_scc1 A_FIN")
            e.ext(sync_block(0, "LD"))
            e("s_cmp_ge_u32 s%d, 2" % S_W); e("s_cbranch_scc1 A_LD")
            e("s_cmp_eq_u32 s%d, 3" % S_R); e("s_cbranch_scc0 A_N3")
            e("s_waitcnt vmcnt(0)")
            e("buffer_load_dword v%d, v5, %s, 0 offen sc1" % (vFL, sr(SRD_DBG, 4)))
            e("s_branch A_LD")
            e.label("A_N3")
            e("s_cmp_eq_u32 s%d, 2" % S_R); e("s_cbranch_scc0 A_LD")
            e.label("A_POLL")
            e("s_waitcnt vmcnt(0)")
            e("v_readfirstlane_b32 s6, v%d" % vFL); e("s_cmp_ge_u32 s6, 8"); e("s_cbranch_scc1 A_GO")
            e("s_sleep 4")
            e("buffer_load_dword v%d, v5, %s, 0 offen sc1" % (vFL, sr(SRD_DBG, 4)))
            e("s_branch A_POLL")
            e.label("A_GO")
            KR_ = 56
            e("s_mul_i32 s6, s%d, 49152" % S_H); e("s_mul_i32 s8, s%d, 3072" % S_W); e("s_add_u32 s6, s6, s8"); e("s_add_u32 s6, s6, %d" % WS_KVP)
            for p in range(8):
                for mu in range(3): e("buffer_load_dwordx4 %s, v%d, %s, s6 offen offset:%d sc1" % (vr(KR_ + 12 * p + 4 * mu, 4), vL16, sr(SRD_WS, 4), 1024 * mu))
                if p < 7: e("s_add_u32 s6, s6, 6144")
            for p in range(1, 8):
                for i in range(12): e("v_add_f32 v%d, v%d, v%d" % (KR_ + i, KR_ + i, KR_ + 12 * p + i))
            for i in range(6): e("v_cvt_pk_bf16_f32 v%d, v%d, v%d" % (FR + i, KR_ + 2 * i, KR_ + 2 * i + 1))
            e("v_mov_b32 v%d, 0" % (FR + 6)); e("v_mov_b32 v%d, 0" % (FR + 7))
            e("s_lshl_b32 s6, s%d, 11" % S_W); e("s_add_u32 s6, s6, %d" % KVX); e("v_add_u32 v6, s6, v%d" % vL16)
            e("ds_write_b128 v6, %s" % vr(FR, 4)); e("ds_write_b128 v6, %s offset:1024" % vr(FR + 4, 4))
            e("s_waitcnt lgkmcnt(0)")
            e("s_branch A_LD")
            e.label("A_FIN")
            e("s_waitcnt vmcnt(0)")
        RAW, PH, PK, EE, T8, LQ, KF_, ND = 56, 72, 80, 96, 116, 120, 136, 152
        y = phi_gather(e, RAW, PH, RAW + 12, RAW + 13)
        e("v_add_u32 v6, %d, v%d" % (KVX, vL16))
        for i in range(4): e("ds_read_b128 %s, v6 offset:%d" % (vr(KF_ + 4 * i, 4), 1024 * i))
        e.ext(y)
        for mu in range(2):
            for rho in range(2): e("%s %s, %s, %s, 0" % (MF, vr(PK + 8 * mu + 4 * rho, 4), vr(PH + 4 * mu, 4), vr(TK + 4 * rho, 4)))
        softmax5(e, PK, EE, T8, LQ)
        for rho in range(2): e("v_mov_b32 v%d, 0" % (LQ + 8 * rho + 6)); e("v_mov_b32 v%d, 0" % (LQ + 8 * rho + 7))
        for rho in range(2):
            for nu in range(2):
                d = vr(ND + 8 * rho + 4 * nu, 4)
                e("%s %s, %s, %s, 0" % (MF, d, vr(KF_ + 8 * nu, 4), vr(LQ + 8 * rho, 4)))
                e("%s %s, %s, %s, %s" % (MF, d, vr(KF_ + 8 * nu + 4, 4), vr(LQ + 8 * rho + 4, 4), d))
        e("s_lshr_b32 s6, s%d, 1" % S_H); e("s_add_u32 s6, s6, 128"); e("s_lshl_b32 s6, s6, 12"); e("s_add_u32 s6, s6, s%d" % S_AP)
        e("s_and_b32 s8, s%d, 1" % S_H); e("s_lshl_b32 s8, s8, 3"); e("s_add_u32 s6, s6, s8")
        e("s_lshr_b32 s8, s%d, 4" % S_H); e("s_add_u32 s8, s8, 144"); e("s_lshl_b32 s8, s8, 12"); e("s_add_u32 s8, s8, s%d" % S_AP)
        e("s_lshr_b32 s9, s%d, 2" % S_H); e("s_and_b32 s9, s9, 3"); e("s_lshl_b32 s9, s9, 8"); e("s_add_u32 s8, s8, s9")
        e("s_and_b32 s9, s%d, 3" % S_H); e("s_lshl_b32 s9, s9, 2"); e("s_add_u32 s8, s8, s9")
        e("v_and_b32 v6, 15, v%d" % vLANE); e("v_lshlrev_b32 v6, 4, v6"); e("v_lshrrev_b32 v7, 4, v%d" % vLANE)
        e("v_mov_b32 v8, s%d" % S_HUGE); e("v_cmp_ne_u32 vcc, 1, v7"); e("v_cndmask_b32 v6, v6, v8, vcc")
        e("s_mov_b32 s9, 0x%x" % f2u(1e-6))
        for rho in range(2):
            n = ND + 8 * rho
            e("v_add_f32 v8, s9, v%d" % (n + 6)); e("v_rcp_f32 v8, v8"); e("v_sub_f32 v9, 1.0, v%d" % vG[rho]); e("v_mul_f32 v8, v8, v9")
            for i in range(6): e("v_mul_f32 v%d, v%d, v8" % (n + i, n + i))
            for i in range(3): e("v_cvt_pk_bf16_f32 v%d, v%d, v%d" % (n + i, n + 2 * i, n + 2 * i + 1))
            e("buffer_store_dwordx2 %s, v%d, %s, s6 offen offset:%d" % (vr(n, 2), vL16, sr(SRD_WS, 4), 1024 * rho))
            e("buffer_store_dword v%d, v6, %s, s8 offen offset:%d" % (n + 2, sr(SRD_WS, 4), 1024 * rho))
        if DIAG: e("v_writelane_b32 v0, s92, 40\nv_writelane_b32 v0, s93, 41\nv_writelane_b32 v0, s94, 42")
        if stamp: e.ext(STAMP(26)); e("s_waitcnt vmcnt(0)"); e.ext(STAMP(27)); e.ext(RSTAMP(61)); e.ext(STAMPOUT(S_W, vLANE, SRD_WS, 6, base=1 << 20))
        if role == 1: e.label("K2_END")
        e("s_endpgm")
        le, _ = resolve_waits(e.l, s4)
        outl += main + le
        for rb in rares: cold += rb.l
    return fix_hazards(outl + cold)
```

```python
from gen_common import *
MF = "v_mfma_f32_16x16x32_bf16"

import os
def gen_k3(stamp=False):
    q = Seq()
    EXP = os.environ.get("K3EXP", "")
    S_W, S_TILE, S_CT = 5, 3, 4
    SRD_A, SRD_W, SRD_OUT, SRD_WS = 44, 48, 52, 56
    vLANE, vA, vW, vW5, vO, vO5 = 1, 2, 3, 4, 5, 6
    RING, NR = 16, 6
    q("s_cmp_ge_u32 s2, 256"); q("s_cbranch_scc1 K3_END")
    load_args(q)
    q("s_and_b32 s%d, s2, 7" % S_TILE); q("s_lshl_b32 s%d, s%d, 2" % (S_TILE, S_TILE))
    q("s_lshr_b32 s6, s2, 3"); q("s_and_b32 s6, s6, 3"); q("s_add_u32 s%d, s%d, s6" % (S_TILE, S_TILE))
    q("s_lshr_b32 s%d, s2, 5" % S_CT)
    if "same" in EXP: q("s_mov_b32 s%d, 0" % S_TILE); q("s_mov_b32 s%d, 0" % S_CT)
    if "xa" in EXP: q("s_and_b32 s%d, s2, 7" % S_TILE); q("s_mov_b32 s%d, 0" % S_CT)
    q("v_lshrrev_b32 v7, 6, v0"); q("v_and_b32 v%d, 63, v0" % vLANE); q("v_readfirstlane_b32 s%d, v7" % S_W)
    q("v_lshlrev_b32 v8, 4, v%d" % vLANE)
    q("v_lshl_add_u32 v%d, v7, 12, v8" % vA)
    q("v_mul_u32_u24 v9, 4608, v7"); q("v_add_u32 v%d, v9, v8" % vW)
    q("v_lshrrev_b32 v10, 4, v%d" % vLANE); q("v_and_b32 v11, 15, v%d" % vLANE)
    q("v_lshl_add_u32 v12, v10, 3, v11"); q("v_lshl_add_u32 v12, v12, 4, v9"); q("v_add_u32 v12, 4096, v12")
    q("v_mov_b32 v13, 0x%x" % HUGE); q("v_cmp_le_u32 vcc, 8, v11"); q("v_cndmask_b32 v%d, v12, v13, vcc" % vW5)
    q("s_mul_i32 s6, s%d, %d" % (S_TILE, NSTEP * 4096)); q("s_add_u32 s6, s6, %d" % WS_AP)
    mk_srd(q, SRD_A, P_WS, NSTEP * 4096, add="s6")
    q("s_mul_i32 s6, s%d, %d" % (S_CT, NSTEP * 4608)); q("s_add_u32 s6, s6, %d" % WS_WP)
    mk_srd(q, SRD_W, P_WS, NSTEP * 4608, add="s6")
    if stamp: mk_srd(q, SRD_WS, P_WS, WS_SIZE); q.ext(STAMP(0)); q.ext(RSTAMP(60))
    NS = 37
    def loads(n):
        z = Seq(); b = RING + 36 * (n % NR)
        z("s_mov_b32 s8, %d" % (n * 4 * 4096)); z("s_mov_b32 s9, %d" % (n * 4 * 4608))
        for i in range(4):
            z("buffer_load_dwordx4 %s, v%d, %s, s9 offen offset:%d" % (vr(b + 16 + 4 * i, 4), vW, sr(SRD_W, 4), 1024 * i))
            z("buffer_load_dwordx4 %s, v%d, %s, s8 offen offset:%d" % (vr(b + 4 * i, 4), vA, sr(SRD_A, 4), 1024 * i))
        z("buffer_load_dwordx4 %s, v%d, %s, s9 offen" % (vr(b + 32, 4), vW5, sr(SRD_W, 4)))
        return z
    for n in range(NR): q.ext(loads(n))
    mk_srd(q, SRD_OUT, P_OUT, 2048 * 1152)
    q("s_lshl_b32 s6, s%d, 6" % S_TILE); q("s_lshl_b32 s7, s%d, 4" % S_W); q("s_add_u32 s6, s6, s7")
    q("v_add_u32 v12, s6, v11"); q("v_mul_u32_u24 v12, 1152, v12"); q("v_lshl_add_u32 v12, v10, 3, v12")
    q("s_mul_i32 s6, s%d, 144" % S_CT); q("v_add_u32 v%d, s6, v12" % vO)
    q("v_cmp_le_u32 vcc, 2, v10"); q("v_cndmask_b32 v%d, v%d, v13, vcc" % (vO5, vO))
    for n in range(NS):
        b = RING + 36 * (n % NR)
        for fi in range(5):
            for rb in range(4):
                if "nomfma" in EXP and n > 0 and not (rb == fi or fi == 4 and rb == 0): continue
                acc = ar(4 * (5 * rb + fi), 4)
                q("%s %s, %s, %s, %s" % (MF, acc, vr(b + 16 + 4 * fi, 4), vr(b + 4 * rb, 4), "0" if n == 0 else acc))
        if n + NR < NS: q.ext(loads(n + NR))
        if stamp and n % 4 == 0: q.ext(STAMP(1 + n // 4))
    if stamp: q.ext(STAMP(20))
    q("s_mul_i32 s6, s%d, 20480" % S_W); q("v_add_u32 v9, s6, v8")
    for blk in range(20): q("ds_write_b128 v9, %s offset:%d" % (ar(4 * blk, 4), 1024 * blk))
    q("s_mul_i32 s6, s%d, 5120" % S_W); q("v_add_u32 v9, s6, v8"); q("v_add_u32 v14, 40960, v9")
    q("s_waitcnt lgkmcnt(0)"); q("s_barrier")
    T = RING
    for fi in range(5):
        for u in range(4):
            q("ds_read_b128 %s, v%d offset:%d" % (vr(T + 16 * fi + 4 * u, 4), 9 if u < 2 else 14, (u & 1) * 20480 + 1024 * fi))
    for fi in range(5):
        t = T + 16 * fi
        for r in range(4):
            q("v_add_f32 v%d, v%d, v%d" % (t + r, t + r, t + 4 + r)); q("v_add_f32 v%d, v%d, v%d" % (t + 8 + r, t + 8 + r, t + 12 + r))
        for r in range(4): q("v_add_f32 v%d, v%d, v%d" % (t + r, t + r, t + 8 + r))
        q("v_cvt_pk_bf16_f32 v%d, v%d, v%d" % (t, t, t + 1)); q("v_cvt_pk_bf16_f32 v%d, v%d, v%d" % (t + 1, t + 2, t + 3))
        q("buffer_store_dwordx2 %s, v%d, %s, 0 offen offset:%d" % (vr(t, 2), vO if fi < 4 else vO5, sr(SRD_OUT, 4), 32 * fi))
    if stamp:
        q.ext(STAMP(21)); q("s_waitcnt vmcnt(0)"); q.ext(STAMP(22)); q.ext(RSTAMP(61)); q.ext(STAMPOUT(S_W, vLANE, SRD_WS, 7, base=2 << 20))
    q.label("K3_END"); q("s_endpgm")
    l, _ = resolve_waits(q.l)
    return fix_hazards(l)
```

```python
import sys
from gen_common import *
from gen_k1 import gen_k1

NAME = "gated_mix__compressed_kv_cla__linear_kernel_hedgehog__prompt"
def build(which, out):
    ks = []
    if "1" in which: ks.append(("k1_kernel", gen_k1(stamp=("s" in which)), 256, 256, 256, 512, 163840))
    if "2" in which:
        from gen_k2 import gen_k2
        from gen_k2 import K2_LDS
        ks.append(("k2_kernel", gen_k2(stamp=("s" in which)), 256, 256, 256, 512, K2_LDS))
    if "3" in which:
        from gen_k3 import gen_k3
        ks.append(("k3_kernel", gen_k3(stamp=("s" in which)), 336, 256, 256, 256, 81920))
    if "f" in which:
        from gen_f import gen_f, F_LDS
        ks.append((NAME + "_kernel", gen_f(stamp=("s" in which)), 256, 256, 256, 512, F_LDS))
    head = open("cdna_kernels/%s.s.ref" % NAME).read().split("; Override launch")[0]
    txt = head
    for (n, l, nv, acc, grid, blk, lds) in ks:
        if "f" in which and "l" not in which: txt += "; @launch grid=(%d,1,1) block=(%d,1,1) lds=%d\n" % (grid, blk, lds)
        else: txt += "; @launch kernel=%s grid=(%d,1,1) block=(%d,1,1) lds=%d\n" % (n, grid, blk, lds)
    txt += '.amdgcn_target "amdgcn-amd-amdhsa--gfx950"\n.text\n'
    descs = ""; np_ = 0
    for (n, l, nv, acc, grid, blk, lds) in ks:
        b, d, p = kernel_text(n, l, nv, acc)
        print(n, "instructions:", len(l), "problems:", p)
        txt += b; descs += ".p2align 6\n" + d; np_ += p
    txt += '.section .rodata,"a"\n' + descs
    open(out, "w").write(txt)
if __name__ == "__main__":
    build(sys.argv[1], sys.argv[2])
```

```python
import re

TRANS = ("v_exp_f32", "v_log_f32", "v_rcp_f32", "v_rsq_f32", "v_sqrt_f32", "v_sin_f32", "v_cos_f32")

def regs_of(tok):
    tok = tok.strip()
    if tok.startswith("-"): tok = tok[1:]
    m = re.fullmatch(r"abs\((.*)\)", tok)
    if m: tok = m.group(1)
    m = re.fullmatch(r"\|(.*)\|", tok)
    if m: tok = m.group(1)
    m = re.fullmatch(r"([vsa])(\d+)", tok)
    if m: return [(m.group(1), int(m.group(2)))]
    m = re.fullmatch(r"([vsa])\[(\d+):(\d+)\]", tok)
    if m: return [(m.group(1), i) for i in range(int(m.group(2)), int(m.group(3)) + 1)]
    if tok == "vcc": return [("s", 106), ("s", 107)]
    if tok == "vcc_lo": return [("s", 106)]
    if tok == "vcc_hi": return [("s", 107)]
    if tok in ("exec", "exec_lo", "exec_hi"): return [("exec", 0)]
    if tok == "m0": return [("m0", 0)]
    return []

class I:
    __slots__ = ("text", "op", "ops", "mods", "rd", "wr", "kind", "tag", "label", "target", "cnt", "wait_tags",
                 "srcA", "srcB", "srcC", "comment", "stdata", "auto", "nowaw")
    def __init__(self, text, tag=None, comment=None):
        self.text = text.strip(); self.tag = tag; self.comment = comment
        self.label = None; self.target = None; self.wait_tags = None; self.auto = False; self.nowaw = False
        self.srcA = self.srcB = self.srcC = []; self.stdata = []
        self.rd = []; self.wr = []; self.cnt = None
        t = self.text
        if t.endswith(":"):
            self.kind = "label"; self.label = t[:-1]; self.op = ""; self.ops = []; self.mods = ""; return
        parts = t.split(None, 1)
        self.op = op = parts[0]
        rest = parts[1] if len(parts) > 1 else ""
        ops = [x.strip() for x in re.split(r",(?![^\[]*\])", rest)] if rest else []
        mods = ""
        if ops:
            last = ops[-1].split(None, 1)
            ops[-1] = last[0] if last else ""
            mods = last[1] if len(last) > 1 else ""
        self.ops = ops; self.mods = mods
        R = lambda i: regs_of(ops[i]) if i < len(ops) else []
        allr = lambda a: [r for i in range(a, len(ops)) for r in regs_of(ops[i])]
        if op.startswith("v_mfma"):
            self.kind = "mfma8" if "32x32x16" in op else "mfma4"
            self.wr = R(0); self.srcA = R(1); self.srcB = R(2); self.srcC = R(3)
            self.rd = self.srcA + self.srcB + self.srcC
        elif op.startswith("v_cmp"):
            self.kind = "valu"; self.wr = R(0); self.rd = allr(1)
        elif op.startswith("v_writelane"):
            self.kind = "valu"; self.wr = R(0); self.rd = allr(0)
        elif op.startswith("v_readfirstlane") or op.startswith("v_readlane"):
            self.kind = "valu"; self.wr = R(0); self.rd = allr(1)
        elif op.startswith("v_permlane"):
            self.kind = "valu"; self.wr = R(0) + R(1); self.rd = R(0) + R(1)
        elif op.startswith("v_add_co") or op.startswith("v_addc_co") or op.startswith("v_sub_co"):
            self.kind = "valu"; self.wr = R(0) + R(1); self.rd = allr(2)
        elif op.startswith("v_"):
            self.kind = "trans" if op.replace("_e64", "").replace("_e32", "") in TRANS else "valu"
            self.wr = R(0); self.rd = allr(1)
            if op.startswith("v_fmac") or op.startswith("v_pk_fmac"): self.rd = self.rd + R(0)
            if op == "v_nop": self.kind = "nop"; self.cnt = 1
        elif op.startswith("ds_bpermute"):
            self.kind = "ds_rd"; self.wr = R(0); self.rd = allr(1)
        elif op.startswith("ds_read"):
            self.kind = "ds_rd"; self.wr = R(0); self.rd = R(1)
        elif op.startswith("ds_write") or op.startswith("ds_add"):
            self.kind = "ds_wr"; self.rd = allr(0)
        elif op.startswith("buffer_load") or op.startswith("global_load"):
            if " lds" in (" " + mods) or "_lds_" in op:
                self.kind = "dma"; self.rd = allr(0) + [("m0", 0)]
            else:
                self.kind = "vm_ld"; self.wr = R(0); self.rd = allr(1)
        elif op.startswith("buffer_store") or op.startswith("global_store"):
            self.kind = "vm_st"; self.rd = allr(0)
            d = R(0) if op.startswith("buffer") else R(1)
            if len(d) >= 3: self.stdata = d
        elif op.startswith("buffer_atomic") or op.startswith("global_atomic"):
            self.kind = "vm_st"; self.rd = allr(0)
        elif op in ("buffer_wbl2", "buffer_inv"):
            self.kind = "vm_st"
        elif op.startswith("s_load") or op.startswith("s_memtime") or op.startswith("s_memrealtime"):
            self.kind = "smem"; self.wr = R(0); self.rd = allr(1)
        elif op == "s_waitcnt":
            self.kind = "wait"
            vm = re.search(r"vmcnt\((\d+)\)", t); lg = re.search(r"lgkmcnt\((\d+)\)", t)
            self.cnt = (int(vm.group(1)) if vm else None, int(lg.group(1)) if lg else None)
        elif op == "WAITV":
            self.kind = "waitv"
        elif op == "s_barrier":
            self.kind = "barrier"
        elif op == "s_nop":
            self.kind = "nop"; self.cnt = int(ops[0]) + 1
        elif op == "s_endpgm":
            self.kind = "end"
        elif op == "s_branch":
            self.kind = "jump"; self.target = ops[0]
        elif op.startswith("s_cbranch"):
            self.kind = "cbranch"; self.target = ops[0]
            if "scc" in op: self.rd = [("scc", 0)]
            elif "vcc" in op: self.rd = [("s", 106), ("s", 107)]
            elif "exec" in op: self.rd = [("exec", 0)]
        elif op.startswith("s_cmp") or op.startswith("s_bitcmp"):
            self.kind = "salu"; self.rd = allr(0); self.wr = [("scc", 0)]
        elif op in ("s_setprio", "s_sleep"):
            self.kind = "salu"
        elif op.startswith("s_"):
            self.kind = "salu"; self.wr = R(0) + [("scc", 0)]; self.rd = allr(1)
            if op.startswith("s_cselect") or op.startswith("s_addc"): self.rd = self.rd + [("scc", 0)]
            if op.startswith("s_mov") or op.startswith("s_cselect") or op.startswith("s_mul") or op.startswith("s_getpc"): self.wr = R(0)
            if "saveexec" in op: self.wr = self.wr + [("exec", 0)]; self.rd = self.rd + [("exec", 0)]
            if op.startswith("s_addk") or op.startswith("s_mulk"): self.rd = self.rd + R(0)
        else:
            raise ValueError("unknown instruction " + t)
    def states(self):
        if self.kind == "label": return 0
        if self.kind == "nop": return self.cnt
        return 1
    def isvalu(self): return self.kind in ("valu", "trans")
    def ismfma(self): return self.kind in ("mfma8", "mfma4")
    def isvm(self): return self.kind in ("vm_ld", "vm_st", "dma")
    def islgkm(self): return self.kind in ("ds_rd", "ds_wr", "smem")
    def __repr__(self): return self.text

def need_states(p, c):
    n = 0
    pw = set(p.wr); cr = set(c.rd); cw = set(c.wr)
    vw = {r for r in pw if r[0] in "va"}
    sw = {r for r in pw if r[0] == "s"}
    if p.isvalu():
        if c.ismfma() and vw & cr: n = max(n, 2)
        if c.op.startswith("v_permlane") and vw & cr: n = max(n, 2)
        if (c.op.startswith("v_readfirstlane") or c.op.startswith("v_readlane")) and vw & cr: n = max(n, 1)
        if sw:
            if c.isvalu() and sw & cr: n = max(n, 2)
            if c.isvm() and sw & cr: n = max(n, 5)
            if c.kind in ("salu", "smem") and sw & cr: n = max(n, 1)
        if p.kind == "trans" and c.kind == "valu" and vw & cr: n = max(n, 1)
        if p.kind == "trans" and (c.kind in ("ds_wr", "vm_st")) and vw & cr: n = max(n, 1)
    if p.ismfma():
        big = p.kind == "mfma8"
        if c.ismfma():
            if vw & (set(c.srcA) | set(c.srcB)): n = max(n, 12 if big else 8)
            cc = set(c.srcC)
            if vw & cc:
                if not (p.wr == c.srcC and p.kind == c.kind): n = max(n, 10 if big else 6)
            elif vw & cw:
                n = max(n, 12 if big else 8)
        elif c.isvalu() or c.isvm() or c.kind in ("ds_rd", "ds_wr"):
            if vw & (cr | cw): n = max(n, 12 if big else 8)
        if c.isvalu() and set(p.srcC) & cw: n = max(n, 7 if big else 3)
    if p.kind == "salu" and ("m0", 0) in pw and c.kind == "dma": n = max(n, 1)
    if p.kind == "vm_st" and p.stdata and set(p.stdata) & cw and (c.isvalu() or c.ismfma() or c.kind in ("ds_rd", "vm_ld")):
        n = max(n, 2)
    return n
MAXWIN = 13

class Pend:
    def __init__(self, vm=None, lg=None):
        self.vm = list(vm or []); self.lg = list(lg or [])
    def copy(self): return Pend(self.vm, self.lg)
    def sig(self):
        f = lambda q: tuple((e[0], tuple(e[1]), e[2]) for e in q)
        return (f(self.vm), f(self.lg))

def entry(ins):
    return (ins.kind, tuple(ins.wr), ins.tag)

def resolve_waits(seq, st=None):
    st = st.copy() if st else Pend()
    out = []
    for ins in seq:
        if ins.kind == "wait" and ins.tag == "OPT":
            out.append(ins); continue
        if ins.kind == "wait":
            vm, lg = ins.cnt
            if vm is not None: st.vm = st.vm[len(st.vm) - vm:] if vm < len(st.vm) and vm > 0 else ([] if vm == 0 else st.vm)
            if lg is not None: st.lg = st.lg[len(st.lg) - lg:] if lg < len(st.lg) and lg > 0 else ([] if lg == 0 else st.lg)
            out.append(ins); continue
        needv = None; needl = None
        if ins.kind == "waitv":
            tags = ins.wait_tags
            for k, e in enumerate(st.vm):
                if e[2] in tags: needv = len(st.vm) - 1 - k
            for k, e in enumerate(st.lg):
                if e[2] in tags: needl = len(st.lg) - 1 - k
        else:
            touch = set(ins.rd) | (set() if ins.nowaw else set(ins.wr))
            for k, e in enumerate(st.vm):
                if touch & set(e[1]): needv = len(st.vm) - 1 - k
            smem_pending = any(e[0] == "smem" for e in st.lg)
            for k, e in enumerate(st.lg):
                if touch & set(e[1]): needl = 0 if smem_pending else len(st.lg) - 1 - k
        if needv is not None or needl is not None:
            parts = []
            if needv is not None:
                needv = min(needv, 63); parts.append("vmcnt(%d)" % needv)
                st.vm = st.vm[len(st.vm) - needv:] if needv else []
            if needl is not None:
                needl = min(needl, 15); parts.append("lgkmcnt(%d)" % needl)
                st.lg = st.lg[len(st.lg) - needl:] if needl else []
            w = I("s_waitcnt " + " ".join(parts)); w.auto = True
            out.append(w)
        if ins.kind in ("waitv", "touch"): continue
        if ins.isvm() and ins.tag == "OPT":
            out.append(ins); continue
        if ins.isvm() and len(st.vm) >= 60:
            w = I("s_waitcnt vmcnt(54)"); w.auto = True; out.append(w); st.vm = st.vm[len(st.vm) - 54:]
        if ins.isvm():
            st.vm.append(entry(ins))
            assert len(st.vm) <= 63, "more than 63 vmem ops outstanding at " + ins.text
        if ins.islgkm():
            st.lg.append(entry(ins))
            if ins.kind == "smem" and len(ins.wr) > 1: st.lg.append(entry(ins))
        out.append(ins)
    return out, st

def fix_hazards(seq):
    out = []
    for ins in seq:
        if ins.kind not in ("label", "nop", "wait", "barrier"):
            dist = 0; need = 0; skip = None
            for k in range(len(out) - 1, max(-1, len(out) - 80), -1):
                p = out[k]
                if p.kind in ("jump", "end") and skip is None: break
                n = need_states(p, ins)
                if n > dist: need = max(need, n - dist)
                if p.kind == "label" and skip is None:
                    if any(x.kind == "cbranch" and x.target == p.label for x in out[max(0, k - 40):k]): skip = p.label
                if skip is not None and p.kind == "cbranch" and p.target == skip: skip = None
                if skip is None: dist += p.states()
                if dist >= MAXWIN: break
            while need > 0:
                k = min(need, 16)
                w = I("s_nop %d" % (k - 1)); w.auto = True
                out.append(w); need -= k
        out.append(ins)
    return out

def check_cfg(seq, name=""):
    labels = {ins.label: i for i, ins in enumerate(seq) if ins.kind == "label"}
    def succ(i):
        ins = seq[i]
        if ins.kind == "end": return []
        if ins.kind == "jump": return [labels[ins.target]]
        if ins.kind == "cbranch": return [i + 1, labels[ins.target]]
        return [i + 1] if i + 1 < len(seq) else []
    probs = []
    for i, p in enumerate(seq):
        if not (p.isvalu() or p.ismfma() or p.kind in ("salu", "vm_st")): continue
        stack = [(s, 0) for s in succ(i)]; seen = set()
        while stack:
            j, d = stack.pop()
            if (j, d) in seen or d >= MAXWIN: continue
            seen.add((j, d))
            c = seq[j]
            if c.kind not in ("label", "nop", "wait", "barrier"):
                n = need_states(p, c)
                if n > d: probs.append("%s hazard: [%d] %s -> [%d] %s needs %d has %d" % (name, i, p.text, j, c.text, n, d))
            for s in succ(j): stack.append((s, d + c.states()))
    seen = set(); stack = [(0, Pend())]; steps = 0
    while stack:
        i, st = stack.pop()
        while True:
            steps += 1
            if steps > 3000000:
                probs.append(name + " wait check gave up"); return probs
            ins = seq[i]
            if ins.kind == "label" or ins.kind in ("cbranch", "jump"):
                key = (i, st.sig())
                if key in seen: break
                seen.add(key)
            if ins.kind == "wait":
                vm, lg = ins.cnt
                if vm is not None and vm < len(st.vm): st.vm = st.vm[len(st.vm) - vm:] if vm else []
                if lg is not None:
                    if lg == 0: st.lg = []
                    elif lg < len(st.lg) and not any(e[0] == "smem" for e in st.lg): st.lg = st.lg[len(st.lg) - lg:]
            else:
                touch = set(ins.rd) | (set() if ins.nowaw else set(ins.wr))
                for q in (st.vm, st.lg):
                    for e in q:
                        if touch & set(e[1]):
                            probs.append("%s wait: [%d] %s touches pending %s" % (name, i, ins.text, e[1][:2]))
                if ins.isvm():
                    st.vm.append((ins.kind, tuple(ins.wr), None))
                    while len(st.vm) > 64: st.vm.pop(0)
                    while st.vm and not st.vm[0][1]: st.vm.pop(0)
                if ins.islgkm():
                    st.lg.append((ins.kind, tuple(ins.wr), None))
                    if ins.kind == "smem" and len(ins.wr) > 1: st.lg.append((ins.kind, tuple(ins.wr), None))
                    while len(st.lg) > 40: st.lg.pop(0)
                    while st.lg and not st.lg[0][1]: st.lg.pop(0)
            ss = succ(i)
            if not ss: break
            for s in ss[1:]: stack.append((s, st.copy()))
            i = ss[0]
    return sorted(set(probs))

class Seq:
    def __init__(self): self.l = []
    def __call__(self, text, tag=None):
        for t in text.strip().split("\n"):
            t = t.split(";")[0].strip()
            if t: self.l.append(I(t, tag=tag))
        return self
    def waitv(self, *tags):
        w = I("WAITV"); w.wait_tags = set(tags); self.l.append(w); return self
    def label(self, name): self.l.append(I(name + ":")); return self
    def ext(self, other): self.l.extend(other.l if isinstance(other, Seq) else other); return self
    def __len__(self): return len(self.l)

def interleave(slots, fillers, per_slot=None, start=0, end=None):
    n = len(slots); end = n if end is None else end
    out = []
    m = len(fillers); k = 0; span = max(1, end - start)
    for i, s in enumerate(slots):
        out.extend(s)
        if start <= i < end:
            upto = (m * (i - start + 1) + span - 1) // span if per_slot is None else min(m, per_slot * (i - start + 1))
            while k < upto: out.append(fillers[k]); k += 1
    out.extend(fillers[k:])
    return out

def render(seq):
    o = []
    for ins in seq:
        o.append(ins.text if ins.kind == "label" else "    " + ins.text)
    return "\n".join(o)

def verify_streams(final, streams, name=""):
    pos = {id(x): i for i, x in enumerate(final)}
    writers = {}
    for i, x in enumerate(final):
        for r in x.wr: writers.setdefault(r, []).append(i)
    import bisect
    probs = []
    for s in streams:
        s = s.l if isinstance(s, Seq) else s
        last = {}; prev = -1
        for c in s:
            if id(c) not in pos: continue
            pc = pos[id(c)]
            if pc < prev: probs.append("%s order broken at %s" % (name, c.text))
            prev = pc
            for r in c.rd:
                if r in last:
                    w = writers[r]; k = bisect.bisect_left(w, pc) - 1
                    if k >= 0 and w[k] != last[r]:
                        probs.append("%s clobber: %s reads %s written in between by %s" % (name, c.text, r, final[w[k]].text))
            for r in c.wr: last[r] = pc
    for p in probs[:20]: print("PROBLEM", p)
    return probs
```

```python
from gen_common import *
from gen_k1 import wg_decode, fmt_job
MF = "v_mfma_f32_16x16x32_bf16"
SLOT = 16384
PHL = 9 * SLOT
KVX = PHL + 2048
K2_LDS = KVX + 4096

S_H, S_J, S_W, S_ROW0 = 3, 4, 5, 7
SRD_WS, SRD_DBG, S_HUGE, S_TMP, S_RG, S_SPIN = 44, 48, 52, 53, 54, 55
SRD_CK, SRD_W, SRD_X, SRD_WB, SRD_GATE, SRD_WO = 56, 60, 64, 68, 72, 76
S_W4K, S_ST, M1, M2 = 80, 82, 88, 90
SRD_WQ, S_MW, S_MB, S_WBG, S_XB = 92, 96, 97, 98, 99
SRD_PHI, S_KG, S_VG, S_KL, S_VL, S_KR, S_T, S_TL, S_TBM, S_L2E, S_AP, S_C, S_R = 56, 60, 61, 62, 63, 64, 65, 66, 67, 68, 69, 70, 72
S_ST2 = 86
SRD_WS2, S_WOSZ, SRD_J, S_JU = 92, 81, 84, 73
MK = [74, 76, 78, 90]
vLANE, vL16, vWo, vWR, vBR, vKA, vVA, vQ, vLs, vPS, vTM, vNINF, vM5 = 1, 2, 3, 4, 12, 13, 14, 15, 17, 19, 21, 22, 23
vG = [3, 12]
FR, DB, Q, TK, O = 24, 160, 216, 248, 128
XRS = [88, 96, 104, 112, 120]
NXR = 5
FR2 = [120, 124, 192, 196, 200, 204, 208, 212]
def qacc(cb, rho):
    n = 2 * cb + rho
    return 56 + 4 * n if n < 8 else 128 + 4 * (n - 8)
P_, S_, NEGM, E_ = 56, 72, 104, 112
import os
DRD = 12; W2 = 4; E64 = 0; NRING = 16; NODMA = 0
SC = " sc1"
PRIO = int(os.environ.get("PRIO", 0))
PXW = int(os.environ.get("PXW", 0))
TLB = int(os.environ.get("TLB", 0))
YPOS = int(os.environ.get("YPOS", 158))
LPOS = int(os.environ.get("LPOS", 56))
LSTEP = int(os.environ.get("LSTEP", 2))
GAP = int(os.environ.get("GAP", 90))
TOUCH = int(os.environ.get("TOUCH", 1))
CODE_BYTES = 110 * 1024
S_TQ, vTQ = 55, 12
ROT = int(os.environ.get("ROT", 0))
K3BAR = int(os.environ.get("K3BAR", 4))
XQ = os.environ.get("XQ", "")
def freg(n):
    n %= NRING
    return FR + 4 * n if n < 8 else FR2[n - 8]
WS_FLG = 80 * MB
FL_KV, FL_KP, FL_AP, FL_PX = WS_FLG, WS_FLG + 4096, WS_FLG + 8192, WS_FLG + 16384
WS_PX = 96 * MB
WS_WH = WS_WP + 5 * MB
F_LDS = 163840

def red4(q, a, b, c, d, op, t0, t1, t2):
    q("v_permlane16_swap_b32 v%d, v%d" % (a, b)); q("v_permlane16_swap_b32 v%d, v%d" % (c, d))
    q("%s v%d, v%d, v%d" % (op, a, a, b)); q("%s v%d, v%d, v%d" % (op, c, c, d))
    q("v_permlane32_swap_b32 v%d, v%d" % (a, c))
    q("%s v%d, v%d, v%d" % (op, a, a, c))
    q("v_mov_b32 v%d, v%d" % (c, a))
    q("v_permlane32_swap_b32 v%d, v%d" % (a, c))
    q("v_mov_b32 v%d, v%d" % (b, a)); q("v_mov_b32 v%d, v%d" % (d, c))
    q("v_permlane16_swap_b32 v%d, v%d" % (a, b)); q("v_permlane16_swap_b32 v%d, v%d" % (c, d))

def red2(q, a, b, op, t):
    q("v_permlane16_swap_b32 v%d, v%d" % (a, b))
    q("%s v%d, v%d, v%d" % (op, a, a, b))
    q("v_mov_b32 v%d, v%d" % (t, a))
    q("v_permlane32_swap_b32 v%d, v%d" % (a, t))
    q("%s v%d, v%d, v%d" % (op, a, a, t))
    q("v_mov_b32 v%d, v%d" % (b, a))
    q("v_permlane16_swap_b32 v%d, v%d" % (a, b))

def phi_gather(q, raw, PH, va, vb):
    q("v_and_b32 v%d, 15, v%d" % (va, vLANE)); q("v_lshrrev_b32 v%d, 4, v%d" % (vb, vLANE))
    q("v_mul_u32_u24 v%d, 144, v%d" % (raw, vb)); q("v_add_u32 v%d, %d, v%d" % (raw, PHL, raw))
    q("v_mov_b32 v%d, 512" % vb)
    for (c, f) in ((0, 16), (4, 17), (8, 8), (12, 12)):
        q("v_cmp_eq_u32 vcc, %d, v%d" % (c, va)); q("v_cndmask_b32 v%d, v%d, %d, vcc" % (vb, vb, f))
    q("v_lshl_add_u32 v%d, v%d, 1, v%d" % (vb, vb, raw)); q("v_lshl_add_u32 v%d, v%d, 1, v%d" % (va, va, raw))
    for mu, a in ((0, va), (1, vb)):
        for i in range(6):
            q("ds_read_u16 v%d, v%d offset:%d" % (raw + 6 * mu + i, a, (i if i < 4 else 12 + i) * 36))
    y = Seq()
    for mu in range(2):
        for i in range(3): y("v_lshl_or_b32 v%d, v%d, 16, v%d" % (PH + 4 * mu + i, raw + 6 * mu + 2 * i + 1, raw + 6 * mu + 2 * i))
        y("v_mov_b32 v%d, 0" % (PH + 4 * mu + 3))
    return y

def softmax5(q, PK, EE, T, OUT):
    vals = [[PK + 4 * r + i for i in range(4)] + [PK + 8 + 4 * r] for r in range(2)]
    for r in range(2):
        v = vals[r]
        q("v_max3_f32 v%d, v%d, v%d, v%d" % (T + 2 * r, v[0], v[1], v[2])); q("v_max3_f32 v%d, -v%d, -v%d, -v%d" % (T + 2 * r + 1, v[0], v[1], v[2]))
        q("v_max3_f32 v%d, v%d, v%d, v%d" % (T + 2 * r, T + 2 * r, v[3], v[4])); q("v_max3_f32 v%d, v%d, -v%d, -v%d" % (T + 2 * r + 1, T + 2 * r + 1, v[3], v[4]))
    red4(q, T, T + 1, T + 2, T + 3, "v_max_f32", 0, 0, 0)
    for i in range(4): q("v_mul_f32 v%d, s%d, v%d" % (T + i, S_L2E, T + i))
    for r in range(2):
        for i in range(5):
            q("v_fma_f32 v%d, v%d, s%d, -v%d" % (EE + 10 * r + i, vals[r][i], S_L2E, T + 2 * r))
            q("v_fma_f32 v%d, -v%d, s%d, -v%d" % (EE + 10 * r + 5 + i, vals[r][i], S_L2E, T + 2 * r + 1))
    for i in range(20): q("v_exp_f32 v%d, v%d" % (EE + i, EE + i))
    for k in range(4): q("v_mul_f32 v%d, v%d, v%d" % (EE + 5 * k + 4, EE + 5 * k + 4, vM5))
    for k in range(4): q("v_add_f32 v%d, v%d, v%d" % (T + k, EE + 5 * k, EE + 5 * k + 1))
    for i in range(2, 5):
        for k in range(4): q("v_add_f32 v%d, v%d, v%d" % (T + k, T + k, EE + 5 * k + i))
    red4(q, T, T + 1, T + 2, T + 3, "v_add_f32", 0, 0, 0)
    for k in range(4): q("v_rcp_f32 v%d, v%d" % (T + k, T + k))
    for k in range(4):
        for i in range(5): q("v_mul_f32 v%d, v%d, v%d" % (EE + 5 * k + i, EE + 5 * k + i, T + k))
    for r in range(2):
        e = EE + 10 * r; o = OUT + 8 * r
        q("v_cvt_pk_bf16_f32 v%d, v%d, v%d" % (o, e, e + 1)); q("v_cvt_pk_bf16_f32 v%d, v%d, v%d" % (o + 1, e + 2, e + 3))
        q("v_cvt_pk_bf16_f32 v%d, v%d, v%d" % (o + 2, e + 5, e + 6)); q("v_cvt_pk_bf16_f32 v%d, v%d, v%d" % (o + 3, e + 7, e + 8))
        q("v_cvt_pk_bf16_f32 v%d, v%d, v%d" % (o + 4, e + 4, e + 9)); q("v_mov_b32 v%d, 0" % (o + 5))

def sreg(buf, e):
    qb, kb, r = e >> 3, (e >> 2) & 1, e & 3
    return S_ + 16 * buf + 8 * kb + 4 * qb + r

def mask_ops(buf, u):
    z = Seq()
    for e0 in range(0, 16, 4):
        for e in range(e0, e0 + 4):
            qb, kb, r = e >> 3, (e >> 2) & 1, e & 3
            z("v_cmp_gt_i32 s[%d:%d], %d, v%d" % (MK[e & 3], MK[e & 3] + 1, 32 * u + 16 * kb + r, vQ + qb))
        for e in range(e0, e0 + 4):
            z("v_cndmask_b32 v%d, v%d, v%d, s[%d:%d]" % (sreg(buf, e), sreg(buf, e), vNINF, MK[e & 3], MK[e & 3] + 1))
    return z

def sm_parts(buf):
    ex = []; post = []
    for e in range(16):
        qb = e >> 3
        ex.append(I("v_exp_f32%s v%d, v%d" % ("_e64" if E64 else "", E_ + (e & 7), sreg(buf, e))))
        z = Seq()
        ad = "v_add_f32_e64" if E64 else "v_add_f32"
        if e & 7 == 1: z("%s v%d, v%d, v%d" % (ad, vPS + qb, E_ + ((e - 1) & 7), E_ + (e & 7)))
        elif e & 7 > 1: z("%s v%d, v%d, v%d" % (ad, vPS + qb, vPS + qb, E_ + (e & 7)))
        if e & 1: z("v_cvt_pk_bf16_f32 v%d, v%d, v%d" % (P_ + 8 * buf + 4 * qb + ((e & 7) >> 1), E_ + ((e - 1) & 7), E_ + (e & 7)))
        post.append(z.l)
    return ex, post

def rare_block(name, X, Y):
    z = Seq(); z.label(name); z("s_nop 8")
    a, b, t = E_, E_ + 1, E_ + 2
    for qb, d in ((0, a), (1, b)):
        r = [sreg(X, 8 * qb + i) for i in range(8)]
        z("v_max3_f32 v%d, v%d, v%d, v%d" % (d, r[0], r[1], r[2])); z("v_max3_f32 v%d, v%d, v%d, v%d" % (d, d, r[3], r[4]))
        z("v_max3_f32 v%d, v%d, v%d, v%d" % (d, d, r[5], r[6])); z("v_max3_f32 v%d, v%d, v%d, 0" % (d, d, r[7]))
    red2(z, a, b, "v_max_f32", t)
    z("v_exp_f32 v%d, -v%d" % (E_ + 4, a)); z("v_exp_f32 v%d, -v%d" % (E_ + 5, b))
    for qb, d in ((0, a), (1, b)):
        for i in range(8):
            z("v_sub_f32 v%d, v%d, v%d" % (sreg(X, 8 * qb + i), sreg(X, 8 * qb + i), d))
            z("v_sub_f32 v%d, v%d, v%d" % (sreg(Y, 8 * qb + i), sreg(Y, 8 * qb + i), d))
        for i in range(4): z("v_sub_f32 v%d, v%d, v%d" % (NEGM + 4 * qb + i, NEGM + 4 * qb + i, d))
        z("v_mul_f32 v%d, v%d, v%d" % (vLs + qb, vLs + qb, E_ + 4 + qb))
        for db in range(8):
            for i in range(4): z("v_mul_f32 v%d, v%d, v%d" % (O + 8 * db + 4 * qb + i, O + 8 * db + 4 * qb + i, E_ + 4 + qb))
    ex, post = sm_parts(X)
    for e in range(16):
        z.ext([ex[e]]); z("s_nop 0"); z.ext(post[e])
    z("s_nop 1")
    z("s_branch %s_R" % name)
    return z

def rd_frag(kind, idx, ring):
    base = vKA if kind == "K" else vVA
    return I("ds_read_b128 %s, v%d offset:%d" % (vr(freg(ring), 4), base, 1024 * idx))

def qk_mfmas(k, buf, ring, first_c):
    kb, js = k >> 2, k & 3
    out = []
    for qb in range(2):
        d = vr(S_ + 16 * buf + 8 * kb + 4 * qb, 4)
        c = d if js else first_c(qb)
        out.append(I("%s %s, %s, %s, %s" % (MF, d, vr(freg(ring), 4), vr(Q + 16 * qb + 4 * js, 4), c)))
    return out
def pv_mfmas(db, buf, ring):
    return [I("%s %s, %s, %s, %s" % (MF, vr(O + 8 * db + 4 * qb, 4), vr(freg(ring), 4), vr(P_ + 8 * buf + 4 * qb, 4), vr(O + 8 * db + 4 * qb, 4))) for qb in range(2)]
NEGC = lambda qb: vr(NEGM + 4 * qb, 4)

def pkg(tag=None):
    z = Seq()
    for (sl, sg, hi) in ((S_VL, S_VG, 1), (S_KL, S_KG, 0)):
        z("s_mov_b32 m0, s%d" % sl)
        z("s_add_u32 s%d, s%d, %d" % (sl, sl, SLOT))
        for e in range(4):
            if not NODMA: z("buffer_load_dwordx4 v%d, %s, s%d offen offset:%d%s lds" % (vL16, sr(SRD_WS, 4), sg, 1024 * e, SC), tag=tag)
        z("s_add_u32 s%d, s%d, %d" % (sg, sg, SLOT))
        z("s_and_b32 s%d, s%d, 0xffff" % (sl, sl))
        if hi: z("s_or_b32 s%d, s%d, 0x10000" % (sl, sl))
    return z

DIAG = int(os.environ.get('DIAG', 0))
def tick(z, acc):
    z("s_memtime s[96:97]"); z("s_waitcnt lgkmcnt(0)")
    if acc is not None: z("s_sub_u32 s99, s96, s98"); z("s_add_u32 s%d, s%d, s99" % (acc, acc))
    z("s_mov_b32 s98, s96")
def sync_block(role, uid, cond=False, xtra=0, strict=None, always=False):
    z = Seq()
    if DIAG: tick(z, None)
    if role == 0:
        z("s_sub_u32 s%d, s%d, s%d" % (S_R, S_TBM, S_T))
        if not always:
            z("s_cmp_ge_u32 s%d, 2" % S_R); z("s_cbranch_scc1 W12_%s" % uid)
            z("s_waitcnt vmcnt(4)")
        z.label("W12_%s" % uid); z("s_waitcnt vmcnt(%d)" % (12 + xtra if strict is None else strict))
        if DIAG: tick(z, 92)
        z("s_barrier")
        if DIAG: tick(z, 93)
        if not always:
            z("s_cmp_gt_u32 s%d, 2" % S_T); z("s_cbranch_scc1 NQ_%s" % uid)
            z("s_cmp_eq_u32 s%d, 0" % S_T); z("s_cbranch_scc1 NQ_%s" % uid)
            z("s_cmp_eq_u32 s%d, 2" % S_T); z("s_cbranch_scc1 CQ_%s" % uid)
            poll_issue(z, 9, 8, SRD_WS, "s15", tag="OPT")
            z("s_branch NQ_%s" % uid)
            z.label("CQ_%s" % uid)
            z("s_waitcnt vmcnt(8)")
            poll_check(z, "PQ_%s" % uid, 9, 7, 8, SRD_WS, "s15")
            z.label("NQ_%s" % uid)
            z("s_cmp_lt_u32 s%d, 3" % S_R); z("s_cbranch_scc1 NP_%s" % uid)
        z.ext(pkg())
        z.label("NP_%s" % uid)
        if DIAG: tick(z, 94)
    else:
        if cond:
            z("s_cmp_eq_u32 s%d, s%d" % (S_T, S_TBM)); z("s_cbranch_scc1 NB_%s" % uid)
        z("s_barrier")
        if cond: z.label("NB_%s" % uid)
        if DIAG: tick(z, 93)
    return z

def adv(vreg):
    z = Seq()
    z("v_add_u32 v%d, 0x4000, v%d" % (vreg, vreg))
    if vreg == vKA: z("v_and_b32 v%d, 0xffff, v%d" % (vreg, vreg))
    else: z("v_and_or_b32 v%d, v%d, s%d, v%d" % (vreg, vreg, S_KR, vC64))
    return z

def check(name):
    z = Seq()
    z("v_max_f32 v%d, v%d, v%d" % (vTM, vPS, vPS + 1))
    z("v_cmp_nle_f32 vcc, v%d, v%d" % (vTM, vTHR()))
    z("s_cbranch_vccnz %s" % name)
    z.label(name + "_R")
    return z
def ladd(qb): return I("v_add_f32 v%d, v%d, v%d" % (vLs + qb, vLs + qb, vPS + qb))
vC64 = 10
def vTHR(): return 11

def place_sm(slots, lo, hi, buf, mask_u, chk, carry=True):
    ex, post = sm_parts(buf)
    n = hi - lo
    pre = mask_ops(buf, mask_u).l if mask_u is not None else []
    groups = [pre[8 * g:8 * g + 8] for g in range(4)]
    if carry:
        slots[lo]["post"].append(ladd(0)); slots[lo + (8 if n == 16 else 0)]["post"].append(ladd(1))
    for e in range(16):
        s = lo + (e * n) // 16
        if pre and e % 4 == 0: slots[s]["mid"].extend(groups[e // 4])
        slots[s]["mid"].append(ex[e])
        slots[s]["post"].extend(post[e])
    if chk: slots[hi - 1]["end"].extend(check(chk).l)

def emit_slots(slots, w2=False):
    out = []
    for n, s in enumerate(slots):
        out += s["pre"]
        if w2 and W2 and n % W2 == 0:
            w = I("v_nop"); w.kind = "touch"; w.rd = list(slots[n + W2 - 1]["m"][0].srcA); w.text = ""
            out.append(w)
        out += [s["m"][0]] + s["mid"] + [s["m"][1]] + s["rd"] + s["post"] + s["end"]
    return out
def mkslot(m): return {"pre": [], "m": m, "mid": [], "rd": [], "post": [], "end": []}

def iteration(role, var, rares):
    uid = "%s%s" % ("AB"[role], var)
    slots = []; plan = []
    if var != "S2":
        for k in range(8): slots.append(mkslot(qk_mfmas(k, 0, len(slots), NEGC))); plan.append(("K", k))
    for db in range(8): slots.append(mkslot(pv_mfmas(db, 0, len(slots)))); plan.append(("V", db))
    a_hi = len(slots)
    if var != "S2":
        for k in range(8): slots.append(mkslot(qk_mfmas(k, 1, len(slots), NEGC))); plan.append(("K", 8 + k))
    for db in range(8): slots.append(mkslot(pv_mfmas(db, 1, len(slots)))); plan.append(("V", 8 + db))
    N = len(slots)
    nxt = {"S": "K", "S1": "V", "S2": None}[var]
    assert DRD > 8
    for n in range(N):
        g = n + DRD
        if g < N: slots[n]["rd"].append(rd_frag(plan[g][0], plan[g][1], g))
        elif nxt:
            if g == N:
                slots[n]["rd"].extend(sync_block(role, uid).l)
            if nxt == "K" and g - N >= 8: slots[n]["rd"].append(rd_frag("V", g - N - 8, g))
            else: slots[n]["rd"].append(rd_frag(nxt, g - N, g))
    if nxt == "K":
        slots[N - DRD - 2]["post"].extend(adv(vKA).l)
        slots[N - DRD + 2]["post"].extend(adv(vVA).l)
    elif nxt == "V": slots[N - DRD - 1]["end"].extend(adv(vVA).l)
    if var == "S2": slots[9]["rd"].extend(sync_block(role, uid, cond=True).l)
    place_sm(slots, 0, a_hi, 1, 1 if var == "S2" else None, "R%sa" % uid); rares.append(rare_block("R%sa" % uid, 1, 0))
    if var != "S2":
        place_sm(slots, a_hi, N, 0, 0 if var == "S1" else None, "R%sb" % uid); rares.append(rare_block("R%sb" % uid, 0, 1))
    else:
        slots[a_hi]["post"].extend([ladd(0), ladd(1)])
    if var == "S":
        slots[N - 3]["post"].extend(Seq()("s_add_u32 s%d, s%d, 1" % (S_T, S_T))("s_add_u32 s6, s%d, 1" % S_T).l)
    out = emit_slots(slots, True)
    return out

def poll_issue(z, vp, voff, srd, soff, tag="POLL"):
    z("buffer_load_dword v%d, v%d, %s, %s offen sc1" % (vp, voff, sr(srd, 4), soff), tag=tag)
def poll_check(z, name, vp, vneed, voff, srd, soff):
    z("v_cmp_lt_u32 vcc, v%d, v%d" % (vp, vneed))
    z("s_cbranch_vccz %s_OK" % name)
    z("s_mov_b32 s%d, 0x40000" % S_SPIN)
    z.label("%s_SP" % name)
    z("s_sleep 2")
    z("buffer_load_dword v%d, v%d, %s, %s offen sc1" % (vp, voff, sr(srd, 4), soff), tag="OPT")
    z("s_waitcnt vmcnt(0)", tag="OPT")
    z("v_cmp_lt_u32 vcc, v%d, v%d" % (vp, vneed))
    z("s_cbranch_vccz %s_OK" % name)
    z("s_sub_u32 s%d, s%d, 1" % (S_SPIN, S_SPIN))
    z("s_cmp_lg_u32 s%d, 0" % S_SPIN)
    z("s_cbranch_scc1 %s_SP" % name)
    z.label("%s_OK" % name)
def w7_block(name, body):
    z = Seq(); z("s_cmp_lg_u32 s%d, 7" % S_W); z("s_cbranch_scc1 %s" % name); z.ext(body); z.label(name)
    return z
def flag_store(base_expr, va, vb):
    z = Seq(); z.ext(base_expr)
    z("v_mov_b32 v%d, s%d" % (va, S_HUGE)); z("v_cmp_eq_u32 vcc, 0, v%d" % vLANE); z("v_cndmask_b32 v%d, v%d, 0, vcc" % (va, va))
    z("v_mov_b32 v%d, 1" % vb)
    z("buffer_store_dword v%d, v%d, %s, s6 offen sc1" % (vb, va, sr(SRD_WS, 4)), tag="OPT")
    return z
def px_group(z, d, t):
    z("s_lshl_b32 s%d, s%d, 3" % (d, S_J)); z("s_and_b32 s%d, s%d, 4" % (t, S_H)); z("s_add_u32 s%d, s%d, s%d" % (d, d, t))
    z("s_lshr_b32 s%d, s%d, 3" % (t, S_H)); z("s_add_u32 s%d, s%d, s%d" % (d, d, t))
def px_flag(z, d, t):
    px_group(z, d, t); z("s_lshl_b32 s%d, s%d, 3" % (d, d)); z("s_add_u32 s%d, s%d, s%d" % (d, d, S_W)); z("s_lshl_b32 s%d, s%d, 7" % (d, d)); z("s_and_b32 s%d, s%d, 3" % (t, S_H)); z("s_lshl_b32 s%d, s%d, 2" % (t, t))
    z("s_add_u32 s%d, s%d, s%d" % (d, d, t)); z("s_add_u32 s%d, s%d, %d" % (d, d, FL_PX))
flat = lambda g: [x for l in g for x in l]
def cp(s):
    out = []
    for x in (s.l if isinstance(s, Seq) else s):
        if isinstance(x, list): out.append(cp(x))
        elif x.kind == "waitv": out.append(x)
        else:
            n_ = I(x.text, tag=x.tag); n_.nowaw = x.nowaw; out.append(n_)
    return out

def gen_f(stamp=False):
    ST = (lambda z, i: z.ext(STAMP(i))) if stamp else (lambda z, i: None)
    q = Seq()
    vAo0, vAo1, vAR, JT, WF, NWF, AF, RW, CH, GT, ACC, WB = 13, 14, 15, 20, 32, 6, 56, 88, 104, 112, 128, 98304
    vWB, vGD, vGA, vBB = 19, 20, 21, [12, 16, 17, 18]
    q("s_cmp_ge_u32 s2, 256"); q("s_cbranch_scc1 F_END")
    load_args(q)
    wg_decode(q, S_H, S_J)
    q("v_lshrrev_b32 v20, 6, v0"); q("v_and_b32 v%d, 63, v0" % vLANE)
    q("v_readfirstlane_b32 s%d, v20" % S_W)
    q("s_and_b32 s%d, s%d, 3" % (S_RG, S_W))
    q("v_lshrrev_b32 v20, 3, v%d" % vLANE)
    q("s_lshl_b32 s6, s%d, 8" % S_J); q("s_lshl_b32 s8, s%d, 5" % S_W); q("s_add_u32 s6, s6, s8")
    q("v_add_u32 v20, s6, v20")
    q("v_lshrrev_b32 v21, 4, v%d" % vLANE); q("v_and_b32 v22, 7, v%d" % vLANE); q("v_xor_b32 v22, v21, v22")
    q("v_lshlrev_b32 v22, 4, v22"); q("v_lshl_add_u32 v%d, v20, 10, v22" % vAo0); q("v_xor_b32 v%d, 64, v%d" % (vAo1, vAo0))
    q("s_lshl_b32 s6, s%d, 3" % S_RG); q("v_add_u32 v20, s6, v21")
    q("s_and_b32 s6, s%d, 1" % S_RG); q("s_lshl_b32 s6, s6, 2"); q("v_add_u32 v22, s6, v21")
    q("v_lshlrev_b32 v22, 1, v22"); q("v_and_b32 v23, 15, v%d" % vLANE); q("v_xor_b32 v22, v22, v23")
    q("v_lshlrev_b32 v22, 4, v22"); q("v_lshl_add_u32 v%d, v20, 13, v22" % vWo)
    q("s_lshl_b32 s6, s%d, 8" % S_H); q("v_add_u32 v%d, s6, v%d" % (vWo, vWo))
    q("s_lshl_b32 s%d, s%d, 12" % (S_W4K, S_W)); q("s_lshl_b32 s%d, s%d, 11" % (S_MW, S_W))
    mk_srd(q, SRD_CK, P_CKV, 2048 * 1024)
    q("s_cmp_lt_u32 s%d, 4" % S_W)
    q("s_cselect_b32 s%d, s%d, s%d" % (SRD_W, P_UK, P_UV)); q("s_cselect_b32 s%d, s%d, s%d" % (SRD_W + 1, P_UK + 1, P_UV + 1))
    q("s_mov_b32 s%d, %d" % (SRD_W + 2, 512 * 8192)); q("s_mov_b32 s%d, 0x00020000" % (SRD_W + 3))
    if stamp: q.ext(STAMP(0)); q.ext(RSTAMP(60))
    def dma_a(I_, sec=0):
        g = []
        for e in range(4):
            z = Seq()
            if e == 0: z("s_add_u32 m0, s%d, %d" % (S_W4K, (I_ % 3) * 32768 + sec * 16384))
            z("s_mov_b32 s%d, %d" % (S_TMP, I_ * 128 + e * (8192 - 1024) + sec * 131072))
            z("buffer_load_dwordx4 v%d, %s, s%d offen offset:%d lds" % ([vAo0, vAo1][e & 1], sr(SRD_CK, 4), S_TMP, e * 1024), tag="A%d" % I_)
            g.append(z.l)
        return g
    def dma_w(i, sec=0):
        g = []
        for e in range(2):
            z = Seq()
            if e == 0: z("s_add_u32 m0, s%d, %d" % (S_MW, WB + (i % 4) * 16384 + sec * 8192))
            z("s_mov_b32 s%d, %d" % (S_TMP, i * 32 * 8192 + e * (4 * 8192 - 1024)))
            z("buffer_load_dwordx4 v%d, %s, s%d offen offset:%d lds" % (vWo, sr(SRD_X if sec else SRD_W, 4), S_TMP, e * 1024), tag="U%d" % i)
            g.append(z.l)
        return g
    q.ext(flat(dma_w(0))); q.ext(flat(dma_a(0))); q.ext(flat(dma_w(1)))
    q("s_barrier")
    q.ext(flat(dma_a(1))); q.ext(flat(dma_w(2))); q.ext(flat(dma_w(3))); q.ext(flat(dma_a(2)))
    if TOUCH:
        q("s_lshr_b32 s8, s2, 3"); q("s_lshl_b32 s9, s8, 3"); q("s_add_u32 s9, s9, s%d" % S_W)
        q("s_getpc_b64 s[12:13]"); q.label("F_PC"); q("s_mov_b32 s14, F_COLD-F_PC"); q("s_mov_b32 s15, 0x00020000")
        q("v_lshlrev_b32 v24, 7, v%d" % vLANE); q("s_lshl_b32 s10, s9, 13")
        q("s_cmp_ge_u32 s10, s14"); q("s_cbranch_scc1 F_NCT")
        q("buffer_load_dword v31, v24, s[12:15], s10 offen", tag="OPT")
        q.label("F_NCT")
    mk_srd(q, SRD_X, P_X, 2048 * 1152); mk_srd(q, SRD_WB, P_WQKV, 576 * 3456); mk_srd(q, SRD_GATE, P_GATE, 1152)
    mk_srd(q, SRD_WS, P_WS, WS_SIZE); mk_srd(q, SRD_DBG, P_DBG, 256); mk_srd(q, SRD_WQ, P_WQ, 576 * 8192)
    q("s_mov_b32 s%d, 0x%x" % (S_HUGE, HUGE))
    q("v_lshlrev_b32 v%d, 4, v%d" % (vL16, vLANE))
    q("s_lshl_b32 s6, s%d, 7" % S_H); q("s_lshl_b32 s8, s%d, 2" % S_J); q("s_add_u32 s6, s6, s8"); q("s_add_u32 s6, s6, %d" % FL_KV)
    q("s_lshl_b32 s8, s%d, 7" % S_J); q("s_lshl_b32 s9, s%d, 2" % S_H); q("s_add_u32 s8, s8, s9"); q("s_add_u32 s8, s8, %d" % FL_AP)
    q("v_lshlrev_b32 v20, 12, v%d" % vLANE); q("v_add_u32 v20, s6, v20"); q("v_mov_b32 v22, s8")
    q("v_cmp_eq_u32 vcc, 2, v%d" % vLANE); q("v_cndmask_b32 v20, v20, v22, vcc")
    q("v_mov_b32 v22, s%d" % S_HUGE); q("v_cmp_gt_u32 vcc, %d, v0" % (7 * 64)); q("v_cndmask_b32 v20, v20, v22, vcc")
    q("v_cmp_lt_u32 vcc, 3, v%d" % vLANE); q("v_cndmask_b32 v20, v20, v22, vcc")
    px_flag(q, 8, 9); q("v_mov_b32 v22, s8"); q("v_cmp_eq_u32 vcc, 3, v%d" % vLANE); q("v_cndmask_b32 v20, v20, v22, vcc")
    q("v_mov_b32 v22, 0")
    q("buffer_store_dword v22, v20, %s, 0 offen sc1" % sr(SRD_WS, 4), tag="J13")
    q("v_and_b32 v20, 15, v%d" % vLANE); q("v_lshrrev_b32 v22, 1, v20"); q("v_xor_b32 v22, v22, v21")
    q("s_lshl_b32 s6, s%d, 6" % S_RG); q("v_add_u32 v20, s6, v20"); q("v_lshlrev_b32 v20, 7, v20")
    q("v_lshl_add_u32 v%d, v22, 4, v20" % vAR); q("v_xor_b32 v%d, 64, v%d" % (vAR + 1, vAR))
    q("v_add_u32 v%d, 0x10000, v%d" % (vAR + 2, vAR)); q("v_add_u32 v%d, 0x10000, v%d" % (vAR + 3, vAR + 1))
    q("v_bfe_u32 v20, v%d, 2, 2" % vLANE); q("v_lshl_add_u32 v22, v21, 3, v20"); q("v_lshlrev_b32 v22, 8, v22")
    q("v_and_b32 v23, 1, v21"); q("v_lshl_add_u32 v20, v23, 2, v20"); q("v_lshl_add_u32 v22, v20, 5, v22")
    q("v_and_b32 v20, 3, v%d" % vLANE); q("v_lshl_add_u32 v22, v20, 3, v22")
    q("s_lshr_b32 s6, s%d, 2" % S_W); q("s_lshl_b32 s6, s6, 13"); q("s_add_u32 s6, s6, %d" % WB)
    q("v_add_u32 v%d, s6, v22" % vWR)
    for cb in range(1, 8): q("v_xor_b32 v%d, %d, v%d" % (vWR + cb, 32 * cb, vWR))
    q("s_lshr_b32 s6, s%d, 2" % S_W); q("s_lshl_b32 s6, s6, 24"); q("s_lshl_b32 s8, s%d, 19" % S_H); q("s_add_u32 s6, s6, s8")
    q("s_lshl_b32 s8, s%d, 2" % S_J); q("s_add_u32 s8, s8, s%d" % S_RG); q("s_lshl_b32 s8, s8, 14"); q("s_add_u32 s%d, s6, s8" % S_ST)
    for i in range(1, 4): q("s_add_u32 s%d, s%d, %d" % (S_ST + i, S_ST, 4096 * i))
    q("s_sub_u32 s6, 15, s%d" % S_J); q("s_cmp_lt_u32 s%d, 4" % S_W); q("s_cselect_b32 s6, s%d, s6" % S_J)
    q("s_lshl_b32 s6, s6, 7"); q("s_lshl_b32 s8, s%d, 5" % S_RG); q("s_add_u32 s%d, s6, s8" % S_ROW0)
    q("s_lshl_b32 s%d, s%d, 10" % (S_MB, S_W))
    q("s_mul_i32 s6, s%d, %d" % (S_H, 576 * 128)); q("s_add_u32 s6, s6, s%d" % S_MB); q("s_add_u32 s%d, s6, %d" % (S_WBG, WS_WBF))
    q("s_lshr_b32 s6, s%d, 4" % S_ROW0); q("s_mul_i32 s6, s6, %d" % (18 * 1024)); q("s_add_u32 s%d, s6, %d" % (S_XB, WS_XF))

    def j1(k):
        z = Seq(); a, b = JT, JT + 1; d = 112 + 4 * k; tg = "OPT" if k == 2 else None
        z("s_lshr_b32 s8, s2, 1"); z("s_and_b32 s9, s2, 1"); z("s_mul_i32 s9, s9, 9")
        z("s_add_u32 s9, s9, %s" % ("s%d" % S_RG if k < 2 else "8"))
        if k == 1: z("s_add_u32 s9, s9, 4")
        z("v_and_b32 v%d, 15, v%d" % (a, vLANE)); z("s_lshl_b32 s10, s8, 4"); z("v_add_u32 v%d, s10, v%d" % (a, a))
        z("v_mul_u32_u24 v%d, 1152, v%d" % (a, a)); z("v_lshrrev_b32 v%d, 4, v%d" % (b, vLANE)); z("v_lshl_add_u32 v%d, v%d, 4, v%d" % (a, b, a))
        z("s_lshl_b32 s10, s9, 6"); z("v_add_u32 v%d, s10, v%d" % (d, a))
        z("s_mul_i32 s8, s8, 18"); z("s_add_u32 s8, s8, s9"); z("s_lshl_b32 s8, s8, 10"); z("s_add_u32 s%d, s8, %d" % (86 + k, WS_XF))
        ld = Seq()("buffer_load_dwordx4 %s, v%d, %s, 0 offen" % (vr(d, 4), d, sr(SRD_X, 4)), tag=tg)
        y = Seq()("buffer_store_dwordx4 %s, v%d, %s, s%d offen sc1" % (vr(d, 4), vL16, sr(SRD_WS, 4), 86 + k), tag=tg or "J13")
        return z, y, ld
    def j2(i, d, t0, dst):
        z = Seq(); t1, t2, t3 = t0 + 1, t0 + 2, t0 + 3
        z("s_add_u32 s8, s%d, %d" % (S_JU, i))
        z("s_mul_i32 s9, s8, 12769"); z("s_lshr_b32 s9, s9, 24")
        z("s_mul_i32 s10, s9, 1314"); z("s_sub_u32 s8, s8, s10")
        z("s_mul_i32 s10, s8, 7282"); z("s_lshr_b32 s10, s10, 16")
        z("s_mul_i32 s11, s10, 9"); z("s_sub_u32 s8, s8, s11"); z("s_lshl_b32 s8, s8, 6")
        z("v_add_u32 v%d, s8, v%d" % (t0, vLANE))
        z("v_mul_u32_u24 v%d, 3641, v%d" % (t1, t0)); z("v_lshrrev_b32 v%d, 16, v%d" % (t1, t1))
        z("v_mul_u32_u24 v%d, 18, v%d" % (t2, t1)); z("v_sub_u32 v%d, v%d, v%d" % (t2, t0, t2))
        z("v_lshrrev_b32 v%d, 3, v%d" % (t3, t1)); z("v_lshl_add_u32 v%d, v%d, 3, v%d" % (t0, t3, t0))
        z("v_and_b32 v%d, 3, v%d" % (d, t1)); z("v_lshl_add_u32 v%d, v%d, 2, v%d" % (t3, t3, d))
        z("v_bfe_u32 v%d, v%d, 2, 1" % (d, t1)); z("v_lshl_add_u32 v%d, v%d, 4, v%d" % (t3, d, t3))
        z("s_lshl_b32 s8, s10, 5")
        for k in range(3): z("s_mov_b32 s%d, s%d" % (SRD_J + k, [P_WO, P_WO + 1, S_WOSZ][k]))
        z("s_cmp_lt_u32 s10, 128"); z("s_cbranch_scc1 J2_%d" % i)
        z("s_mov_b32 s%d, s%d" % (SRD_J, P_WO2)); z("s_mov_b32 s%d, s%d" % (SRD_J + 1, P_WO2 + 1)); z("s_mov_b32 s%d, %d" % (SRD_J + 2, 576 * 1152))
        z("v_lshrrev_b32 v%d, 4, v%d" % (t3, t1)); z("v_lshl_add_u32 v%d, v%d, 1, v%d" % (t3, t3, t1))
        z("s_mul_i32 s8, s10, 36"); z("s_sub_u32 s8, s8, %d" % (36 * 128))
        z("s_cmp_lt_u32 s10, 144"); z("s_cbranch_scc1 J2_%d" % i)
        z("v_lshrrev_b32 v%d, 1, v%d" % (t3, t1)); z("v_mul_u32_u24 v%d, 18, v%d" % (t3, t3)); z("v_and_b32 v%d, 1, v%d" % (t1, t1)); z("v_add_u32 v%d, v%d, v%d" % (t3, t3, t1))
        z("s_mul_i32 s8, s10, 288"); z("s_sub_u32 s8, s8, %d" % (288 * 144 - 16))
        z.label("J2_%d" % i)
        z("v_add_u32 v%d, s8, v%d" % (t3, t3)); z("v_mul_u32_u24 v%d, 1152, v%d" % (t3, t3)); z("v_lshl_add_u32 v%d, v%d, 4, v%d" % (t3, t2, t3))
        z("s_mul_i32 s8, s9, 288")
        z("buffer_load_dwordx4 %s, v%d, %s, s8 offen" % (vr(d, 4), t3, sr(SRD_J, 4)))
        z("s_lshr_b32 s8, s10, 5"); z("s_mul_i32 s8, s8, 37"); z("s_and_b32 s11, s10, 31"); z("s_add_u32 s8, s8, s11")
        z("s_sub_u32 s11, s10, 128"); z("s_lshr_b32 s6, s11, 2"); z("s_mul_i32 s6, s6, 37"); z("s_and_b32 s11, s11, 3"); z("s_add_u32 s6, s6, s11"); z("s_add_u32 s6, s6, 32")
        z("s_cmp_ge_u32 s10, 128"); z("s_cselect_b32 s8, s6, s8")
        z("s_mul_i32 s6, s10, 74"); z("s_sub_u32 s6, s6, %d" % (74 * 144 - 36))
        z("s_cmp_ge_u32 s10, 144"); z("s_cselect_b32 s8, s6, s8")
        z("s_mul_i32 s9, s9, 148"); z("s_add_u32 s9, s9, s8")
        z("s_mul_i32 s9, s9, 9728"); z("s_add_u32 s9, s9, %d" % WS_WP)
        z("v_lshlrev_b32 v%d, 4, v%d" % (t0, t0)); z("v_add_u32 v%d, s9, v%d" % (dst, t0))
        y = Seq()
        y("buffer_store_dwordx4 %s, v%d, %s, 0 offen sc1" % (vr(d, 4), dst, sr(SRD_WS2, 4)))
        return z, y
    def j3(ps):
        z = Seq(); d = RW + 8 * ps; tg = "OPT" if ps == 2 else None
        t0, t1, t2, t3, dst = JT + 1, JT + 2, JT + 3, JT + 9, 124 + ps
        z("s_mul_i32 s8, s%d, 72" % S_J); z("s_lshl_b32 s9, s%d, 3" % S_RG); z("s_add_u32 s8, s8, %s" % ("s9" if ps < 2 else "64"))
        if ps == 1: z("s_add_u32 s8, s8, 32")
        z("v_lshrrev_b32 v%d, 3, v%d" % (t0, vLANE)); z("v_add_u32 v%d, s8, v%d" % (t0, t0))
        z("v_bfe_u32 v%d, v%d, 1, 1" % (t1, t0)); z("v_bfe_u32 v%d, v%d, 3, 1" % (t2, t0)); z("v_lshl_add_u32 v%d, v%d, 1, v%d" % (t1, t2, t1))
        z("v_and_b32 v%d, 7, v%d" % (t2, vLANE)); z("v_lshlrev_b32 v%d, 1, v%d" % (t1, t1)); z("v_xor_b32 v%d, v%d, v%d" % (t1, t1, t2))
        z("s_mul_i32 s8, s%d, %d" % (S_H, 576 * 128)); z("s_add_u32 s8, s8, %d" % WS_WBF)
        z("v_lshlrev_b32 v%d, 4, v%d" % (t2, t2)); z("v_lshl_add_u32 v%d, v%d, 7, v%d" % (t2, t0, t2)); z("v_add_u32 v%d, s8, v%d" % (dst, t2))
        z("s_mul_i32 s8, s%d, 36" % S_H)
        z("v_mul_u32_u24 v%d, 3456, v%d" % (t2, t0)); z("v_add_u32 v%d, s8, v%d" % (d + 5, t2))
        z("v_lshlrev_b32 v%d, 1, v%d" % (d + 6, t0)); z("v_mov_b32 v%d, v%d" % (d + 7, t1))
        for k in range(4): z("v_mov_b32 v%d, 0" % (d + k))
        z("v_lshrrev_b32 v%d, 1, v%d" % (t0, t1)); z("v_and_b32 v%d, 1, v%d" % (t3, t1)); z("v_lshl_add_u32 v%d, v%d, 4, v%d" % (t2, t3, d + 5))
        z("v_mov_b32 v%d, 2304" % t3); z("v_cmp_eq_u32 vcc, 1, v%d" % t0); z("v_cndmask_b32 v%d, 0, v%d, vcc" % (t3, t3)); z("v_add_u32 v%d, v%d, v%d" % (t2, t2, t3))
        z("v_mov_b32 v%d, 1152" % t3); z("v_cmp_eq_u32 vcc, 2, v%d" % t0); z("v_cndmask_b32 v%d, 0, v%d, vcc" % (t3, t3)); z("v_add_u32 v%d, v%d, v%d" % (d + 4, t2, t3))
        ld = Seq()
        ld("v_cmp_eq_u32 vcc, 6, v%d" % (d + 7)); ld("v_cmp_gt_u32 s[8:9], 6, v%d" % (d + 7)); ld("s_mov_b64 exec, vcc")
        ld("buffer_load_ushort v%d, v%d, %s, 0 offen" % (d + 3, d + 6, sr(SRD_GATE, 4)), tag=tg)
        for k in range(3): ld("buffer_load_dword v%d, v%d, %s, 0 offen offset:%d" % (d + k, d + 5, sr(SRD_WB, 4), 1152 * k + 32), tag=tg)
        ld("s_mov_b64 exec, s[8:9]")
        x = I("buffer_load_dwordx4 %s, v%d, %s, 0 offen" % (vr(d, 4), d + 4, sr(SRD_WB, 4)), tag=tg); x.nowaw = True
        ld.l.append(x)
        ld("s_mov_b64 exec, -1")
        y = Seq()
        y("buffer_store_dwordx4 %s, v%d, %s, 0 offen sc1" % (vr(d, 4), dst, sr(SRD_WS, 4)), tag=tg or "J13")
        return z, y, ld
    def touch(n, dst):
        z = Seq(); na = 64 if n == 0 else 96
        g = Seq()
        g("s_lshr_b32 s8, s2, 3"); g("s_lshl_b32 s8, s8, 2"); g("s_add_u32 s8, s8, s%d" % S_RG)
        g("s_and_b32 s9, s8, 31"); g("s_lshl_b32 s9, s9, 16"); g("s_lshr_b32 s10, s8, 5"); g("s_lshl_b32 s10, s10, 7"); g("s_add_u32 s9, s9, s10"); g("s_add_u32 s9, s9, %d" % ((3 if n == 0 else 5) * 128))
        g("s_sub_u32 s10, s8, %d" % na); g("s_lshr_b32 s10, s10, 3"); g("s_add_u32 s10, s10, %d" % (4 if n == 0 else 12)); g("s_lshl_b32 s10, s10, 18")
        g("s_bfe_u32 s11, s8, 0x20001"); g("s_lshl_b32 s11, s11, 11"); g("s_add_u32 s10, s10, s11"); g("s_and_b32 s11, s2, 7"); g("s_lshl_b32 s11, s11, 8"); g("s_add_u32 s10, s10, s11")
        g("s_bitcmp1_b32 s8, 0"); g("s_cselect_b32 s12, s%d, s%d" % (P_UV, P_UK)); g("s_cselect_b32 s13, s%d, s%d" % (P_UV + 1, P_UK + 1))
        g("s_cmp_lt_u32 s8, %d" % na); g("s_cselect_b32 s12, s%d, s12" % P_CKV); g("s_cselect_b32 s13, s%d, s13" % (P_CKV + 1)); g("s_cselect_b32 s9, s9, s10")
        g("s_cselect_b32 s14, %d, s%d" % (2048 * 1024, SRD_W + 2)); g("s_cselect_b64 vcc, -1, 0")
        g("v_lshlrev_b32 v%d, 10, v%d" % (dst, vLANE)); g("v_lshrrev_b32 v24, 1, v%d" % vLANE); g("v_lshlrev_b32 v24, 13, v24"); g("v_and_b32 v25, 1, v%d" % vLANE)
        g("v_lshl_add_u32 v24, v25, 7, v24"); g("v_cndmask_b32 v%d, v24, v%d, vcc" % (dst, dst))
        g("buffer_load_dword v%d, v%d, s[12:15], s9 offen" % (dst, dst))
        return g.l
    def touch_wq(n, dst):
        g = Seq()
        g("s_lshr_b32 s8, s2, 3"); g("s_lshl_b32 s8, s8, 2"); g("s_add_u32 s8, s8, s%d" % S_RG); g("s_add_u32 s8, s8, %d" % (128 * n)); g("s_lshl_b32 s8, s8, 15")
        g("v_and_b32 v24, 1, v%d" % vLANE); g("v_lshlrev_b32 v24, 7, v24"); g("v_lshrrev_b32 v25, 4, v%d" % vLANE); g("v_lshl_add_u32 v24, v25, 13, v24")
        g("v_bfe_u32 v25, v%d, 2, 2" % vLANE); g("v_lshl_add_u32 v24, v25, 11, v24"); g("s_and_b32 s11, s2, 7"); g("s_lshl_b32 s11, s11, 8"); g("v_add_u32 v24, s11, v24")
        g("buffer_load_dword v%d, v24, %s, s8 offen" % (dst, sr(SRD_WQ, 4)))
        return g.l

    q("s_cmp_ge_u32 s%d, 4" % S_W); q("s_cbranch_scc1 F_B")
    pre, st0 = resolve_waits(q.l)
    outl = list(pre); cold = []
    WQS = [4, 5, 7, 1, 2, 3, 4, 5, 7]
    WBS = [6 * SLOT, 6 * SLOT + 8192, 0, 8192, 8 * SLOT, 8 * SLOT + 8192, 6 * SLOT, 6 * SLOT + 8192, 9 * SLOT + 8192]
    for role in range(2):
        RN = "AB"[role]
        r = Seq()
        if role == 1: r.label("F_B")
        def dma_wq(i):
            g = []
            for e in range(2):
                z = Seq()
                if e == 0: z("s_add_u32 m0, s%d, %d" % (S_MW, WQS[i] * SLOT))
                z("s_mov_b32 s%d, %d" % (S_TMP, (i * 64 + role * 32) * 8192 + e * (4 * 8192 - 1024)))
                z("buffer_load_dwordx4 v%d, %s, s%d offen offset:%d lds" % (vWo, sr(SRD_WQ, 4), S_TMP, e * 1024), tag="W%d" % i)
                g.append(z.l)
            return g
        def dma_wb(i):
            z = Seq()
            z("s_add_u32 m0, s%d, %d" % (S_MB, WBS[i])); z("s_add_u32 s%d, s%d, %d" % (S_TMP, S_WBG, i * 8192))
            z("buffer_load_dwordx4 v%d, %s, s%d offen sc1 lds" % (vL16, sr(SRD_WS, 4), S_TMP), tag="W%d" % i)
            return [z.l]
        def ld_x(ks):
            g = []
            for rr in range(2):
                z = Seq()
                z("s_add_u32 s%d, s%d, %d" % (S_TMP, S_XB, (rr * 18 + ks) * 1024))
                z("buffer_load_dwordx4 %s, v%d, %s, s%d offen sc1" % (vr(XRS[ks % NXR] + 4 * rr, 4), vL16, sr(SRD_WS, 4), S_TMP))
                g.append(z.l)
            return g
        NM = 512
        extra = {f: [] for f in range(NM)}
        streams = []
        def spread(lst, a, per=int(os.environ.get("PER", 1))):
            streams.append([y_ for x_ in lst for y_ in (x_ if isinstance(x_, list) else [x_])])
            for k, ins in enumerate(lst): extra[a + k // per].extend(ins if isinstance(ins, list) else [ins])
            return a + (len(lst) + per - 1) // per
        def rd_w(i, cb):
            w = WF + 4 * ((8 * i + cb) % NWF); off = (i % 4) * 16384
            return Seq()("ds_read_b64_tr_b16 %s, v%d offset:%d" % (vr(w, 2), vWR + cb, off))("ds_read_b64_tr_b16 %s, v%d offset:%d" % (vr(w + 2, 2), vWR + cb, off + 1024)).l
        def rd_a(i, rbk):
            sl = (i >> 1) % 3
            base = vAR + (i & 1) + (2 if sl == 2 else 0); off = (32768 if sl == 1 else 0) + rbk * 2048
            return Seq()("ds_read_b128 %s, v%d offset:%d" % (vr(AF + 16 * (i & 1) + 4 * rbk, 4), base, off)).l
        B1, B2 = int(os.environ.get('B1', 9)), 10
        def arrive(name, fill, ta=30, tb=31):
            z = Seq(); z("v_mov_b32 v%d, s%d" % (ta, S_HUGE)); fill(z, ta, tb); z("v_mov_b32 v%d, 1" % tb)
            z("buffer_atomic_add v%d, v%d, %s, 0 offen" % (tb, ta, sr(SRD_DBG, 4)), tag="OPT")
            return w7_block(name, z).l
        def fill1(z, ta, tb):
            z("s_lshl_b32 s11, s%d, 2" % S_H); z("v_mov_b32 v%d, s11" % tb); z("v_cmp_eq_u32 vcc, 0, v%d" % vLANE); z("v_cndmask_b32 v%d, v%d, v%d, vcc" % (ta, ta, tb))
            z("s_lshr_b32 s11, s2, 4"); z("s_lshl_b32 s11, s11, 2"); z("s_add_u32 s11, s11, 128"); z("v_mov_b32 v%d, s11" % tb)
            z("v_cmp_eq_u32 vcc, 1, v%d" % vLANE); z("v_cndmask_b32 v%d, v%d, v%d, vcc" % (ta, ta, tb))
            z("s_and_b32 s11, s2, 7"); z("s_lshl_b32 s11, s11, 2"); z("s_add_u32 s11, s11, 224"); z("v_mov_b32 v%d, s11" % tb)
            z("v_cmp_eq_u32 vcc, 2, v%d" % vLANE); z("v_cndmask_b32 v%d, v%d, v%d, vcc" % (ta, ta, tb))
        def fill2(z, ta, tb):
            z("s_and_b32 s11, s2, 7"); z("s_lshl_b32 s11, s11, 2"); z("s_add_u32 s11, s11, 192"); z("v_mov_b32 v%d, s11" % tb)
            z("v_cmp_eq_u32 vcc, 0, v%d" % vLANE); z("v_cndmask_b32 v%d, v%d, v%d, vcc" % (ta, ta, tb))
        def publish1(i):
            z = Seq(); tags = ["U%d" % i] + (["A%d" % (i >> 1)] if i % 2 == 0 else [])
            if i == B1: tags += ["J13"]
            z.waitv(*tags)
            if i == 14 and role == 1:
                y_ = Seq(); y_("s_waitcnt vmcnt(4)", tag="OPT"); poll_check(y_, "P1", 26, 25, 24, SRD_DBG, "0"); z.ext(w7_block("F_P1C", y_))
            z("s_barrier")
            if i % 2 == 0: ST(z, 1 + i // 2)
            return z.l
        DW = 4
        for i in range(16):
            for cb in range(8):
                n = 8 * i + cb - DW
                if n >= 0:
                    if cb == 0: extra[4 * n].extend(publish1(i))
                    extra[4 * n].extend(rd_w(i, cb))
            if i > 0:
                for rbk in range(4): extra[32 * (i - 1) + 18 + 3 * rbk].extend(rd_a(i, rbk))
                g = []
                if i == 12 and role == 1:
                    z = Seq()
                    z("v_lshrrev_b32 v24, 2, v%d" % vL16); poll_issue(z, 26, 24, SRD_DBG, "0", tag="OPT")
                    z("v_cmp_eq_u32 vcc, s%d, v%d" % (S_H, vLANE)); z("v_cndmask_b32 v25, 0, 8, vcc")
                    z("s_add_u32 s8, s%d, 32" % S_J); z("v_cmp_eq_u32 vcc, s8, v%d" % vLANE); z("v_cndmask_b32 v25, v25, 16, vcc")
                    z("s_sub_u32 s8, 47, s%d" % S_J); z("v_cmp_eq_u32 vcc, s8, v%d" % vLANE); z("v_cndmask_b32 v25, v25, 16, vcc")
                    g.append(w7_block("F_P1I", z).l)
                if role == 0:
                    if i + 2 < 16 and i >= 2: g += dma_w(i + 2) + dma_w(i + 2, 1)
                    if i % 2 == 1 and i >= 3 and (i >> 1) + 2 < 8: g += dma_a((i >> 1) + 2) + dma_a((i >> 1) + 2, 1)
                if i == 13: g += dma_wq(0) + dma_wq(1)
                if i == 14: g += dma_wb(0) + dma_wb(1)
                if i == 15: g += dma_wq(2) + dma_wq(3) + dma_wb(2) + dma_wb(3)
                if role == 1 and i == B1: g.append(arrive("F_AR1", fill1))
                for k, l in enumerate(g): extra[32 * (i - 1) + 17 + (2 if len(g) < 8 else 1) * k].extend(l)
        if role == 0: mk_srd(r, SRD_X, P_UV, 512 * 8192)
        else:
            J = [j1(k) for k in range(3)] + [j3(k) for k in range(3)]
            if TOUCH > 1: r.ext(touch(0, 27))
            p = 2
            for x_ in J: p = spread(cp(x_[0]), p, 2)
            w4 = lambda nm, k: Seq()("s_cmp_lg_u32 s%d, 4" % S_W)("s_cbranch_scc1 %s" % nm).l + cp(J[2][k]) + cp(J[5][k]) + Seq().label(nm).l
            for l in [w4("F_Z4", 2)] + [cp(J[k][2]) for k in (0, 1, 3, 4)]: extra[p].extend(l); p += 2
            if TOUCH > 1: extra[p + 4].extend(touch(1, 28))
            p += GAP
            for l in [cp(J[4][1]), w4("F_Y4", 1)] + [cp(J[k][1]) for k in (0, 1, 3)]: extra[p].extend(l); p += 2
            assert p < 32 * (B1 - 1) - 20, p
            if TOUCH: extra[p + 8].extend(touch_wq(0, 29)); extra[p + 16].extend(Seq()("s_cmp_ge_u32 s2, 32")("s_cbranch_scc1 F_TQ").l + [I(x.text, tag="OPT") for x in touch_wq(1, 19)] + Seq().label("F_TQ").l)
        for ks in range(5):
            for k, l in enumerate(ld_x(ks)): extra[32 * 13 + 24 + 4 * ks + 2 * k].extend(l)
        r.ext(publish1(0))
        for rbk in range(4): r.ext(rd_a(0, rbk))
        for cb in range(DW): r.ext(rd_w(0, cb))
        for f in range(NM):
            i, cb, rbk = f >> 5, (f >> 2) & 7, f & 3
            acc = vr(ACC + 4 * (4 * cb + rbk), 4); w = vr(WF + 4 * ((8 * i + cb) % NWF), 4); a = vr(AF + 16 * (i & 1) + 4 * rbk, 4)
            ops = (w, a) if role == 0 else (a, w)
            r("%s %s, %s, %s, %s" % (MF, acc, ops[0], ops[1], "0" if i == 0 else acc))
            r.ext(extra[f])
        ST(r, 9)
        NF = 216
        extra = {f: [] for f in range(2 * NF)}
        def rd_q(n):
            ks, ph = n // 12, n % 12; s1 = ks & 1; w = FR + 4 * (n % 8)
            if ph < 8:
                return Seq()("ds_read_b64_tr_b16 %s, v%d offset:%d" % (vr(w, 2), vWR + ph, s1 * 8192))("ds_read_b64_tr_b16 %s, v%d offset:%d" % (vr(w + 2, 2), vWR + ph, s1 * 8192 + 1024)).l
            return Seq()("ds_read_b64_tr_b16 %s, v%d offset:%d" % (vr(w, 2), vBB[ph - 8], s1 * 4096))("ds_read_b64_tr_b16 %s, v%d offset:%d" % (vr(w + 2, 2), vBB[ph - 8], s1 * 4096 + 512)).l
        BKV = 5
        def publish(i):
            z = Seq()
            d = ((WQS[i] - WQS[i - 1]) * SLOT if i else WQS[0] * SLOT - WB - role * 8192) & 0xffffffff
            for cb in range(8):
                if "r" not in XQ or i == 0: z("v_add_u32 v%d, 0x%x, v%d" % (vWR + cb, d, vWR + cb))
            if i and "r" in XQ: pass
            elif i:
                for b in vBB: z("v_add_u32 v%d, 0x%x, v%d" % (b, (WBS[i] - WBS[i - 1]) & 0xffffffff, b))
            else:
                z("v_lshrrev_b32 v13, 4, v%d" % vLANE); z("v_bfe_u32 v14, v%d, 2, 2" % vLANE); z("v_lshl_add_u32 v15, v13, 3, v14"); z("v_lshlrev_b32 v15, 7, v15")
                z("v_lshrrev_b32 v14, 1, v14"); z("v_and_b32 v13, 1, v13"); z("v_lshl_add_u32 v14, v13, 1, v14"); z("v_lshl_add_u32 v15, v14, 5, v15")
                z("v_and_b32 v14, 3, v%d" % vLANE); z("v_lshl_add_u32 v15, v14, 3, v15"); z("v_add_u32 v%d, %d, v15" % (vBB[0], WBS[0]))
                for b in range(1, 4): z("v_xor_b32 v%d, %d, v%d" % (vBB[b], 32 * b, vBB[0]))
            z.waitv(*(["W%d" % i] + (["KVS"] if i == BKV else [])))
            z("s_barrier")
            ST(z, 10 + i)
            return z.l
        def kv_obj(kind, t, slot):
            z = Seq()
            z("s_add_u32 m0, s%d, %d" % (S_W4K, slot * SLOT)); z("s_add_u32 s%d, s%d, %d" % (S_TMP, S_KG if kind == "K" else S_VG, t * SLOT))
            for e in range(4): z("buffer_load_dwordx4 v%d, %s, s%d offen offset:%d sc1 lds" % (vL16, sr(SRD_WS, 4), S_TMP, 1024 * e), tag="%s%d" % (kind, t))
            return [z.l]
        phl = Seq()
        phl("s_mul_i32 s6, s%d, 648" % S_H); mk_srd(phl, SRD_PHI, P_PHI, 648, add="s6")
        phl("s_lshl_b32 s6, s%d, 8" % S_W); phl("s_add_u32 m0, s6, %d" % PHL); phl("v_lshrrev_b32 v13, 2, v%d" % vL16)
        phl("buffer_load_dword v13, %s, s6 offen lds" % sr(SRD_PHI, 4), tag="W5")
        DWQ = 5
        after = {0: dma_wq(4) + dma_wb(4) + dma_wq(5) + dma_wb(5) + [phl.l], 2: dma_wq(6) + dma_wb(8), 3: dma_wq(7) + dma_wb(6) + dma_wb(7), 4: dma_wq(8)}
        if role == 1:
            fb = Seq(); fb("s_lshl_b32 s6, s%d, 7" % S_H); fb("s_lshl_b32 s8, s%d, 2" % S_J); fb("s_add_u32 s6, s6, s8"); fb("s_add_u32 s6, s6, %d" % FL_KV)
            fbe = Seq().ext(cp(fb)); fbe("s_cmp_lt_u32 s%d, 2" % S_J); fbe("s_cselect_b32 s6, s6, s%d" % S_HUGE)
            after[BKV] = [w7_block("F_FKV", flag_store(fbe, 13, 14)).l]
            fkv_late = w7_block("F_FKV2", flag_store(fb, 8, 9))
        else:
            z = Seq()
            z("v_lshrrev_b32 v13, 2, v%d" % vL16); z("v_mov_b32 v15, s%d" % S_HUGE); z("v_cmp_gt_u32 vcc, 2, v%d" % vLANE)
            z("v_cndmask_b32 v13, v15, v13, vcc"); z("v_cndmask_b32 v15, 0, 1, vcc")
            z("s_lshl_b32 s9, s%d, 7" % S_H); z("s_add_u32 s9, s9, %d" % FL_KV)
            poll_issue(z, 14, 13, SRD_WS, "s9")
            after[6] = [z.l]
            z = Seq(); poll_check(z, "P2A", 14, 15, 13, SRD_WS, "s9")
            after[7] = [z.l] + kv_obj("K", 0, 0) + kv_obj("K", 1, 1)
            after[8] = kv_obj("V", 0, 4) + kv_obj("K", 2, 2)
        for n in range(DWQ, NF):
            pos = 2 * (n - DWQ) + 1
            if n % 24 == 0:
                extra[pos].extend(publish(n // 24))
                for k, l in enumerate(after.get(n // 24, [])): extra[pos + 2 + k].extend(l)
            extra[pos].extend(rd_q(n))
        for k, l in enumerate(after[0]): extra[1 + k].extend(l)
        pk = Seq(); sts = []
        order = list(range(8, 16)) + list(range(8))
        free = []
        for n in order:
            if role == 0:
                j, rbk = n >> 2, n & 3
                b0, b1 = ACC + 4 * (8 * j + rbk), ACC + 4 * (8 * j + 4 + rbk); fi = 4 * rbk + j
            else:
                cb, u = n >> 1, n & 1
                b0, b1 = ACC + 4 * (4 * cb + 2 * u), ACC + 4 * (4 * cb + 2 * u + 1); fi = 8 * u + cb
            if n >= 8: t = b0; free.append(b1)
            else: t = free.pop(0)
            pk("v_cvt_pk_bf16_f32 v%d, v%d, v%d" % (t, b0, b0 + 1)); pk("v_cvt_pk_bf16_f32 v%d, v%d, v%d" % (t + 1, b0 + 2, b0 + 3))
            pk("v_cvt_pk_bf16_f32 v%d, v%d, v%d" % (t + 2, b1, b1 + 1)); pk("v_cvt_pk_bf16_f32 v%d, v%d, v%d" % (t + 3, b1 + 2, b1 + 3))
            sts.append((t, fi))
        sts.sort()
        mkst = lambda t, fi, base, tag: I("buffer_store_dwordx4 %s, v%d, %s, s%d offen offset:%d sc1" % (vr(t, 4), vL16, sr(SRD_WS, 4), base + (fi >> 2), (fi & 3) * 1024), tag=tag)
        for k, (t, fi) in enumerate(sts):
            for (pos, br, nm) in ((8 + 10 * k, "scc0", "E"), (13 + 20 * k, "scc1", "L")):
                z = Seq(); z("s_cmp_lt_u32 s%d, 2" % S_J); z("s_cbranch_%s KS%s%s%d" % (br, RN, nm, k))
                z.ext([mkst(t, fi, S_ST, "OPT")]); z.label("KS%s%s%d" % (RN, nm, k))
                if "s" not in XQ: extra[pos].extend(z.l)
        for ks in range(18 - NXR):
            for k, l in enumerate(ld_x(ks + NXR)):
                if ks == 6: l[-1].tag = "KVS"
                if "x" not in XQ: extra[24 * ks + 24 + k].extend(l)
        z = Seq()
        z("s_lshl_b32 s6, s%d, 19" % S_H); z("s_add_u32 s%d, s6, s%d" % (S_KG, S_W4K)); z("s_add_u32 s%d, s%d, %d" % (S_VG, S_KG, WS_VF))
        z("s_lshr_b32 s%d, s%d, 6" % (S_TL, S_ROW0))
        z("s_lshl_b32 s6, s%d, 1" % S_J); z("s_sub_u32 s%d, 31, s6" % S_TBM)
        c = f2u(LOG2E / (128 ** 0.5))
        z("s_mov_b32 s%d, 0x%x" % (S_C, c)); z("s_mov_b32 s%d, 0x%x" % (S_C + 1, c)); z("s_mov_b32 s%d, 0x%x" % (S_L2E, f2u(LOG2E)))
        z("s_mul_i32 s6, s%d, %d" % (S_TL, NSTEP * 4096)); z("s_lshr_b32 s8, s%d, 4" % S_ROW0); z("s_and_b32 s8, s8, 3"); z("s_lshl_b32 s8, s8, 10")
        z("s_add_u32 s6, s6, s8"); z("s_add_u32 s%d, s6, %d" % (S_AP, WS_AP))
        z("v_lshrrev_b32 v22, 4, v%d" % vLANE); z("v_cmp_gt_u32 vcc, 2, v22"); z("v_cndmask_b32 v%d, 0, 1.0, vcc" % vM5)
        z("v_mov_b32 v%d, 0xff800000" % vNINF)
        streams.append(z.l)
        for k, ins in enumerate(z.l): extra[200 + k].append(ins)
        RAW, PH = 192, 208
        z = Seq(); y = phi_gather(z, RAW, PH, RAW + 12, RAW + 13); streams.append(z.l)
        for k, ins in enumerate(z.l): extra[24 * 16 + 2 + k].append(ins)
        r.ext(publish(0))
        for n in range(DWQ): r.ext(rd_q(n))
        r.ext(pk)
        for n in range(NF):
            ks, ph = n // 12, n % 12
            for rho in range(2):
                acc = vr(qacc(ph, rho) if ph < 8 else (DB + 4 * (2 * (ph - 8) + rho)), 4)
                r("%s %s, %s, %s, %s" % (MF, acc, vr(FR + 4 * (n % 8), 4), vr(XRS[ks % NXR] + 4 * rho, 4), "0" if ks == 0 else acc))
                r.ext(extra[2 * n + rho])
        ST(r, 20)
        r.ext(y)
        for qb in range(2):
            for js in range(4):
                for hb in range(2):
                    a = qacc(2 * js + hb, qb)
                    r("v_pk_mul_f32 %s, %s, s[%d:%d]" % (vr(a, 2), vr(a, 2), S_C, S_C + 1)); r("v_pk_mul_f32 %s, %s, s[%d:%d]" % (vr(a + 2, 2), vr(a + 2, 2), S_C, S_C + 1))
                    d = Q + 16 * qb + 4 * js + 2 * hb
                    r("v_cvt_pk_bf16_f32 v%d, v%d, v%d" % (d, a, a + 1)); r("v_cvt_pk_bf16_f32 v%d, v%d, v%d" % (d + 1, a + 2, a + 3))
        U, VM, PK, EE, T8, LK = 56, 64, 72, 88, 108, 192
        blk = lambda b, rho: DB + 4 * (2 * b + rho)
        r("v_and_b32 v%d, 15, v%d" % (T8, vLANE)); r("v_lshlrev_b32 v%d, 2, v%d" % (T8, T8)); r("v_add_u32 v%d, 64, v%d" % (T8, T8))
        for rho in range(2): r("ds_bpermute_b32 v%d, v%d, v%d" % (vG[rho], T8, blk(3, rho) + 2))
        for rho in range(2):
            t, u = TK + 4 * rho, U + 4 * rho
            for (d, b) in ((u, 2), (t + 2, 3), (t, 0), (VM + 4 * rho, 1)):
                r("v_cvt_pk_bf16_f32 v%d, v%d, v%d" % (d, blk(b, rho), blk(b, rho) + 1)); r("v_cvt_pk_bf16_f32 v%d, v%d, v%d" % (d + 1, blk(b, rho) + 2, blk(b, rho) + 3))
            r("v_mov_b32 v%d, v%d" % (u + 2, t + 3)); r("v_mov_b32 v%d, v%d" % (u + 3, t + 2))
            r("v_mov_b32 v%d, v%d" % (VM + 4 * rho + 2, t + 2)); r("v_mov_b32 v%d, 0x3f80" % (VM + 4 * rho + 3))
        for mu in range(2):
            for rho in range(2): r("%s %s, %s, %s, 0" % (MF, vr(PK + 8 * mu + 4 * rho, 4), vr(PH + 4 * mu, 4), vr(U + 4 * rho, 4)))
        for rho in range(2):
            g = vG[rho]
            r("v_mul_f32 v%d, s%d, v%d" % (g, S_L2E, g)); r("v_exp_f32 v%d, -v%d" % (g, g)); r("v_add_f32 v%d, 1.0, v%d" % (g, g)); r("v_rcp_f32 v%d, v%d" % (g, g))
        vF = 4
        r("v_and_b32 v6, 15, v%d" % vLANE); r("v_lshrrev_b32 v7, 4, v%d" % vLANE)
        r("v_lshlrev_b32 v8, 2, v7"); r("v_sub_u32 v8, v6, v8")
        r("v_add_u32 v%d, s%d, v8" % (vQ, S_ROW0)); r("v_add_u32 v%d, 16, v%d" % (vQ + 1, vQ))
        r("v_mov_b32 v%d, 0" % vLs); r("v_mov_b32 v%d, 0" % (vLs + 1))
        FB0 = 6 * SLOT
        r("s_mul_i32 s6, s%d, 5376" % S_W); r("s_add_u32 s6, s6, %d" % FB0)
        r("v_mul_u32_u24 v8, 168, v6"); r("v_lshl_add_u32 v8, v7, 3, v8"); r("v_add_u32 v%d, s6, v8" % vF)
        r("s_barrier")
        if role == 0: r.ext(flat(kv_obj("V", 1, 5)))
        softmax5(r, PK, EE, T8, LK)
        ST(r, 21)
        for rho in range(2):
            for b in range(3): r("ds_write_b64 v%d, %s offset:%d" % (vF, vr(LK + 8 * rho + 2 * b, 2), 2688 * rho + 32 * b))
            for b in range(2): r("ds_write_b64 v%d, %s offset:%d" % (vF, vr(VM + 4 * rho + 2 * b, 2), 2688 * rho + 96 + 32 * b))
        r("v_mov_b32 v%d, 0x44800000" % vTHR())
        r("v_mov_b32 v%d, v%d" % (vKA, vL16))
        r("s_mov_b32 s%d, 0xffff" % S_KR); r("v_mov_b32 v%d, 0x10000" % vC64); r("v_add_u32 v%d, 0x10000, v%d" % (vVA, vL16)); r("s_mov_b32 s%d, 0" % S_T)
        r("s_waitcnt lgkmcnt(0)")
        if role == 0: r.waitv("K0")
        else: r("s_waitcnt vmcnt(0)")
        r("s_barrier")
        if role == 1: r.ext(fkv_late)
        ST(r, 22)
        if role == 1: r("s_cmp_ge_u32 s%d, 6" % S_W); r("s_cbranch_scc1 F_NC")
        CA, CB, CD = 56, 88, 120
        r("s_cmp_ge_u32 s%d, 3" % S_W); r("s_cselect_b32 s6, 1, 0"); r("s_mul_i32 s8, s6, 3"); r("s_sub_u32 s8, s%d, s8" % S_W)
        r("v_bfe_u32 v8, v%d, 2, 2" % vLANE); r("v_lshl_add_u32 v8, v7, 3, v8")
        r("v_and_b32 v9, 3, v%d" % vLANE); r("v_lshlrev_b32 v9, 3, v9")
        r("v_mul_u32_u24 v21, 168, v8"); r("v_add_u32 v21, v21, v9")
        r("s_lshl_b32 s9, s8, 5"); r("s_add_u32 s9, s9, %d" % FB0); r("v_add_u32 v4, s9, v21")
        r("s_lshl_b32 s9, s6, 5"); r("s_add_u32 s9, s9, %d" % (FB0 + 96)); r("v_add_u32 v6, s9, v21")
        for ks in range(8):
            for (dst, a) in ((CA, 4), (CB, 6)):
                r("ds_read_b64_tr_b16 %s, v%d offset:%d" % (vr(dst + 4 * ks, 2), a, 5376 * ks)); r("ds_read_b64_tr_b16 %s, v%d offset:%d" % (vr(dst + 4 * ks + 2, 2), a, 5376 * ks + 4 * 168))
        for ks in range(8): r("%s %s, %s, %s, %s" % (MF, vr(CD, 4), vr(CA + 4 * ks, 4), vr(CB + 4 * ks, 4), "0" if ks == 0 else vr(CD, 4)))
        r("s_lshl_b32 s9, s%d, 3" % S_H); r("s_add_u32 s9, s9, s%d" % S_J); r("s_mul_i32 s9, s9, 6144"); r("s_add_u32 s9, s9, s%d" % S_MB); r("s_add_u32 s9, s9, %d" % WS_KVP)
        r("buffer_store_dwordx4 %s, v%d, %s, s9 offen sc1" % (vr(CD, 4), vL16, sr(SRD_WS, 4)), tag="KVP")
        if role == 1: r.label("F_NC")
        for n in range(DRD): r.ext([rd_frag("K", n, n)])
        slots = []
        for k in range(8): slots.append(mkslot(qk_mfmas(k, 0, k, lambda qb: "0")))
        for n in range(8):
            if n + DRD < 16: slots[n]["rd"].append(rd_frag("K", n + DRD, n + DRD))
            slots[n]["post"].extend(Seq()("\n".join("v_mov_b32 v%d, 0" % (O + 8 * n + i) for i in range(8))).l)
        r.ext(emit_slots(slots))
        r.ext(mask_ops(0, 0))
        a, b, t = E_, E_ + 1, E_ + 2
        for qb, d in ((0, a), (1, b)):
            x = [sreg(0, 8 * qb + i) for i in range(8)]
            r("v_max3_f32 v%d, v%d, v%d, v%d" % (d, x[0], x[1], x[2])); r("v_max3_f32 v%d, v%d, v%d, v%d" % (d, d, x[3], x[4]))
            r("v_max3_f32 v%d, v%d, v%d, v%d" % (d, d, x[5], x[6])); r("v_max_f32 v%d, v%d, v%d" % (d, d, x[7]))
        red2(r, a, b, "v_max_f32", t)
        for qb, d in ((0, a), (1, b)):
            for i in range(4): r("v_sub_f32 v%d, 0, v%d" % (NEGM + 4 * qb + i, d))
        for qb, d in ((0, a), (1, b)):
            for i in range(8): r("v_sub_f32 v%d, v%d, v%d" % (sreg(0, 8 * qb + i), sreg(0, 8 * qb + i), d))
        r("s_lshl_b32 s6, s%d, 6" % S_TL)
        r("v_subrev_u32 v%d, s6, v%d" % (vQ, vQ)); r("v_subrev_u32 v%d, s6, v%d" % (vQ + 1, vQ + 1))
        slots = []
        for k in range(8): slots.append(mkslot(qk_mfmas(k, 1, 8 + k, NEGC)))
        place_sm(slots, 0, 8, 0, None, None, carry=False)
        r.ext(emit_slots(slots))
        r.waitv("KVP", "K1", "V0")
        r("s_barrier")
        if role == 0:
            r("s_add_u32 s%d, s%d, %d" % (S_KL, S_W4K, 3 * SLOT)); r("s_add_u32 s%d, s%d, %d" % (S_VL, S_W4K, 6 * SLOT))
            r("s_add_u32 s%d, s%d, %d" % (S_KG, S_KG, 3 * SLOT)); r("s_add_u32 s%d, s%d, %d" % (S_VG, S_VG, 2 * SLOT))
            r("v_lshrrev_b32 v8, 2, v%d" % vL16); r("v_mov_b32 v7, s%d" % S_HUGE); r("v_cmp_gt_u32 vcc, 8, v%d" % vLANE)
            r("v_cndmask_b32 v8, v7, v8, vcc"); r("v_cndmask_b32 v7, 0, 1, vcc"); r("s_lshl_b32 s15, s%d, 7" % S_H); r("s_add_u32 s15, s15, %d" % FL_KV)
            r("s_mov_b32 m0, s%d" % S_KL)
            for e in range(4): r("buffer_load_dwordx4 v%d, %s, s%d offen offset:%d sc1 lds" % (vL16, sr(SRD_WS, 4), S_KG, 1024 * e))
            r("s_add_u32 s%d, s%d, %d" % (S_KG, S_KG, SLOT)); r("s_mov_b32 s%d, s%d" % (S_KL, S_W4K))
            r.ext(pkg())
        else:
            fb = Seq(); fb("s_lshl_b32 s6, s%d, 7" % S_H); fb("s_lshl_b32 s8, s%d, 2" % S_J); fb("s_add_u32 s6, s6, s8"); fb("s_add_u32 s6, s6, %d" % FL_KP)
            r.ext(w7_block("F_FKP", flag_store(fb, 4, 5)))
        if (role == 1 and PRIO) or PRIO == 2: r("s_setprio 1")
        if stamp: r.ext(STAMP(23)); r.ext(RSTAMP(62))
        main, st1 = resolve_waits(r.l, st0)
        verify_streams(main, streams, "f")
        st1.vm = []
        rares = []
        z = Seq()
        z("s_cmp_eq_u32 s%d, 0" % S_TL); z("s_cbranch_scc1 %s_PV" % RN)
        z.ext(adv(vKA))
        for n in range(DRD): z.ext([rd_frag("K", n, n) if n < 8 else rd_frag("V", n - 8, n)])
        z("s_cmp_le_u32 s%d, 1" % S_TL); z("s_cbranch_scc1 %s_S1" % RN)
        lz, stl = resolve_waits(z.l, st1)
        main += lz
        tmp = []
        b1, s1 = resolve_waits(iteration(role, "S", tmp), stl); s1.vm = []
        b2, s2 = resolve_waits(iteration(role, "S", rares), s1); s2.vm = []
        assert [x.text for x in b1] == [x.text for x in b2] and s1.sig() == s2.sig(), "loop not steady"
        main += Seq().label("%s_LOOP" % RN).l + b2 + Seq()("s_cmp_lt_u32 s6, s%d" % S_TL)("s_cbranch_scc1 %s_LOOP" % RN)("s_branch %s_S1" % RN).l
        z = Seq(); z.label("%s_PV" % RN)
        for n in range(DRD): z.ext([rd_frag("V", n, n)])
        z("s_branch %s_S2" % RN)
        lz, _ = resolve_waits(z.l, st1)
        main += lz
        b, s3 = resolve_waits(iteration(role, "S1", rares), s1); s3.vm = []
        main += Seq().label("%s_S1" % RN).l + b + Seq()("s_add_u32 s%d, s%d, 1" % (S_T, S_T)).l
        b, s4 = resolve_waits(iteration(role, "S2", rares), s3); s4.vm = []
        main += Seq().label("%s_S2" % RN).l + b
        e = Seq()
        if stamp: e.ext(STAMP(24)); e.ext(RSTAMP(63))
        vFL, vFO, vFN = 4, 5, 6
        if role == 0:
            e("s_setprio 0")
            e("v_lshrrev_b32 v%d, 2, v%d" % (vFO, vL16)); e("v_mov_b32 v%d, s%d" % (vFN, S_HUGE)); e("v_cmp_gt_u32 vcc, 8, v%d" % vLANE)
            e("v_cndmask_b32 v%d, v%d, v%d, vcc" % (vFO, vFN, vFO)); e("v_cndmask_b32 v%d, 0, 1, vcc" % vFN)
            e("s_lshl_b32 s14, s%d, 7" % S_H); e("s_add_u32 s14, s14, %d" % FL_KP)
            poll_issue(e, vFL, vFO, SRD_WS, "s14")
        red2(e, vLs, vLs + 1, "v_add_f32", E_)
        for qb in range(2):
            e("v_rcp_f32 v%d, v%d" % (vLs + qb, vLs + qb)); e("v_mul_f32 v%d, v%d, v%d" % (E_ + 2 * qb, vLs + qb, vG[qb])); e("v_mov_b32 v%d, v%d" % (E_ + 2 * qb + 1, E_ + 2 * qb))
        e("s_lshl_b32 s6, s%d, 14" % S_H); e("s_add_u32 s6, s6, s%d" % S_AP)
        for js in range(4):
            for qb in range(2):
                t = FR + 4 * ((2 * js + qb) % 8)
                for hb in range(2):
                    a = O + 8 * (2 * js + hb) + 4 * qb
                    e("v_pk_mul_f32 %s, %s, %s" % (vr(a, 2), vr(a, 2), vr(E_ + 2 * qb, 2))); e("v_pk_mul_f32 %s, %s, %s" % (vr(a + 2, 2), vr(a + 2, 2), vr(E_ + 2 * qb, 2)))
                    e("v_cvt_pk_bf16_f32 v%d, v%d, v%d" % (t + 2 * hb, a, a + 1)); e("v_cvt_pk_bf16_f32 v%d, v%d, v%d" % (t + 2 * hb + 1, a + 2, a + 3))
                e("buffer_store_dwordx4 %s, v%d, %s, s6 offen offset:%d sc1" % (vr(t, 4), vL16, sr(SRD_WS, 4), 1024 * qb))
            if js < 3: e("s_add_u32 s6, s6, 4096")
        ST(e, 25)
        if role == 0:
            e("s_sub_u32 s6, s%d, 1" % S_J); e("s_cmp_ge_u32 s6, 5"); e("s_cbranch_scc1 A_LD")
            e("s_mul_i32 s8, s%d, 5" % S_H); e("s_add_u32 s6, s6, s8"); e("s_lshl_b32 s6, s6, 2"); e("s_add_u32 s6, s6, s%d" % S_W); e("s_mul_i32 s%d, s6, 9" % S_JU)
            e("s_mov_b32 s%d, %d" % (S_WOSZ, 4096 * 1152)); e("s_mov_b32 s%d, 0x00020000" % (SRD_J + 3))
            mk_srd(e, SRD_WS2, P_WS, WS_WP + 16 * 37 * 9728)
            e("s_cmp_ge_u32 s%d, 2" % S_W); e("s_cbranch_scc1 A_J0")
            e("s_add_u32 s%d, s%d, 1" % (S_T, S_T)); e.ext(sync_block(0, "JP"))
            e.label("A_J0")
            jb = [j2(i, 56 + 4 * (i % 6), 80, 84 + (i % 6)) for i in range(9)]
            nops = [3, 6, 6, 3, 0, 0]
            for st_ in range(6):
                e("s_add_u32 s%d, s%d, 1" % (S_T, S_T))
                x_ = (nops[st_ - 1] if st_ >= 1 else 0) + (nops[st_ - 2] if st_ >= 2 else 0)
                e.ext(sync_block(0, "J%d" % st_, xtra=x_, strict=8 if st_ == 5 else None, always=True))
                if 1 <= st_ <= 3:
                    e("s_waitcnt vmcnt(8)")
                    for i in range(3 * st_ - 3, 3 * st_): e.ext(jb[i][1])
                if st_ < 3:
                    for i in range(3 * st_, 3 * st_ + 3): e.ext(jb[i][0])
            z = Seq(); z("v_mov_b32 v24, s%d" % S_HUGE); fill2(z, 24, 25); z("v_mov_b32 v25, 1")
            z("buffer_atomic_add v25, v24, %s, 0 offen" % sr(SRD_DBG, 4))
            e("s_cmp_lg_u32 s%d, 0" % S_W); e("s_cbranch_scc1 A_LD"); e.ext(z)
            e.label("A_LD")
            e("s_add_u32 s%d, s%d, 1" % (S_T, S_T)); e("s_cmp_ge_u32 s%d, s%d" % (S_T, S_TBM)); e("s_cbranch_scc1 A_FIN")
            e.ext(sync_block(0, "LD"))
            e("s_cmp_ge_u32 s%d, 2" % S_W); e("s_cbranch_scc1 A_LD")
            e("s_cmp_eq_u32 s%d, 3" % S_R); e("s_cbranch_scc0 A_N3")
            e("s_waitcnt vmcnt(0)")
            poll_issue(e, vFL, vFO, SRD_WS, "s14")
            e("s_branch A_LD")
            e.label("A_N3")
            e("s_cmp_eq_u32 s%d, 2" % S_R); e("s_cbranch_scc0 A_LD")
            e("s_waitcnt vmcnt(0)")
            poll_check(e, "P3A", vFL, vFN, vFO, SRD_WS, "s14")
            KR_ = 56
            e("s_mul_i32 s6, s%d, 49152" % S_H); e("s_mul_i32 s8, s%d, 3072" % S_W); e("s_add_u32 s6, s6, s8"); e("s_add_u32 s6, s6, %d" % WS_KVP)
            for p in range(8):
                for mu in range(3): e("buffer_load_dwordx4 %s, v%d, %s, s6 offen offset:%d sc1" % (vr(KR_ + 12 * p + 4 * mu, 4), vL16, sr(SRD_WS, 4), 1024 * mu))
                if p < 7: e("s_add_u32 s6, s6, 6144")
            for p in range(1, 8):
                for i in range(12): e("v_add_f32 v%d, v%d, v%d" % (KR_ + i, KR_ + i, KR_ + 12 * p + i))
            for i in range(6): e("v_cvt_pk_bf16_f32 v%d, v%d, v%d" % (FR + i, KR_ + 2 * i, KR_ + 2 * i + 1))
            e("v_mov_b32 v%d, 0" % (FR + 6)); e("v_mov_b32 v%d, 0" % (FR + 7))
            e("s_lshl_b32 s6, s%d, 11" % S_W); e("s_add_u32 s6, s6, %d" % KVX); e("v_add_u32 v21, s6, v%d" % vL16)
            e("ds_write_b128 v21, %s" % vr(FR, 4)); e("ds_write_b128 v21, %s offset:1024" % vr(FR + 4, 4))
            e("s_waitcnt lgkmcnt(0)")
            e("s_branch A_LD")
            e.label("A_FIN"); e("s_waitcnt vmcnt(0)"); e("s_branch F_FIN")
        le, _ = resolve_waits(e.l, s4)
        outl += main + le
        for rb in rares: cold += rb.l
    e = Seq(); e.label("F_FIN"); e("s_setprio 0")
    e("s_waitcnt lgkmcnt(0)")
    e("v_lshrrev_b32 v4, 2, v%d" % vL16); poll_issue(e, 5, 4, SRD_DBG, "0")
    RAW, PH, PK, EE, T8, LQ, KF_, ND = 56, 72, 80, 96, 116, 120, 136, 152
    y = phi_gather(e, RAW, PH, RAW + 12, RAW + 13)
    e("v_add_u32 v6, %d, v%d" % (KVX, vL16))
    for i in range(4): e("ds_read_b128 %s, v6 offset:%d" % (vr(KF_ + 4 * i, 4), 1024 * i))
    e.ext(y)
    for mu in range(2):
        for rho in range(2): e("%s %s, %s, %s, 0" % (MF, vr(PK + 8 * mu + 4 * rho, 4), vr(PH + 4 * mu, 4), vr(TK + 4 * rho, 4)))
    softmax5(e, PK, EE, T8, LQ)
    for rho in range(2): e("v_mov_b32 v%d, 0" % (LQ + 8 * rho + 6)); e("v_mov_b32 v%d, 0" % (LQ + 8 * rho + 7))
    for rho in range(2):
        for nu in range(2):
            d = vr(ND + 8 * rho + 4 * nu, 4)
            e("%s %s, %s, %s, 0" % (MF, d, vr(KF_ + 8 * nu, 4), vr(LQ + 8 * rho, 4)))
            e("%s %s, %s, %s, %s" % (MF, d, vr(KF_ + 8 * nu + 4, 4), vr(LQ + 8 * rho + 4, 4), d))
    e("s_lshr_b32 s6, s%d, 1" % S_H); e("s_add_u32 s6, s6, 128"); e("s_lshl_b32 s6, s6, 12"); e("s_add_u32 s6, s6, s%d" % S_AP)
    e("s_and_b32 s8, s%d, 1" % S_H); e("s_lshl_b32 s8, s8, 9"); e("s_add_u32 s6, s6, s8")
    e("s_lshr_b32 s8, s%d, 4" % S_H); e("s_add_u32 s8, s8, 144"); e("s_lshl_b32 s8, s8, 12"); e("s_add_u32 s8, s8, s%d" % S_AP)
    e("s_lshr_b32 s9, s%d, 2" % S_H); e("s_and_b32 s9, s9, 3"); e("s_lshl_b32 s9, s9, 8"); e("s_add_u32 s8, s8, s9")
    e("s_and_b32 s9, s%d, 3" % S_H); e("s_lshl_b32 s9, s9, 2"); e("s_add_u32 s8, s8, s9")
    e("v_and_b32 v6, 15, v%d" % vLANE); e("v_lshlrev_b32 v6, 4, v6"); e("v_lshrrev_b32 v7, 4, v%d" % vLANE)
    e("v_lshl_add_u32 v10, v7, 7, v6"); e("v_and_b32 v9, 1, v7")
    e("v_mov_b32 v8, s%d" % S_HUGE); e("v_cmp_ne_u32 vcc, 1, v7"); e("v_cndmask_b32 v6, v6, v8, vcc")
    e("v_cmp_ne_u32 vcc, 0, v9"); e("v_cndmask_b32 v10, v10, v8, vcc")
    e("s_mov_b32 s9, 0x%x" % f2u(1e-6))
    for rho in range(2):
        n = ND + 8 * rho
        e("v_add_f32 v8, s9, v%d" % (n + 6)); e("v_rcp_f32 v8, v8"); e("v_sub_f32 v9, 1.0, v%d" % vG[rho]); e("v_mul_f32 v8, v8, v9")
        for i in range(6): e("v_mul_f32 v%d, v%d, v8" % (n + i, n + i))
        for i in range(2): e("v_cvt_pk_bf16_f32 v%d, v%d, v%d" % (n + i, n + 2 * i, n + 2 * i + 1))
        e("v_cvt_pk_bf16_f32 v%d, v%d, v%d" % (n + 4, n + 4, n + 5))
        e("v_mov_b32 v%d, v%d" % (n + 2, n)); e("v_mov_b32 v%d, v%d" % (n + 3, n + 1))
        e("v_permlane16_swap_b32 v%d, v%d" % (n, n + 2)); e("v_permlane16_swap_b32 v%d, v%d" % (n + 1, n + 3))
        e("buffer_store_dwordx4 %s, v10, %s, s6 offen offset:%d sc1" % (vr(n, 4), sr(SRD_WS, 4), 1024 * rho), tag="APS")
        e("buffer_store_dword v%d, v6, %s, s8 offen offset:%d sc1" % (n + 4, sr(SRD_WS, 4), 1024 * rho), tag="APS")
    ST(e, 26)
    SRD_W3, SRD_OUT, S_KQ, S_A, S_WM, S_G, S_SO, S_R16 = 56, 60, 64, 65, 68, 69, 72, 76
    WR0 = 65536; NS = 37; IMG = 9728
    e("s_and_b32 s%d, s%d, 3" % (S_KQ, S_H))
    e("s_lshl_b32 s8, s%d, 1" % S_J); e("s_sub_u32 s9, 30, s8"); e("s_bitcmp1_b32 s%d, 2" % S_H); e("s_cselect_b32 s10, s9, s8")
    e("s_lshr_b32 s6, s%d, 2" % S_W); e("s_add_u32 s6, s6, s10"); e("s_mul_i32 s6, s6, %d" % (NSTEP * 4096)); e("s_lshl_b32 s8, s%d, 10" % S_RG)
    e("s_add_u32 s6, s6, s8"); e("s_add_u32 s6, s6, %d" % WS_AP)
    e("s_lshl_b32 s8, s%d, 17" % S_KQ); e("s_add_u32 s%d, s6, s8" % S_A)
    e("s_lshl_b32 s8, s%d, 14" % S_KQ); e("s_add_u32 s%d, s6, s8" % (S_A + 1)); e("s_add_u32 s%d, s%d, %d" % (S_A + 1, S_A + 1, 128 * 4096))
    e("s_lshl_b32 s8, s%d, 11" % S_KQ); e("s_add_u32 s8, s6, s8"); e("s_add_u32 s8, s8, %d" % (144 * 4096))
    e("s_bitcmp1_b32 s%d, 0" % S_KQ); e("s_cselect_b32 s%d, s%d, s8" % (S_A + 2, S_HUGE))
    e("s_cselect_b32 s9, 36, 37"); e("s_cselect_b32 s11, 8, 16")
    e("s_lshr_b32 s6, s%d, 3" % S_H); e("s_lshl_b32 s6, s6, 2"); e("s_add_u32 s6, s6, s%d" % S_KQ); e("s_mul_i32 s6, s6, %d" % (37 * IMG)); e("s_add_u32 s6, s6, %d" % WS_WP)
    mk_srd(e, SRD_W3, P_WS, 0, add="s6"); e("s_mul_i32 s%d, s9, %d" % (SRD_W3 + 2, IMG))
    mk_srd(e, SRD_OUT, P_OUT, 2048 * 1152)
    e("s_add_u32 s%d, s%d, %d" % (S_WM, S_MB, WR0))
    vH, vT, vA, vO, vO5 = 8, 12, 14, 10, 11
    e("v_add_u32 v%d, s%d, v%d" % (vH, S_MB, vL16))
    e("v_bfe_u32 v10, v%d, 2, 2" % vLANE); e("v_lshl_add_u32 v10, v7, 3, v10"); e("v_mul_u32_u24 v10, 288, v10"); e("v_lshl_add_u32 v10, v7, 7, v10")
    e("v_and_b32 v11, 3, v%d" % vLANE); e("v_lshl_add_u32 v10, v11, 3, v10")
    e("s_lshr_b32 s6, s%d, 2" % S_W); e("s_mul_i32 s6, s6, 160"); e("s_add_u32 s6, s6, %d" % WR0)
    e("v_add_u32 v%d, s6, v10" % vT); e("v_add_u32 v%d, %d, v%d" % (vT + 1, 4 * IMG, vT))
    e("s_lshl_b32 s6, s%d, 11" % S_RG); e("v_add_u32 v%d, s6, v%d" % (vA, vL16))
    e("v_cmp_le_u32 vcc, 48, v%d" % vLANE); e("v_cndmask_b32 v6, 0, 20, vcc"); e("v_cmp_le_u32 vcc, 56, v%d" % vLANE); e("v_cndmask_b32 v6, v6, 32, vcc")
    poll_check(e, "P4", 5, 6, 4, SRD_DBG, "0")
    e("s_lshl_b32 s6, s%d, 3" % S_KQ); e("v_subrev_u32 v9, s6, v%d" % vLANE); e("v_cmp_gt_u32 vcc, s11, v9")
    e("v_mov_b32 v6, s%d" % S_HUGE); e("v_cndmask_b32 v4, v6, v4, vcc"); e("v_cndmask_b32 v6, 0, 1, vcc")
    e("s_lshl_b32 s11, s%d, 7" % S_J); e("s_add_u32 s11, s11, %d" % FL_AP)
    AG, WG, AC = 24, 40, 80
    S_ROT = 88
    for t in range(4):
        e("s_lshr_b32 s6, s%d, %d" % (S_H, 3 if ROT else 8)); e("s_add_u32 s6, s6, %d" % t); e("s_and_b32 s6, s6, 3"); e("s_lshl_b32 s6, s6, 12"); e("s_add_u32 s%d, s%d, s6" % (S_ROT + t, S_A))
    def dmaw(qq):
        z = Seq()
        z("s_mov_b32 m0, s%d" % S_WM); z("s_mov_b32 s9, %d" % (qq * 8192)); z("s_add_u32 s%d, s%d, 8192" % (S_WM, S_WM))
        z("buffer_load_dwordx4 v%d, %s, s9 offen sc1 lds" % (vH, sr(SRD_W3, 4)), tag="P%d" % qq)
        z("s_sub_u32 s9, s%d, %d" % (S_WM, 76 * 1024)); z("s_cmp_ge_u32 s%d, %d" % (S_WM, WR0 + 76 * 1024)); z("s_cselect_b32 s%d, s9, s%d" % (S_WM, S_WM))
        return z
    def dmaa(n):
        z = Seq()
        z("s_add_u32 m0, s%d, %d" % (S_MB, (n % 8) * 8192))
        if n < 36: z("s_add_u32 s8, s%d, %d" % ((S_ROT + (n & 3), (n & 28) * 4096) if n < 32 else (S_A + 1, (n - 32) * 4096)))
        z("buffer_load_dwordx4 v%d, %s, s%d offen sc1 lds" % (vL16, sr(SRD_WS, 4), 8 if n < 36 else S_A + 2), tag="Q%d" % n)
        return z
    def rds(n, nf):
        sl = n % 8; hi = sl >> 2; out = []
        for rho in range(2): out.append(Seq()("ds_read_b128 %s, v%d offset:%d" % (vr(AG + 8 * (n % 2) + 4 * rho, 4), vA, sl * 8192 + 1024 * rho)).l)
        for fi in range(nf):
            out.append(Seq()("\n".join("ds_read_b64_tr_b16 %s, v%d offset:%d" % (vr(WG + 20 * (n % 2) + 4 * fi + 2 * hh, 2), vT + hi, (sl & 3) * IMG + 32 * fi + 1152 * hh) for hh in range(2))).l)
        return out
    e.waitv("APS")
    e("s_barrier")
    fb = Seq(); fb("s_lshl_b32 s6, s%d, 7" % S_J); fb("s_lshl_b32 s8, s%d, 2" % S_H); fb("s_add_u32 s6, s6, s8"); fb("s_add_u32 s6, s6, %d" % FL_AP)
    e.ext(w7_block("F_FAP", flag_store(fb, 10, 11)))
    ST(e, 27)
    nq0 = 9; na0 = 8; NQ = 44
    for qq in range(nq0): e.ext(dmaw(qq))
    e("v_and_b32 v16, 15, v%d" % vLANE); e("s_lshl_b32 s6, s10, 6"); e("s_lshl_b32 s8, s%d, 5" % S_RG); e("s_add_u32 s6, s6, s8")
    e("v_add_u32 v16, s6, v16"); e("v_mul_u32_u24 v16, 1152, v16"); e("v_lshl_add_u32 v16, v7, 3, v16")
    e("s_lshr_b32 s6, s%d, 3" % S_H); e("s_mul_i32 s6, s6, 288"); e("s_lshr_b32 s8, s%d, 2" % S_W); e("s_mul_i32 s8, s8, 160"); e("s_add_u32 s6, s6, s8")
    e("v_add_u32 v%d, s6, v16" % vO)
    e("s_mov_b32 s%d, %d" % (S_R16, 16 * 1152))
    px_group(e, S_G, 6)
    e("s_lshl_b32 s6, s%d, 5" % S_G); e("s_add_u32 s6, s6, s%d" % S_W); e("s_mul_i32 s6, s6, 10240"); e("s_add_u32 s10, s6, %d" % WS_PX)
    for t in range(4): e("s_add_u32 s%d, s10, %d" % (S_SO + t, t * 81920))
    z = Seq(); z("v_mov_b32 v5, 0")
    poll_check(z, "P5", 5, 6, 4, SRD_WS, "s11")
    e.ext(w7_block("F_P5", z))
    e("s_barrier")
    ST(e, 28)
    for n in range(na0): e.ext(dmaa(n))
    def pub(m):
        z = Seq(); z.waitv("P%d" % min(NQ - 1, (19 * m + 18) // 8), "Q%d" % min(NS - 1, 2 * m + 1)); z("s_waitcnt lgkmcnt(0)"); z("s_barrier")
        return z.l
    e.ext(pub(0))
    e("s_cmp_ge_u32 s%d, 4" % S_W); e("s_cbranch_scc1 G_B")
    le, stp = resolve_waits(e.l, Pend(vm=[("vm_st", (), "APS")] * 8))
    tail = []
    for role in range(2):
        RN = "AB"[role]; nf = 5 - role; nb = 2 * nf; na = na0; nq = nq0
        e = Seq()
        if role: e.label("G_B")
        e.ext(flat(rds(0, nf)))
        for n in range(NS):
            fill = {k: [] for k in range(nb)}
            if n + 1 < NS:
                if n % 2 == 1:
                    m = (n + 1) // 2
                    fill[0].extend(pub(m))
                    k = nb - 3
                    while na < NS and na <= 2 * m + 7: fill[k].extend(dmaa(na).l); na += 1; k = min(nb - 1, k + 1)
                    k = 0
                    while nq < NQ and nq <= (19 * m + 68) // 8: nxt_fill.append(dmaw(nq).l) if False else fill[nb - 1].extend(dmaw(nq).l); nq += 1
                for k, l in enumerate(rds(n + 1, nf)): fill[k].extend(l)
            for fi in range(nf):
                for rho in range(2):
                    acc = vr(AC + 4 * (2 * fi + rho), 4)
                    e("%s %s, %s, %s, %s" % (MF, acc, vr(WG + 20 * (n % 2) + 4 * fi, 4), vr(AG + 8 * (n % 2) + 4 * rho, 4), "0" if n == 0 else acc))
                    e.ext(fill[2 * fi + rho])
            if n % 8 == 0 and n < 32: ST(e, 29 + n // 8)
        assert na == NS and nq == NQ, (na, nq)
        ST(e, 34)
        e("s_mul_i32 s6, s%d, 81920" % S_KQ); e("s_add_u32 s6, s6, s10")
        for t in range(3): e("s_add_u32 s%d, s6, %d" % (84 + t, 4096 * t))
        for kq in range(4):
            if kq < 3: e("s_cmp_lg_u32 s%d, %d" % (S_KQ, kq)); e("s_cbranch_scc1 %s_XS%d" % (RN, kq))
            for b in range(nb):
                if b & 3 != kq: e("buffer_store_dwordx4 %s, v%d, %s, s%d offen offset:%d sc1" % (vr(AC + 4 * b, 4), vL16, sr(SRD_WS, 4), 84 + (b >> 2), (b & 3) * 1024), tag="OPT")
            if kq < 3: e("s_branch %s_XSD" % RN); e.label("%s_XS%d" % (RN, kq))
        e.label("%s_XSD" % RN)
        if PXW:
            e("v_lshrrev_b32 v4, 2, v%d" % vL16); e("v_mov_b32 v6, s%d" % S_HUGE); e("v_cmp_gt_u32 vcc, 4, v%d" % vLANE)
            e("v_cndmask_b32 v4, v6, v4, vcc"); e("v_cndmask_b32 v6, 0, 1, vcc")
            fb = Seq(); px_flag(fb, 6, 8); fb("s_and_b32 s11, s6, 0xffffff80"); fb("s_waitcnt vmcnt(0)")
            e.ext(flag_store(fb, 16, 17)); e("v_mov_b32 v5, 0"); poll_check(e, "P6%s" % RN, 5, 6, 4, SRD_WS, "s11")
        else:
            if role:
                e("v_lshrrev_b32 v4, 2, v%d" % vL16); e("v_mov_b32 v6, s%d" % S_HUGE); e("v_cmp_gt_u32 vcc, 4, v%d" % vLANE)
                e("v_cndmask_b32 v4, v6, v4, vcc"); e("v_cndmask_b32 v6, 0, 1, vcc")
            e("s_waitcnt vmcnt(0)"); e("s_barrier")
            if role:
                fb = Seq(); px_flag(fb, 6, 8); fb("s_and_b32 s11, s6, 0xffffff80")
                z = flag_store(fb, 16, 17); z("v_mov_b32 v5, 0"); poll_check(z, "P6", 5, 6, 4, SRD_WS, "s11")
                e.ext(w7_block("F_P6", z))
            e("s_barrier")
        ST(e, 33)
        lz, stx = resolve_waits(e.l, stp); tail += lz
        for kq in range(4):
            z = Seq()
            if kq < 3: z("s_cmp_lg_u32 s%d, %d" % (S_KQ, kq)); z("s_cbranch_scc1 %s_XL%d" % (RN, kq))
            own = [b for b in range(nb) if b & 3 == kq]; srcs = [t for t in range(4) if t != kq]
            for i, b in enumerate(own):
                for k, t in enumerate(srcs):
                    if b >= 4: z("s_add_u32 s6, s%d, %d" % (S_SO + t, (b >> 2) * 4096))
                    z("buffer_load_dwordx4 %s, v%d, %s, s%d offen offset:%d sc1" % (vr(24 + 12 * i + 4 * k, 4), vL16, sr(SRD_WS, 4), 6 if b >= 4 else S_SO + t, (b & 3) * 1024))
            for i, b in enumerate(own):
                a_ = AC + 4 * b
                for k in range(3):
                    for x in range(4): z("v_add_f32 v%d, v%d, v%d" % (a_ + x, a_ + x, 24 + 12 * i + 4 * k + x))
                z("v_cvt_pk_bf16_f32 v%d, v%d, v%d" % (a_, a_, a_ + 1)); z("v_cvt_pk_bf16_f32 v%d, v%d, v%d" % (a_ + 1, a_ + 2, a_ + 3))
                fi, rho = b >> 1, b & 1
                z("buffer_store_dwordx2 %s, v%d, %s, %s offen offset:%d" % (vr(a_, 2), vO, sr(SRD_OUT, 4), "s%d" % S_R16 if rho else "0", 32 * fi))
            if kq < 3 or role == 0: z("s_branch F_XLD")
            if kq < 3: z.label("%s_XL%d" % (RN, kq))
            lz, _ = resolve_waits(z.l, stx); tail += lz
    e = Seq(); e.label("F_XLD")
    if stamp: e.ext(STAMP(35)); e("s_waitcnt vmcnt(0)"); e.ext(STAMP(36)); e.ext(RSTAMP(61)); e.ext(STAMPOUT(S_W, vLANE, SRD_WS, 6, base=1 << 20))
    e.label("F_END"); e("s_endpgm")
    return fix_hazards(outl + le + tail + e.l + Seq().label("F_COLD").l + cold)
```

```python
import re

TRANS = ("v_exp_f32", "v_log_f32", "v_rcp_f32", "v_rsq_f32", "v_sqrt_f32", "v_sin_f32", "v_cos_f32")

def regs_of(tok):
    tok = tok.strip()
    if tok.startswith("-"): tok = tok[1:]
    m = re.fullmatch(r"abs\((.*)\)", tok)
    if m: tok = m.group(1)
    m = re.fullmatch(r"\|(.*)\|", tok)
    if m: tok = m.group(1)
    m = re.fullmatch(r"([vsa])(\d+)", tok)
    if m: return [(m.group(1), int(m.group(2)))]
    m = re.fullmatch(r"([vsa])\[(\d+):(\d+)\]", tok)
    if m: return [(m.group(1), i) for i in range(int(m.group(2)), int(m.group(3)) + 1)]
    if tok == "vcc": return [("s", 106), ("s", 107)]
    if tok == "vcc_lo": return [("s", 106)]
    if tok == "vcc_hi": return [("s", 107)]
    if tok in ("exec", "exec_lo", "exec_hi"): return [("exec", 0)]
    if tok == "m0": return [("m0", 0)]
    return []

class I:
    __slots__ = ("text", "op", "ops", "mods", "rd", "wr", "kind", "tag", "label", "target", "cnt", "wait_tags",
                 "srcA", "srcB", "srcC", "comment", "stdata", "auto", "nowaw")
    def __init__(self, text, tag=None, comment=None):
        self.text = text.strip(); self.tag = tag; self.comment = comment
        self.label = None; self.target = None; self.wait_tags = None; self.auto = False; self.nowaw = False
        self.srcA = self.srcB = self.srcC = []; self.stdata = []
        self.rd = []; self.wr = []; self.cnt = None
        t = self.text
        if t.endswith(":"):
            self.kind = "label"; self.label = t[:-1]; self.op = ""; self.ops = []; self.mods = ""; return
        if t.startswith("."):
            self.kind = "label"; self.label = "@" + t + str(id(self)); self.op = ""; self.ops = []; self.mods = ""; return
        parts = t.split(None, 1)
        self.op = op = parts[0]
        rest = parts[1] if len(parts) > 1 else ""
        ops = [x.strip() for x in re.split(r",(?![^\[]*\])", rest)] if rest else []
        mods = ""
        if ops:
            last = ops[-1].split(None, 1)
            ops[-1] = last[0] if last else ""
            mods = last[1] if len(last) > 1 else ""
        self.ops = ops; self.mods = mods
        R = lambda i: regs_of(ops[i]) if i < len(ops) else []
        allr = lambda a: [r for i in range(a, len(ops)) for r in regs_of(ops[i])]
        if op.startswith("v_mfma"):
            self.kind = "mfma8" if "32x32x16" in op else "mfma4"
            self.wr = R(0); self.srcA = R(1); self.srcB = R(2); self.srcC = R(3)
            self.rd = self.srcA + self.srcB + self.srcC
        elif op.startswith("v_cmp"):
            self.kind = "valu"; self.wr = R(0); self.rd = allr(1)
        elif op.startswith("v_writelane"):
            self.kind = "valu"; self.wr = R(0); self.rd = allr(0)
        elif op.startswith("v_readfirstlane") or op.startswith("v_readlane"):
            self.kind = "valu"; self.wr = R(0); self.rd = allr(1)
        elif op.startswith("v_permlane"):
            self.kind = "valu"; self.wr = R(0) + R(1); self.rd = R(0) + R(1)
        elif op.startswith("v_add_co") or op.startswith("v_addc_co") or op.startswith("v_sub_co"):
            self.kind = "valu"; self.wr = R(0) + R(1); self.rd = allr(2)
        elif op.startswith("v_"):
            self.kind = "trans" if op.replace("_e64", "").replace("_e32", "") in TRANS else "valu"
            self.wr = R(0); self.rd = allr(1)
            if op.startswith("v_fmac") or op.startswith("v_pk_fmac"): self.rd = self.rd + R(0)
            if op == "v_nop": self.kind = "nop"; self.cnt = 1
        elif op.startswith("ds_bpermute"):
            self.kind = "ds_rd"; self.wr = R(0); self.rd = allr(1)
        elif op.startswith("ds_read"):
            self.kind = "ds_rd"; self.wr = R(0); self.rd = R(1)
        elif op.startswith("ds_write") or op.startswith("ds_add"):
            self.kind = "ds_wr"; self.rd = allr(0)
        elif op.startswith("buffer_load") or op.startswith("global_load"):
            if " lds" in (" " + mods) or "_lds_" in op:
                self.kind = "dma"; self.rd = allr(0) + [("m0", 0)]
            else:
                self.kind = "vm_ld"; self.wr = R(0); self.rd = allr(1)
        elif op.startswith("buffer_store") or op.startswith("global_store"):
            self.kind = "vm_st"; self.rd = allr(0)
            d = R(0) if op.startswith("buffer") else R(1)
            if len(d) >= 3: self.stdata = d
        elif op.startswith("buffer_atomic") or op.startswith("global_atomic"):
            self.kind = "vm_st"; self.rd = allr(0)
        elif op in ("buffer_wbl2", "buffer_inv"):
            self.kind = "vm_st"
        elif op.startswith("s_load") or op.startswith("s_memtime") or op.startswith("s_memrealtime"):
            self.kind = "smem"; self.wr = R(0); self.rd = allr(1)
        elif op == "s_waitcnt":
            self.kind = "wait"
            vm = re.search(r"vmcnt\((\d+)\)", t); lg = re.search(r"lgkmcnt\((\d+)\)", t)
            self.cnt = (int(vm.group(1)) if vm else None, int(lg.group(1)) if lg else None)
        elif op == "WAITV":
            self.kind = "waitv"
        elif op == "s_barrier":
            self.kind = "barrier"
        elif op == "s_nop":
            self.kind = "nop"; self.cnt = int(ops[0]) + 1
        elif op == "s_endpgm":
            self.kind = "end"
        elif op == "s_branch":
            self.kind = "jump"; self.target = ops[0]
        elif op.startswith("s_cbranch"):
            self.kind = "cbranch"; self.target = ops[0]
            if "scc" in op: self.rd = [("scc", 0)]
            elif "vcc" in op: self.rd = [("s", 106), ("s", 107)]
            elif "exec" in op: self.rd = [("exec", 0)]
        elif op.startswith("s_cmp") or op.startswith("s_bitcmp"):
            self.kind = "salu"; self.rd = allr(0); self.wr = [("scc", 0)]
        elif op in ("s_setprio", "s_sleep"):
            self.kind = "salu"
        elif op.startswith("s_"):
            self.kind = "salu"; self.wr = R(0) + [("scc", 0)]; self.rd = allr(1)
            if op.startswith("s_cselect") or op.startswith("s_addc"): self.rd = self.rd + [("scc", 0)]
            if op.startswith("s_mov") or op.startswith("s_cselect") or op.startswith("s_mul") or op.startswith("s_getpc"): self.wr = R(0)
            if "saveexec" in op: self.wr = self.wr + [("exec", 0)]; self.rd = self.rd + [("exec", 0)]
            if op.startswith("s_addk") or op.startswith("s_mulk"): self.rd = self.rd + R(0)
        else:
            raise ValueError("unknown instruction " + t)
    def states(self):
        if self.kind == "label": return 0
        if self.kind == "nop": return self.cnt
        return 1
    def isvalu(self): return self.kind in ("valu", "trans")
    def ismfma(self): return self.kind in ("mfma8", "mfma4")
    def isvm(self): return self.kind in ("vm_ld", "vm_st", "dma")
    def islgkm(self): return self.kind in ("ds_rd", "ds_wr", "smem")
    def __repr__(self): return self.text

def need_states(p, c):
    n = 0
    pw = set(p.wr); cr = set(c.rd); cw = set(c.wr)
    vw = {r for r in pw if r[0] in "va"}
    sw = {r for r in pw if r[0] == "s"}
    if p.isvalu():
        if c.ismfma() and vw & cr: n = max(n, 2)
        if c.op.startswith("v_permlane") and vw & cr: n = max(n, 2)
        if (c.op.startswith("v_readfirstlane") or c.op.startswith("v_readlane")) and vw & cr: n = max(n, 1)
        if sw:
            if c.isvalu() and sw & cr: n = max(n, 2)
            if c.isvm() and sw & cr: n = max(n, 5)
            if c.kind in ("salu", "smem") and sw & cr: n = max(n, 1)
        if p.kind == "trans" and c.kind == "valu" and vw & cr: n = max(n, 1)
        if p.kind == "trans" and (c.kind in ("ds_wr", "vm_st")) and vw & cr: n = max(n, 1)
    if p.ismfma():
        big = p.kind == "mfma8"
        if c.ismfma():
            if vw & (set(c.srcA) | set(c.srcB)): n = max(n, 12 if big else 8)
            cc = set(c.srcC)
            if vw & cc:
                if not (p.wr == c.srcC and p.kind == c.kind): n = max(n, 10 if big else 6)
            elif vw & cw:
                n = max(n, 12 if big else 8)
        elif c.isvalu() or c.isvm() or c.kind in ("ds_rd", "ds_wr"):
            if vw & (cr | cw): n = max(n, 12 if big else 8)
        if c.isvalu() and set(p.srcC) & cw: n = max(n, 7 if big else 3)
    if p.kind == "salu" and ("m0", 0) in pw and c.kind == "dma": n = max(n, 1)
    if p.kind == "vm_st" and p.stdata and set(p.stdata) & cw and (c.isvalu() or c.ismfma() or c.kind in ("ds_rd", "vm_ld")):
        n = max(n, 2)
    return n
MAXWIN = 13

class Pend:
    def __init__(self, vm=None, lg=None):
        self.vm = list(vm or []); self.lg = list(lg or [])
    def copy(self): return Pend(self.vm, self.lg)
    def sig(self):
        f = lambda q: tuple((e[0], tuple(e[1]), e[2]) for e in q)
        return (f(self.vm), f(self.lg))

def entry(ins):
    return (ins.kind, tuple(ins.wr), ins.tag)

def resolve_waits(seq, st=None):
    st = st.copy() if st else Pend()
    out = []
    for ins in seq:
        if ins.kind == "wait" and ins.tag == "OPT":
            out.append(ins); continue
        if ins.kind == "wait":
            vm, lg = ins.cnt
            if vm is not None: st.vm = st.vm[len(st.vm) - vm:] if vm < len(st.vm) and vm > 0 else ([] if vm == 0 else st.vm)
            if lg is not None: st.lg = st.lg[len(st.lg) - lg:] if lg < len(st.lg) and lg > 0 else ([] if lg == 0 else st.lg)
            out.append(ins); continue
        needv = None; needl = None
        if ins.kind == "waitv":
            tags = ins.wait_tags
            for k, e in enumerate(st.vm):
                if e[2] in tags: needv = len(st.vm) - 1 - k
            for k, e in enumerate(st.lg):
                if e[2] in tags: needl = len(st.lg) - 1 - k
        else:
            touch = set(ins.rd) | (set() if ins.nowaw else set(ins.wr))
            for k, e in enumerate(st.vm):
                if touch & set(e[1]): needv = len(st.vm) - 1 - k
            smem_pending = any(e[0] == "smem" for e in st.lg)
            for k, e in enumerate(st.lg):
                if touch & set(e[1]): needl = 0 if smem_pending else len(st.lg) - 1 - k
        if needv is not None or needl is not None:
            parts = []
            if needv is not None:
                needv = min(needv, 63); parts.append("vmcnt(%d)" % needv)
                st.vm = st.vm[len(st.vm) - needv:] if needv else []
            if needl is not None:
                needl = min(needl, 15); parts.append("lgkmcnt(%d)" % needl)
                st.lg = st.lg[len(st.lg) - needl:] if needl else []
            w = I("s_waitcnt " + " ".join(parts)); w.auto = True
            out.append(w)
        if ins.kind in ("waitv", "touch"): continue
        if (ins.isvm() or ins.islgkm()) and ins.tag == "OPT":
            out.append(ins); continue
        if ins.isvm() and len(st.vm) >= 60:
            w = I("s_waitcnt vmcnt(54)"); w.auto = True; out.append(w); st.vm = st.vm[len(st.vm) - 54:]
        if ins.isvm():
            st.vm.append(entry(ins))
            assert len(st.vm) <= 63, "more than 63 vmem ops outstanding at " + ins.text
        if ins.islgkm():
            st.lg.append(entry(ins))
            if ins.kind == "smem" and len(ins.wr) > 1: st.lg.append(entry(ins))
        out.append(ins)
    return out, st

def fix_hazards(seq):
    out = []
    for ins in seq:
        if ins.kind not in ("label", "nop", "wait", "barrier"):
            dist = 0; need = 0; skip = None
            for k in range(len(out) - 1, max(-1, len(out) - 80), -1):
                p = out[k]
                if p.kind in ("jump", "end") and skip is None: break
                n = need_states(p, ins)
                if n > dist: need = max(need, n - dist)
                if p.kind == "label" and skip is None:
                    if any(x.kind == "cbranch" and x.target == p.label for x in out[max(0, k - 40):k]): skip = p.label
                if skip is not None and p.kind == "cbranch" and p.target == skip: skip = None
                if skip is None: dist += p.states()
                if dist >= MAXWIN: break
            while need > 0:
                k = min(need, 16)
                w = I("s_nop %d" % (k - 1)); w.auto = True
                out.append(w); need -= k
        out.append(ins)
    return out

def check_cfg(seq, name=""):
    labels = {ins.label: i for i, ins in enumerate(seq) if ins.kind == "label"}
    def succ(i):
        ins = seq[i]
        if ins.kind == "end": return []
        if ins.kind == "jump": return [labels[ins.target]]
        if ins.kind == "cbranch": return [i + 1, labels[ins.target]]
        return [i + 1] if i + 1 < len(seq) else []
    probs = []
    for i, p in enumerate(seq):
        if not (p.isvalu() or p.ismfma() or p.kind in ("salu", "vm_st")): continue
        stack = [(s, 0) for s in succ(i)]; seen = set()
        while stack:
            j, d = stack.pop()
            if (j, d) in seen or d >= MAXWIN: continue
            seen.add((j, d))
            c = seq[j]
            if c.kind not in ("label", "nop", "wait", "barrier"):
                n = need_states(p, c)
                if n > d: probs.append("%s hazard: [%d] %s -> [%d] %s needs %d has %d" % (name, i, p.text, j, c.text, n, d))
            for s in succ(j): stack.append((s, d + c.states()))
    seen = set(); stack = [(0, Pend())]; steps = 0
    while stack:
        i, st = stack.pop()
        while True:
            steps += 1
            if steps > 40000000:
                probs.append(name + " wait check gave up"); return probs
            ins = seq[i]
            if ins.kind == "label" or ins.kind in ("cbranch", "jump"):
                nv = len(st.vm)
                key = (i, tuple((e[1], nv - 1 - k) for k, e in enumerate(st.vm) if e[1]), tuple((e[0], e[1]) for e in st.lg))
                if key in seen: break
                seen.add(key)
            if ins.kind == "wait":
                vm, lg = ins.cnt
                if vm is not None and vm < len(st.vm): st.vm = st.vm[len(st.vm) - vm:] if vm else []
                if lg is not None:
                    if lg == 0: st.lg = []
                    elif lg < len(st.lg) and not any(e[0] == "smem" for e in st.lg): st.lg = st.lg[len(st.lg) - lg:]
            else:
                touch = set(ins.rd) | (set() if ins.nowaw else set(ins.wr))
                for q in (st.vm, st.lg):
                    for e in q:
                        if touch & set(e[1]):
                            probs.append("%s wait: [%d] %s touches pending %s" % (name, i, ins.text, e[1][:2]))
                if ins.isvm():
                    st.vm.append((ins.kind, tuple(ins.wr), None))
                    while len(st.vm) > 64: st.vm.pop(0)
                    while st.vm and not st.vm[0][1]: st.vm.pop(0)
                if ins.islgkm():
                    st.lg.append((ins.kind, tuple(ins.wr), None))
                    if ins.kind == "smem" and len(ins.wr) > 1: st.lg.append((ins.kind, tuple(ins.wr), None))
                    while len(st.lg) > 40: st.lg.pop(0)
                    while st.lg and not st.lg[0][1]: st.lg.pop(0)
            ss = succ(i)
            if not ss: break
            for s in ss[1:]: stack.append((s, st.copy()))
            i = ss[0]
    return sorted(set(probs))

class Seq:
    def __init__(self): self.l = []
    def __call__(self, text, tag=None):
        for t in text.strip().split("\n"):
            t = t.split(";")[0].strip()
            if t: self.l.append(I(t, tag=tag))
        return self
    def waitv(self, *tags):
        w = I("WAITV"); w.wait_tags = set(tags); self.l.append(w); return self
    def label(self, name): self.l.append(I(name + ":")); return self
    def ext(self, other): self.l.extend(other.l if isinstance(other, Seq) else other); return self
    def __len__(self): return len(self.l)

def interleave(slots, fillers, per_slot=None, start=0, end=None):
    n = len(slots); end = n if end is None else end
    out = []
    m = len(fillers); k = 0; span = max(1, end - start)
    for i, s in enumerate(slots):
        out.extend(s)
        if start <= i < end:
            upto = (m * (i - start + 1) + span - 1) // span if per_slot is None else min(m, per_slot * (i - start + 1))
            while k < upto: out.append(fillers[k]); k += 1
    out.extend(fillers[k:])
    return out

def render(seq):
    o = []
    for ins in seq:
        o.append(ins.text if ins.kind == "label" else "    " + ins.text)
    return "\n".join(o)

def verify_streams(final, streams, name=""):
    pos = {id(x): i for i, x in enumerate(final)}
    writers = {}
    for i, x in enumerate(final):
        for r in x.wr: writers.setdefault(r, []).append(i)
    import bisect
    probs = []
    for s in streams:
        s = s.l if isinstance(s, Seq) else s
        last = {}; prev = -1
        for c in s:
            if id(c) not in pos: continue
            pc = pos[id(c)]
            if pc < prev: probs.append("%s order broken at %s" % (name, c.text))
            prev = pc
            for r in c.rd:
                if r in last:
                    w = writers[r]; k = bisect.bisect_left(w, pc) - 1
                    if k >= 0 and w[k] != last[r]:
                        probs.append("%s clobber: %s reads %s written in between by %s" % (name, c.text, r, final[w[k]].text))
            for r in c.wr: last[r] = pc
    for p in probs[:20]: print("PROBLEM", p)
    return probs

VOP3_ONLY = ("v_cvt_pk_bf16", "v_and_or", "v_lshl_add", "v_lshl_or", "v_max3", "v_min3", "v_fma_", "v_pk_", "v_add3", "v_bfe", "v_mad", "v_perm", "v_mul_lo", "v_readlane", "v_writelane")
def isize(ins):
    if ins.kind == "label": return 0, False
    t = ins.text; op = ins.op
    lit = any(re.fullmatch(r"-?(0x[0-9a-f]+|\d+)", o) and not (-16 <= int(o, 0) <= 64) for o in ins.ops)
    if ins.ismfma() or ins.isvm() or ins.kind in ("ds_rd", "ds_wr", "smem"): return 8, False
    if op.startswith("s_"):
        return (8 if lit and op not in ("s_waitcnt", "s_nop", "s_sleep", "s_setprio") else 4), False
    if op.endswith("_e64") or op.startswith(VOP3_ONLY) or lit: return 8, False
    if any(o.startswith("-") and not re.fullmatch(r"-\d+(\.\d+)?", o) for o in ins.ops): return 8, False
    if op.startswith("v_cmp") and ins.ops[0] != "vcc": return 8, False
    if op.startswith("v_cndmask") and ins.ops[-1] != "vcc": return 8, False
    if op.startswith("v_permlane") or op.startswith("v_readfirstlane") or op.startswith("v_cmp") or op.startswith("v_cndmask"): return 4, False
    return 4, True

def align8(seq):
    out = []; off = 0
    real = [k for k, x in enumerate(seq) if x.kind != "label"]
    nxt = {real[k]: (seq[real[k + 1]] if k + 1 < len(real) else None) for k in range(len(real))}
    for k, x in enumerate(seq):
        sz, flex = isize(x)
        if flex and off % 8 == 0:
            n = nxt[k]
            if n is None or isize(n)[0] == 8:
                y = I(x.op + "_e64 " + x.text.split(None, 1)[1], tag=x.tag); x = y; sz = 8
        out.append(x); off += sz
    return out
```

```python
from gen_common import *
from gen_k1 import wg_decode, fmt_job
MF = "v_mfma_f32_16x16x32_bf16"
SLOT = 16384
PHL = 9 * SLOT
KVX = PHL + 2048
K2_LDS = KVX + 4096

S_H, S_J, S_W, S_ROW0 = 3, 4, 5, 7
SRD_WS, SRD_DBG, S_HUGE, S_TMP, S_RG, S_SPIN = 44, 48, 52, 53, 54, 55
SRD_CK, SRD_W, SRD_X, SRD_WB, SRD_GATE, SRD_WO = 56, 60, 64, 68, 72, 76
S_W4K, S_ST, M1, M2 = 80, 82, 88, 90
SRD_WQ, S_MW, S_MB, S_WBG, S_XB = 92, 96, 97, 98, 99
SRD_PHI, S_KG, S_VG, S_KL, S_VL, S_KR, S_T, S_TL, S_TBM, S_L2E, S_AP, S_C, S_R = 56, 60, 61, 62, 63, 64, 65, 66, 67, 68, 69, 70, 72
S_ST2 = 86
SRD_WS2, S_WOSZ, SRD_J, S_JU = 92, 81, 84, 73
MK = [74, 76, 78, 90]
vLANE, vL16, vWo, vWR, vBR, vKA, vVA, vQ, vLs, vPS, vTM, vNINF, vM5 = 1, 2, 3, 4, 12, 13, 14, 15, 17, 19, 21, 22, 23
vG = [3, 12]
FR, DB, Q, TK, O = 24, 160, 216, 248, 128
XRS = [88, 96, 104, 112, 120]
NXR = 5
FR2 = [120, 124, 192, 196, 200, 204, 208, 212]
def qacc(cb, rho):
    n = 2 * cb + rho
    return 56 + 4 * n if n < 8 else 128 + 4 * (n - 8)
P_, S_, NEGM, E_ = 56, 72, 104, 112
import os
DRD = 12; W2 = 4; E64 = 0; NRING = 16; NODMA = 0
SC = " sc1"
AL8 = int(os.environ.get("AL8", 0))
ALN = int(os.environ.get("ALN", 4))
JLO, JN, JG = eval(os.environ.get("JCFG", "(1, 5, [3, 3, 3])"))
PRIO = int(os.environ.get("PRIO", 0))
PXW = int(os.environ.get("PXW", 0))
TLB = int(os.environ.get("TLB", 0))
YPOS = int(os.environ.get("YPOS", 158))
LPOS = int(os.environ.get("LPOS", 56))
LSTEP = int(os.environ.get("LSTEP", 2))
GAP = int(os.environ.get("GAP", 90))
TOUCH = int(os.environ.get("TOUCH", 1))
CODE_BYTES = 110 * 1024
S_TQ, vTQ = 55, 12
ROT = int(os.environ.get("ROT", 0))
K3BAR = int(os.environ.get("K3BAR", 4))
XQ = os.environ.get("XQ", "")
def freg(n):
    n %= NRING
    return FR + 4 * n if n < 8 else FR2[n - 8]
WS_FLG = 80 * MB
FL_KV, FL_KP, FL_AP, FL_PX = WS_FLG, WS_FLG + 4096, WS_FLG + 8192, WS_FLG + 16384
WS_PX = 96 * MB
WS_WH = WS_WP + 5 * MB
F_LDS = 163840

def red4(q, a, b, c, d, op, t0, t1, t2):
    q("v_permlane16_swap_b32 v%d, v%d" % (a, b)); q("v_permlane16_swap_b32 v%d, v%d" % (c, d))
    q("%s v%d, v%d, v%d" % (op, a, a, b)); q("%s v%d, v%d, v%d" % (op, c, c, d))
    q("v_permlane32_swap_b32 v%d, v%d" % (a, c))
    q("%s v%d, v%d, v%d" % (op, a, a, c))
    q("v_mov_b32 v%d, v%d" % (c, a))
    q("v_permlane32_swap_b32 v%d, v%d" % (a, c))
    q("v_mov_b32 v%d, v%d" % (b, a)); q("v_mov_b32 v%d, v%d" % (d, c))
    q("v_permlane16_swap_b32 v%d, v%d" % (a, b)); q("v_permlane16_swap_b32 v%d, v%d" % (c, d))

def red2(q, a, b, op, t):
    q("v_permlane16_swap_b32 v%d, v%d" % (a, b))
    q("%s v%d, v%d, v%d" % (op, a, a, b))
    q("v_mov_b32 v%d, v%d" % (t, a))
    q("v_permlane32_swap_b32 v%d, v%d" % (a, t))
    q("%s v%d, v%d, v%d" % (op, a, a, t))
    q("v_mov_b32 v%d, v%d" % (b, a))
    q("v_permlane16_swap_b32 v%d, v%d" % (a, b))

def phi_gather(q, raw, PH, va, vb):
    q("v_and_b32 v%d, 15, v%d" % (va, vLANE)); q("v_lshrrev_b32 v%d, 4, v%d" % (vb, vLANE))
    q("v_mul_u32_u24 v%d, 144, v%d" % (raw, vb)); q("v_add_u32 v%d, %d, v%d" % (raw, PHL, raw))
    q("v_mov_b32 v%d, 512" % vb)
    for (c, f) in ((0, 16), (4, 17), (8, 8), (12, 12)):
        q("v_cmp_eq_u32 vcc, %d, v%d" % (c, va)); q("v_cndmask_b32 v%d, v%d, %d, vcc" % (vb, vb, f))
    q("v_lshl_add_u32 v%d, v%d, 1, v%d" % (vb, vb, raw)); q("v_lshl_add_u32 v%d, v%d, 1, v%d" % (va, va, raw))
    for mu, a in ((0, va), (1, vb)):
        for i in range(6):
            q("ds_read_u16 v%d, v%d offset:%d" % (raw + 6 * mu + i, a, (i if i < 4 else 12 + i) * 36))
    y = Seq()
    for mu in range(2):
        for i in range(3): y("v_lshl_or_b32 v%d, v%d, 16, v%d" % (PH + 4 * mu + i, raw + 6 * mu + 2 * i + 1, raw + 6 * mu + 2 * i))
        y("v_mov_b32 v%d, 0" % (PH + 4 * mu + 3))
    return y

def softmax5(q, PK, EE, T, OUT):
    vals = [[PK + 4 * r + i for i in range(4)] + [PK + 8 + 4 * r] for r in range(2)]
    for r in range(2):
        v = vals[r]
        q("v_max3_f32 v%d, v%d, v%d, v%d" % (T + 2 * r, v[0], v[1], v[2])); q("v_max3_f32 v%d, -v%d, -v%d, -v%d" % (T + 2 * r + 1, v[0], v[1], v[2]))
        q("v_max3_f32 v%d, v%d, v%d, v%d" % (T + 2 * r, T + 2 * r, v[3], v[4])); q("v_max3_f32 v%d, v%d, -v%d, -v%d" % (T + 2 * r + 1, T + 2 * r + 1, v[3], v[4]))
    red4(q, T, T + 1, T + 2, T + 3, "v_max_f32", 0, 0, 0)
    for i in range(4): q("v_mul_f32 v%d, s%d, v%d" % (T + i, S_L2E, T + i))
    for r in range(2):
        for i in range(5):
            q("v_fma_f32 v%d, v%d, s%d, -v%d" % (EE + 10 * r + i, vals[r][i], S_L2E, T + 2 * r))
            q("v_fma_f32 v%d, -v%d, s%d, -v%d" % (EE + 10 * r + 5 + i, vals[r][i], S_L2E, T + 2 * r + 1))
    for i in range(20): q("v_exp_f32 v%d, v%d" % (EE + i, EE + i))
    for k in range(4): q("v_mul_f32 v%d, v%d, v%d" % (EE + 5 * k + 4, EE + 5 * k + 4, vM5))
    for k in range(4): q("v_add_f32 v%d, v%d, v%d" % (T + k, EE + 5 * k, EE + 5 * k + 1))
    for i in range(2, 5):
        for k in range(4): q("v_add_f32 v%d, v%d, v%d" % (T + k, T + k, EE + 5 * k + i))
    red4(q, T, T + 1, T + 2, T + 3, "v_add_f32", 0, 0, 0)
    for k in range(4): q("v_rcp_f32 v%d, v%d" % (T + k, T + k))
    for k in range(4):
        for i in range(5): q("v_mul_f32 v%d, v%d, v%d" % (EE + 5 * k + i, EE + 5 * k + i, T + k))
    for r in range(2):
        e = EE + 10 * r; o = OUT + 8 * r
        q("v_cvt_pk_bf16_f32 v%d, v%d, v%d" % (o, e, e + 1)); q("v_cvt_pk_bf16_f32 v%d, v%d, v%d" % (o + 1, e + 2, e + 3))
        q("v_cvt_pk_bf16_f32 v%d, v%d, v%d" % (o + 2, e + 5, e + 6)); q("v_cvt_pk_bf16_f32 v%d, v%d, v%d" % (o + 3, e + 7, e + 8))
        q("v_cvt_pk_bf16_f32 v%d, v%d, v%d" % (o + 4, e + 4, e + 9)); q("v_mov_b32 v%d, 0" % (o + 5))

def sreg(buf, e):
    qb, kb, r = e >> 3, (e >> 2) & 1, e & 3
    return S_ + 16 * buf + 8 * kb + 4 * qb + r

def mask_ops(buf, u):
    z = Seq()
    for e0 in range(0, 16, 4):
        for e in range(e0, e0 + 4):
            qb, kb, r = e >> 3, (e >> 2) & 1, e & 3
            z("v_cmp_gt_i32 s[%d:%d], %d, v%d" % (MK[e & 3], MK[e & 3] + 1, 32 * u + 16 * kb + r, vQ + qb))
        for e in range(e0, e0 + 4):
            z("v_cndmask_b32 v%d, v%d, v%d, s[%d:%d]" % (sreg(buf, e), sreg(buf, e), vNINF, MK[e & 3], MK[e & 3] + 1))
    return z

def sm_parts(buf):
    ex = []; post = []
    for e in range(16):
        qb = e >> 3
        ex.append(I("v_exp_f32%s v%d, v%d" % ("_e64" if E64 else "", E_ + (e & 7), sreg(buf, e))))
        z = Seq()
        ad = "v_add_f32_e64" if E64 else "v_add_f32"
        if e & 7 == 1: z("%s v%d, v%d, v%d" % (ad, vPS + qb, E_ + ((e - 1) & 7), E_ + (e & 7)))
        elif e & 7 > 1: z("%s v%d, v%d, v%d" % (ad, vPS + qb, vPS + qb, E_ + (e & 7)))
        if e & 1: z("v_cvt_pk_bf16_f32 v%d, v%d, v%d" % (P_ + 8 * buf + 4 * qb + ((e & 7) >> 1), E_ + ((e - 1) & 7), E_ + (e & 7)))
        post.append(z.l[::-1] if AL8 else z.l)
    return ex, post

def rare_block(name, X, Y):
    z = Seq(); z.label(name); z("s_nop 8")
    a, b, t = E_, E_ + 1, E_ + 2
    for qb, d in ((0, a), (1, b)):
        r = [sreg(X, 8 * qb + i) for i in range(8)]
        z("v_max3_f32 v%d, v%d, v%d, v%d" % (d, r[0], r[1], r[2])); z("v_max3_f32 v%d, v%d, v%d, v%d" % (d, d, r[3], r[4]))
        z("v_max3_f32 v%d, v%d, v%d, v%d" % (d, d, r[5], r[6])); z("v_max3_f32 v%d, v%d, v%d, 0" % (d, d, r[7]))
    red2(z, a, b, "v_max_f32", t)
    z("v_exp_f32 v%d, -v%d" % (E_ + 4, a)); z("v_exp_f32 v%d, -v%d" % (E_ + 5, b))
    for qb, d in ((0, a), (1, b)):
        for i in range(8):
            z("v_sub_f32 v%d, v%d, v%d" % (sreg(X, 8 * qb + i), sreg(X, 8 * qb + i), d))
            z("v_sub_f32 v%d, v%d, v%d" % (sreg(Y, 8 * qb + i), sreg(Y, 8 * qb + i), d))
        for i in range(4): z("v_sub_f32 v%d, v%d, v%d" % (NEGM + 4 * qb + i, NEGM + 4 * qb + i, d))
        z("v_mul_f32 v%d, v%d, v%d" % (vLs + qb, vLs + qb, E_ + 4 + qb))
        for db in range(8):
            for i in range(4): z("v_mul_f32 v%d, v%d, v%d" % (O + 8 * db + 4 * qb + i, O + 8 * db + 4 * qb + i, E_ + 4 + qb))
    ex, post = sm_parts(X)
    for e in range(16):
        z.ext([ex[e]]); z("s_nop 0"); z.ext(post[e])
    z("s_nop 1")
    z("s_branch %s_R" % name)
    return z

def rd_frag(kind, idx, ring):
    base = vKA if kind == "K" else vVA
    return I("ds_read_b128 %s, v%d offset:%d" % (vr(freg(ring), 4), base, 1024 * idx))

def qk_mfmas(k, buf, ring, first_c):
    kb, js = k >> 2, k & 3
    out = []
    for qb in range(2):
        d = vr(S_ + 16 * buf + 8 * kb + 4 * qb, 4)
        c = d if js else first_c(qb)
        out.append(I("%s %s, %s, %s, %s" % (MF, d, vr(freg(ring), 4), vr(Q + 16 * qb + 4 * js, 4), c)))
    return out
def pv_mfmas(db, buf, ring):
    return [I("%s %s, %s, %s, %s" % (MF, vr(O + 8 * db + 4 * qb, 4), vr(freg(ring), 4), vr(P_ + 8 * buf + 4 * qb, 4), vr(O + 8 * db + 4 * qb, 4))) for qb in range(2)]
NEGC = lambda qb: vr(NEGM + 4 * qb, 4)

def pkg(tag=None):
    z = Seq()
    for (sl, sg, hi) in ((S_VL, S_VG, 1), (S_KL, S_KG, 0)):
        z("s_mov_b32 m0, s%d" % sl)
        z("s_add_u32 s%d, s%d, %d" % (sl, sl, SLOT))
        for e in range(4):
            if not NODMA: z("buffer_load_dwordx4 v%d, %s, s%d offen offset:%d%s lds" % (vL16, sr(SRD_WS, 4), sg, 1024 * e, SC), tag=tag)
        z("s_add_u32 s%d, s%d, %d" % (sg, sg, SLOT))
        z("s_and_b32 s%d, s%d, 0xffff" % (sl, sl))
        if hi: z("s_or_b32 s%d, s%d, 0x10000" % (sl, sl))
    return z

DIAG = int(os.environ.get('DIAG', 0))
def tick(z, acc):
    z("s_memtime s[100:101]"); z("s_waitcnt lgkmcnt(0)")
    if acc is not None: z("s_sub_u32 s101, s100, s99"); z("s_add_u32 s%d, s%d, s101" % (acc, acc))
    z("s_mov_b32 s99, s100")
def sync_block(role, uid, cond=False, xtra=0, strict=None, always=False, prev=0):
    z = Seq()
    if DIAG: tick(z, None)
    if role == 0:
        z("s_sub_u32 s%d, s%d, s%d" % (S_R, S_TBM, S_T))
        if not always:
            z("s_cmp_ge_u32 s%d, 2" % S_R); z("s_cbranch_scc1 W12_%s" % uid)
            z("s_waitcnt vmcnt(4)")
        z.label("W12_%s" % uid); z("s_waitcnt vmcnt(%d)" % (12 + xtra if strict is None else strict))
        if DIAG: tick(z, 96)
        z("s_barrier")
        if DIAG: tick(z, 98)
        if not always: z("s_cmp_lt_u32 s%d, 3" % S_R); z("s_cbranch_scc1 NP_%s" % uid)
        z("s_and_b32 s8, s%d, 3" % S_T); z("s_cmp_eq_u32 s8, 2"); z("s_cbranch_scc1 CQ_%s" % uid)
        z("s_cmp_lg_u32 s8, 1"); z("s_cbranch_scc1 NQ_%s" % uid)
        poll_issue(z, 9, 8, SRD_WS, "s15", tag="OPT")
        if not always:
            z("s_lshl_b32 s8, s%d, 8" % S_T); z("s_or_b32 s8, s8, s%d" % S_W); z("s_cmp_lg_u32 s8, 256"); z("s_cbranch_scc1 NQ_%s" % uid)
            fb = Seq(); fb("s_lshl_b32 s8, s%d, 2" % S_J); fb("s_add_u32 s8, s8, s15"); fb("s_add_u32 s8, s8, %d" % (FL_KP - FL_KV))
            z.ext(flag_store(fb, vTM, 0, so=8))
        z("s_branch NQ_%s" % uid)
        z.label("CQ_%s" % uid)
        z("s_add_u32 s8, s%d, 6" % S_T); z("s_lshr_b32 s8, s8, 2"); z("s_sub_u32 s8, 7, s8")
        z("v_cmp_eq_u32 vcc, s8, v%d" % vLANE); z("v_cndmask_b32 v7, 0, 1, vcc")
        z("s_waitcnt vmcnt(%d)" % (8 + prev))
        poll_check(z, "PQ_%s" % uid, 9, 7, 8, SRD_WS, "s15")
        z.label("NQ_%s" % uid)
        z.ext(pkg())
        z.label("NP_%s" % uid)
    else:
        if cond:
            z("s_cmp_eq_u32 s%d, s%d" % (S_T, S_TBM)); z("s_cbranch_scc1 NB_%s" % uid)
        z("s_waitcnt vmcnt(0)")
        z("s_barrier")
        if cond: z.label("NB_%s" % uid)
        if DIAG: tick(z, 98)
    return z

def adv(vreg):
    z = Seq()
    z("v_add_u32 v%d, 0x4000, v%d" % (vreg, vreg))
    if vreg == vKA: z("v_and_b32 v%d, 0xffff, v%d" % (vreg, vreg))
    else: z("v_and_or_b32 v%d, v%d, s%d, v%d" % (vreg, vreg, S_KR, vC64))
    return z

def check(name):
    z = Seq()
    z("v_max_f32 v%d, v%d, v%d" % (vTM, vPS, vPS + 1))
    z("v_cmp_nle_f32 vcc, v%d, v%d" % (vTM, vTHR()))
    z("s_cbranch_vccnz %s" % name)
    z.label(name + "_R")
    return z
def ladd(qb): return I("v_add_f32 v%d, v%d, v%d" % (vLs + qb, vLs + qb, vPS + qb))
vC64 = 10
def vTHR(): return 11

def place_sm(slots, lo, hi, buf, mask_u, chk, carry=True):
    ex, post = sm_parts(buf)
    n = hi - lo
    pre = mask_ops(buf, mask_u).l if mask_u is not None else []
    groups = [pre[8 * g:8 * g + 8] for g in range(4)]
    if carry:
        slots[lo]["post"].append(ladd(0)); slots[lo + (8 if n == 16 else 0)]["post"].append(ladd(1))
    for e in range(16):
        s = lo + (e * n) // 16
        if pre and e % 4 == 0: slots[s]["mid"].extend(groups[e // 4])
        slots[s]["mid"].append(ex[e])
        slots[s]["post"].extend(post[e])
    if chk: slots[hi - 1]["end"].extend(check(chk).l)

def emit_slots(slots, w2=False):
    out = []
    for n, s in enumerate(slots):
        out += s["pre"]
        if w2 and W2 and n % W2 == 0:
            w = I("v_nop"); w.kind = "touch"; w.rd = list(slots[n + W2 - 1]["m"][0].srcA); w.text = ""
            out.append(w)
        out += [s["m"][0]] + s["mid"] + [s["m"][1]] + s["rd"] + s["post"] + s["end"]
    return out
def mkslot(m): return {"pre": [], "m": m, "mid": [], "rd": [], "post": [], "end": []}

def iteration(role, var, rares):
    uid = "%s%s" % ("AB"[role], var)
    slots = []; plan = []
    if var != "S2":
        for k in range(8): slots.append(mkslot(qk_mfmas(k, 0, len(slots), NEGC))); plan.append(("K", k))
    for db in range(8): slots.append(mkslot(pv_mfmas(db, 0, len(slots)))); plan.append(("V", db))
    a_hi = len(slots)
    if var != "S2":
        for k in range(8): slots.append(mkslot(qk_mfmas(k, 1, len(slots), NEGC))); plan.append(("K", 8 + k))
    for db in range(8): slots.append(mkslot(pv_mfmas(db, 1, len(slots)))); plan.append(("V", 8 + db))
    N = len(slots)
    nxt = {"S": "K", "S1": "V", "S2": None}[var]
    assert DRD > 8
    for n in range(N):
        g = n + DRD
        if g < N: slots[n]["rd"].append(rd_frag(plan[g][0], plan[g][1], g))
        elif nxt:
            if g == N:
                slots[n]["rd"].extend(sync_block(role, uid).l)
            if nxt == "K" and g - N >= 8: slots[n]["rd"].append(rd_frag("V", g - N - 8, g))
            else: slots[n]["rd"].append(rd_frag(nxt, g - N, g))
    if nxt == "K":
        slots[N - DRD - 2]["post"].extend(adv(vKA).l)
        slots[N - DRD + 2]["post"].extend(adv(vVA).l)
    elif nxt == "V": slots[N - DRD - 1]["end"].extend(adv(vVA).l)
    if var == "S2": slots[9]["rd"].extend(sync_block(role, uid, cond=True).l)
    place_sm(slots, 0, a_hi, 1, 1 if var == "S2" else None, "R%sa" % uid); rares.append(rare_block("R%sa" % uid, 1, 0))
    if var != "S2":
        place_sm(slots, a_hi, N, 0, 0 if var == "S1" else None, "R%sb" % uid); rares.append(rare_block("R%sb" % uid, 0, 1))
    else:
        slots[a_hi]["post"].extend([ladd(0), ladd(1)])
    if var == "S":
        slots[N - 3]["post"].extend(Seq()("s_add_u32 s%d, s%d, 1" % (S_T, S_T))("s_add_u32 s6, s%d, 1" % S_T).l)
    out = emit_slots(slots, True)
    return out

def poll_issue(z, vp, voff, srd, soff, tag="POLL"):
    z("buffer_load_dword v%d, v%d, %s, %s offen sc1" % (vp, voff, sr(srd, 4), soff), tag=tag)
def poll_check(z, name, vp, vneed, voff, srd, soff):
    z("v_cmp_lt_u32 vcc, v%d, v%d" % (vp, vneed))
    z("s_cbranch_vccz %s_OK" % name)
    z("s_mov_b32 s%d, 0x40000" % S_SPIN)
    z.label("%s_SP" % name)
    z("s_sleep 2")
    z("buffer_load_dword v%d, v%d, %s, %s offen sc1" % (vp, voff, sr(srd, 4), soff), tag="OPT")
    z("s_waitcnt vmcnt(0)", tag="OPT")
    z("v_cmp_lt_u32 vcc, v%d, v%d" % (vp, vneed))
    z("s_cbranch_vccz %s_OK" % name)
    z("s_sub_u32 s%d, s%d, 1" % (S_SPIN, S_SPIN))
    z("s_cmp_lg_u32 s%d, 0" % S_SPIN)
    z("s_cbranch_scc1 %s_SP" % name)
    z.label("%s_OK" % name)
def w7_block(name, body):
    z = Seq(); z("s_cmp_lg_u32 s%d, 7" % S_W); z("s_cbranch_scc1 %s" % name); z.ext(body); z.label(name)
    return z
def flag_store(base_expr, va, vb, so=6):
    z = Seq(); z.ext(base_expr)
    z("v_mov_b32 v%d, 1" % va); z("s_mov_b64 exec, 1")
    z("buffer_store_dword v%d, off, %s, s%d sc1" % (va, sr(SRD_WS, 4), so), tag="OPT")
    z("s_mov_b64 exec, -1")
    return z
def px_group(z, d, t):
    z("s_lshl_b32 s%d, s%d, 3" % (d, S_J)); z("s_and_b32 s%d, s%d, 4" % (t, S_H)); z("s_add_u32 s%d, s%d, s%d" % (d, d, t))
    z("s_lshr_b32 s%d, s%d, 3" % (t, S_H)); z("s_add_u32 s%d, s%d, s%d" % (d, d, t))
def px_flag(z, d, t):
    px_group(z, d, t); z("s_lshl_b32 s%d, s%d, 3" % (d, d)); z("s_add_u32 s%d, s%d, s%d" % (d, d, S_W)); z("s_lshl_b32 s%d, s%d, 7" % (d, d)); z("s_and_b32 s%d, s%d, 3" % (t, S_H)); z("s_lshl_b32 s%d, s%d, 2" % (t, t))
    z("s_add_u32 s%d, s%d, s%d" % (d, d, t)); z("s_add_u32 s%d, s%d, %d" % (d, d, FL_PX))
flat = lambda g: [x for l in g for x in l]
def cp(s):
    out = []
    for x in (s.l if isinstance(s, Seq) else s):
        if isinstance(x, list): out.append(cp(x))
        elif x.kind == "waitv": out.append(x)
        else:
            n_ = I(x.text, tag=x.tag); n_.nowaw = x.nowaw; out.append(n_)
    return out

def gen_f(stamp=False):
    ST = (lambda z, i: z.ext(STAMP(i))) if stamp else (lambda z, i: None)
    q = Seq()
    vAo0, vAo1, vAR, JT, WF, NWF, AF, RW, CH, GT, ACC, WB = 13, 14, 15, 20, 32, 6, 56, 88, 104, 112, 128, 98304
    vWB, vGD, vGA, vBB = 19, 20, 21, [12, 16, 17, 18]
    q("s_cmp_ge_u32 s2, 256"); q("s_cbranch_scc1 F_END")
    load_args(q)
    wg_decode(q, S_H, S_J)
    q("v_lshrrev_b32 v20, 6, v0"); q("v_and_b32 v%d, 63, v0" % vLANE)
    q("v_readfirstlane_b32 s%d, v20" % S_W)
    q("s_and_b32 s%d, s%d, 3" % (S_RG, S_W))
    q("v_lshrrev_b32 v20, 3, v%d" % vLANE)
    q("s_xor_b32 s6, s%d, 7" % S_J); q("s_lshl_b32 s6, s6, 8"); q("s_lshl_b32 s8, s%d, 5" % S_W); q("s_add_u32 s6, s6, s8")
    q("v_add_u32 v20, s6, v20")
    q("v_lshrrev_b32 v21, 4, v%d" % vLANE); q("v_and_b32 v22, 7, v%d" % vLANE); q("v_xor_b32 v22, v21, v22")
    q("v_lshlrev_b32 v22, 4, v22"); q("v_lshl_add_u32 v%d, v20, 10, v22" % vAo0); q("v_xor_b32 v%d, 64, v%d" % (vAo1, vAo0))
    q("s_lshl_b32 s6, s%d, 3" % S_RG); q("v_add_u32 v20, s6, v21")
    q("s_and_b32 s6, s%d, 1" % S_RG); q("s_lshl_b32 s6, s6, 2"); q("v_add_u32 v22, s6, v21")
    q("v_lshlrev_b32 v22, 1, v22"); q("v_and_b32 v23, 15, v%d" % vLANE); q("v_xor_b32 v22, v22, v23")
    q("v_lshlrev_b32 v22, 4, v22"); q("v_lshl_add_u32 v%d, v20, 13, v22" % vWo)
    q("s_lshl_b32 s6, s%d, 8" % S_H); q("v_add_u32 v%d, s6, v%d" % (vWo, vWo))
    q("s_lshl_b32 s%d, s%d, 12" % (S_W4K, S_W)); q("s_lshl_b32 s%d, s%d, 11" % (S_MW, S_W))
    mk_srd(q, SRD_CK, P_CKV, 2048 * 1024)
    q("s_cmp_lt_u32 s%d, 4" % S_W)
    q("s_cselect_b32 s%d, s%d, s%d" % (SRD_W, P_UK, P_UV)); q("s_cselect_b32 s%d, s%d, s%d" % (SRD_W + 1, P_UK + 1, P_UV + 1))
    q("s_mov_b32 s%d, %d" % (SRD_W + 2, 512 * 8192)); q("s_mov_b32 s%d, 0x00020000" % (SRD_W + 3))
    if stamp: q.ext(STAMP(0)); q.ext(RSTAMP(60))
    def dma_a(I_, sec=0):
        g = []
        for e in range(4):
            z = Seq()
            if e == 0: z("s_add_u32 m0, s%d, %d" % (S_W4K, (I_ % 3) * 32768 + sec * 16384))
            z("s_mov_b32 s%d, %d" % (S_TMP, I_ * 128 + e * (8192 - 1024) + sec * 131072))
            z("buffer_load_dwordx4 v%d, %s, s%d offen offset:%d lds" % ([vAo0, vAo1][e & 1], sr(SRD_CK, 4), S_TMP, e * 1024), tag="A%d" % I_)
            g.append(z.l)
        return g
    def dma_w(i, sec=0):
        g = []
        for e in range(2):
            z = Seq()
            if e == 0: z("s_add_u32 m0, s%d, %d" % (S_MW, WB + (i % 4) * 16384 + sec * 8192))
            z("s_mov_b32 s%d, %d" % (S_TMP, i * 32 * 8192 + e * (4 * 8192 - 1024)))
            z("buffer_load_dwordx4 v%d, %s, s%d offen offset:%d lds" % (vWo, sr(SRD_X if sec else SRD_W, 4), S_TMP, e * 1024), tag="U%d" % i)
            g.append(z.l)
        return g
    q.ext(flat(dma_w(0))); q.ext(flat(dma_a(0))); q.ext(flat(dma_w(1)))
    q("s_barrier")
    q.ext(flat(dma_a(1))); q.ext(flat(dma_w(2))); q.ext(flat(dma_w(3))); q.ext(flat(dma_a(2)))
    if TOUCH:
        q("s_lshr_b32 s8, s2, 3"); q("s_lshl_b32 s9, s8, 3"); q("s_add_u32 s9, s9, s%d" % S_W)
        q("s_getpc_b64 s[12:13]"); q.label("F_PC"); q("s_mov_b32 s14, F_COLD-F_PC"); q("s_mov_b32 s15, 0x00020000")
        q("v_lshlrev_b32 v24, 7, v%d" % vLANE); q("s_lshl_b32 s10, s9, 13")
        q("s_cmp_ge_u32 s10, s14"); q("s_cbranch_scc1 F_NCT")
        q("buffer_load_dword v31, v24, s[12:15], s10 offen", tag="OPT")
        q.label("F_NCT")
    mk_srd(q, SRD_X, P_X, 2048 * 1152); mk_srd(q, SRD_WB, P_WQKV, 576 * 3456); mk_srd(q, SRD_GATE, P_GATE, 1152)
    mk_srd(q, SRD_WS, P_WS, WS_SIZE); mk_srd(q, SRD_DBG, P_DBG, 256); mk_srd(q, SRD_WQ, P_WQ, 576 * 8192)
    q("s_mov_b32 s%d, 0x%x" % (S_HUGE, HUGE))
    q("v_lshlrev_b32 v%d, 4, v%d" % (vL16, vLANE))
    q("s_lshl_b32 s6, s%d, 7" % S_H); q("s_lshl_b32 s8, s%d, 2" % S_J); q("s_add_u32 s6, s6, s8"); q("s_add_u32 s6, s6, %d" % FL_KV)
    q("s_lshl_b32 s8, s%d, 7" % S_J); q("s_lshl_b32 s9, s%d, 2" % S_H); q("s_add_u32 s8, s8, s9"); q("s_add_u32 s8, s8, %d" % FL_AP)
    q("v_lshlrev_b32 v20, 12, v%d" % vLANE); q("v_add_u32 v20, s6, v20"); q("v_mov_b32 v22, s8")
    q("v_cmp_eq_u32 vcc, 2, v%d" % vLANE); q("v_cndmask_b32 v20, v20, v22, vcc")
    q("v_mov_b32 v22, s%d" % S_HUGE); q("v_cmp_gt_u32 vcc, %d, v0" % (7 * 64)); q("v_cndmask_b32 v20, v20, v22, vcc")
    q("v_cmp_lt_u32 vcc, 3, v%d" % vLANE); q("v_cndmask_b32 v20, v20, v22, vcc")
    px_flag(q, 8, 9); q("v_mov_b32 v22, s8"); q("v_cmp_eq_u32 vcc, 3, v%d" % vLANE); q("v_cndmask_b32 v20, v20, v22, vcc")
    q("v_mov_b32 v22, 0")
    q("buffer_store_dword v22, v20, %s, 0 offen sc1" % sr(SRD_WS, 4), tag="J13")
    q("v_and_b32 v20, 15, v%d" % vLANE); q("v_lshrrev_b32 v22, 1, v20"); q("v_xor_b32 v22, v22, v21")
    q("s_lshl_b32 s6, s%d, 6" % S_RG); q("v_add_u32 v20, s6, v20"); q("v_lshlrev_b32 v20, 7, v20")
    q("v_lshl_add_u32 v%d, v22, 4, v20" % vAR); q("v_xor_b32 v%d, 64, v%d" % (vAR + 1, vAR))
    q("v_add_u32 v%d, 0x10000, v%d" % (vAR + 2, vAR)); q("v_add_u32 v%d, 0x10000, v%d" % (vAR + 3, vAR + 1))
    q("v_bfe_u32 v20, v%d, 2, 2" % vLANE); q("v_lshl_add_u32 v22, v21, 3, v20"); q("v_lshlrev_b32 v22, 8, v22")
    q("v_and_b32 v23, 1, v21"); q("v_lshl_add_u32 v20, v23, 2, v20"); q("v_lshl_add_u32 v22, v20, 5, v22")
    q("v_and_b32 v20, 3, v%d" % vLANE); q("v_lshl_add_u32 v22, v20, 3, v22")
    q("s_lshr_b32 s6, s%d, 2" % S_W); q("s_lshl_b32 s6, s6, 13"); q("s_add_u32 s6, s6, %d" % WB)
    q("v_add_u32 v%d, s6, v22" % vWR)
    for cb in range(1, 8): q("v_xor_b32 v%d, %d, v%d" % (vWR + cb, 32 * cb, vWR))
    q("s_lshr_b32 s6, s%d, 2" % S_W); q("s_lshl_b32 s6, s6, 24"); q("s_lshl_b32 s8, s%d, 19" % S_H); q("s_add_u32 s6, s6, s8")
    q("s_xor_b32 s8, s%d, 7" % S_J); q("s_lshl_b32 s8, s8, 2"); q("s_add_u32 s8, s8, s%d" % S_RG); q("s_lshl_b32 s8, s8, 14"); q("s_add_u32 s%d, s6, s8" % S_ST)
    for i in range(1, 4): q("s_add_u32 s%d, s%d, %d" % (S_ST + i, S_ST, 4096 * i))
    q("s_sub_u32 s6, 15, s%d" % S_J); q("s_cmp_lt_u32 s%d, 4" % S_W); q("s_cselect_b32 s6, s%d, s6" % S_J)
    q("s_lshl_b32 s6, s6, 7"); q("s_lshl_b32 s8, s%d, 5" % S_RG); q("s_add_u32 s%d, s6, s8" % S_ROW0)
    q("s_lshl_b32 s%d, s%d, 10" % (S_MB, S_W))
    q("s_mul_i32 s6, s%d, %d" % (S_H, 576 * 128)); q("s_add_u32 s6, s6, s%d" % S_MB); q("s_add_u32 s%d, s6, %d" % (S_WBG, WS_WBF))
    q("s_lshr_b32 s6, s%d, 4" % S_ROW0); q("s_mul_i32 s6, s6, %d" % (18 * 1024)); q("s_add_u32 s%d, s6, %d" % (S_XB, WS_XF))

    def j1(k):
        z = Seq(); a, b = JT, JT + 1; d = 112 + 4 * k; tg = "OPT" if k == 2 else None
        z("s_lshr_b32 s8, s2, 1"); z("s_and_b32 s9, s2, 1"); z("s_mul_i32 s9, s9, 9")
        z("s_add_u32 s9, s9, %s" % ("s%d" % S_RG if k < 2 else "8"))
        if k == 1: z("s_add_u32 s9, s9, 4")
        z("v_lshrrev_b32 v%d, 2, v%d" % (a, vLANE)); z("s_lshl_b32 s10, s8, 4"); z("v_add_u32 v%d, s10, v%d" % (a, a))
        z("v_mul_u32_u24 v%d, 1152, v%d" % (a, a)); z("v_and_b32 v%d, 3, v%d" % (b, vLANE)); z("v_lshl_add_u32 v%d, v%d, 4, v%d" % (a, b, a))
        if k == 0: z("v_and_b32 v127, 15, v%d" % vLANE); z("v_lshlrev_b32 v127, 4, v127"); z("v_lshrrev_b32 v%d, 4, v%d" % (b, vLANE)); z("v_lshl_add_u32 v127, v%d, 2, v127" % b)
        z("s_lshl_b32 s10, s9, 6"); z("v_add_u32 v%d, s10, v%d" % (d, a))
        z("s_mul_i32 s8, s8, 18"); z("s_add_u32 s8, s8, s9"); z("s_lshl_b32 s8, s8, 10"); z("s_add_u32 s%d, s8, %d" % (86 + k, WS_XF))
        ld = Seq()("buffer_load_dwordx4 %s, v%d, %s, 0 offen" % (vr(d, 4), d, sr(SRD_X, 4)), tag=tg)
        y = Seq()
        for i in range(4): y("ds_bpermute_b32 v%d, v127, v%d" % (d + i, d + i), tag=tg)
        if k == 2: y("s_waitcnt lgkmcnt(0)", tag="OPT")
        y("buffer_store_dwordx4 %s, v%d, %s, s%d offen sc1" % (vr(d, 4), vL16, sr(SRD_WS, 4), 86 + k), tag=tg or "J13")
        return z, y, ld
    def j2(i, d, t0, dst):
        z = Seq(); t1, t2, t3 = t0 + 1, t0 + 2, t0 + 3
        z("s_add_u32 s8, s%d, %d" % (S_JU, i))
        z("s_mul_i32 s9, s8, 12769"); z("s_lshr_b32 s9, s9, 24")
        z("s_mul_i32 s10, s9, 1314"); z("s_sub_u32 s8, s8, s10")
        z("s_mul_i32 s10, s8, 7282"); z("s_lshr_b32 s10, s10, 16")
        z("s_mul_i32 s11, s10, 9"); z("s_sub_u32 s8, s8, s11"); z("s_lshl_b32 s8, s8, 6")
        z("v_add_u32 v%d, s8, v%d" % (t0, vLANE))
        z("v_mul_u32_u24 v%d, 3641, v%d" % (t1, t0)); z("v_lshrrev_b32 v%d, 16, v%d" % (t1, t1))
        z("v_mul_u32_u24 v%d, 18, v%d" % (t2, t1)); z("v_sub_u32 v%d, v%d, v%d" % (t2, t0, t2))
        z("v_lshrrev_b32 v%d, 3, v%d" % (t3, t1)); z("v_lshl_add_u32 v%d, v%d, 3, v%d" % (t0, t3, t0))
        z("v_and_b32 v%d, 3, v%d" % (d, t1)); z("v_lshl_add_u32 v%d, v%d, 2, v%d" % (t3, t3, d))
        z("v_bfe_u32 v%d, v%d, 2, 1" % (d, t1)); z("v_lshl_add_u32 v%d, v%d, 4, v%d" % (t3, d, t3))
        z("s_lshl_b32 s8, s10, 5")
        for k in range(3): z("s_mov_b32 s%d, s%d" % (SRD_J + k, [P_WO, P_WO + 1, S_WOSZ][k]))
        z("s_cmp_lt_u32 s10, 128"); z("s_cbranch_scc1 J2_%d" % i)
        z("s_mov_b32 s%d, s%d" % (SRD_J, P_WO2)); z("s_mov_b32 s%d, s%d" % (SRD_J + 1, P_WO2 + 1)); z("s_mov_b32 s%d, %d" % (SRD_J + 2, 576 * 1152))
        z("v_lshrrev_b32 v%d, 4, v%d" % (t3, t1)); z("v_lshl_add_u32 v%d, v%d, 1, v%d" % (t3, t3, t1))
        z("s_mul_i32 s8, s10, 36"); z("s_sub_u32 s8, s8, %d" % (36 * 128))
        z("s_cmp_lt_u32 s10, 144"); z("s_cbranch_scc1 J2_%d" % i)
        z("v_lshrrev_b32 v%d, 1, v%d" % (t3, t1)); z("v_mul_u32_u24 v%d, 18, v%d" % (t3, t3)); z("v_and_b32 v%d, 1, v%d" % (t1, t1)); z("v_add_u32 v%d, v%d, v%d" % (t3, t3, t1))
        z("s_mul_i32 s8, s10, 288"); z("s_sub_u32 s8, s8, %d" % (288 * 144 - 16))
        z.label("J2_%d" % i)
        z("v_add_u32 v%d, s8, v%d" % (t3, t3)); z("v_mul_u32_u24 v%d, 1152, v%d" % (t3, t3)); z("v_lshl_add_u32 v%d, v%d, 4, v%d" % (t3, t2, t3))
        z("s_mul_i32 s8, s9, 288")
        z("buffer_load_dwordx4 %s, v%d, %s, s8 offen" % (vr(d, 4), t3, sr(SRD_J, 4)))
        z("s_lshr_b32 s8, s10, 5"); z("s_mul_i32 s8, s8, 37")
        z("s_lshl_b32 s11, s9, %d" % (3 if ROT else 8)); z("s_sub_u32 s11, s10, s11"); z("s_and_b32 s11, s11, 31"); z("s_add_u32 s8, s8, s11")
        z("s_sub_u32 s11, s10, 128"); z("s_lshr_b32 s6, s11, 2"); z("s_mul_i32 s6, s6, 37"); z("s_and_b32 s11, s11, 3"); z("s_add_u32 s6, s6, s11"); z("s_add_u32 s6, s6, 32")
        z("s_cmp_ge_u32 s10, 128"); z("s_cselect_b32 s8, s6, s8")
        z("s_mul_i32 s6, s10, 74"); z("s_sub_u32 s6, s6, %d" % (74 * 144 - 36))
        z("s_cmp_ge_u32 s10, 144"); z("s_cselect_b32 s8, s6, s8")
        z("s_mul_i32 s9, s9, 148"); z("s_add_u32 s9, s9, s8")
        z("s_mul_i32 s9, s9, 9728"); z("s_add_u32 s9, s9, %d" % WS_WP)
        z("v_lshlrev_b32 v%d, 4, v%d" % (t0, t0)); z("v_add_u32 v%d, s9, v%d" % (dst, t0))
        y = Seq()
        y("buffer_store_dwordx4 %s, v%d, %s, 0 offen sc1" % (vr(d, 4), dst, sr(SRD_WS2, 4)))
        return z, y
    def j3(ps):
        z = Seq(); d = RW + 8 * ps; tg = "OPT" if ps == 2 else None
        t0, t1, t2, t3, dst = JT + 1, JT + 2, JT + 3, JT + 9, 124 + ps
        z("s_mul_i32 s8, s%d, 72" % S_J); z("s_lshl_b32 s9, s%d, 3" % S_RG); z("s_add_u32 s8, s8, %s" % ("s9" if ps < 2 else "64"))
        if ps == 1: z("s_add_u32 s8, s8, 32")
        z("v_lshrrev_b32 v%d, 3, v%d" % (t0, vLANE)); z("v_add_u32 v%d, s8, v%d" % (t0, t0))
        z("v_bfe_u32 v%d, v%d, 1, 1" % (t1, t0)); z("v_bfe_u32 v%d, v%d, 3, 1" % (t2, t0)); z("v_lshl_add_u32 v%d, v%d, 1, v%d" % (t1, t2, t1))
        z("v_and_b32 v%d, 7, v%d" % (t2, vLANE)); z("v_lshlrev_b32 v%d, 1, v%d" % (t1, t1)); z("v_xor_b32 v%d, v%d, v%d" % (t1, t1, t2))
        z("s_mul_i32 s8, s%d, %d" % (S_H, 576 * 128)); z("s_add_u32 s8, s8, %d" % WS_WBF)
        z("v_lshlrev_b32 v%d, 4, v%d" % (t2, t2)); z("v_lshl_add_u32 v%d, v%d, 7, v%d" % (t2, t0, t2)); z("v_add_u32 v%d, s8, v%d" % (dst, t2))
        z("s_mul_i32 s8, s%d, 36" % S_H)
        z("v_mul_u32_u24 v%d, 3456, v%d" % (t2, t0)); z("v_add_u32 v%d, s8, v%d" % (d + 5, t2))
        z("v_lshlrev_b32 v%d, 1, v%d" % (d + 6, t0)); z("v_mov_b32 v%d, v%d" % (d + 7, t1))
        for k in range(4): z("v_mov_b32 v%d, 0" % (d + k))
        z("v_lshrrev_b32 v%d, 1, v%d" % (t0, t1)); z("v_and_b32 v%d, 1, v%d" % (t3, t1)); z("v_lshl_add_u32 v%d, v%d, 4, v%d" % (t2, t3, d + 5))
        z("v_mov_b32 v%d, 2304" % t3); z("v_cmp_eq_u32 vcc, 1, v%d" % t0); z("v_cndmask_b32 v%d, 0, v%d, vcc" % (t3, t3)); z("v_add_u32 v%d, v%d, v%d" % (t2, t2, t3))
        z("v_mov_b32 v%d, 1152" % t3); z("v_cmp_eq_u32 vcc, 2, v%d" % t0); z("v_cndmask_b32 v%d, 0, v%d, vcc" % (t3, t3)); z("v_add_u32 v%d, v%d, v%d" % (d + 4, t2, t3))
        ld = Seq()
        ld("v_cmp_eq_u32 vcc, 6, v%d" % (d + 7)); ld("v_cmp_gt_u32 s[8:9], 6, v%d" % (d + 7)); ld("s_mov_b64 exec, vcc")
        ld("buffer_load_ushort v%d, v%d, %s, 0 offen" % (d + 3, d + 6, sr(SRD_GATE, 4)), tag=tg)
        for k in range(3): ld("buffer_load_dword v%d, v%d, %s, 0 offen offset:%d" % (d + k, d + 5, sr(SRD_WB, 4), 1152 * k + 32), tag=tg)
        ld("s_mov_b64 exec, s[8:9]")
        x = I("buffer_load_dwordx4 %s, v%d, %s, 0 offen" % (vr(d, 4), d + 4, sr(SRD_WB, 4)), tag=tg); x.nowaw = True
        ld.l.append(x)
        ld("s_mov_b64 exec, -1")
        y = Seq()
        y("buffer_store_dwordx4 %s, v%d, %s, 0 offen sc1" % (vr(d, 4), dst, sr(SRD_WS, 4)), tag=tg or "J13")
        return z, y, ld
    def touch(n, dst):
        z = Seq(); na = 64 if n == 0 else 96
        g = Seq()
        g("s_lshr_b32 s8, s2, 3"); g("s_lshl_b32 s8, s8, 2"); g("s_add_u32 s8, s8, s%d" % S_RG)
        g("s_and_b32 s9, s8, 31"); g("s_lshl_b32 s9, s9, 16"); g("s_lshr_b32 s10, s8, 5"); g("s_lshl_b32 s10, s10, 7"); g("s_add_u32 s9, s9, s10"); g("s_add_u32 s9, s9, %d" % ((3 if n == 0 else 5) * 128))
        g("s_sub_u32 s10, s8, %d" % na); g("s_lshr_b32 s10, s10, 3"); g("s_add_u32 s10, s10, %d" % (4 if n == 0 else 12)); g("s_lshl_b32 s10, s10, 18")
        g("s_bfe_u32 s11, s8, 0x20001"); g("s_lshl_b32 s11, s11, 11"); g("s_add_u32 s10, s10, s11"); g("s_and_b32 s11, s2, 7"); g("s_lshl_b32 s11, s11, 8"); g("s_add_u32 s10, s10, s11")
        g("s_bitcmp1_b32 s8, 0"); g("s_cselect_b32 s12, s%d, s%d" % (P_UV, P_UK)); g("s_cselect_b32 s13, s%d, s%d" % (P_UV + 1, P_UK + 1))
        g("s_cmp_lt_u32 s8, %d" % na); g("s_cselect_b32 s12, s%d, s12" % P_CKV); g("s_cselect_b32 s13, s%d, s13" % (P_CKV + 1)); g("s_cselect_b32 s9, s9, s10")
        g("s_cselect_b32 s14, %d, s%d" % (2048 * 1024, SRD_W + 2)); g("s_cselect_b64 vcc, -1, 0")
        g("v_lshlrev_b32 v%d, 10, v%d" % (dst, vLANE)); g("v_lshrrev_b32 v24, 1, v%d" % vLANE); g("v_lshlrev_b32 v24, 13, v24"); g("v_and_b32 v25, 1, v%d" % vLANE)
        g("v_lshl_add_u32 v24, v25, 7, v24"); g("v_cndmask_b32 v%d, v24, v%d, vcc" % (dst, dst))
        g("buffer_load_dword v%d, v%d, s[12:15], s9 offen" % (dst, dst))
        return g.l
    def touch_wq(n, dst):
        g = Seq()
        g("s_lshr_b32 s8, s2, 3"); g("s_lshl_b32 s8, s8, 2"); g("s_add_u32 s8, s8, s%d" % S_RG); g("s_add_u32 s8, s8, %d" % (128 * n)); g("s_lshl_b32 s8, s8, 15")
        g("v_and_b32 v24, 1, v%d" % vLANE); g("v_lshlrev_b32 v24, 7, v24"); g("v_lshrrev_b32 v25, 4, v%d" % vLANE); g("v_lshl_add_u32 v24, v25, 13, v24")
        g("v_bfe_u32 v25, v%d, 2, 2" % vLANE); g("v_lshl_add_u32 v24, v25, 11, v24"); g("s_and_b32 s11, s2, 7"); g("s_lshl_b32 s11, s11, 8"); g("v_add_u32 v24, s11, v24")
        g("buffer_load_dword v%d, v24, %s, s8 offen" % (dst, sr(SRD_WQ, 4)))
        return g.l

    q("s_cmp_ge_u32 s%d, 4" % S_W); q("s_cbranch_scc1 F_B")
    pre, st0 = resolve_waits(q.l)
    outl = list(pre); cold = []
    WQS = [4, 5, 7, 1, 2, 3, 4, 5, 7]
    WBS = [6 * SLOT, 6 * SLOT + 8192, 0, 8192, 8 * SLOT, 8 * SLOT + 8192, 6 * SLOT, 6 * SLOT + 8192, 9 * SLOT + 8192]
    for role in range(2):
        RN = "AB"[role]
        r = Seq()
        if role == 1: r.label("F_B")
        def dma_wq(i):
            g = []
            for e in range(2):
                z = Seq()
                if e == 0: z("s_add_u32 m0, s%d, %d" % (S_MW, WQS[i] * SLOT))
                z("s_mov_b32 s%d, %d" % (S_TMP, (i * 64 + role * 32) * 8192 + e * (4 * 8192 - 1024)))
                z("buffer_load_dwordx4 v%d, %s, s%d offen offset:%d lds" % (vWo, sr(SRD_WQ, 4), S_TMP, e * 1024), tag="W%d" % i)
                g.append(z.l)
            return g
        def dma_wb(i):
            z = Seq()
            z("s_add_u32 m0, s%d, %d" % (S_MB, WBS[i])); z("s_add_u32 s%d, s%d, %d" % (S_TMP, S_WBG, i * 8192))
            z("buffer_load_dwordx4 v%d, %s, s%d offen sc1 lds" % (vL16, sr(SRD_WS, 4), S_TMP), tag="W%d" % i)
            return [z.l]
        def ld_x(ks):
            g = []
            for rr in range(2):
                z = Seq()
                z("s_add_u32 s%d, s%d, %d" % (S_TMP, S_XB, (rr * 18 + ks) * 1024))
                z("buffer_load_dwordx4 %s, v%d, %s, s%d offen sc1" % (vr(XRS[ks % NXR] + 4 * rr, 4), vL16, sr(SRD_WS, 4), S_TMP))
                g.append(z.l)
            return g
        NM = 512
        extra = {f: [] for f in range(NM)}
        streams = []
        def spread(lst, a, per=int(os.environ.get("PER", 1))):
            streams.append([y_ for x_ in lst for y_ in (x_ if isinstance(x_, list) else [x_])])
            for k, ins in enumerate(lst): extra[a + k // per].extend(ins if isinstance(ins, list) else [ins])
            return a + (len(lst) + per - 1) // per
        def rd_w(i, cb):
            w = WF + 4 * ((8 * i + cb) % NWF); off = (i % 4) * 16384
            return Seq()("ds_read_b64_tr_b16 %s, v%d offset:%d" % (vr(w, 2), vWR + cb, off))("ds_read_b64_tr_b16 %s, v%d offset:%d" % (vr(w + 2, 2), vWR + cb, off + 1024)).l
        def rd_a(i, rbk):
            sl = (i >> 1) % 3
            base = vAR + (i & 1) + (2 if sl == 2 else 0); off = (32768 if sl == 1 else 0) + rbk * 2048
            return Seq()("ds_read_b128 %s, v%d offset:%d" % (vr(AF + 16 * (i & 1) + 4 * rbk, 4), base, off)).l
        B1, B2 = int(os.environ.get('B1', 9)), 10
        def arrive(name, fill, ta=30, tb=31):
            z = Seq(); z("v_mov_b32 v%d, s%d" % (ta, S_HUGE)); fill(z, ta, tb); z("v_mov_b32 v%d, 1" % tb)
            z("buffer_atomic_add v%d, v%d, %s, 0 offen" % (tb, ta, sr(SRD_DBG, 4)), tag="OPT")
            return w7_block(name, z).l
        def fill1(z, ta, tb):
            z("s_lshl_b32 s11, s%d, 2" % S_H); z("v_mov_b32 v%d, s11" % tb); z("v_cmp_eq_u32 vcc, 0, v%d" % vLANE); z("v_cndmask_b32 v%d, v%d, v%d, vcc" % (ta, ta, tb))
            z("s_lshr_b32 s11, s2, 4"); z("s_lshl_b32 s11, s11, 2"); z("s_add_u32 s11, s11, 128"); z("v_mov_b32 v%d, s11" % tb)
            z("v_cmp_eq_u32 vcc, 1, v%d" % vLANE); z("v_cndmask_b32 v%d, v%d, v%d, vcc" % (ta, ta, tb))
            z("s_and_b32 s11, s2, 7"); z("s_lshl_b32 s11, s11, 2"); z("s_add_u32 s11, s11, 224"); z("v_mov_b32 v%d, s11" % tb)
            z("v_cmp_eq_u32 vcc, 2, v%d" % vLANE); z("v_cndmask_b32 v%d, v%d, v%d, vcc" % (ta, ta, tb))
        def fill2(z, ta, tb):
            z("s_and_b32 s11, s2, 7"); z("s_lshl_b32 s11, s11, 2"); z("s_add_u32 s11, s11, 192"); z("v_mov_b32 v%d, s11" % tb)
            z("v_cmp_eq_u32 vcc, 0, v%d" % vLANE); z("v_cndmask_b32 v%d, v%d, v%d, vcc" % (ta, ta, tb))
        def publish1(i):
            z = Seq(); tags = ["U%d" % i] + (["A%d" % (i >> 1)] if i % 2 == 0 else [])
            if i == B1: tags += ["J13"]
            z.waitv(*tags)
            if i == 14 and role == 1:
                y_ = Seq(); y_("s_waitcnt vmcnt(4)", tag="OPT"); poll_check(y_, "P1", 26, 25, 24, SRD_DBG, "0"); z.ext(w7_block("F_P1C", y_))
            z("s_barrier")
            if i % 2 == 0: ST(z, 1 + i // 2)
            return z.l
        DW = 4
        for i in range(16):
            for cb in range(8):
                n = 8 * i + cb - DW
                if n >= 0:
                    if cb == 0: extra[4 * n].extend(publish1(i))
                    extra[4 * n].extend(rd_w(i, cb))
            if i > 0:
                for rbk in range(4): extra[32 * (i - 1) + 18 + 3 * rbk].extend(rd_a(i, rbk))
                g = []
                if i == 12 and role == 1:
                    z = Seq()
                    z("v_lshrrev_b32 v24, 2, v%d" % vL16); poll_issue(z, 26, 24, SRD_DBG, "0", tag="OPT")
                    z("v_cmp_eq_u32 vcc, s%d, v%d" % (S_H, vLANE)); z("v_cndmask_b32 v25, 0, 8, vcc")
                    z("s_add_u32 s8, s%d, 32" % S_J); z("v_cmp_eq_u32 vcc, s8, v%d" % vLANE); z("v_cndmask_b32 v25, v25, 16, vcc")
                    z("s_sub_u32 s8, 47, s%d" % S_J); z("v_cmp_eq_u32 vcc, s8, v%d" % vLANE); z("v_cndmask_b32 v25, v25, 16, vcc")
                    g.append(w7_block("F_P1I", z).l)
                if role == 0:
                    if i + 2 < 16 and i >= 2: g += dma_w(i + 2) + dma_w(i + 2, 1)
                    if i % 2 == 1 and i >= 3 and (i >> 1) + 2 < 8: g += dma_a((i >> 1) + 2) + dma_a((i >> 1) + 2, 1)
                if i == 13: g += dma_wq(0) + dma_wq(1)
                if i == 14: g += dma_wb(0) + dma_wb(1)
                if i == 15: g += dma_wq(2) + dma_wq(3) + dma_wb(2) + dma_wb(3)
                if role == 1 and i == B1: g.append(arrive("F_AR1", fill1))
                for k, l in enumerate(g): extra[32 * (i - 1) + 17 + (2 if len(g) < 8 else 1) * k].extend(l)
        if role == 0: mk_srd(r, SRD_X, P_UV, 512 * 8192)
        else:
            J = [j1(k) for k in range(3)] + [j3(k) for k in range(3)]
            if TOUCH > 1: r.ext(touch(0, 27))
            p = 2
            for x_ in J: p = spread(cp(x_[0]), p, 2)
            w4 = lambda nm, k: Seq()("s_cmp_lg_u32 s%d, 4" % S_W)("s_cbranch_scc1 %s" % nm).l + cp(J[2][k]) + cp(J[5][k]) + Seq().label(nm).l
            for l in [w4("F_Z4", 2)] + [cp(J[k][2]) for k in (0, 1, 3, 4)]: extra[p].extend(l); p += 2
            if TOUCH > 1: extra[p + 4].extend(touch(1, 28))
            p += GAP
            for l in [cp(J[4][1]), w4("F_Y4", 1)] + [cp(J[k][1]) for k in (0, 1, 3)]: extra[p].extend(l); p += 2
            assert p < 32 * (B1 - 1) - 20, p
            if TOUCH: extra[p + 8].extend(touch_wq(0, 29)); extra[p + 16].extend(Seq()("s_cmp_ge_u32 s2, 32")("s_cbranch_scc1 F_TQ").l + [I(x.text, tag="OPT") for x in touch_wq(1, 19)] + Seq().label("F_TQ").l)
        for ks in range(5):
            for k, l in enumerate(ld_x(ks)): extra[32 * 13 + 24 + 4 * ks + 2 * k].extend(l)
        r.ext(publish1(0))
        for rbk in range(4): r.ext(rd_a(0, rbk))
        for cb in range(DW): r.ext(rd_w(0, cb))
        for f in range(NM):
            i, cb, rbk = f >> 5, (f >> 2) & 7, f & 3
            acc = vr(ACC + 4 * (4 * cb + rbk), 4); w = vr(WF + 4 * ((8 * i + cb) % NWF), 4); a = vr(AF + 16 * (i & 1) + 4 * rbk, 4)
            ops = (w, a) if role == 0 else (a, w)
            r("%s %s, %s, %s, %s" % (MF, acc, ops[0], ops[1], "0" if i == 0 else acc))
            r.ext(extra[f])
        ST(r, 9)
        NF = 216
        extra = {f: [] for f in range(2 * NF)}
        FO = [(n // 12, n % 12) for n in range(192)] + [(k, p) for k in (16, 17) for p in range(8, 12)] + [(k, p) for k in (16, 17) for p in range(8)]
        def rd_q(n):
            ks, ph = FO[n]; s1 = ks & 1; w = FR + 4 * (n % 8)
            if ph < 8:
                return Seq()("ds_read_b64_tr_b16 %s, v%d offset:%d" % (vr(w, 2), vWR + ph, s1 * 8192))("ds_read_b64_tr_b16 %s, v%d offset:%d" % (vr(w + 2, 2), vWR + ph, s1 * 8192 + 1024)).l
            return Seq()("ds_read_b64_tr_b16 %s, v%d offset:%d" % (vr(w, 2), vBB[ph - 8], s1 * 4096))("ds_read_b64_tr_b16 %s, v%d offset:%d" % (vr(w + 2, 2), vBB[ph - 8], s1 * 4096 + 512)).l
        BKV = 5
        def publish(i):
            z = Seq()
            d = ((WQS[i] - WQS[i - 1]) * SLOT if i else WQS[0] * SLOT - WB - role * 8192) & 0xffffffff
            for cb in range(8):
                if "r" not in XQ or i == 0: z("v_add_u32 v%d, 0x%x, v%d" % (vWR + cb, d, vWR + cb))
            if i and "r" in XQ: pass
            elif i:
                for b in vBB: z("v_add_u32 v%d, 0x%x, v%d" % (b, (WBS[i] - WBS[i - 1]) & 0xffffffff, b))
            else:
                z("v_lshrrev_b32 v13, 4, v%d" % vLANE); z("v_bfe_u32 v14, v%d, 2, 2" % vLANE); z("v_lshl_add_u32 v15, v13, 3, v14"); z("v_lshlrev_b32 v15, 7, v15")
                z("v_lshrrev_b32 v14, 1, v14"); z("v_and_b32 v13, 1, v13"); z("v_lshl_add_u32 v14, v13, 1, v14"); z("v_lshl_add_u32 v15, v14, 5, v15")
                z("v_and_b32 v14, 3, v%d" % vLANE); z("v_lshl_add_u32 v15, v14, 3, v15"); z("v_add_u32 v%d, %d, v15" % (vBB[0], WBS[0]))
                for b in range(1, 4): z("v_xor_b32 v%d, %d, v%d" % (vBB[b], 32 * b, vBB[0]))
            z.waitv(*(["W%d" % i] + (["KVS"] if i == BKV else [])))
            z("s_barrier")
            ST(z, 10 + i)
            return z.l
        def kv_obj(kind, t, slot):
            z = Seq()
            z("s_add_u32 m0, s%d, %d" % (S_W4K, slot * SLOT)); z("s_add_u32 s%d, s%d, %d" % (S_TMP, S_KG if kind == "K" else S_VG, t * SLOT))
            for e in range(4): z("buffer_load_dwordx4 v%d, %s, s%d offen offset:%d sc1 lds" % (vL16, sr(SRD_WS, 4), S_TMP, 1024 * e), tag="%s%d" % (kind, t))
            return [z.l]
        phl = Seq()
        phl("s_mul_i32 s6, s%d, 648" % S_H); mk_srd(phl, SRD_PHI, P_PHI, 648, add="s6")
        phl("s_lshl_b32 s6, s%d, 8" % S_W); phl("s_add_u32 m0, s6, %d" % PHL); phl("v_lshrrev_b32 v13, 2, v%d" % vL16)
        phl("buffer_load_dword v13, %s, s6 offen lds" % sr(SRD_PHI, 4), tag="W5")
        DWQ = 5
        after = {0: dma_wq(4) + dma_wb(4) + dma_wq(5) + dma_wb(5) + [phl.l], 2: dma_wq(6) + dma_wb(8), 3: dma_wq(7) + dma_wb(6) + dma_wb(7), 4: dma_wq(8)}
        if role == 1:
            fb = Seq(); fb("s_lshl_b32 s6, s%d, 7" % S_H); fb("s_lshl_b32 s8, s%d, 2" % S_J); fb("s_add_u32 s6, s6, s8"); fb("s_add_u32 s6, s6, %d" % FL_KV)
            fbe = Seq().ext(cp(fb)); fbe("s_cmp_ge_u32 s%d, 6" % S_J); fbe("s_cselect_b32 s6, s6, s%d" % S_HUGE)
            after[BKV] = [w7_block("F_FKV", flag_store(fbe, 13, 14)).l]
            fkv_late = w7_block("F_FKV2", flag_store(fb, 8, 9))
        else:
            z = Seq()
            z("v_lshrrev_b32 v13, 2, v%d" % vL16); z("v_mov_b32 v15, s%d" % S_HUGE); z("v_xor_b32 v14, 7, v%d" % vLANE); z("v_cmp_gt_u32 vcc, 2, v14")
            z("v_cndmask_b32 v13, v15, v13, vcc"); z("v_cndmask_b32 v15, 0, 1, vcc")
            z("s_lshl_b32 s9, s%d, 7" % S_H); z("s_add_u32 s9, s9, %d" % FL_KV)
            poll_issue(z, 14, 13, SRD_WS, "s9")
            after[6] = [z.l]
            z = Seq(); poll_check(z, "P2A", 14, 15, 13, SRD_WS, "s9")
            after[7] = [z.l] + kv_obj("K", 0, 0) + kv_obj("K", 1, 1)
            after[8] = kv_obj("V", 0, 4) + kv_obj("K", 2, 2)
        for n in range(DWQ, NF):
            pos = 2 * (n - DWQ) + 1
            if n % 24 == 0:
                extra[pos].extend(publish(n // 24))
                for k, l in enumerate(after.get(n // 24, [])): extra[pos + 2 + k].extend(l)
            extra[pos].extend(rd_q(n))
        for k, l in enumerate(after[0]): extra[1 + k].extend(l)
        pk = Seq(); sts = []
        order = list(range(8, 16)) + list(range(8))
        free = []
        for n in order:
            if role == 0:
                j, rbk = n >> 2, n & 3
                b0, b1 = ACC + 4 * (8 * j + rbk), ACC + 4 * (8 * j + 4 + rbk); fi = 4 * rbk + j
            else:
                cb, u = n >> 1, n & 1
                b0, b1 = ACC + 4 * (4 * cb + 2 * u), ACC + 4 * (4 * cb + 2 * u + 1); fi = 8 * u + cb
            if n >= 8: t = b0; free.append(b1)
            else: t = free.pop(0)
            pk("v_cvt_pk_bf16_f32 v%d, v%d, v%d" % (t, b0, b0 + 1)); pk("v_cvt_pk_bf16_f32 v%d, v%d, v%d" % (t + 1, b0 + 2, b0 + 3))
            pk("v_cvt_pk_bf16_f32 v%d, v%d, v%d" % (t + 2, b1, b1 + 1)); pk("v_cvt_pk_bf16_f32 v%d, v%d, v%d" % (t + 3, b1 + 2, b1 + 3))
            sts.append((t, fi))
        sts.sort()
        mkst = lambda t, fi, base, tag: I("buffer_store_dwordx4 %s, v%d, %s, s%d offen offset:%d sc1" % (vr(t, 4), vL16, sr(SRD_WS, 4), base + (fi >> 2), (fi & 3) * 1024), tag=tag)
        for k, (t, fi) in enumerate(sts):
            for (pos, br, nm) in ((8 + 10 * k, "scc0", "E"), (13 + 20 * k, "scc1", "L")):
                z = Seq(); z("s_cmp_ge_u32 s%d, 6" % S_J); z("s_cbranch_%s KS%s%s%d" % (br, RN, nm, k))
                z.ext([mkst(t, fi, S_ST, "OPT")]); z.label("KS%s%s%d" % (RN, nm, k))
                if "s" not in XQ: extra[pos].extend(z.l)
        for ks in range(18 - NXR):
            for k, l in enumerate(ld_x(ks + NXR)):
                if ks == 6: l[-1].tag = "KVS"
                if "x" not in XQ: extra[24 * ks + 24 + k].extend(l)
        z = Seq()
        z("s_lshl_b32 s6, s%d, 19" % S_H); z("s_add_u32 s%d, s6, s%d" % (S_KG, S_W4K)); z("s_add_u32 s%d, s%d, %d" % (S_VG, S_KG, WS_VF))
        z("s_lshr_b32 s%d, s%d, 6" % (S_TL, S_ROW0))
        z("s_lshl_b32 s6, s%d, 1" % S_J); z("s_sub_u32 s%d, 31, s6" % S_TBM)
        c = f2u(LOG2E / (128 ** 0.5))
        z("s_mov_b32 s%d, 0x%x" % (S_C, c)); z("s_mov_b32 s%d, 0x%x" % (S_C + 1, c)); z("s_mov_b32 s%d, 0x%x" % (S_L2E, f2u(LOG2E)))
        z("s_mul_i32 s6, s%d, %d" % (S_TL, NSTEP * 4096)); z("s_lshr_b32 s8, s%d, 4" % S_ROW0); z("s_and_b32 s8, s8, 3"); z("s_lshl_b32 s8, s8, 10")
        z("s_add_u32 s6, s6, s8"); z("s_add_u32 s%d, s6, %d" % (S_AP, WS_AP))
        z("v_lshrrev_b32 v22, 4, v%d" % vLANE); z("v_cmp_gt_u32 vcc, 2, v22"); z("v_cndmask_b32 v%d, 0, 1.0, vcc" % vM5)
        z("v_mov_b32 v%d, 0xff800000" % vNINF)
        streams.append(z.l)
        for k, ins in enumerate(z.l): extra[200 + k].append(ins)
        RAW, PH = 192, 208
        z = Seq(); y = phi_gather(z, RAW, PH, RAW + 12, RAW + 13); streams.append(z.l)
        for k, ins in enumerate(z.l): extra[340 + k].append(ins)
        U, VM, PK, EE, T8, LK = 88, 112, 216, 160, 120, 192
        blk = lambda b, rho: DB + 4 * (2 * b + rho)
        t_ = Seq(); t_.ext(y)
        t_("v_and_b32 v%d, 15, v%d" % (T8, vLANE)); t_("v_lshlrev_b32 v%d, 2, v%d" % (T8, T8)); t_("v_add_u32 v%d, 64, v%d" % (T8, T8))
        for rho in range(2):
            t, u = TK + 4 * rho, U + 4 * rho
            for (d, b) in ((u, 2), (t + 2, 3)):
                t_("v_cvt_pk_bf16_f32 v%d, v%d, v%d" % (d, blk(b, rho), blk(b, rho) + 1)); t_("v_cvt_pk_bf16_f32 v%d, v%d, v%d" % (d + 1, blk(b, rho) + 2, blk(b, rho) + 3))
            t_("v_mov_b32 v%d, v%d" % (u + 2, t + 3)); t_("v_mov_b32 v%d, v%d" % (u + 3, t + 2))
        for rho in range(2): t_("ds_bpermute_b32 v%d, v%d, v%d" % (vG[rho], T8, blk(3, rho) + 2))
        for mu in range(2):
            for rho in range(2): t_("%s %s, %s, %s, 0" % (MF, vr(PK + 8 * mu + 4 * rho, 4), vr(PH + 4 * mu, 4), vr(U + 4 * rho, 4)))
        for rho in range(2):
            t = TK + 4 * rho
            for (d, b) in ((t, 0), (VM + 4 * rho, 1)):
                t_("v_cvt_pk_bf16_f32 v%d, v%d, v%d" % (d, blk(b, rho), blk(b, rho) + 1)); t_("v_cvt_pk_bf16_f32 v%d, v%d, v%d" % (d + 1, blk(b, rho) + 2, blk(b, rho) + 3))
            t_("v_mov_b32 v%d, v%d" % (VM + 4 * rho + 2, t + 2)); t_("v_mov_b32 v%d, 0x3f80" % (VM + 4 * rho + 3))
        for rho in range(2):
            g = vG[rho]
            t_("v_mul_f32 v%d, s%d, v%d" % (g, S_L2E, g)); t_("v_exp_f32 v%d, -v%d" % (g, g)); t_("v_add_f32 v%d, 1.0, v%d" % (g, g)); t_("v_rcp_f32 v%d, v%d" % (g, g))
        softmax5(t_, PK, EE, T8, LK)
        streams.append(t_.l)
        t0_ = 2 * 200 + 2; span = 2 * NF - t0_
        for k, ins in enumerate(t_.l): extra[t0_ + (k * span) // len(t_.l)].append(ins)
        r.ext(publish(0))
        for n in range(DWQ): r.ext(rd_q(n))
        r.ext(pk)
        for n in range(NF):
            ks, ph = FO[n]
            for rho in range(2):
                acc = vr(qacc(ph, rho) if ph < 8 else (DB + 4 * (2 * (ph - 8) + rho)), 4)
                r("%s %s, %s, %s, %s" % (MF, acc, vr(FR + 4 * (n % 8), 4), vr(XRS[ks % NXR] + 4 * rho, 4), "0" if ks == 0 else acc))
                r.ext(extra[2 * n + rho])
        ST(r, 20)
        vF = 4
        FB0 = 6 * SLOT
        r("v_and_b32 v6, 15, v%d" % vLANE); r("v_lshrrev_b32 v7, 4, v%d" % vLANE)
        r("s_mul_i32 s6, s%d, 5376" % S_W); r("s_add_u32 s6, s6, %d" % FB0)
        r("v_mul_u32_u24 v8, 168, v6"); r("v_lshl_add_u32 v8, v7, 3, v8"); r("v_add_u32 v%d, s6, v8" % vF)
        r("v_mov_b32 v%d, v%d" % (vKA, vL16))
        if role == 0: r.waitv("K0")
        else: r("s_waitcnt vmcnt(0)")
        r("s_barrier")
        for rho in range(2):
            for b in range(3): r("ds_write_b64 v%d, %s offset:%d" % (vF, vr(LK + 8 * rho + 2 * b, 2), 2688 * rho + 32 * b), tag="FW")
            for b in range(2): r("ds_write_b64 v%d, %s offset:%d" % (vF, vr(VM + 4 * rho + 2 * b, 2), 2688 * rho + 96 + 32 * b), tag="FW")
        if role == 0: r.ext(flat(kv_obj("V", 1, 5)))
        else: r.ext(fkv_late)
        for n in range(8): r.ext([rd_frag("K", n, n)])
        for qb in range(2):
            for js in range(4):
                for hb in range(2):
                    a = qacc(2 * js + hb, qb)
                    r("v_pk_mul_f32 %s, %s, s[%d:%d]" % (vr(a, 2), vr(a, 2), S_C, S_C + 1)); r("v_pk_mul_f32 %s, %s, s[%d:%d]" % (vr(a + 2, 2), vr(a + 2, 2), S_C, S_C + 1))
                    d = Q + 16 * qb + 4 * js + 2 * hb
                    r("v_cvt_pk_bf16_f32 v%d, v%d, v%d" % (d, a, a + 1)); r("v_cvt_pk_bf16_f32 v%d, v%d, v%d" % (d + 1, a + 2, a + 3))
        r("v_lshlrev_b32 v8, 2, v7"); r("v_sub_u32 v8, v6, v8")
        r("v_add_u32 v%d, s%d, v8" % (vQ, S_ROW0)); r("v_add_u32 v%d, 16, v%d" % (vQ + 1, vQ))
        r("v_mov_b32 v%d, 0" % vLs); r("v_mov_b32 v%d, 0" % (vLs + 1))
        r("v_mov_b32 v%d, 0x44800000" % vTHR())
        r("s_mov_b32 s%d, 0xffff" % S_KR); r("v_mov_b32 v%d, 0x10000" % vC64); r("v_add_u32 v%d, 0x10000, v%d" % (vVA, vL16)); r("s_mov_b32 s%d, 0" % S_T)
        CA, CB, CD, ZR = 128, 160, 64, 68
        r("s_cmp_ge_u32 s%d, 3" % S_W); r("s_cselect_b32 s6, 1, 0"); r("s_mul_i32 s8, s6, 3"); r("s_sub_u32 s8, s%d, s8" % S_W)
        r("v_bfe_u32 v8, v%d, 2, 2" % vLANE); r("v_lshl_add_u32 v8, v7, 3, v8")
        r("v_and_b32 v9, 3, v%d" % vLANE); r("v_lshlrev_b32 v9, 3, v9")
        r("v_mul_u32_u24 v21, 168, v8"); r("v_add_u32 v21, v21, v9")
        r("s_lshl_b32 s9, s8, 5"); r("s_add_u32 s9, s9, %d" % FB0); r("v_add_u32 v4, s9, v21")
        r("s_lshl_b32 s9, s6, 5"); r("s_add_u32 s9, s9, %d" % (FB0 + 96)); r("v_add_u32 v6, s9, v21")
        for i in range(4): r("v_mov_b32 v%d, 0" % (ZR + i))
        ST(r, 21)
        r.waitv("FW")
        r("s_barrier")
        ST(r, 22)
        for n in range(8, DRD): r.ext([rd_frag("K", n, n)])
        crd = []
        for ks in range(8):
            for (dst, a) in ((CA, 4), (CB, 6)):
                crd += Seq()("ds_read_b64_tr_b16 %s, v%d offset:%d" % (vr(dst + 4 * ks, 2), a, 5376 * ks))("ds_read_b64_tr_b16 %s, v%d offset:%d" % (vr(dst + 4 * ks + 2, 2), a, 5376 * ks + 4 * 168)).l
        slots = []
        for k in range(8): slots.append(mkslot(qk_mfmas(k, 0, k, lambda qb: "0")))
        for n in range(8):
            if n + DRD < 16: slots[n]["rd"].append(rd_frag("K", n + DRD, n + DRD))
            slots[n]["mid"].extend(crd[4 * n:4 * n + 2]); slots[n]["rd"].extend(crd[4 * n + 2:4 * n + 4])
        r.ext(emit_slots(slots))
        for ks in range(8): r("%s %s, %s, %s, %s" % (MF, vr(CD, 4), vr(CA + 4 * ks, 4), vr(CB + 4 * ks, 4), "0" if ks == 0 else vr(CD, 4)))
        r("s_cmp_lg_u32 s%d, 0" % S_TL); r("s_cbranch_scc1 %s_NM" % RN)
        r("s_nop 4")
        r.ext(mask_ops(0, 0))
        r.label("%s_NM" % RN)
        a, b, t = E_, E_ + 1, E_ + 2
        for qb, d in ((0, a), (1, b)):
            x = [sreg(0, 8 * qb + i) for i in range(8)]
            r("v_max3_f32 v%d, v%d, v%d, v%d" % (d, x[0], x[1], x[2])); r("v_max3_f32 v%d, v%d, v%d, v%d" % (d, d, x[3], x[4]))
            r("v_max3_f32 v%d, v%d, v%d, v%d" % (d, d, x[5], x[6])); r("v_max_f32 v%d, v%d, v%d" % (d, d, x[7]))
        r("s_lshl_b32 s9, s%d, 3" % S_H); r("s_add_u32 s9, s9, s%d" % S_J); r("s_mul_i32 s9, s9, 6144"); r("s_add_u32 s9, s9, s%d" % S_MB); r("s_add_u32 s9, s9, %d" % WS_KVP)
        if role == 1: r("s_cmp_ge_u32 s%d, 6" % S_W); r("s_cselect_b32 s9, s%d, s9" % S_HUGE)
        zs = [I("%s %s, %s, %s, 0" % (MF, vr(O + 4 * i, 4), vr(ZR, 4), vr(ZR, 4))) for i in range(16)]
        z = Seq(); red2(z, a, b, "v_max_f32", t)
        z("buffer_store_dwordx4 %s, v%d, %s, s9 offen sc1" % (vr(CD, 4), vL16, sr(SRD_WS, 4)))
        for qb, d in ((0, a), (1, b)):
            for i in range(4): z("v_sub_f32 v%d, 0, v%d" % (NEGM + 4 * qb + i, d))
        for qb, d in ((0, a), (1, b)):
            for i in range(8): z("v_sub_f32 v%d, v%d, v%d" % (sreg(0, 8 * qb + i), sreg(0, 8 * qb + i), d))
        r.ext(interleave([[x_] for x_ in zs], z.l))
        r("s_lshl_b32 s6, s%d, 6" % S_TL)
        r("v_subrev_u32 v%d, s6, v%d" % (vQ, vQ)); r("v_subrev_u32 v%d, s6, v%d" % (vQ + 1, vQ + 1))
        slots = []
        for k in range(8): slots.append(mkslot(qk_mfmas(k, 1, 8 + k, NEGC)))
        place_sm(slots, 0, 8, 0, None, None, carry=False)
        r.ext(emit_slots(slots))
        r.waitv("K1", "V0")
        r("s_barrier")
        if role == 0:
            r("s_add_u32 s%d, s%d, %d" % (S_KL, S_W4K, 3 * SLOT)); r("s_add_u32 s%d, s%d, %d" % (S_VL, S_W4K, 6 * SLOT))
            r("s_add_u32 s%d, s%d, %d" % (S_KG, S_KG, 3 * SLOT)); r("s_add_u32 s%d, s%d, %d" % (S_VG, S_VG, 2 * SLOT))
            r("v_lshrrev_b32 v8, 2, v%d" % vL16); r("v_mov_b32 v7, s%d" % S_HUGE); r("v_cmp_gt_u32 vcc, 8, v%d" % vLANE)
            r("v_cndmask_b32 v8, v7, v8, vcc"); r("v_cndmask_b32 v7, 0, 1, vcc"); r("s_lshl_b32 s15, s%d, 7" % S_H); r("s_add_u32 s15, s15, %d" % FL_KV)
            r("s_mov_b32 m0, s%d" % S_KL)
            for e in range(4): r("buffer_load_dwordx4 v%d, %s, s%d offen offset:%d sc1 lds" % (vL16, sr(SRD_WS, 4), S_KG, 1024 * e))
            r("s_add_u32 s%d, s%d, %d" % (S_KG, S_KG, SLOT)); r("s_mov_b32 s%d, s%d" % (S_KL, S_W4K))
            r.ext(pkg())
        if (role == 1 and PRIO) or PRIO == 2: r("s_setprio 1")
        if stamp: r.ext(STAMP(23)); r.ext(RSTAMP(62))
        if DIAG: r("s_mov_b32 s96, 600"); r("s_mov_b32 s98, 600")
        main, st1 = resolve_waits(r.l, st0)
        verify_streams(main, streams, "f")
        st1.vm = []
        rares = []
        z = Seq()
        z("s_cmp_eq_u32 s%d, 0" % S_TL); z("s_cbranch_scc1 %s_PV" % RN)
        z.ext(adv(vKA))
        for n in range(DRD): z.ext([rd_frag("K", n, n) if n < 8 else rd_frag("V", n - 8, n)])
        z("s_cmp_le_u32 s%d, 1" % S_TL); z("s_cbranch_scc1 %s_S1" % RN)
        lz, stl = resolve_waits(z.l, st1)
        main += lz
        tmp = []
        b1, s1 = resolve_waits(iteration(role, "S", tmp), stl); s1.vm = []
        b2, s2 = resolve_waits(iteration(role, "S", rares), s1); s2.vm = []
        assert [x.text for x in b1] == [x.text for x in b2] and s1.sig() == s2.sig(), "loop not steady"
        if ALN >= 0: main += Seq()(".p2align 6").l + [I("s_nop 0") for _ in range(ALN)]
        if AL8: b2 = align8(fix_hazards(b2))
        main += Seq().label("%s_LOOP" % RN).l + b2 + Seq()("s_cmp_lt_u32 s6, s%d" % S_TL)("s_cbranch_scc1 %s_LOOP" % RN)("s_branch %s_S1" % RN).l
        z = Seq(); z.label("%s_PV" % RN)
        for n in range(DRD): z.ext([rd_frag("V", n, n)])
        z("s_branch %s_S2" % RN)
        lz, _ = resolve_waits(z.l, st1)
        main += lz
        b, s3 = resolve_waits(iteration(role, "S1", rares), s1); s3.vm = []
        main += Seq().label("%s_S1" % RN).l + b + Seq()("s_add_u32 s%d, s%d, 1" % (S_T, S_T)).l
        b, s4 = resolve_waits(iteration(role, "S2", rares), s3); s4.vm = []
        main += Seq().label("%s_S2" % RN).l + b
        e = Seq()
        if stamp: e.ext(STAMP(24)); e.ext(RSTAMP(63))
        vFL, vFO, vFN = 4, 5, 6
        if role == 0:
            e("s_setprio 0")
            e("v_lshrrev_b32 v%d, 2, v%d" % (vFO, vL16)); e("v_mov_b32 v%d, s%d" % (vFN, S_HUGE)); e("v_cmp_gt_u32 vcc, 8, v%d" % vLANE)
            e("v_cndmask_b32 v%d, v%d, v%d, vcc" % (vFO, vFN, vFO)); e("v_cndmask_b32 v%d, 0, 1, vcc" % vFN)
            e("s_lshl_b32 s14, s%d, 7" % S_H); e("s_add_u32 s14, s14, %d" % FL_KP)
            poll_issue(e, vFL, vFO, SRD_WS, "s14")
        red2(e, vLs, vLs + 1, "v_add_f32", E_)
        for qb in range(2):
            e("v_rcp_f32 v%d, v%d" % (vLs + qb, vLs + qb)); e("v_mul_f32 v%d, v%d, v%d" % (E_ + 2 * qb, vLs + qb, vG[qb])); e("v_mov_b32 v%d, v%d" % (E_ + 2 * qb + 1, E_ + 2 * qb))
        e("s_lshl_b32 s6, s%d, 14" % S_H); e("s_add_u32 s6, s6, s%d" % S_AP)
        for js in range(4):
            for qb in range(2):
                t = FR + 4 * ((2 * js + qb) % 8)
                for hb in range(2):
                    a = O + 8 * (2 * js + hb) + 4 * qb
                    e("v_pk_mul_f32 %s, %s, %s" % (vr(a, 2), vr(a, 2), vr(E_ + 2 * qb, 2))); e("v_pk_mul_f32 %s, %s, %s" % (vr(a + 2, 2), vr(a + 2, 2), vr(E_ + 2 * qb, 2)))
                    e("v_cvt_pk_bf16_f32 v%d, v%d, v%d" % (t + 2 * hb, a, a + 1)); e("v_cvt_pk_bf16_f32 v%d, v%d, v%d" % (t + 2 * hb + 1, a + 2, a + 3))
                e("buffer_store_dwordx4 %s, v%d, %s, s6 offen offset:%d sc1" % (vr(t, 4), vL16, sr(SRD_WS, 4), 1024 * qb))
            if js < 3: e("s_add_u32 s6, s6, 4096")
        ST(e, 25)
        if role == 0:
            e("s_sub_u32 s6, s%d, %d" % (S_J, JLO)); e("s_cmp_ge_u32 s6, %d" % JN); e("s_cbranch_scc1 A_LD")
            e("s_mul_i32 s8, s%d, %d" % (S_H, JN)); e("s_add_u32 s6, s6, s8"); e("s_lshl_b32 s6, s6, 2"); e("s_add_u32 s6, s6, s%d" % S_W); e("s_mul_i32 s%d, s6, %d" % (S_JU, sum(JG)))
            e("s_mov_b32 s%d, %d" % (S_WOSZ, 4096 * 1152)); e("s_mov_b32 s%d, 0x00020000" % (SRD_J + 3))
            mk_srd(e, SRD_WS2, P_WS, WS_WP + 16 * 37 * 9728)
            e("s_cmp_ge_u32 s%d, 2" % S_W); e("s_cbranch_scc1 A_J0")
            e("s_add_u32 s%d, s%d, 1" % (S_T, S_T)); e.ext(sync_block(0, "JP"))
            e.label("A_J0")
            assert sum(JG) * JN * 128 >= 5256 and sum(JG) * JN * 128 <= 6144
            jb = [j2(i, 56 + 4 * (i % 10), 96, 100 + (i % 10)) for i in range(sum(JG))]
            grp = [range(sum(JG[:k]), sum(JG[:k + 1])) for k in range(len(JG))]
            G_ = len(JG); nops = [(JG[k] if k < G_ else 0) + (JG[k - 1] if 1 <= k <= G_ else 0) for k in range(G_ + 3)]
            assert 2 * (JLO + JN - 1) + 2 + G_ + 2 < 31 - 2 * (JLO + JN - 1) - 3
            for st_ in range(G_ + 3):
                e("s_add_u32 s%d, s%d, 1" % (S_T, S_T))
                x_ = (nops[st_ - 1] if st_ >= 1 else 0) + (nops[st_ - 2] if st_ >= 2 else 0)
                e.ext(sync_block(0, "J%d" % st_, xtra=x_, strict=8 if st_ == G_ + 2 else None, always=True, prev=nops[st_ - 1] if st_ else 0))
                if 1 <= st_ <= G_:
                    e("s_waitcnt vmcnt(8)")
                    for i in grp[st_ - 1]: e.ext(jb[i][1])
                if st_ < G_:
                    for i in grp[st_]: e.ext(jb[i][0])
            z = Seq(); z("v_mov_b32 v24, s%d" % S_HUGE); fill2(z, 24, 25); z("v_mov_b32 v25, 1")
            z("buffer_atomic_add v25, v24, %s, 0 offen" % sr(SRD_DBG, 4))
            e("s_cmp_lg_u32 s%d, 0" % S_W); e("s_cbranch_scc1 A_LD"); e.ext(z)
            e.label("A_LD")
            e("s_add_u32 s%d, s%d, 1" % (S_T, S_T)); e("s_cmp_ge_u32 s%d, s%d" % (S_T, S_TBM)); e("s_cbranch_scc1 A_FIN")
            e.ext(sync_block(0, "LD"))
            e("s_cmp_ge_u32 s%d, 2" % S_W); e("s_cbranch_scc1 A_LD")
            e("s_cmp_eq_u32 s%d, 3" % S_R); e("s_cbranch_scc0 A_N3")
            e("s_waitcnt vmcnt(0)")
            poll_issue(e, vFL, vFO, SRD_WS, "s14")
            e("s_branch A_LD")
            e.label("A_N3")
            e("s_cmp_eq_u32 s%d, 2" % S_R); e("s_cbranch_scc0 A_LD")
            e("s_waitcnt vmcnt(0)")
            poll_check(e, "P3A", vFL, vFN, vFO, SRD_WS, "s14")
            KR_ = 56
            e("s_mul_i32 s6, s%d, 49152" % S_H); e("s_mul_i32 s8, s%d, 3072" % S_W); e("s_add_u32 s6, s6, s8"); e("s_add_u32 s6, s6, %d" % WS_KVP)
            for p in range(8):
                for mu in range(3): e("buffer_load_dwordx4 %s, v%d, %s, s6 offen offset:%d sc1" % (vr(KR_ + 12 * p + 4 * mu, 4), vL16, sr(SRD_WS, 4), 1024 * mu))
                if p < 7: e("s_add_u32 s6, s6, 6144")
            for p in range(1, 8):
                for i in range(12): e("v_add_f32 v%d, v%d, v%d" % (KR_ + i, KR_ + i, KR_ + 12 * p + i))
            for i in range(6): e("v_cvt_pk_bf16_f32 v%d, v%d, v%d" % (FR + i, KR_ + 2 * i, KR_ + 2 * i + 1))
            e("v_mov_b32 v%d, 0" % (FR + 6)); e("v_mov_b32 v%d, 0" % (FR + 7))
            e("s_lshl_b32 s6, s%d, 11" % S_W); e("s_add_u32 s6, s6, %d" % KVX); e("v_add_u32 v21, s6, v%d" % vL16)
            e("ds_write_b128 v21, %s" % vr(FR, 4)); e("ds_write_b128 v21, %s offset:1024" % vr(FR + 4, 4))
            e("s_waitcnt lgkmcnt(0)")
            e("s_branch A_LD")
            e.label("A_FIN"); e("s_waitcnt vmcnt(0)"); e("s_branch F_FIN")
        le, _ = resolve_waits(e.l, s4)
        outl += main + le
        for rb in rares: cold += rb.l
    e = Seq(); e.label("F_FIN"); e("s_setprio 0")
    e("s_waitcnt lgkmcnt(0)")
    e("v_lshrrev_b32 v4, 2, v%d" % vL16); poll_issue(e, 5, 4, SRD_DBG, "0")
    RAW, PH, PK, EE, T8, LQ, KF_, ND = 56, 72, 80, 96, 116, 120, 136, 152
    y = phi_gather(e, RAW, PH, RAW + 12, RAW + 13)
    e("v_add_u32 v6, %d, v%d" % (KVX, vL16))
    for i in range(4): e("ds_read_b128 %s, v6 offset:%d" % (vr(KF_ + 4 * i, 4), 1024 * i))
    e.ext(y)
    for mu in range(2):
        for rho in range(2): e("%s %s, %s, %s, 0" % (MF, vr(PK + 8 * mu + 4 * rho, 4), vr(PH + 4 * mu, 4), vr(TK + 4 * rho, 4)))
    softmax5(e, PK, EE, T8, LQ)
    for rho in range(2): e("v_mov_b32 v%d, 0" % (LQ + 8 * rho + 6)); e("v_mov_b32 v%d, 0" % (LQ + 8 * rho + 7))
    for rho in range(2):
        for nu in range(2):
            d = vr(ND + 8 * rho + 4 * nu, 4)
            e("%s %s, %s, %s, 0" % (MF, d, vr(KF_ + 8 * nu, 4), vr(LQ + 8 * rho, 4)))
            e("%s %s, %s, %s, %s" % (MF, d, vr(KF_ + 8 * nu + 4, 4), vr(LQ + 8 * rho + 4, 4), d))
    e("s_lshr_b32 s6, s%d, 1" % S_H); e("s_add_u32 s6, s6, 128"); e("s_lshl_b32 s6, s6, 12"); e("s_add_u32 s6, s6, s%d" % S_AP)
    e("s_and_b32 s8, s%d, 1" % S_H); e("s_lshl_b32 s8, s8, 9"); e("s_add_u32 s6, s6, s8")
    e("s_lshr_b32 s8, s%d, 4" % S_H); e("s_add_u32 s8, s8, 144"); e("s_lshl_b32 s8, s8, 12"); e("s_add_u32 s8, s8, s%d" % S_AP)
    e("s_lshr_b32 s9, s%d, 2" % S_H); e("s_and_b32 s9, s9, 3"); e("s_lshl_b32 s9, s9, 8"); e("s_add_u32 s8, s8, s9")
    e("s_and_b32 s9, s%d, 3" % S_H); e("s_lshl_b32 s9, s9, 2"); e("s_add_u32 s8, s8, s9")
    e("v_and_b32 v6, 15, v%d" % vLANE); e("v_lshlrev_b32 v6, 4, v6"); e("v_lshrrev_b32 v7, 4, v%d" % vLANE)
    e("v_lshl_add_u32 v10, v7, 7, v6"); e("v_and_b32 v9, 1, v7")
    e("v_mov_b32 v8, s%d" % S_HUGE); e("v_cmp_ne_u32 vcc, 1, v7"); e("v_cndmask_b32 v6, v6, v8, vcc")
    e("v_cmp_ne_u32 vcc, 0, v9"); e("v_cndmask_b32 v10, v10, v8, vcc")
    e("s_mov_b32 s9, 0x%x" % f2u(1e-6))
    for rho in range(2):
        n = ND + 8 * rho
        e("v_add_f32 v8, s9, v%d" % (n + 6)); e("v_rcp_f32 v8, v8"); e("v_sub_f32 v9, 1.0, v%d" % vG[rho]); e("v_mul_f32 v8, v8, v9")
        for i in range(6): e("v_mul_f32 v%d, v%d, v8" % (n + i, n + i))
        for i in range(2): e("v_cvt_pk_bf16_f32 v%d, v%d, v%d" % (n + i, n + 2 * i, n + 2 * i + 1))
        e("v_cvt_pk_bf16_f32 v%d, v%d, v%d" % (n + 4, n + 4, n + 5))
        e("v_mov_b32 v%d, v%d" % (n + 2, n)); e("v_mov_b32 v%d, v%d" % (n + 3, n + 1))
        e("v_permlane16_swap_b32 v%d, v%d" % (n, n + 2)); e("v_permlane16_swap_b32 v%d, v%d" % (n + 1, n + 3))
        e("buffer_store_dwordx4 %s, v10, %s, s6 offen offset:%d sc1" % (vr(n, 4), sr(SRD_WS, 4), 1024 * rho), tag="APS")
        e("buffer_store_dword v%d, v6, %s, s8 offen offset:%d sc1" % (n + 4, sr(SRD_WS, 4), 1024 * rho), tag="APS")
    ST(e, 26)
    if DIAG: e("v_writelane_b32 v0, s96, 40"); e("v_writelane_b32 v0, s98, 41"); e("v_writelane_b32 v0, s98, 42")
    SRD_W3, SRD_OUT, S_KQ, S_A, S_WM, S_G, S_SO, S_R16 = 56, 60, 64, 65, 68, 69, 72, 76
    WR0 = 65536; NS = 37; IMG = 9728
    e("s_and_b32 s%d, s%d, 3" % (S_KQ, S_H))
    e("s_lshl_b32 s8, s%d, 1" % S_J); e("s_sub_u32 s9, 30, s8"); e("s_bitcmp1_b32 s%d, 2" % S_H); e("s_cselect_b32 s10, s9, s8")
    e("s_lshr_b32 s6, s%d, 2" % S_W); e("s_add_u32 s6, s6, s10"); e("s_mul_i32 s6, s6, %d" % (NSTEP * 4096)); e("s_lshl_b32 s8, s%d, 10" % S_RG)
    e("s_add_u32 s6, s6, s8"); e("s_add_u32 s6, s6, %d" % WS_AP)
    e("s_lshl_b32 s8, s%d, 17" % S_KQ); e("s_add_u32 s%d, s6, s8" % S_A)
    e("s_lshl_b32 s8, s%d, 14" % S_KQ); e("s_add_u32 s%d, s6, s8" % (S_A + 1)); e("s_add_u32 s%d, s%d, %d" % (S_A + 1, S_A + 1, 128 * 4096))
    e("s_lshl_b32 s8, s%d, 11" % S_KQ); e("s_add_u32 s8, s6, s8"); e("s_add_u32 s8, s8, %d" % (144 * 4096))
    e("s_bitcmp1_b32 s%d, 0" % S_KQ); e("s_cselect_b32 s%d, s%d, s8" % (S_A + 2, S_HUGE))
    e("s_cselect_b32 s9, 36, 37"); e("s_cselect_b32 s11, 8, 16")
    e("s_lshr_b32 s6, s%d, 3" % S_H); e("s_lshl_b32 s6, s6, 2"); e("s_add_u32 s6, s6, s%d" % S_KQ); e("s_mul_i32 s6, s6, %d" % (37 * IMG)); e("s_add_u32 s6, s6, %d" % WS_WP)
    mk_srd(e, SRD_W3, P_WS, 0, add="s6"); e("s_mul_i32 s%d, s9, %d" % (SRD_W3 + 2, IMG))
    mk_srd(e, SRD_OUT, P_OUT, 2048 * 1152)
    e("s_lshl_b32 s%d, s%d, 10" % (S_WM, S_RG))
    vH, vT, vA, vO, vO5 = 18, 12, 14, 10, 11
    e("v_add_u32 v%d, s%d, v%d" % (vH, S_MB, vL16)); e("v_add_u32 v%d, s%d, v%d" % (vH + 1, S_WM, vL16))
    e("v_bfe_u32 v10, v%d, 2, 2" % vLANE); e("v_lshl_add_u32 v10, v7, 3, v10"); e("v_mul_u32_u24 v10, 288, v10"); e("v_lshl_add_u32 v10, v7, 7, v10")
    e("v_and_b32 v11, 3, v%d" % vLANE); e("v_lshl_add_u32 v10, v11, 3, v10")
    e("s_lshr_b32 s6, s%d, 2" % S_W); e("s_mul_i32 s6, s6, 160"); e("s_add_u32 s6, s6, %d" % WR0)
    e("v_add_u32 v%d, s6, v10" % vT); e("v_add_u32 v%d, %d, v%d" % (vT + 1, 4 * IMG, vT))
    e("s_lshl_b32 s6, s%d, 11" % S_RG); e("v_add_u32 v%d, s6, v%d" % (vA, vL16))
    e("v_cmp_le_u32 vcc, 48, v%d" % vLANE); e("v_cndmask_b32 v6, 0, %d, vcc" % (4 * JN)); e("v_cmp_le_u32 vcc, 56, v%d" % vLANE); e("v_cndmask_b32 v6, v6, 32, vcc")
    poll_check(e, "P4", 5, 6, 4, SRD_DBG, "0")
    e("s_lshl_b32 s6, s%d, 3" % S_KQ); e("v_subrev_u32 v9, s6, v%d" % vLANE); e("v_cmp_gt_u32 vcc, s11, v9")
    e("v_mov_b32 v6, s%d" % S_HUGE); e("v_cndmask_b32 v4, v6, v4, vcc"); e("v_cndmask_b32 v6, 0, 1, vcc")
    e("s_lshl_b32 s11, s%d, 7" % S_J); e("s_add_u32 s11, s11, %d" % FL_AP)
    AG, WG, AC = 24, 40, 80
    S_ROT = 88
    for t in range(4):
        e("s_lshr_b32 s6, s%d, %d" % (S_H, 3 if ROT else 8)); e("s_add_u32 s6, s6, %d" % t); e("s_and_b32 s6, s6, 3"); e("s_lshl_b32 s6, s6, 15"); e("s_add_u32 s%d, s%d, s6" % (S_ROT + t, S_A))
    def dmaw(qq, nw=8):
        z = Seq(); base = (nw * qq) % 76
        sm = S_MB if nw == 8 else S_WM
        z("s_add_u32 m0, s%d, %d" % (sm, WR0 + base * 1024))
        if base + nw - 1 >= 76:
            z("s_sub_u32 s9, m0, %d" % (76 * 1024)); z("s_cmp_ge_u32 m0, %d" % (WR0 + 76 * 1024)); z("s_cselect_b32 m0, s9, m0")
        z("s_mov_b32 s9, %d" % (nw * qq * 1024))
        z("buffer_load_dwordx4 v%d, %s, s9 offen sc1 lds" % (vH if nw == 8 else vH + 1, sr(SRD_W3, 4)), tag="P%d" % (nw * qq // 4))
        return z
    def dmaa(n):
        z = Seq()
        z("s_add_u32 m0, s%d, %d" % (S_MB, (n % 8) * 8192))
        if n < 36: z("s_add_u32 s8, s%d, %d" % ((S_ROT + (n >> 3), (n & 7) * 4096) if n < 32 else (S_A + 1, (n - 32) * 4096)))
        z("buffer_load_dwordx4 v%d, %s, s%d offen sc1 lds" % (vL16, sr(SRD_WS, 4), 8 if n < 36 else S_A + 2), tag="Q%d" % n)
        return z
    def rds(n, nf):
        sl = n % 8; hi = sl >> 2; out = []
        for rho in range(2): out.append(Seq()("ds_read_b128 %s, v%d offset:%d" % (vr(AG + 8 * (n % 2) + 4 * rho, 4), vA, sl * 8192 + 1024 * rho)).l)
        for fi in range(nf):
            out.append(Seq()("\n".join("ds_read_b64_tr_b16 %s, v%d offset:%d" % (vr(WG + 20 * (n % 2) + 4 * fi + 2 * hh, 2), vT + hi, (sl & 3) * IMG + 32 * fi + 1152 * hh) for hh in range(2))).l)
        return out
    e.waitv("APS")
    e("s_barrier")
    fb = Seq(); fb("s_lshl_b32 s6, s%d, 7" % S_J); fb("s_lshl_b32 s8, s%d, 2" % S_H); fb("s_add_u32 s6, s6, s8"); fb("s_add_u32 s6, s6, %d" % FL_AP)
    e.ext(w7_block("F_FAP", flag_store(fb, 10, 11)))
    ST(e, 27)
    nq0 = 9; na0 = 8; NQ = 88
    for qq in range(nq0): e.ext(dmaw(qq))
    e("v_and_b32 v16, 15, v%d" % vLANE); e("s_lshl_b32 s6, s10, 6"); e("s_lshl_b32 s8, s%d, 5" % S_RG); e("s_add_u32 s6, s6, s8")
    e("v_add_u32 v16, s6, v16"); e("v_mul_u32_u24 v16, 1152, v16"); e("v_lshl_add_u32 v16, v7, 3, v16")
    e("s_lshr_b32 s6, s%d, 3" % S_H); e("s_mul_i32 s6, s6, 288"); e("s_lshr_b32 s8, s%d, 2" % S_W); e("s_mul_i32 s8, s8, 160"); e("s_add_u32 s6, s6, s8")
    e("v_add_u32 v%d, s6, v16" % vO)
    e("s_mov_b32 s%d, %d" % (S_R16, 16 * 1152))
    px_group(e, S_G, 6)
    e("s_lshl_b32 s6, s%d, 5" % S_G); e("s_add_u32 s6, s6, s%d" % S_W); e("s_mul_i32 s6, s6, 10240"); e("s_add_u32 s10, s6, %d" % WS_PX)
    for t in range(4): e("s_add_u32 s%d, s10, %d" % (S_SO + t, t * 81920))
    z = Seq(); z("v_mov_b32 v5, 0")
    poll_check(z, "P5", 5, 6, 4, SRD_WS, "s11")
    e.ext(w7_block("F_P5", z))
    e("s_barrier")
    ST(e, 28)
    for n in range(na0): e.ext(dmaa(n))
    def pub(m):
        z = Seq(); z.waitv(*(["P%d" % k for k in range(min(NQ - 1, (19 * m + 18) // 4) + 1)] + ["Q%d" % min(NS - 1, 2 * m + 1)])); z("s_waitcnt lgkmcnt(0)"); z("s_barrier")
        return z.l
    e.ext(pub(0))
    e("s_cmp_ge_u32 s%d, 4" % S_W); e("s_cbranch_scc1 G_B")
    le, stp = resolve_waits(e.l, Pend(vm=[("vm_st", (), "APS")] * 8))
    tail = []
    for role in range(2):
        RN = "AB"[role]; nf = 5 - role; nb = 2 * nf; na = na0; nq = 2 * nq0
        e = Seq()
        if role: e.label("G_B")
        e.ext(flat(rds(0, nf)))
        later = []
        for n in range(NS):
            fill = {k: [] for k in range(nb)}
            for k, l in enumerate(later): fill[min(nb - 1, 2 + k)].append(l)
            later = []
            if n + 1 < NS:
                if n % 2 == 1:
                    m = (n + 1) // 2
                    fill[0].extend(pub(m))
                    k = nb - 3
                    while na < NS and na <= 2 * m + 7: fill[k].extend(dmaa(na).l); na += 1; k = min(nb - 1, k + 1)
                    while nq < NQ and nq <= (19 * m + 72) // 4:
                        if role: later.append(dmaw(nq, 4).l)
                        nq += 1
                for k, l in enumerate(rds(n + 1, nf)): fill[k] = (fill[k] + l) if (k == 0 and n % 2 == 1) else (l + fill[k])
            fill = {k: [y_ for x_ in v_ for y_ in (x_ if isinstance(x_, list) else [x_])] for k, v_ in fill.items()}
            for fi in range(nf):
                for rho in range(2):
                    acc = vr(AC + 4 * (2 * fi + rho), 4)
                    e("%s %s, %s, %s, %s" % (MF, acc, vr(WG + 20 * (n % 2) + 4 * fi, 4), vr(AG + 8 * (n % 2) + 4 * rho, 4), "0" if n == 0 else acc))
                    e.ext(fill[2 * fi + rho])
            if n % 8 == 0 and n < 32: ST(e, 29 + n // 8)
        assert na == NS and nq == NQ, (na, nq)
        ST(e, 34)
        e("s_mul_i32 s6, s%d, 81920" % S_KQ); e("s_add_u32 s6, s6, s10")
        for t in range(3): e("s_add_u32 s%d, s6, %d" % (84 + t, 4096 * t))
        for kq in range(4):
            if kq < 3: e("s_cmp_lg_u32 s%d, %d" % (S_KQ, kq)); e("s_cbranch_scc1 %s_XS%d" % (RN, kq))
            for b in range(nb):
                if b & 3 != kq: e("buffer_store_dwordx4 %s, v%d, %s, s%d offen offset:%d sc1" % (vr(AC + 4 * b, 4), vL16, sr(SRD_WS, 4), 84 + (b >> 2), (b & 3) * 1024), tag="OPT")
            if kq < 3: e("s_branch %s_XSD" % RN); e.label("%s_XS%d" % (RN, kq))
        e.label("%s_XSD" % RN)
        if PXW:
            e("v_lshrrev_b32 v4, 2, v%d" % vL16); e("v_mov_b32 v6, s%d" % S_HUGE); e("v_cmp_gt_u32 vcc, 4, v%d" % vLANE)
            e("v_cndmask_b32 v4, v6, v4, vcc"); e("v_cndmask_b32 v6, 0, 1, vcc")
            fb = Seq(); px_flag(fb, 6, 8); fb("s_and_b32 s11, s6, 0xffffff80"); fb("s_waitcnt vmcnt(0)")
            e.ext(flag_store(fb, 16, 17)); e("v_mov_b32 v5, 0"); poll_check(e, "P6%s" % RN, 5, 6, 4, SRD_WS, "s11")
        else:
            if role:
                e("v_lshrrev_b32 v4, 2, v%d" % vL16); e("v_mov_b32 v6, s%d" % S_HUGE); e("v_cmp_gt_u32 vcc, 4, v%d" % vLANE)
                e("v_cndmask_b32 v4, v6, v4, vcc"); e("v_cndmask_b32 v6, 0, 1, vcc")
            e("s_waitcnt vmcnt(0)"); e("s_barrier")
            if role:
                fb = Seq(); px_flag(fb, 6, 8); fb("s_and_b32 s11, s6, 0xffffff80")
                z = flag_store(fb, 16, 17); z("v_mov_b32 v5, 0"); poll_check(z, "P6", 5, 6, 4, SRD_WS, "s11")
                e.ext(w7_block("F_P6", z))
            e("s_barrier")
        ST(e, 33)
        lz, stx = resolve_waits(e.l, stp); tail += lz
        for kq in range(4):
            z = Seq()
            if kq < 3: z("s_cmp_lg_u32 s%d, %d" % (S_KQ, kq)); z("s_cbranch_scc1 %s_XL%d" % (RN, kq))
            own = [b for b in range(nb) if b & 3 == kq]; srcs = [t for t in range(4) if t != kq]
            for i, b in enumerate(own):
                for k, t in enumerate(srcs):
                    if b >= 4: z("s_add_u32 s6, s%d, %d" % (S_SO + t, (b >> 2) * 4096))
                    z("buffer_load_dwordx4 %s, v%d, %s, s%d offen offset:%d sc1" % (vr(24 + 12 * i + 4 * k, 4), vL16, sr(SRD_WS, 4), 6 if b >= 4 else S_SO + t, (b & 3) * 1024))
            for i, b in enumerate(own):
                a_ = AC + 4 * b
                for k in range(3):
                    for x in range(4): z("v_add_f32 v%d, v%d, v%d" % (a_ + x, a_ + x, 24 + 12 * i + 4 * k + x))
                z("v_cvt_pk_bf16_f32 v%d, v%d, v%d" % (a_, a_, a_ + 1)); z("v_cvt_pk_bf16_f32 v%d, v%d, v%d" % (a_ + 1, a_ + 2, a_ + 3))
                fi, rho = b >> 1, b & 1
                z("buffer_store_dwordx2 %s, v%d, %s, %s offen offset:%d" % (vr(a_, 2), vO, sr(SRD_OUT, 4), "s%d" % S_R16 if rho else "0", 32 * fi))
            if kq < 3 or role == 0: z("s_branch F_XLD")
            if kq < 3: z.label("%s_XL%d" % (RN, kq))
            lz, _ = resolve_waits(z.l, stx); tail += lz
    e = Seq(); e.label("F_XLD")
    if stamp: e.ext(STAMP(35)); e("s_waitcnt vmcnt(0)"); e.ext(STAMP(36)); e.ext(RSTAMP(61)); e.ext(STAMPOUT(S_W, vLANE, SRD_WS, 6, base=1 << 20))
    e.label("F_END"); e("s_endpgm")
    return fix_hazards(outl + le + tail + e.l + Seq().label("F_COLD").l + cold)
```

```python
from gen_common import *
from gen_k1 import wg_decode, fmt_job
MF = "v_mfma_f32_16x16x32_bf16"
SLOT = 16384
PHL = 9 * SLOT
KVX = PHL + 2048
K2_LDS = KVX + 4096

S_H, S_J, S_W, S_ROW0 = 3, 4, 5, 7
SRD_WS, SRD_DBG, S_HUGE, S_TMP, S_RG, S_SPIN = 44, 48, 52, 53, 54, 55
SRD_CK, SRD_W, SRD_X, SRD_WB, SRD_GATE, SRD_WO = 56, 60, 64, 68, 72, 76
S_W4K, S_ST, M1, M2 = 80, 82, 88, 90
SRD_WQ, S_MW, S_MB, S_WBG, S_XB = 92, 96, 97, 98, 99
SRD_PHI, S_KG, S_VG, S_KL, S_VL, S_KR, S_T, S_TL, S_TBM, S_L2E, S_AP, S_C, S_R = 56, 60, 61, 62, 63, 64, 65, 66, 67, 68, 69, 70, 72
S_ST2 = 86
SRD_WS2, S_WOSZ, SRD_J, S_JU = 92, 81, 84, 73
MK = [74, 76, 78, 90]
vLANE, vL16, vWo, vWR, vBR, vKA, vVA, vQ, vLs, vPS, vTM, vNINF, vM5 = 1, 2, 3, 4, 12, 13, 14, 15, 17, 19, 21, 22, 23
vG = [3, 12]
FR, DB, Q, TK, O = 24, 160, 216, 248, 128
XRS = [88, 96, 104, 112, 120]
NXR = 5
FR2 = [120, 124, 192, 196, 200, 204, 208, 212]
def qacc(cb, rho):
    n = 2 * cb + rho
    return 56 + 4 * n if n < 8 else 128 + 4 * (n - 8)
P_, S_, NEGM, E_ = 56, 72, 104, 112
import os
DRD = 12; W2 = 4; E64 = 0; NRING = 16; NODMA = 0
SC = " sc1"
XS0, XSP, XSB = eval(os.environ.get("XS", "(0, 1, 0)"))
B32 = int(os.environ.get("B32", 0))
SNT = 0x7FC17FC1
S_PXO = 13
JMODE = int(os.environ.get("JMODE", 0))
YSTEP = int(os.environ.get("YSTEP", 2))
AL8 = int(os.environ.get("AL8", 0))
ALN = int(os.environ.get("ALN", 4))
JLO, JN, JG = eval(os.environ.get("JCFG", "(1, 5, [3, 3, 3])"))
PRIO = int(os.environ.get("PRIO", 0))
PXW = int(os.environ.get("PXW", 0))
TLB = int(os.environ.get("TLB", 0))
YPOS = int(os.environ.get("YPOS", 158))
LPOS = int(os.environ.get("LPOS", 56))
LSTEP = int(os.environ.get("LSTEP", 2))
GAP = int(os.environ.get("GAP", 90))
TOUCH = int(os.environ.get("TOUCH", 1))
CODE_BYTES = 110 * 1024
S_TQ, vTQ = 55, 12
ROT = int(os.environ.get("ROT", 0))
K3BAR = int(os.environ.get("K3BAR", 4))
XQ = os.environ.get("XQ", "")
def freg(n):
    n %= NRING
    return FR + 4 * n if n < 8 else FR2[n - 8]
WS_FLG = 80 * MB
FL_KV, FL_KP, FL_AP, FL_PX = WS_FLG, WS_FLG + 4096, WS_FLG + 8192, WS_FLG + 16384
WS_PX = 96 * MB
WS_WH = WS_WP + 5 * MB
F_LDS = 163840

def red4(q, a, b, c, d, op, t0, t1, t2):
    q("v_permlane16_swap_b32 v%d, v%d" % (a, b)); q("v_permlane16_swap_b32 v%d, v%d" % (c, d))
    q("%s v%d, v%d, v%d" % (op, a, a, b)); q("%s v%d, v%d, v%d" % (op, c, c, d))
    q("v_permlane32_swap_b32 v%d, v%d" % (a, c))
    q("%s v%d, v%d, v%d" % (op, a, a, c))
    q("v_mov_b32 v%d, v%d" % (c, a))
    q("v_permlane32_swap_b32 v%d, v%d" % (a, c))
    q("v_mov_b32 v%d, v%d" % (b, a)); q("v_mov_b32 v%d, v%d" % (d, c))
    q("v_permlane16_swap_b32 v%d, v%d" % (a, b)); q("v_permlane16_swap_b32 v%d, v%d" % (c, d))

def red2(q, a, b, op, t):
    q("v_permlane16_swap_b32 v%d, v%d" % (a, b))
    q("%s v%d, v%d, v%d" % (op, a, a, b))
    q("v_mov_b32 v%d, v%d" % (t, a))
    q("v_permlane32_swap_b32 v%d, v%d" % (a, t))
    q("%s v%d, v%d, v%d" % (op, a, a, t))
    q("v_mov_b32 v%d, v%d" % (b, a))
    q("v_permlane16_swap_b32 v%d, v%d" % (a, b))

def phi_gather(q, raw, PH, va, vb):
    q("v_and_b32 v%d, 15, v%d" % (va, vLANE)); q("v_lshrrev_b32 v%d, 4, v%d" % (vb, vLANE))
    q("v_mul_u32_u24 v%d, 144, v%d" % (raw, vb)); q("v_add_u32 v%d, %d, v%d" % (raw, PHL, raw))
    q("v_mov_b32 v%d, 512" % vb)
    for (c, f) in ((0, 16), (4, 17), (8, 8), (12, 12)):
        q("v_cmp_eq_u32 vcc, %d, v%d" % (c, va)); q("v_cndmask_b32 v%d, v%d, %d, vcc" % (vb, vb, f))
    q("v_lshl_add_u32 v%d, v%d, 1, v%d" % (vb, vb, raw)); q("v_lshl_add_u32 v%d, v%d, 1, v%d" % (va, va, raw))
    for mu, a in ((0, va), (1, vb)):
        for i in range(6):
            q("ds_read_u16 v%d, v%d offset:%d" % (raw + 6 * mu + i, a, (i if i < 4 else 12 + i) * 36))
    y = Seq()
    for mu in range(2):
        for i in range(3): y("v_lshl_or_b32 v%d, v%d, 16, v%d" % (PH + 4 * mu + i, raw + 6 * mu + 2 * i + 1, raw + 6 * mu + 2 * i))
        y("v_mov_b32 v%d, 0" % (PH + 4 * mu + 3))
    return y

def softmax5(q, PK, EE, T, OUT):
    vals = [[PK + 4 * r + i for i in range(4)] + [PK + 8 + 4 * r] for r in range(2)]
    for r in range(2):
        v = vals[r]
        q("v_max3_f32 v%d, v%d, v%d, v%d" % (T + 2 * r, v[0], v[1], v[2])); q("v_max3_f32 v%d, -v%d, -v%d, -v%d" % (T + 2 * r + 1, v[0], v[1], v[2]))
        q("v_max3_f32 v%d, v%d, v%d, v%d" % (T + 2 * r, T + 2 * r, v[3], v[4])); q("v_max3_f32 v%d, v%d, -v%d, -v%d" % (T + 2 * r + 1, T + 2 * r + 1, v[3], v[4]))
    red4(q, T, T + 1, T + 2, T + 3, "v_max_f32", 0, 0, 0)
    for i in range(4): q("v_mul_f32 v%d, s%d, v%d" % (T + i, S_L2E, T + i))
    for r in range(2):
        for i in range(5):
            q("v_fma_f32 v%d, v%d, s%d, -v%d" % (EE + 10 * r + i, vals[r][i], S_L2E, T + 2 * r))
            q("v_fma_f32 v%d, -v%d, s%d, -v%d" % (EE + 10 * r + 5 + i, vals[r][i], S_L2E, T + 2 * r + 1))
    for i in range(20): q("v_exp_f32 v%d, v%d" % (EE + i, EE + i))
    for k in range(4): q("v_mul_f32 v%d, v%d, v%d" % (EE + 5 * k + 4, EE + 5 * k + 4, vM5))
    for k in range(4): q("v_add_f32 v%d, v%d, v%d" % (T + k, EE + 5 * k, EE + 5 * k + 1))
    for i in range(2, 5):
        for k in range(4): q("v_add_f32 v%d, v%d, v%d" % (T + k, T + k, EE + 5 * k + i))
    red4(q, T, T + 1, T + 2, T + 3, "v_add_f32", 0, 0, 0)
    for k in range(4): q("v_rcp_f32 v%d, v%d" % (T + k, T + k))
    for k in range(4):
        for i in range(5): q("v_mul_f32 v%d, v%d, v%d" % (EE + 5 * k + i, EE + 5 * k + i, T + k))
    for r in range(2):
        e = EE + 10 * r; o = OUT + 8 * r
        q("v_cvt_pk_bf16_f32 v%d, v%d, v%d" % (o, e, e + 1)); q("v_cvt_pk_bf16_f32 v%d, v%d, v%d" % (o + 1, e + 2, e + 3))
        q("v_cvt_pk_bf16_f32 v%d, v%d, v%d" % (o + 2, e + 5, e + 6)); q("v_cvt_pk_bf16_f32 v%d, v%d, v%d" % (o + 3, e + 7, e + 8))
        q("v_cvt_pk_bf16_f32 v%d, v%d, v%d" % (o + 4, e + 4, e + 9)); q("v_mov_b32 v%d, 0" % (o + 5))

W32 = False
MF32 = "v_mfma_f32_32x32x16_bf16"
E32 = 4
def red1(q, a, op, t):
    q("v_mov_b32 v%d, v%d" % (t, a)); q("v_permlane32_swap_b32 v%d, v%d" % (a, t)); q("%s v%d, v%d, v%d" % (op, a, a, t))

def sreg(buf, e):
    if W32: return S_ + 16 * buf + 4 * [0, 2, 1, 3][e >> 2] + (e & 3)
    qb, kb, r = e >> 3, (e >> 2) & 1, e & 3
    return S_ + 16 * buf + 8 * kb + 4 * qb + r

def mask_ops(buf, u):
    z = Seq()
    for e0 in range(0, 16, 4):
        for e in range(e0, e0 + 4):
            qb, kb, r = e >> 3, (e >> 2) & 1, e & 3
            key, th = (32 * u + 8 * [0, 2, 1, 3][e >> 2] + r, vQ) if W32 else (32 * u + 16 * kb + r, vQ + qb)
            z("v_cmp_gt_i32 s[%d:%d], %d, v%d" % (MK[e & 3], MK[e & 3] + 1, key, th))
        for e in range(e0, e0 + 4):
            z("v_cndmask_b32 v%d, v%d, v%d, s[%d:%d]" % (sreg(buf, e), sreg(buf, e), vNINF, MK[e & 3], MK[e & 3] + 1))
    return z

def sm_parts(buf):
    ex = []; post = []
    er = (lambda e: E32 + (e & 3)) if W32 else (lambda e: E_ + (e & 7))
    for e in range(16):
        ps = vPS if W32 else vPS + (e >> 3); k = e if W32 else e & 7
        ex.append(I("v_exp_f32 v%d, v%d" % (er(e), sreg(buf, e))))
        z = Seq()
        if k == 1: z("v_add_f32 v%d, v%d, v%d" % (ps, er(e - 1), er(e)))
        elif k > 1: z("v_add_f32 v%d, v%d, v%d" % (ps, ps, er(e)))
        if e & 1: z("v_cvt_pk_bf16_f32 v%d, v%d, v%d" % (P_ + 8 * buf + (e >> 1), er(e - 1), er(e)))
        post.append(z.l[::-1] if AL8 else z.l)
    return ex, post

def row_max(z, X, floor0):
    groups = [(E32, range(16))] if W32 else [(E_, range(8)), (E_ + 1, range(8, 16))]
    for d, es in groups:
        r = [sreg(X, e) for e in es] + (["0"] if floor0 else [])
        f = lambda x: x if x == "0" else "v%d" % x
        z("v_max3_f32 v%d, %s, %s, %s" % (d, f(r[0]), f(r[1]), f(r[2]))); r = r[3:]
        while len(r) >= 2: z("v_max3_f32 v%d, v%d, %s, %s" % (d, d, f(r[0]), f(r[1]))); r = r[2:]
        if r: z("v_max_f32 v%d, %s, v%d" % (d, f(r[0]), d))
    if W32: return [(E32, range(16), range(O, O + 64), range(NEGM, NEGM + 16), vLs)]
    return [(E_ + qb, range(8 * qb, 8 * qb + 8), [O + 8 * db + 4 * qb + i for db in range(8) for i in range(4)], range(NEGM + 4 * qb, NEGM + 4 * qb + 4), vLs + qb) for qb in range(2)]
def row_red(z, op):
    if W32: red1(z, E32, op, E32 + 1)
    else: red2(z, E_, E_ + 1, op, E_ + 2)

def rare_block(name, X, Y):
    z = Seq(); z.label(name); z("s_nop 12")
    G = row_max(z, X, True); row_red(z, "v_max_f32")
    for k, (d, es, os_, ng, l_) in enumerate(G):
        f = d + (2 if W32 else 4)
        z("v_exp_f32 v%d, -v%d" % (f, d))
        for e in es:
            z("v_sub_f32 v%d, v%d, v%d" % (sreg(X, e), sreg(X, e), d)); z("v_sub_f32 v%d, v%d, v%d" % (sreg(Y, e), sreg(Y, e), d))
        for r in ng: z("v_sub_f32 v%d, v%d, v%d" % (r, r, d))
        z("v_mul_f32 v%d, v%d, v%d" % (l_, l_, f))
        for r in os_: z("v_mul_f32 v%d, v%d, v%d" % (r, r, f))
    ex, post = sm_parts(X)
    for e in range(16):
        z.ext([ex[e]]); z("s_nop 0"); z.ext(post[e])
    z("s_nop 1")
    z("s_branch %s_R" % name)
    return z

def rd_frag(kind, idx, ring):
    base = vKA if kind == "K" else vVA
    off = 1024 * idx
    if W32: off = (idx >> 3) * 8192 + ((idx & 7) >> 1) * (1024 if kind == "K" else 2048) + (idx & 1) * 512
    return I("ds_read_b128 %s, v%d offset:%d" % (vr(freg(ring), 4), base, off))

def qk_mfmas(k, buf, ring, first_c):
    if W32:
        d = vr(S_ + 16 * buf, 16)
        return [I("%s %s, %s, %s, %s" % (MF32, d, vr(freg(ring), 4), vr(Q + 16 * (k & 1) + 4 * (k >> 1), 4), d if k else first_c(0)))]
    kb, js = k >> 2, k & 3
    out = []
    for qb in range(2):
        d = vr(S_ + 16 * buf + 8 * kb + 4 * qb, 4)
        c = d if js else first_c(qb)
        out.append(I("%s %s, %s, %s, %s" % (MF, d, vr(freg(ring), 4), vr(Q + 16 * qb + 4 * js, 4), c)))
    return out
def pv_mfmas(db, buf, ring):
    if W32:
        o = vr(O + 16 * (db >> 1), 16)
        return [I("%s %s, %s, %s, %s" % (MF32, o, vr(freg(ring), 4), vr(P_ + 8 * buf + 4 * (db & 1), 4), o))]
    return [I("%s %s, %s, %s, %s" % (MF, vr(O + 8 * db + 4 * qb, 4), vr(freg(ring), 4), vr(P_ + 8 * buf + 4 * qb, 4), vr(O + 8 * db + 4 * qb, 4))) for qb in range(2)]
NEGC = lambda qb: vr(NEGM, 16) if W32 else vr(NEGM + 4 * qb, 4)

def pkg(tag=None):
    z = Seq()
    for (sl, sg, hi) in ((S_VL, S_VG, 1), (S_KL, S_KG, 0)):
        z("s_mov_b32 m0, s%d" % sl)
        z("s_add_u32 s%d, s%d, %d" % (sl, sl, SLOT))
        for e in range(4):
            if not NODMA: z("buffer_load_dwordx4 v%d, %s, s%d offen offset:%d%s lds" % (vL16, sr(SRD_WS, 4), sg, 1024 * e, SC), tag=tag)
        z("s_add_u32 s%d, s%d, %d" % (sg, sg, SLOT))
        z("s_and_b32 s%d, s%d, 0xffff" % (sl, sl))
        if hi: z("s_or_b32 s%d, s%d, 0x10000" % (sl, sl))
    return z

DIAG = int(os.environ.get('DIAG', 0))
def tick(z, acc):
    z("s_memtime s[100:101]"); z("s_waitcnt lgkmcnt(0)")
    if acc is not None: z("s_sub_u32 s101, s100, s99"); z("s_add_u32 s%d, s%d, s101" % (acc, acc))
    z("s_mov_b32 s99, s100")
def sync_block(role, uid, cond=False, xtra=0, strict=None, always=False, prev=0):
    z = Seq()
    if DIAG: tick(z, None)
    if role == 0:
        z("s_sub_u32 s%d, s%d, s%d" % (S_R, S_TBM, S_T))
        if not always:
            z("s_cmp_ge_u32 s%d, 2" % S_R); z("s_cbranch_scc1 W12_%s" % uid)
            z("s_waitcnt vmcnt(4)")
        z.label("W12_%s" % uid)
        if strict is None:
            z("s_cmp_eq_u32 s%d, 4" % S_T); z("s_cbranch_scc1 W22_%s" % uid)
        z("s_waitcnt vmcnt(%d)" % (12 + xtra if strict is None else strict))
        if strict is None: z.label("W22_%s" % uid); z("s_waitcnt vmcnt(%d)" % (22 + xtra))
        if DIAG: tick(z, 96)
        z("s_barrier")
        if DIAG: tick(z, 98)
        if not always: z("s_cmp_lt_u32 s%d, 3" % S_R); z("s_cbranch_scc1 NP_%s" % uid)
        z("s_and_b32 s8, s%d, 3" % S_T); z("s_cmp_eq_u32 s8, 2"); z("s_cbranch_scc1 CQ_%s" % uid)
        z("s_cmp_lg_u32 s8, 1"); z("s_cbranch_scc1 NQ_%s" % uid)
        poll_issue(z, 9, 8, SRD_WS, "s15", tag="OPT")
        z("s_lshl_b32 s8, s%d, 8" % S_T); z("s_or_b32 s8, s8, s%d" % S_W)
        z("s_cmp_lg_u32 s8, %d" % (9 * 256)); z("s_cbranch_scc1 N9_%s" % uid)
        z("s_and_b32 s8, s2, 7"); z("s_lshl_b32 s8, s8, 2"); z("s_add_u32 s8, s8, 224"); z("v_mov_b32 v%d, 0x10000" % vTM); z("s_mov_b64 exec, 1")
        z("buffer_atomic_add v%d, off, %s, s8" % (vTM, sr(SRD_DBG, 4)), tag="OPT"); z("s_mov_b64 exec, -1"); z("s_branch NQ_%s" % uid)
        z.label("N9_%s" % uid)
        if not always:
            z("s_cmp_lg_u32 s8, 256"); z("s_cbranch_scc1 NQ_%s" % uid)
            fb = Seq(); fb("s_lshl_b32 s8, s%d, 2" % S_J); fb("s_add_u32 s8, s8, s15"); fb("s_add_u32 s8, s8, %d" % (FL_KP - FL_KV))
            z.ext(flag_store(fb, vTM, 0, so=8))
        z("s_branch NQ_%s" % uid)
        z.label("CQ_%s" % uid)
        z("s_add_u32 s8, s%d, 6" % S_T); z("s_lshr_b32 s8, s8, 2"); z("s_sub_u32 s8, 7, s8")
        z("v_cmp_eq_u32 vcc, s8, v%d" % vLANE); z("v_cndmask_b32 v7, 0, 1, vcc")
        z("s_waitcnt vmcnt(%d)" % (8 + prev))
        poll_check(z, "PQ_%s" % uid, 9, 7, 8, SRD_WS, "s15")
        z.label("NQ_%s" % uid)
        z.ext(pkg())
        z("s_sub_u32 s8, s%d, 2" % S_T); z("s_cmp_ge_u32 s8, 2"); z("s_cbranch_scc1 NP_%s" % uid)
        for i in range(4): z("v_mov_b32 v%d, 0x%x" % (FR + i, SNT))
        z("s_mul_i32 s8, s8, 20480"); z("s_add_u32 s8, s8, s%d" % S_PXO); z("s_add_u32 s9, s8, 4096")
        for i in range(5): z("buffer_store_dwordx4 %s, v%d, %s, s%d offen offset:%d sc1" % (vr(FR, 4), vL16, sr(SRD_WS, 4), 8 + i // 4, (i & 3) * 1024), tag="OPT")
        z.label("NP_%s" % uid)
    else:
        if cond:
            z("s_cmp_eq_u32 s%d, s%d" % (S_T, S_TBM)); z("s_cbranch_scc1 NB_%s" % uid)
        z("s_waitcnt vmcnt(0)")
        z("s_barrier")
        if cond: z.label("NB_%s" % uid)
        if DIAG: tick(z, 98)
    return z

def adv(vreg):
    z = Seq()
    z("v_add_u32 v%d, 0x4000, v%d" % (vreg, vreg))
    if vreg == vKA: z("v_and_b32 v%d, 0xffff, v%d" % (vreg, vreg))
    else: z("v_and_or_b32 v%d, v%d, s%d, v%d" % (vreg, vreg, S_KR, vC64))
    return z

def check(name):
    z = Seq()
    if not W32: z("v_max_f32 v%d, v%d, v%d" % (vTM, vPS, vPS + 1))
    z("v_cmp_nle_f32 vcc, v%d, v%d" % (vPS if W32 else vTM, vTHR()))
    z("s_cbranch_vccnz %s" % name)
    z.label(name + "_R")
    return z
def ladd(qb): return I("v_add_f32 v%d, v%d, v%d" % (vLs + qb, vLs + qb, vPS + qb))
def ladds(): return [ladd(0)] if W32 else [ladd(0), ladd(1)]
vC64 = 10
def vTHR(): return 11

def place_sm(slots, lo, hi, buf, mask_u, chk, carry=True):
    ex, post = sm_parts(buf)
    n = hi - lo
    pre = mask_ops(buf, mask_u).l if mask_u is not None else []
    groups = [pre[8 * g:8 * g + 8] for g in range(4)]
    if carry:
        slots[lo]["post"].append(ladd(0))
        if not W32: slots[lo + (8 if n == 16 else 0)]["post"].append(ladd(1))
    for e in range(16):
        s = lo + (e * n) // 16
        if pre and e % 4 == 0: slots[s]["mid"].extend(groups[e // 4])
        slots[s]["mid"].append(ex[e])
        if W32 and n == 16: slots[s + 1]["post"].extend(post[e]) if s + 1 < hi else slots[s]["end"].extend(post[e])
        else: slots[s]["post"].extend(post[e])
    if chk: slots[hi - 1]["end"].extend(check(chk).l)

def emit_slots(slots, w2=False):
    out = []
    for n, s in enumerate(slots):
        out += s["pre"]
        if w2 and W2 and n % W2 == 0:
            w = I("v_nop"); w.kind = "touch"; w.rd = list(slots[n + W2 - 1]["m"][0].srcA); w.text = ""
            out.append(w)
        if len(s["m"]) == 1: out += s["m"] + s["rd"] + s["mid"] + s["post"] + s["end"]
        else: out += [s["m"][0]] + s["mid"] + [s["m"][1]] + s["rd"] + s["post"] + s["end"]
    return out
def mkslot(m): return {"pre": [], "m": m, "mid": [], "rd": [], "post": [], "end": []}

def iteration(role, var, rares):
    uid = "%s%s" % ("AB"[role], var)
    slots = []; plan = []
    if var != "S2":
        for k in range(8): slots.append(mkslot(qk_mfmas(k, 0, len(slots), NEGC))); plan.append(("K", k))
    for db in range(8): slots.append(mkslot(pv_mfmas(db, 0, len(slots)))); plan.append(("V", db))
    a_hi = len(slots)
    if var != "S2":
        for k in range(8): slots.append(mkslot(qk_mfmas(k, 1, len(slots), NEGC))); plan.append(("K", 8 + k))
    for db in range(8): slots.append(mkslot(pv_mfmas(db, 1, len(slots)))); plan.append(("V", 8 + db))
    N = len(slots)
    nxt = {"S": "K", "S1": "V", "S2": None}[var]
    assert DRD > 8
    for n in range(N):
        g = n + DRD
        if g < N: slots[n]["rd"].append(rd_frag(plan[g][0], plan[g][1], g))
        elif nxt:
            if g == N:
                slots[n]["rd"].extend(sync_block(role, uid).l)
            if nxt == "K" and g - N >= 8: slots[n]["rd"].append(rd_frag("V", g - N - 8, g))
            else: slots[n]["rd"].append(rd_frag(nxt, g - N, g))
    if nxt == "K":
        slots[N - DRD - 2]["post"].extend(adv(vKA).l)
        slots[N - DRD + 2]["post"].extend(adv(vVA).l)
    elif nxt == "V": slots[N - DRD - 1]["end"].extend(adv(vVA).l)
    if var == "S2": slots[9]["rd"].extend(sync_block(role, uid, cond=True).l)
    place_sm(slots, 0, a_hi, 1, 1 if var == "S2" else None, "R%sa" % uid); rares.append(rare_block("R%sa" % uid, 1, 0))
    if var != "S2":
        place_sm(slots, a_hi, N, 0, 0 if var == "S1" else None, "R%sb" % uid); rares.append(rare_block("R%sb" % uid, 0, 1))
    else:
        slots[a_hi]["post"].extend(ladds())
    if var == "S":
        slots[N - 3]["post"].extend(Seq()("s_add_u32 s%d, s%d, 1" % (S_T, S_T))("s_add_u32 s6, s%d, 1" % S_T).l)
    out = emit_slots(slots, True)
    return out

def poll_issue(z, vp, voff, srd, soff, tag="POLL"):
    z("buffer_load_dword v%d, v%d, %s, %s offen sc1" % (vp, voff, sr(srd, 4), soff), tag=tag)
def poll_check(z, name, vp, vneed, voff, srd, soff):
    z("v_cmp_lt_u32 vcc, v%d, v%d" % (vp, vneed))
    z("s_cbranch_vccz %s_OK" % name)
    z("s_mov_b32 s%d, 0x40000" % S_SPIN)
    z.label("%s_SP" % name)
    z("s_sleep 2")
    z("buffer_load_dword v%d, v%d, %s, %s offen sc1" % (vp, voff, sr(srd, 4), soff), tag="OPT")
    z("s_waitcnt vmcnt(0)", tag="OPT")
    z("v_cmp_lt_u32 vcc, v%d, v%d" % (vp, vneed))
    z("s_cbranch_vccz %s_OK" % name)
    z("s_sub_u32 s%d, s%d, 1" % (S_SPIN, S_SPIN))
    z("s_cmp_lg_u32 s%d, 0" % S_SPIN)
    z("s_cbranch_scc1 %s_SP" % name)
    z.label("%s_OK" % name)
def w7_block(name, body):
    z = Seq(); z("s_cmp_lg_u32 s%d, 7" % S_W); z("s_cbranch_scc1 %s" % name); z.ext(body); z.label(name)
    return z
def flag_store(base_expr, va, vb, so=6):
    z = Seq(); z.ext(base_expr)
    z("v_mov_b32 v%d, 1" % va); z("s_mov_b64 exec, 1")
    z("buffer_store_dword v%d, off, %s, s%d sc1" % (va, sr(SRD_WS, 4), so), tag="OPT")
    z("s_mov_b64 exec, -1")
    return z
def px_group(z, d, t):
    z("s_lshl_b32 s%d, s%d, 3" % (d, S_J)); z("s_and_b32 s%d, s%d, 4" % (t, S_H)); z("s_add_u32 s%d, s%d, s%d" % (d, d, t))
    z("s_lshr_b32 s%d, s%d, 3" % (t, S_H)); z("s_add_u32 s%d, s%d, s%d" % (d, d, t))
def px_flag(z, d, t):
    px_group(z, d, t); z("s_lshl_b32 s%d, s%d, 3" % (d, d)); z("s_add_u32 s%d, s%d, s%d" % (d, d, S_W)); z("s_lshl_b32 s%d, s%d, 7" % (d, d)); z("s_and_b32 s%d, s%d, 3" % (t, S_H)); z("s_lshl_b32 s%d, s%d, 2" % (t, t))
    z("s_add_u32 s%d, s%d, s%d" % (d, d, t)); z("s_add_u32 s%d, s%d, %d" % (d, d, FL_PX))
flat = lambda g: [x for l in g for x in l]
def cp(s):
    out = []
    for x in (s.l if isinstance(s, Seq) else s):
        if isinstance(x, list): out.append(cp(x))
        elif x.kind == "waitv": out.append(x)
        else:
            n_ = I(x.text, tag=x.tag); n_.nowaw = x.nowaw; out.append(n_)
    return out

def gen_f(stamp=False):
    ST = (lambda z, i: z.ext(STAMP(i))) if stamp else (lambda z, i: None)
    q = Seq()
    vAo0, vAo1, vAR, JT, WF, NWF, AF, RW, CH, GT, ACC, WB = 13, 14, 15, 20, 32, 6, 56, 88, 104, 112, 128, 98304
    vWB, vGD, vGA, vBB = 19, 20, 21, [12, 16, 17, 18]
    q("s_cmp_ge_u32 s2, 256"); q("s_cbranch_scc1 F_END")
    load_args(q)
    wg_decode(q, S_H, S_J)
    q("v_lshrrev_b32 v20, 6, v0"); q("v_and_b32 v%d, 63, v0" % vLANE)
    q("v_readfirstlane_b32 s%d, v20" % S_W)
    q("s_and_b32 s%d, s%d, 3" % (S_RG, S_W))
    q("v_lshrrev_b32 v20, 3, v%d" % vLANE)
    q("s_xor_b32 s6, s%d, 7" % S_J); q("s_lshl_b32 s6, s6, 8"); q("s_lshl_b32 s8, s%d, 5" % S_W); q("s_add_u32 s6, s6, s8")
    q("v_add_u32 v20, s6, v20")
    q("v_lshrrev_b32 v21, 4, v%d" % vLANE); q("v_and_b32 v22, 7, v%d" % vLANE); q("v_xor_b32 v22, v21, v22")
    q("v_lshlrev_b32 v22, 4, v22"); q("v_lshl_add_u32 v%d, v20, 10, v22" % vAo0); q("v_xor_b32 v%d, 64, v%d" % (vAo1, vAo0))
    q("s_lshl_b32 s6, s%d, 3" % S_RG); q("v_add_u32 v20, s6, v21")
    q("s_and_b32 s6, s%d, 1" % S_RG); q("s_lshl_b32 s6, s6, 2"); q("v_add_u32 v22, s6, v21")
    q("v_lshlrev_b32 v22, 1, v22"); q("v_and_b32 v23, 15, v%d" % vLANE); q("v_xor_b32 v22, v22, v23")
    q("v_lshlrev_b32 v22, 4, v22"); q("v_lshl_add_u32 v%d, v20, 13, v22" % vWo)
    q("s_lshl_b32 s6, s%d, 8" % S_H); q("v_add_u32 v%d, s6, v%d" % (vWo, vWo))
    q("s_lshl_b32 s%d, s%d, 12" % (S_W4K, S_W)); q("s_lshl_b32 s%d, s%d, 11" % (S_MW, S_W))
    mk_srd(q, SRD_CK, P_CKV, 2048 * 1024)
    q("s_cmp_lt_u32 s%d, 4" % S_W)
    q("s_cselect_b32 s%d, s%d, s%d" % (SRD_W, P_UK, P_UV)); q("s_cselect_b32 s%d, s%d, s%d" % (SRD_W + 1, P_UK + 1, P_UV + 1))
    q("s_mov_b32 s%d, %d" % (SRD_W + 2, 512 * 8192)); q("s_mov_b32 s%d, 0x00020000" % (SRD_W + 3))
    if stamp: q.ext(STAMP(0)); q.ext(RSTAMP(60))
    def dma_a(I_, sec=0):
        g = []
        for e in range(4):
            z = Seq()
            if e == 0: z("s_add_u32 m0, s%d, %d" % (S_W4K, (I_ % 3) * 32768 + sec * 16384))
            z("s_mov_b32 s%d, %d" % (S_TMP, I_ * 128 + e * (8192 - 1024) + sec * 131072))
            z("buffer_load_dwordx4 v%d, %s, s%d offen offset:%d lds" % ([vAo0, vAo1][e & 1], sr(SRD_CK, 4), S_TMP, e * 1024), tag="A%d" % I_)
            g.append(z.l)
        return g
    def dma_w(i, sec=0):
        g = []
        for e in range(2):
            z = Seq()
            if e == 0: z("s_add_u32 m0, s%d, %d" % (S_MW, WB + (i % 4) * 16384 + sec * 8192))
            z("s_mov_b32 s%d, %d" % (S_TMP, i * 32 * 8192 + e * (4 * 8192 - 1024)))
            z("buffer_load_dwordx4 v%d, %s, s%d offen offset:%d lds" % (vWo, sr(SRD_X if sec else SRD_W, 4), S_TMP, e * 1024), tag="U%d" % i)
            g.append(z.l)
        return g
    q.ext(flat(dma_w(0))); q.ext(flat(dma_a(0))); q.ext(flat(dma_w(1)))
    q("s_barrier")
    q.ext(flat(dma_a(1))); q.ext(flat(dma_w(2))); q.ext(flat(dma_w(3))); q.ext(flat(dma_a(2)))
    if TOUCH:
        q("s_lshr_b32 s8, s2, 3"); q("s_lshl_b32 s9, s8, 3"); q("s_add_u32 s9, s9, s%d" % S_W)
        q("s_getpc_b64 s[12:13]"); q.label("F_PC"); q("s_mov_b32 s14, F_COLD-F_PC"); q("s_mov_b32 s15, 0x00020000")
        q("v_lshlrev_b32 v24, 7, v%d" % vLANE); q("s_lshl_b32 s10, s9, 13")
        q("s_cmp_ge_u32 s10, s14"); q("s_cbranch_scc1 F_NCT")
        q("buffer_load_dword v31, v24, s[12:15], s10 offen", tag="OPT")
        q.label("F_NCT")
    mk_srd(q, SRD_X, P_X, 2048 * 1152); mk_srd(q, SRD_WB, P_WQKV, 576 * 3456); mk_srd(q, SRD_GATE, P_GATE, 1152)
    mk_srd(q, SRD_WS, P_WS, WS_SIZE); mk_srd(q, SRD_DBG, P_DBG, 256); mk_srd(q, SRD_WQ, P_WQ, 576 * 8192)
    q("s_mov_b32 s%d, 0x%x" % (S_HUGE, HUGE))
    q("v_lshlrev_b32 v%d, 4, v%d" % (vL16, vLANE))
    q("s_lshl_b32 s6, s%d, 7" % S_H); q("s_lshl_b32 s8, s%d, 2" % S_J); q("s_add_u32 s6, s6, s8"); q("s_add_u32 s6, s6, %d" % FL_KV)
    q("s_lshl_b32 s8, s%d, 7" % S_J); q("s_lshl_b32 s9, s%d, 2" % S_H); q("s_add_u32 s8, s8, s9"); q("s_add_u32 s8, s8, %d" % FL_AP)
    q("v_lshlrev_b32 v20, 12, v%d" % vLANE); q("v_add_u32 v20, s6, v20"); q("v_mov_b32 v22, s8")
    q("v_cmp_eq_u32 vcc, 2, v%d" % vLANE); q("v_cndmask_b32 v20, v20, v22, vcc")
    q("v_mov_b32 v22, s%d" % S_HUGE); q("v_cmp_gt_u32 vcc, %d, v0" % (7 * 64)); q("v_cndmask_b32 v20, v20, v22, vcc")
    q("v_cmp_lt_u32 vcc, 3, v%d" % vLANE); q("v_cndmask_b32 v20, v20, v22, vcc")
    px_flag(q, 8, 9); q("v_mov_b32 v22, s8"); q("v_cmp_eq_u32 vcc, 3, v%d" % vLANE); q("v_cndmask_b32 v20, v20, v22, vcc")
    q("v_mov_b32 v22, 0")
    q("buffer_store_dword v22, v20, %s, 0 offen sc1" % sr(SRD_WS, 4), tag="J13")
    q("v_and_b32 v20, 15, v%d" % vLANE); q("v_lshrrev_b32 v22, 1, v20"); q("v_xor_b32 v22, v22, v21")
    q("s_lshl_b32 s6, s%d, 6" % S_RG); q("v_add_u32 v20, s6, v20"); q("v_lshlrev_b32 v20, 7, v20")
    q("v_lshl_add_u32 v%d, v22, 4, v20" % vAR); q("v_xor_b32 v%d, 64, v%d" % (vAR + 1, vAR))
    q("v_add_u32 v%d, 0x10000, v%d" % (vAR + 2, vAR)); q("v_add_u32 v%d, 0x10000, v%d" % (vAR + 3, vAR + 1))
    q("v_bfe_u32 v20, v%d, 2, 2" % vLANE); q("v_lshl_add_u32 v22, v21, 3, v20"); q("v_lshlrev_b32 v22, 8, v22")
    q("v_and_b32 v23, 1, v21"); q("v_lshl_add_u32 v20, v23, 2, v20"); q("v_lshl_add_u32 v22, v20, 5, v22")
    q("v_and_b32 v20, 3, v%d" % vLANE); q("v_lshl_add_u32 v22, v20, 3, v22")
    q("s_lshr_b32 s6, s%d, 2" % S_W); q("s_lshl_b32 s6, s6, 13"); q("s_add_u32 s6, s6, %d" % WB)
    q("v_add_u32 v%d, s6, v22" % vWR)
    for cb in range(1, 8): q("v_xor_b32 v%d, %d, v%d" % (vWR + cb, 32 * cb, vWR))
    q("s_lshr_b32 s6, s%d, 2" % S_W); q("s_lshl_b32 s6, s6, 24"); q("s_lshl_b32 s8, s%d, 19" % S_H); q("s_add_u32 s6, s6, s8")
    q("s_xor_b32 s8, s%d, 7" % S_J); q("s_lshl_b32 s8, s8, 2"); q("s_add_u32 s8, s8, s%d" % S_RG); q("s_lshl_b32 s8, s8, 14"); q("s_add_u32 s%d, s6, s8" % S_ST)
    for i in range(1, 4): q("s_add_u32 s%d, s%d, %d" % (S_ST + i, S_ST, 4096 * i))
    q("s_sub_u32 s6, 15, s%d" % S_J); q("s_cmp_lt_u32 s%d, 4" % S_W); q("s_cselect_b32 s6, s%d, s6" % S_J)
    q("s_lshl_b32 s6, s6, 7"); q("s_lshl_b32 s8, s%d, 5" % S_RG); q("s_add_u32 s%d, s6, s8" % S_ROW0)
    q("s_lshl_b32 s%d, s%d, 10" % (S_MB, S_W))
    q("s_mul_i32 s6, s%d, %d" % (S_H, 576 * 128)); q("s_add_u32 s6, s6, s%d" % S_MB); q("s_add_u32 s%d, s6, %d" % (S_WBG, WS_WBF))
    q("s_lshr_b32 s6, s%d, 4" % S_ROW0); q("s_mul_i32 s6, s6, %d" % (18 * 1024)); q("s_add_u32 s%d, s6, %d" % (S_XB, WS_XF))

    def j1(k):
        z = Seq(); a, b = JT, JT + 1; d = 112 + 4 * k; tg = "OPT" if k == 2 else None
        z("s_lshr_b32 s8, s2, 1"); z("s_and_b32 s9, s2, 1"); z("s_mul_i32 s9, s9, 9")
        z("s_add_u32 s9, s9, %s" % ("s%d" % S_RG if k < 2 else "8"))
        if k == 1: z("s_add_u32 s9, s9, 4")
        z("v_lshrrev_b32 v%d, 2, v%d" % (a, vLANE)); z("s_lshl_b32 s10, s8, 4"); z("v_add_u32 v%d, s10, v%d" % (a, a))
        z("v_mul_u32_u24 v%d, 1152, v%d" % (a, a)); z("v_and_b32 v%d, 3, v%d" % (b, vLANE)); z("v_lshl_add_u32 v%d, v%d, 4, v%d" % (a, b, a))
        if k == 0: z("v_and_b32 v127, 15, v%d" % vLANE); z("v_lshlrev_b32 v127, 4, v127"); z("v_lshrrev_b32 v%d, 4, v%d" % (b, vLANE)); z("v_lshl_add_u32 v127, v%d, 2, v127" % b)
        z("s_lshl_b32 s10, s9, 6"); z("v_add_u32 v%d, s10, v%d" % (d, a))
        z("s_mul_i32 s8, s8, 18"); z("s_add_u32 s8, s8, s9"); z("s_lshl_b32 s8, s8, 10"); z("s_add_u32 s%d, s8, %d" % (86 + k, WS_XF))
        ld = Seq()("buffer_load_dwordx4 %s, v%d, %s, 0 offen" % (vr(d, 4), d, sr(SRD_X, 4)), tag=tg)
        y = Seq()
        for i in range(4): y("ds_bpermute_b32 v%d, v127, v%d" % (d + i, d + i), tag=tg)
        if k == 2: y("s_waitcnt lgkmcnt(0)", tag="OPT")
        y("buffer_store_dwordx4 %s, v%d, %s, s%d offen sc1" % (vr(d, 4), vL16, sr(SRD_WS, 4), 86 + k), tag=tg or "J13")
        return z, y, ld
    def j2(i, d, t0, dst):
        z = Seq(); t1, t2, t3 = t0 + 1, t0 + 2, t0 + 3
        z("s_add_u32 s8, s%d, %d" % (S_JU, i))
        z("s_mul_i32 s9, s8, 12769"); z("s_lshr_b32 s9, s9, 24")
        z("s_mul_i32 s10, s9, 1314"); z("s_sub_u32 s8, s8, s10")
        z("s_mul_i32 s10, s8, 7282"); z("s_lshr_b32 s10, s10, 16")
        z("s_mul_i32 s11, s10, 9"); z("s_sub_u32 s8, s8, s11"); z("s_lshl_b32 s8, s8, 6")
        z("v_add_u32 v%d, s8, v%d" % (t0, vLANE))
        z("v_mul_u32_u24 v%d, 3641, v%d" % (t1, t0)); z("v_lshrrev_b32 v%d, 16, v%d" % (t1, t1))
        z("v_mul_u32_u24 v%d, 18, v%d" % (t2, t1)); z("v_sub_u32 v%d, v%d, v%d" % (t2, t0, t2))
        z("v_lshrrev_b32 v%d, 3, v%d" % (t3, t1)); z("v_lshl_add_u32 v%d, v%d, 3, v%d" % (t0, t3, t0))
        z("v_and_b32 v%d, 3, v%d" % (d, t1)); z("v_lshl_add_u32 v%d, v%d, 2, v%d" % (t3, t3, d))
        z("v_bfe_u32 v%d, v%d, 2, 1" % (d, t1)); z("v_lshl_add_u32 v%d, v%d, 4, v%d" % (t3, d, t3))
        z("s_lshl_b32 s8, s10, 5")
        for k in range(3): z("s_mov_b32 s%d, s%d" % (SRD_J + k, [P_WO, P_WO + 1, S_WOSZ][k]))
        z("s_cmp_lt_u32 s10, 128"); z("s_cbranch_scc1 J2_%d" % i)
        z("s_mov_b32 s%d, s%d" % (SRD_J, P_WO2)); z("s_mov_b32 s%d, s%d" % (SRD_J + 1, P_WO2 + 1)); z("s_mov_b32 s%d, %d" % (SRD_J + 2, 576 * 1152))
        z("v_lshrrev_b32 v%d, 4, v%d" % (t3, t1)); z("v_lshl_add_u32 v%d, v%d, 1, v%d" % (t3, t3, t1))
        z("s_mul_i32 s8, s10, 36"); z("s_sub_u32 s8, s8, %d" % (36 * 128))
        z("s_cmp_lt_u32 s10, 144"); z("s_cbranch_scc1 J2_%d" % i)
        z("v_lshrrev_b32 v%d, 1, v%d" % (t3, t1)); z("v_mul_u32_u24 v%d, 18, v%d" % (t3, t3)); z("v_and_b32 v%d, 1, v%d" % (t1, t1)); z("v_add_u32 v%d, v%d, v%d" % (t3, t3, t1))
        z("s_mul_i32 s8, s10, 288"); z("s_sub_u32 s8, s8, %d" % (288 * 144 - 16))
        z.label("J2_%d" % i)
        z("v_add_u32 v%d, s8, v%d" % (t3, t3)); z("v_mul_u32_u24 v%d, 1152, v%d" % (t3, t3)); z("v_lshl_add_u32 v%d, v%d, 4, v%d" % (t3, t2, t3))
        z("s_mul_i32 s8, s9, 288")
        z("buffer_load_dwordx4 %s, v%d, %s, s8 offen" % (vr(d, 4), t3, sr(SRD_J, 4)))
        z("s_lshr_b32 s8, s10, 5"); z("s_mul_i32 s8, s8, 37")
        z("s_lshl_b32 s11, s9, %d" % (3 if ROT else 8)); z("s_sub_u32 s11, s10, s11"); z("s_and_b32 s11, s11, 31"); z("s_add_u32 s8, s8, s11")
        z("s_sub_u32 s11, s10, 128"); z("s_lshr_b32 s6, s11, 2"); z("s_mul_i32 s6, s6, 37"); z("s_and_b32 s11, s11, 3"); z("s_add_u32 s6, s6, s11"); z("s_add_u32 s6, s6, 32")
        z("s_cmp_ge_u32 s10, 128"); z("s_cselect_b32 s8, s6, s8")
        z("s_mul_i32 s6, s10, 74"); z("s_sub_u32 s6, s6, %d" % (74 * 144 - 36))
        z("s_cmp_ge_u32 s10, 144"); z("s_cselect_b32 s8, s6, s8")
        z("s_mul_i32 s9, s9, 148"); z("s_add_u32 s9, s9, s8")
        z("s_mul_i32 s9, s9, 9728"); z("s_add_u32 s9, s9, %d" % WS_WP)
        z("v_lshlrev_b32 v%d, 4, v%d" % (t0, t0)); z("v_add_u32 v%d, s9, v%d" % (dst, t0))
        y = Seq()
        y("buffer_store_dwordx4 %s, v%d, %s, 0 offen sc1" % (vr(d, 4), dst, sr(SRD_WS2, 4)))
        return z, y
    def j3(ps):
        z = Seq(); d = RW + 8 * ps; tg = "OPT" if ps == 2 else None
        t0, t1, t2, t3, dst = JT + 1, JT + 2, JT + 3, JT + 9, 124 + ps
        z("s_mul_i32 s8, s%d, 72" % S_J); z("s_lshl_b32 s9, s%d, 3" % S_RG); z("s_add_u32 s8, s8, %s" % ("s9" if ps < 2 else "64"))
        if ps == 1: z("s_add_u32 s8, s8, 32")
        z("v_lshrrev_b32 v%d, 3, v%d" % (t0, vLANE)); z("v_add_u32 v%d, s8, v%d" % (t0, t0))
        z("v_bfe_u32 v%d, v%d, 1, 1" % (t1, t0)); z("v_bfe_u32 v%d, v%d, 3, 1" % (t2, t0)); z("v_lshl_add_u32 v%d, v%d, 1, v%d" % (t1, t2, t1))
        z("v_and_b32 v%d, 7, v%d" % (t2, vLANE)); z("v_lshlrev_b32 v%d, 1, v%d" % (t1, t1)); z("v_xor_b32 v%d, v%d, v%d" % (t1, t1, t2))
        z("s_mul_i32 s8, s%d, %d" % (S_H, 576 * 128)); z("s_add_u32 s8, s8, %d" % WS_WBF)
        z("v_lshlrev_b32 v%d, 4, v%d" % (t2, t2)); z("v_lshl_add_u32 v%d, v%d, 7, v%d" % (t2, t0, t2)); z("v_add_u32 v%d, s8, v%d" % (dst, t2))
        z("s_mul_i32 s8, s%d, 36" % S_H)
        z("v_mul_u32_u24 v%d, 3456, v%d" % (t2, t0)); z("v_add_u32 v%d, s8, v%d" % (d + 5, t2))
        z("v_lshlrev_b32 v%d, 1, v%d" % (d + 6, t0)); z("v_mov_b32 v%d, v%d" % (d + 7, t1))
        for k in range(4): z("v_mov_b32 v%d, 0" % (d + k))
        z("v_lshrrev_b32 v%d, 1, v%d" % (t0, t1)); z("v_and_b32 v%d, 1, v%d" % (t3, t1)); z("v_lshl_add_u32 v%d, v%d, 4, v%d" % (t2, t3, d + 5))
        z("v_mov_b32 v%d, 2304" % t3); z("v_cmp_eq_u32 vcc, 1, v%d" % t0); z("v_cndmask_b32 v%d, 0, v%d, vcc" % (t3, t3)); z("v_add_u32 v%d, v%d, v%d" % (t2, t2, t3))
        z("v_mov_b32 v%d, 1152" % t3); z("v_cmp_eq_u32 vcc, 2, v%d" % t0); z("v_cndmask_b32 v%d, 0, v%d, vcc" % (t3, t3)); z("v_add_u32 v%d, v%d, v%d" % (d + 4, t2, t3))
        ld = Seq()
        ld("v_cmp_eq_u32 vcc, 6, v%d" % (d + 7)); ld("v_cmp_gt_u32 s[8:9], 6, v%d" % (d + 7)); ld("s_mov_b64 exec, vcc")
        ld("buffer_load_ushort v%d, v%d, %s, 0 offen" % (d + 3, d + 6, sr(SRD_GATE, 4)), tag=tg)
        for k in range(3): ld("buffer_load_dword v%d, v%d, %s, 0 offen offset:%d" % (d + k, d + 5, sr(SRD_WB, 4), 1152 * k + 32), tag=tg)
        ld("s_mov_b64 exec, s[8:9]")
        x = I("buffer_load_dwordx4 %s, v%d, %s, 0 offen" % (vr(d, 4), d + 4, sr(SRD_WB, 4)), tag=tg); x.nowaw = True
        ld.l.append(x)
        ld("s_mov_b64 exec, -1")
        y = Seq()
        y("buffer_store_dwordx4 %s, v%d, %s, 0 offen sc1" % (vr(d, 4), dst, sr(SRD_WS, 4)), tag=tg or "J13")
        return z, y, ld
    def touch(n, dst):
        z = Seq(); na = 64 if n == 0 else 96
        g = Seq()
        g("s_lshr_b32 s8, s2, 3"); g("s_lshl_b32 s8, s8, 2"); g("s_add_u32 s8, s8, s%d" % S_RG)
        g("s_and_b32 s9, s8, 31"); g("s_lshl_b32 s9, s9, 16"); g("s_lshr_b32 s10, s8, 5"); g("s_lshl_b32 s10, s10, 7"); g("s_add_u32 s9, s9, s10"); g("s_add_u32 s9, s9, %d" % ((3 if n == 0 else 5) * 128))
        g("s_sub_u32 s10, s8, %d" % na); g("s_lshr_b32 s10, s10, 3"); g("s_add_u32 s10, s10, %d" % (4 if n == 0 else 12)); g("s_lshl_b32 s10, s10, 18")
        g("s_bfe_u32 s11, s8, 0x20001"); g("s_lshl_b32 s11, s11, 11"); g("s_add_u32 s10, s10, s11"); g("s_and_b32 s11, s2, 7"); g("s_lshl_b32 s11, s11, 8"); g("s_add_u32 s10, s10, s11")
        g("s_bitcmp1_b32 s8, 0"); g("s_cselect_b32 s12, s%d, s%d" % (P_UV, P_UK)); g("s_cselect_b32 s13, s%d, s%d" % (P_UV + 1, P_UK + 1))
        g("s_cmp_lt_u32 s8, %d" % na); g("s_cselect_b32 s12, s%d, s12" % P_CKV); g("s_cselect_b32 s13, s%d, s13" % (P_CKV + 1)); g("s_cselect_b32 s9, s9, s10")
        g("s_cselect_b32 s14, %d, s%d" % (2048 * 1024, SRD_W + 2)); g("s_cselect_b64 vcc, -1, 0")
        g("v_lshlrev_b32 v%d, 10, v%d" % (dst, vLANE)); g("v_lshrrev_b32 v24, 1, v%d" % vLANE); g("v_lshlrev_b32 v24, 13, v24"); g("v_and_b32 v25, 1, v%d" % vLANE)
        g("v_lshl_add_u32 v24, v25, 7, v24"); g("v_cndmask_b32 v%d, v24, v%d, vcc" % (dst, dst))
        g("buffer_load_dword v%d, v%d, s[12:15], s9 offen" % (dst, dst))
        return g.l
    def touch_wq(n, dst):
        g = Seq()
        g("s_lshr_b32 s8, s2, 3"); g("s_lshl_b32 s8, s8, 2"); g("s_add_u32 s8, s8, s%d" % S_RG); g("s_add_u32 s8, s8, %d" % (128 * n)); g("s_lshl_b32 s8, s8, 15")
        g("v_and_b32 v24, 1, v%d" % vLANE); g("v_lshlrev_b32 v24, 7, v24"); g("v_lshrrev_b32 v25, 4, v%d" % vLANE); g("v_lshl_add_u32 v24, v25, 13, v24")
        g("v_bfe_u32 v25, v%d, 2, 2" % vLANE); g("v_lshl_add_u32 v24, v25, 11, v24"); g("s_and_b32 s11, s2, 7"); g("s_lshl_b32 s11, s11, 8"); g("v_add_u32 v24, s11, v24")
        g("buffer_load_dword v%d, v24, %s, s8 offen" % (dst, sr(SRD_WQ, 4)))
        return g.l

    q("s_cmp_ge_u32 s%d, 4" % S_W); q("s_cbranch_scc1 F_B")
    pre, st0 = resolve_waits(q.l)
    outl = list(pre); cold = []
    WQS = [4, 5, 7, 1, 2, 3, 4, 5, 7]
    WBS = [6 * SLOT, 6 * SLOT + 8192, 0, 8192, 8 * SLOT, 8 * SLOT + 8192, 6 * SLOT, 6 * SLOT + 8192, 9 * SLOT + 8192]
    global W32
    for role in range(2):
        RN = "AB"[role]
        W32 = bool(role == 1 and B32)
        r = Seq()
        if role == 1: r.label("F_B")
        def dma_wq(i):
            g = []
            for e in range(2):
                z = Seq()
                if e == 0: z("s_add_u32 m0, s%d, %d" % (S_MW, WQS[i] * SLOT))
                z("s_mov_b32 s%d, %d" % (S_TMP, (i * 64 + role * 32) * 8192 + e * (4 * 8192 - 1024)))
                z("buffer_load_dwordx4 v%d, %s, s%d offen offset:%d lds" % (vWo, sr(SRD_WQ, 4), S_TMP, e * 1024), tag="W%d" % i)
                g.append(z.l)
            return g
        def dma_wb(i):
            z = Seq()
            z("s_add_u32 m0, s%d, %d" % (S_MB, WBS[i])); z("s_add_u32 s%d, s%d, %d" % (S_TMP, S_WBG, i * 8192))
            z("buffer_load_dwordx4 v%d, %s, s%d offen sc1 lds" % (vL16, sr(SRD_WS, 4), S_TMP), tag="W%d" % i)
            return [z.l]
        def ld_x(ks):
            g = []
            for rr in range(2):
                z = Seq()
                z("s_add_u32 s%d, s%d, %d" % (S_TMP, S_XB, (rr * 18 + ks) * 1024))
                z("buffer_load_dwordx4 %s, v%d, %s, s%d offen sc1" % (vr(XRS[ks % NXR] + 4 * rr, 4), vL16, sr(SRD_WS, 4), S_TMP))
                g.append(z.l)
            return g
        NM = 512
        extra = {f: [] for f in range(NM)}
        streams = []
        def spread(lst, a, per=int(os.environ.get("PER", 1))):
            streams.append([y_ for x_ in lst for y_ in (x_ if isinstance(x_, list) else [x_])])
            for k, ins in enumerate(lst): extra[a + k // per].extend(ins if isinstance(ins, list) else [ins])
            return a + (len(lst) + per - 1) // per
        def rd_w(i, cb):
            w = WF + 4 * ((8 * i + cb) % NWF); off = (i % 4) * 16384
            return Seq()("ds_read_b64_tr_b16 %s, v%d offset:%d" % (vr(w, 2), vWR + cb, off))("ds_read_b64_tr_b16 %s, v%d offset:%d" % (vr(w + 2, 2), vWR + cb, off + 1024)).l
        def rd_a(i, rbk):
            sl = (i >> 1) % 3
            base = vAR + (i & 1) + (2 if sl == 2 else 0); off = (32768 if sl == 1 else 0) + rbk * 2048
            return Seq()("ds_read_b128 %s, v%d offset:%d" % (vr(AF + 16 * (i & 1) + 4 * rbk, 4), base, off)).l
        B1, B2 = int(os.environ.get('B1', 9)), 10
        def arrive(name, fill, ta=30, tb=31):
            z = Seq(); z("v_mov_b32 v%d, s%d" % (ta, S_HUGE)); fill(z, ta, tb); z("v_mov_b32 v%d, 1" % tb)
            z("buffer_atomic_add v%d, v%d, %s, 0 offen" % (tb, ta, sr(SRD_DBG, 4)), tag="OPT")
            return w7_block(name, z).l
        def fill1(z, ta, tb):
            z("s_lshl_b32 s11, s%d, 2" % S_H); z("v_mov_b32 v%d, s11" % tb); z("v_cmp_eq_u32 vcc, 0, v%d" % vLANE); z("v_cndmask_b32 v%d, v%d, v%d, vcc" % (ta, ta, tb))
            z("s_lshr_b32 s11, s2, 4"); z("s_lshl_b32 s11, s11, 2"); z("s_add_u32 s11, s11, 128"); z("v_mov_b32 v%d, s11" % tb)
            z("v_cmp_eq_u32 vcc, 1, v%d" % vLANE); z("v_cndmask_b32 v%d, v%d, v%d, vcc" % (ta, ta, tb))
            z("s_and_b32 s11, s2, 7"); z("s_lshl_b32 s11, s11, 2"); z("s_add_u32 s11, s11, 224"); z("v_mov_b32 v%d, s11" % tb)
            z("v_cmp_eq_u32 vcc, 2, v%d" % vLANE); z("v_cndmask_b32 v%d, v%d, v%d, vcc" % (ta, ta, tb))
        def fill2(z, ta, tb):
            z("s_and_b32 s11, s2, 7"); z("s_lshl_b32 s11, s11, 2"); z("s_add_u32 s11, s11, 192"); z("v_mov_b32 v%d, s11" % tb)
            z("v_cmp_eq_u32 vcc, 0, v%d" % vLANE); z("v_cndmask_b32 v%d, v%d, v%d, vcc" % (ta, ta, tb))
        def publish1(i):
            z = Seq(); tags = ["U%d" % i] + (["A%d" % (i >> 1)] if i % 2 == 0 else [])
            if i == B1: tags += ["J13"]
            z.waitv(*tags)
            if i == 14 and role == 1:
                y_ = Seq(); y_("s_waitcnt vmcnt(4)", tag="OPT"); poll_check(y_, "P1", 26, 25, 24, SRD_DBG, "0"); z.ext(w7_block("F_P1C", y_))
            z("s_barrier")
            if i % 2 == 0: ST(z, 1 + i // 2)
            return z.l
        DW = 4
        for i in range(16):
            for cb in range(8):
                n = 8 * i + cb - DW
                if n >= 0:
                    if cb == 0: extra[4 * n].extend(publish1(i))
                    t_ = rd_w(i, cb); extra[4 * n].insert(len(extra[4 * n]) if cb == 0 else 0, t_[0]); extra[4 * n + 1].insert(0, t_[1])
            if i > 0:
                for rbk in range(4): extra[32 * (i - 1) + 18 + 4 * rbk].insert(0, rd_a(i, rbk)[0])
                g = []
                if i == 12 and role == 1:
                    z = Seq()
                    z("v_lshrrev_b32 v24, 2, v%d" % vL16); poll_issue(z, 26, 24, SRD_DBG, "0", tag="OPT")
                    z("v_cmp_eq_u32 vcc, s%d, v%d" % (S_H, vLANE)); z("v_cndmask_b32 v25, 0, 8, vcc")
                    z("s_add_u32 s8, s%d, 32" % S_J); z("v_cmp_eq_u32 vcc, s8, v%d" % vLANE); z("v_cndmask_b32 v25, v25, 16, vcc")
                    z("s_sub_u32 s8, 47, s%d" % S_J); z("v_cmp_eq_u32 vcc, s8, v%d" % vLANE); z("v_cndmask_b32 v25, v25, 16, vcc")
                    g.append(w7_block("F_P1I", z).l)
                if role == 0:
                    if i + 2 < 16 and i >= 2: g += dma_w(i + 2) + dma_w(i + 2, 1)
                    if i % 2 == 1 and i >= 3 and (i >> 1) + 2 < 8: g += dma_a((i >> 1) + 2) + dma_a((i >> 1) + 2, 1)
                if i == 13: g += dma_wq(0) + dma_wq(1)
                if i == 14: g += dma_wb(0) + dma_wb(1)
                if i == 15: g += dma_wq(2) + dma_wq(3) + dma_wb(2) + dma_wb(3)
                if role == 1 and i == B1: g.append(arrive("F_AR1", fill1))
                for k, l in enumerate(g): extra[32 * (i - 1) + 17 + (2 if len(g) < 8 else 1) * k].extend(l)
        if role == 0: mk_srd(r, SRD_X, P_UV, 512 * 8192)
        else:
            J = [j1(k) for k in range(3)] + [j3(k) for k in range(3)]
            if TOUCH > 1: r.ext(touch(0, 27))
            w4 = lambda nm, k: Seq()("s_cmp_lg_u32 s%d, 4" % S_W)("s_cbranch_scc1 %s" % nm).l + cp(J[2][k]) + cp(J[5][k]) + Seq().label(nm).l
            lds_ = [w4("F_Z4", 2)] + [cp(J[k][2]) for k in (0, 1, 3, 4)]
            if JMODE == 0:
                p = 2
                for x_ in J: p = spread(cp(x_[0]), p, 2)
                for l in lds_: extra[p].extend(l); p += LSTEP
            else:
                for x_ in J: r.ext(cp(x_[0]))
                for l in lds_: r.ext(l)
                p = 0
            p += GAP
            for l in [cp(J[4][1]), w4("F_Y4", 1)] + [cp(J[k][1]) for k in (0, 1, 3)]: extra[p].extend(l); p += YSTEP
            assert p < 32 * (B1 - 1) + 8, p
            if TOUCH: extra[p + 8].extend(touch_wq(0, 29)); extra[p + 16].extend(Seq()("s_cmp_ge_u32 s2, 32")("s_cbranch_scc1 F_TQ").l + [I(x.text, tag="OPT") for x in touch_wq(1, 19)] + Seq().label("F_TQ").l)
        for ks in range(5):
            for k, l in enumerate(ld_x(ks)): extra[32 * 13 + 24 + 4 * ks + 2 * k].extend(l)
        r.ext(publish1(0))
        for rbk in range(4): r.ext(rd_a(0, rbk))
        for cb in range(DW): r.ext(rd_w(0, cb))
        for f in range(NM):
            i, cb, rbk = f >> 5, (f >> 2) & 7, f & 3
            acc = vr(ACC + 4 * (4 * cb + rbk), 4); w = vr(WF + 4 * ((8 * i + cb) % NWF), 4); a = vr(AF + 16 * (i & 1) + 4 * rbk, 4)
            ops = (w, a) if role == 0 else (a, w)
            r("%s %s, %s, %s, %s" % (MF, acc, ops[0], ops[1], "0" if i == 0 else acc))
            r.ext(extra[f])
        ST(r, 9)
        NF = 216
        extra = {f: [] for f in range(2 * NF)}
        FO = [(n // 12, n % 12) for n in range(192)] + [(k, p) for k in (16, 17) for p in range(8, 12)] + [(k, p) for k in (16, 17) for p in range(8)]
        def rd_q(n):
            ks, ph = FO[n]; s1 = ks & 1; w = FR + 4 * (n % 8)
            if ph < 8:
                return Seq()("ds_read_b64_tr_b16 %s, v%d offset:%d" % (vr(w, 2), vWR + ph, s1 * 8192))("ds_read_b64_tr_b16 %s, v%d offset:%d" % (vr(w + 2, 2), vWR + ph, s1 * 8192 + 1024)).l
            return Seq()("ds_read_b64_tr_b16 %s, v%d offset:%d" % (vr(w, 2), vBB[ph - 8], s1 * 4096))("ds_read_b64_tr_b16 %s, v%d offset:%d" % (vr(w + 2, 2), vBB[ph - 8], s1 * 4096 + 512)).l
        BKV = 5
        def publish(i):
            z = Seq()
            d = ((WQS[i] - WQS[i - 1]) * SLOT if i else WQS[0] * SLOT - WB - role * 8192) & 0xffffffff
            for cb in range(8):
                if "r" not in XQ or i == 0: z("v_add_u32 v%d, 0x%x, v%d" % (vWR + cb, d, vWR + cb))
            if i and "r" in XQ: pass
            elif i:
                for b in vBB: z("v_add_u32 v%d, 0x%x, v%d" % (b, (WBS[i] - WBS[i - 1]) & 0xffffffff, b))
            else:
                z("v_lshrrev_b32 v13, 4, v%d" % vLANE); z("v_bfe_u32 v14, v%d, 2, 2" % vLANE); z("v_lshl_add_u32 v15, v13, 3, v14"); z("v_lshlrev_b32 v15, 7, v15")
                z("v_lshrrev_b32 v14, 1, v14"); z("v_and_b32 v13, 1, v13"); z("v_lshl_add_u32 v14, v13, 1, v14"); z("v_lshl_add_u32 v15, v14, 5, v15")
                z("v_and_b32 v14, 3, v%d" % vLANE); z("v_lshl_add_u32 v15, v14, 3, v15"); z("v_add_u32 v%d, %d, v15" % (vBB[0], WBS[0]))
                for b in range(1, 4): z("v_xor_b32 v%d, %d, v%d" % (vBB[b], 32 * b, vBB[0]))
            z.waitv(*(["W%d" % i] + (["KVS"] if i == BKV else [])))
            z("s_barrier")
            ST(z, 10 + i)
            return z.l
        def kv_obj(kind, t, slot):
            z = Seq()
            z("s_add_u32 m0, s%d, %d" % (S_W4K, slot * SLOT)); z("s_add_u32 s%d, s%d, %d" % (S_TMP, S_KG if kind == "K" else S_VG, t * SLOT))
            for e in range(4): z("buffer_load_dwordx4 v%d, %s, s%d offen offset:%d sc1 lds" % (vL16, sr(SRD_WS, 4), S_TMP, 1024 * e), tag="%s%d" % (kind, t))
            return [z.l]
        phl = Seq()
        phl("s_mul_i32 s6, s%d, 648" % S_H); mk_srd(phl, SRD_PHI, P_PHI, 648, add="s6")
        phl("s_lshl_b32 s6, s%d, 8" % S_W); phl("s_add_u32 m0, s6, %d" % PHL); phl("v_lshrrev_b32 v13, 2, v%d" % vL16)
        phl("buffer_load_dword v13, %s, s6 offen lds" % sr(SRD_PHI, 4), tag="W5")
        DWQ = 5
        after = {0: dma_wq(4) + dma_wb(4) + dma_wq(5) + dma_wb(5) + [phl.l], 2: dma_wq(6) + dma_wb(8), 3: dma_wq(7) + dma_wb(6) + dma_wb(7), 4: dma_wq(8)}
        if role == 1:
            fb = Seq(); fb("s_lshl_b32 s6, s%d, 7" % S_H); fb("s_lshl_b32 s8, s%d, 2" % S_J); fb("s_add_u32 s6, s6, s8"); fb("s_add_u32 s6, s6, %d" % FL_KV)
            fbe = Seq().ext(cp(fb)); fbe("s_cmp_ge_u32 s%d, 6" % S_J); fbe("s_cselect_b32 s6, s6, s%d" % S_HUGE)
            after[BKV] = [w7_block("F_FKV", flag_store(fbe, 13, 14)).l]
            fkv_late = w7_block("F_FKV2", flag_store(fb, 8, 9))
        else:
            z = Seq()
            z("v_lshrrev_b32 v13, 2, v%d" % vL16); z("v_mov_b32 v15, s%d" % S_HUGE); z("v_xor_b32 v14, 7, v%d" % vLANE); z("v_cmp_gt_u32 vcc, 2, v14")
            z("v_cndmask_b32 v13, v15, v13, vcc"); z("v_cndmask_b32 v15, 0, 1, vcc")
            z("s_lshl_b32 s9, s%d, 7" % S_H); z("s_add_u32 s9, s9, %d" % FL_KV)
            poll_issue(z, 14, 13, SRD_WS, "s9")
            after[6] = [z.l]
            z = Seq(); poll_check(z, "P2A", 14, 15, 13, SRD_WS, "s9")
            after[7] = [z.l] + kv_obj("K", 0, 0) + kv_obj("K", 1, 1)
            after[8] = kv_obj("V", 0, 4) + kv_obj("K", 2, 2)
        for n in range(DWQ, NF):
            pos = 2 * (n - DWQ)
            if n % 24 == 0:
                extra[pos].extend(publish(n // 24))
                for k, l in enumerate(after.get(n // 24, [])): extra[pos + 2 + k].extend(l)
            t_ = rd_q(n); extra[pos].insert(len(extra[pos]) if n % 24 == 0 else 0, t_[0]); extra[pos + 1].insert(0, t_[1])
        for k, l in enumerate(after[0]): extra[1 + k].extend(l)
        pk = Seq(); sts = []
        order = list(range(8, 16)) + list(range(8))
        free = []
        for n in order:
            if role == 0:
                j, rbk = n >> 2, n & 3
                b0, b1 = ACC + 4 * (8 * j + rbk), ACC + 4 * (8 * j + 4 + rbk); fi = 4 * rbk + j
            else:
                cb, u = n >> 1, n & 1
                b0, b1 = ACC + 4 * (4 * cb + 2 * u), ACC + 4 * (4 * cb + 2 * u + 1); fi = 8 * u + cb
            if n >= 8: t = b0; free.append(b1)
            else: t = free.pop(0)
            pk("v_cvt_pk_bf16_f32 v%d, v%d, v%d" % (t, b0, b0 + 1)); pk("v_cvt_pk_bf16_f32 v%d, v%d, v%d" % (t + 1, b0 + 2, b0 + 3))
            pk("v_cvt_pk_bf16_f32 v%d, v%d, v%d" % (t + 2, b1, b1 + 1)); pk("v_cvt_pk_bf16_f32 v%d, v%d, v%d" % (t + 3, b1 + 2, b1 + 3))
            sts.append((t, fi))
        sts.sort()
        mkst = lambda t, fi, base, tag: I("buffer_store_dwordx4 %s, v%d, %s, s%d offen offset:%d sc1" % (vr(t, 4), vL16, sr(SRD_WS, 4), base + (fi >> 2), (fi & 3) * 1024), tag=tag)
        for k, (t, fi) in enumerate(sts):
            for (pos, br, nm) in ((8 + 10 * k, "scc0", "E"), (13 + 20 * k, "scc1", "L")):
                z = Seq(); z("s_cmp_ge_u32 s%d, 6" % S_J); z("s_cbranch_%s KS%s%s%d" % (br, RN, nm, k))
                z.ext([mkst(t, fi, S_ST, "OPT")]); z.label("KS%s%s%d" % (RN, nm, k))
                if "s" not in XQ: extra[pos].extend(z.l)
        for ks in range(18 - NXR):
            for k, l in enumerate(ld_x(ks + NXR)):
                if ks == 6: l[-1].tag = "KVS"
                if "x" not in XQ: extra[24 * ks + 24 + XS0 + XSP * k + XSB * role].extend(l)
        z = Seq()
        z("s_lshl_b32 s6, s%d, 19" % S_H); z("s_add_u32 s%d, s6, s%d" % (S_KG, S_W4K)); z("s_add_u32 s%d, s%d, %d" % (S_VG, S_KG, WS_VF))
        z("s_lshr_b32 s%d, s%d, 6" % (S_TL, S_ROW0))
        z("s_lshl_b32 s6, s%d, 1" % S_J); z("s_sub_u32 s%d, 31, s6" % S_TBM)
        c = f2u(LOG2E / (128 ** 0.5))
        z("s_mov_b32 s%d, 0x%x" % (S_C, c)); z("s_mov_b32 s%d, 0x%x" % (S_C + 1, c)); z("s_mov_b32 s%d, 0x%x" % (S_L2E, f2u(LOG2E)))
        z("s_mul_i32 s6, s%d, %d" % (S_TL, NSTEP * 4096)); z("s_lshr_b32 s8, s%d, 4" % S_ROW0); z("s_and_b32 s8, s8, 3"); z("s_lshl_b32 s8, s8, 10")
        z("s_add_u32 s6, s6, s8"); z("s_add_u32 s%d, s6, %d" % (S_AP, WS_AP))
        z("v_lshrrev_b32 v22, 4, v%d" % vLANE); z("v_cmp_gt_u32 vcc, 2, v22"); z("v_cndmask_b32 v%d, 0, 1.0, vcc" % vM5)
        z("v_mov_b32 v%d, 0xff800000" % vNINF)
        streams.append(z.l)
        for k, ins in enumerate(z.l): extra[200 + k].append(ins)
        RAW, PH = 192, 208
        z = Seq(); y = phi_gather(z, RAW, PH, RAW + 12, RAW + 13); streams.append(z.l)
        for k, ins in enumerate(z.l): extra[340 + k].append(ins)
        U, VM, PK, EE, T8, LK = 88, 112, 216, 160, 120, 192
        blk = lambda b, rho: DB + 4 * (2 * b + rho)
        t_ = Seq(); t_.ext(y)
        t_("v_and_b32 v%d, 15, v%d" % (T8, vLANE)); t_("v_lshlrev_b32 v%d, 2, v%d" % (T8, T8)); t_("v_add_u32 v%d, 64, v%d" % (T8, T8))
        for rho in range(2):
            t, u = TK + 4 * rho, U + 4 * rho
            for (d, b) in ((u, 2), (t + 2, 3)):
                t_("v_cvt_pk_bf16_f32 v%d, v%d, v%d" % (d, blk(b, rho), blk(b, rho) + 1)); t_("v_cvt_pk_bf16_f32 v%d, v%d, v%d" % (d + 1, blk(b, rho) + 2, blk(b, rho) + 3))
            t_("v_mov_b32 v%d, v%d" % (u + 2, t + 3)); t_("v_mov_b32 v%d, v%d" % (u + 3, t + 2))
        for rho in range(2): t_("ds_bpermute_b32 v%d, v%d, v%d" % (vG[rho], T8, blk(3, rho) + 2))
        for mu in range(2):
            for rho in range(2): t_("%s %s, %s, %s, 0" % (MF, vr(PK + 8 * mu + 4 * rho, 4), vr(PH + 4 * mu, 4), vr(U + 4 * rho, 4)))
        for rho in range(2):
            t = TK + 4 * rho
            for (d, b) in ((t, 0), (VM + 4 * rho, 1)):
                t_("v_cvt_pk_bf16_f32 v%d, v%d, v%d" % (d, blk(b, rho), blk(b, rho) + 1)); t_("v_cvt_pk_bf16_f32 v%d, v%d, v%d" % (d + 1, blk(b, rho) + 2, blk(b, rho) + 3))
            t_("v_mov_b32 v%d, v%d" % (VM + 4 * rho + 2, t + 2)); t_("v_mov_b32 v%d, 0x3f80" % (VM + 4 * rho + 3))
        for rho in range(2):
            g = vG[rho]
            t_("v_mul_f32 v%d, s%d, v%d" % (g, S_L2E, g)); t_("v_exp_f32 v%d, -v%d" % (g, g)); t_("v_add_f32 v%d, 1.0, v%d" % (g, g)); t_("v_rcp_f32 v%d, v%d" % (g, g))
        softmax5(t_, PK, EE, T8, LK)
        streams.append(t_.l)
        t0_ = 2 * 200 + 2; span = 2 * NF - t0_
        for k, ins in enumerate(t_.l): extra[t0_ + (k * span) // len(t_.l)].append(ins)
        r.ext(publish(0))
        for n in range(DWQ): r.ext(rd_q(n))
        r.ext(pk)
        for n in range(NF):
            ks, ph = FO[n]
            for rho in range(2):
                acc = vr(qacc(ph, rho) if ph < 8 else (DB + 4 * (2 * (ph - 8) + rho)), 4)
                r("%s %s, %s, %s, %s" % (MF, acc, vr(FR + 4 * (n % 8), 4), vr(XRS[ks % NXR] + 4 * rho, 4), "0" if ks == 0 else acc))
                xl = extra[2 * n + rho]
                if "d" in XQ and 48 <= 2 * n < 300: xl = [x_ for x_ in xl if x_.kind != "dma"]
                if "b" in XQ and 48 <= 2 * n < 300: xl = [x_ for x_ in xl if x_.kind != "barrier"]
                r.ext(xl)
        ST(r, 20)
        vF = 4
        FB0 = 6 * SLOT
        r("v_and_b32 v6, 15, v%d" % vLANE); r("v_lshrrev_b32 v7, 4, v%d" % vLANE)
        r("s_mul_i32 s6, s%d, 5376" % S_W); r("s_add_u32 s6, s6, %d" % FB0)
        r("v_mul_u32_u24 v8, 168, v6"); r("v_lshl_add_u32 v8, v7, 3, v8"); r("v_add_u32 v%d, s6, v8" % vF)
        if W32:
            r("v_lshlrev_b32 v9, 4, v6"); r("v_lshrrev_b32 v8, 1, v7"); r("v_lshl_add_u32 v9, v8, 8, v9"); r("v_and_b32 v8, 1, v7")
            r("v_lshl_add_u32 v%d, v8, 12, v9" % vKA); r("v_lshl_add_u32 v%d, v8, 10, v9" % (vLs + 1))
        else: r("v_mov_b32 v%d, v%d" % (vKA, vL16))
        if role == 0: r.waitv("K0")
        else: r("s_waitcnt vmcnt(0)")
        r("s_barrier")
        for rho in range(2):
            for b in range(3): r("ds_write_b64 v%d, %s offset:%d" % (vF, vr(LK + 8 * rho + 2 * b, 2), 2688 * rho + 32 * b), tag="FW")
            for b in range(2): r("ds_write_b64 v%d, %s offset:%d" % (vF, vr(VM + 4 * rho + 2 * b, 2), 2688 * rho + 96 + 32 * b), tag="FW")
        if role == 0: r.ext(flat(kv_obj("V", 1, 5)))
        else: r.ext(fkv_late)
        for n in range(8): r.ext([rd_frag("K", n, n)])
        for qb in range(2):
            for js in range(4):
                for hb in range(2):
                    a = qacc(2 * js + hb, qb)
                    r("v_pk_mul_f32 %s, %s, s[%d:%d]" % (vr(a, 2), vr(a, 2), S_C, S_C + 1)); r("v_pk_mul_f32 %s, %s, s[%d:%d]" % (vr(a + 2, 2), vr(a + 2, 2), S_C, S_C + 1))
                    d = Q + 16 * qb + 4 * js + 2 * hb
                    r("v_cvt_pk_bf16_f32 v%d, v%d, v%d" % (d, a, a + 1)); r("v_cvt_pk_bf16_f32 v%d, v%d, v%d" % (d + 1, a + 2, a + 3))
        if W32:
            for op in ("v_permlane16_swap_b32", "v_permlane32_swap_b32"):
                for i in range(16): r("%s v%d, v%d" % (op, Q + i, Q + 16 + i))
            r("v_and_b32 v8, 31, v%d" % vLANE); r("v_lshrrev_b32 v9, 5, v%d" % vLANE); r("v_lshlrev_b32 v9, 2, v9"); r("v_sub_u32 v8, v8, v9")
            r("v_add_u32 v%d, s%d, v8" % (vQ, S_ROW0)); r("v_mov_b32 v%d, 0" % vLs)
        else:
            r("v_lshlrev_b32 v8, 2, v7"); r("v_sub_u32 v8, v6, v8")
            r("v_add_u32 v%d, s%d, v8" % (vQ, S_ROW0)); r("v_add_u32 v%d, 16, v%d" % (vQ + 1, vQ))
            r("v_mov_b32 v%d, 0" % vLs); r("v_mov_b32 v%d, 0" % (vLs + 1))
        r("v_mov_b32 v%d, 0x44800000" % vTHR())
        r("s_mov_b32 s%d, 0xffff" % S_KR); r("v_mov_b32 v%d, 0x10000" % vC64); r("v_add_u32 v%d, 0x10000, v%d" % (vVA, vLs + 1 if W32 else vL16)); r("s_mov_b32 s%d, 0" % S_T)
        CA, CB, CD, ZR = 128, 160, 64, 68
        r("s_cmp_ge_u32 s%d, 3" % S_W); r("s_cselect_b32 s6, 1, 0"); r("s_mul_i32 s8, s6, 3"); r("s_sub_u32 s8, s%d, s8" % S_W)
        r("v_bfe_u32 v8, v%d, 2, 2" % vLANE); r("v_lshl_add_u32 v8, v7, 3, v8")
        r("v_and_b32 v9, 3, v%d" % vLANE); r("v_lshlrev_b32 v9, 3, v9")
        r("v_mul_u32_u24 v21, 168, v8"); r("v_add_u32 v21, v21, v9")
        r("s_lshl_b32 s9, s8, 5"); r("s_add_u32 s9, s9, %d" % FB0); r("v_add_u32 v4, s9, v21")
        r("s_lshl_b32 s9, s6, 5"); r("s_add_u32 s9, s9, %d" % (FB0 + 96)); r("v_add_u32 v6, s9, v21")
        for i in range(4): r("v_mov_b32 v%d, 0" % (ZR + i))
        ST(r, 21)
        r.waitv("FW")
        r("s_barrier")
        ST(r, 22)
        for n in range(8, DRD): r.ext([rd_frag("K", n, n)])
        crd = []
        for ks in range(8):
            for (dst, a) in ((CA, 4), (CB, 6)):
                crd += Seq()("ds_read_b64_tr_b16 %s, v%d offset:%d" % (vr(dst + 4 * ks, 2), a, 5376 * ks))("ds_read_b64_tr_b16 %s, v%d offset:%d" % (vr(dst + 4 * ks + 2, 2), a, 5376 * ks + 4 * 168)).l
        slots = []
        for k in range(8): slots.append(mkslot(qk_mfmas(k, 0, k, lambda qb: "0")))
        for n in range(8):
            if n + DRD < 16: slots[n]["rd"].append(rd_frag("K", n + DRD, n + DRD))
            slots[n]["mid"].extend(crd[4 * n:4 * n + 2]); slots[n]["rd"].extend(crd[4 * n + 2:4 * n + 4])
        if W32: slots[7]["end"].append(I("s_nop 3"))
        r.ext(emit_slots(slots))
        for ks in range(8): r("%s %s, %s, %s, %s" % (MF, vr(CD, 4), vr(CA + 4 * ks, 4), vr(CB + 4 * ks, 4), "0" if ks == 0 else vr(CD, 4)))
        r("s_cmp_lg_u32 s%d, 0" % S_TL); r("s_cbranch_scc1 %s_NM" % RN)
        r("s_nop 4")
        r.ext(mask_ops(0, 0))
        r.label("%s_NM" % RN)
        G0 = row_max(r, 0, False)
        r("s_lshl_b32 s9, s%d, 3" % S_H); r("s_add_u32 s9, s9, s%d" % S_J); r("s_mul_i32 s9, s9, 6144"); r("s_add_u32 s9, s9, s%d" % S_MB); r("s_add_u32 s9, s9, %d" % WS_KVP)
        if role == 1: r("s_cmp_ge_u32 s%d, 6" % S_W); r("s_cselect_b32 s9, s%d, s9" % S_HUGE)
        zs = [I("%s %s, %s, %s, 0" % (MF, vr(O + 4 * i, 4), vr(ZR, 4), vr(ZR, 4))) for i in range(16)]
        z = Seq(); row_red(z, "v_max_f32")
        z("buffer_store_dwordx4 %s, v%d, %s, s9 offen sc1" % (vr(CD, 4), vL16, sr(SRD_WS, 4)))
        for (d, es, os_, ng, l_) in G0:
            for x_ in ng: z("v_sub_f32 v%d, 0, v%d" % (x_, d))
        for (d, es, os_, ng, l_) in G0:
            for e_ in es: z("v_sub_f32 v%d, v%d, v%d" % (sreg(0, e_), sreg(0, e_), d))
        r.ext(interleave([[x_] for x_ in zs], z.l))
        r("s_lshl_b32 s6, s%d, 6" % S_TL)
        r("v_subrev_u32 v%d, s6, v%d" % (vQ, vQ))
        if not W32: r("v_subrev_u32 v%d, s6, v%d" % (vQ + 1, vQ + 1))
        slots = []
        for k in range(8): slots.append(mkslot(qk_mfmas(k, 1, 8 + k, NEGC)))
        place_sm(slots, 0, 8, 0, None, None, carry=False)
        r.ext(emit_slots(slots))
        r.waitv("K1", "V0")
        r("s_barrier")
        if role == 0:
            r("s_add_u32 s%d, s%d, %d" % (S_KL, S_W4K, 3 * SLOT)); r("s_add_u32 s%d, s%d, %d" % (S_VL, S_W4K, 6 * SLOT))
            r("s_add_u32 s%d, s%d, %d" % (S_KG, S_KG, 3 * SLOT)); r("s_add_u32 s%d, s%d, %d" % (S_VG, S_VG, 2 * SLOT))
            r("v_lshrrev_b32 v8, 2, v%d" % vL16); r("v_mov_b32 v7, s%d" % S_HUGE); r("v_cmp_gt_u32 vcc, 8, v%d" % vLANE)
            r("v_cndmask_b32 v8, v7, v8, vcc"); r("v_cndmask_b32 v7, 0, 1, vcc"); r("s_lshl_b32 s15, s%d, 7" % S_H); r("s_add_u32 s15, s15, %d" % FL_KV)
            px_group(r, S_PXO, 8); r("s_lshl_b32 s%d, s%d, 2" % (S_PXO, S_PXO)); r("s_and_b32 s8, s%d, 3" % S_H); r("s_add_u32 s%d, s%d, s8" % (S_PXO, S_PXO))
            r("s_mul_i32 s%d, s%d, 40960" % (S_PXO, S_PXO)); r("s_mul_i32 s8, s%d, 5120" % S_W); r("s_add_u32 s%d, s%d, s8" % (S_PXO, S_PXO)); r("s_add_u32 s%d, s%d, %d" % (S_PXO, S_PXO, WS_PX))
            r("s_mov_b32 m0, s%d" % S_KL)
            for e in range(4): r("buffer_load_dwordx4 v%d, %s, s%d offen offset:%d sc1 lds" % (vL16, sr(SRD_WS, 4), S_KG, 1024 * e))
            r("s_add_u32 s%d, s%d, %d" % (S_KG, S_KG, SLOT)); r("s_mov_b32 s%d, s%d" % (S_KL, S_W4K))
            r.ext(pkg())
        if (role == 1 and PRIO) or PRIO == 2: r("s_setprio 1")
        if stamp: r.ext(STAMP(23)); r.ext(RSTAMP(62))
        if DIAG: r("s_mov_b32 s96, 600"); r("s_mov_b32 s98, 600")
        main, st1 = resolve_waits(r.l, st0)
        verify_streams(main, streams, "f")
        st1.vm = []
        rares = []
        z = Seq()
        z("s_cmp_eq_u32 s%d, 0" % S_TL); z("s_cbranch_scc1 %s_PV" % RN)
        z.ext(adv(vKA))
        for n in range(DRD): z.ext([rd_frag("K", n, n) if n < 8 else rd_frag("V", n - 8, n)])
        z("s_cmp_le_u32 s%d, 1" % S_TL); z("s_cbranch_scc1 %s_S1" % RN)
        lz, stl = resolve_waits(z.l, st1)
        main += lz
        tmp = []
        b1, s1 = resolve_waits(iteration(role, "S", tmp), stl); s1.vm = []
        b2, s2 = resolve_waits(iteration(role, "S", rares), s1); s2.vm = []
        assert [x.text for x in b1] == [x.text for x in b2] and s1.sig() == s2.sig(), "loop not steady"
        if ALN >= 0: main += Seq()(".p2align 6").l + [I("s_nop 0") for _ in range(ALN)]
        if AL8: b2 = align8(fix_hazards(b2))
        main += Seq().label("%s_LOOP" % RN).l + b2 + Seq()("s_cmp_lt_u32 s6, s%d" % S_TL)("s_cbranch_scc1 %s_LOOP" % RN)("s_branch %s_S1" % RN).l
        z = Seq(); z.label("%s_PV" % RN)
        for n in range(DRD): z.ext([rd_frag("V", n, n)])
        z("s_branch %s_S2" % RN)
        lz, _ = resolve_waits(z.l, st1)
        main += lz
        b, s3 = resolve_waits(iteration(role, "S1", rares), s1); s3.vm = []
        main += Seq().label("%s_S1" % RN).l + b + Seq()("s_add_u32 s%d, s%d, 1" % (S_T, S_T)).l
        b, s4 = resolve_waits(iteration(role, "S2", rares), s3); s4.vm = []
        main += Seq().label("%s_S2" % RN).l + b
        e = Seq()
        if stamp: e.ext(STAMP(24)); e.ext(RSTAMP(63))
        vFL, vFO, vFN = 4, 5, 6
        if role == 0:
            e("s_setprio 0")
            e("v_lshrrev_b32 v%d, 2, v%d" % (vFO, vL16)); e("v_mov_b32 v%d, s%d" % (vFN, S_HUGE)); e("v_cmp_gt_u32 vcc, 8, v%d" % vLANE)
            e("v_cndmask_b32 v%d, v%d, v%d, vcc" % (vFO, vFN, vFO)); e("v_cndmask_b32 v%d, 0, 1, vcc" % vFN)
            e("s_lshl_b32 s14, s%d, 7" % S_H); e("s_add_u32 s14, s14, %d" % FL_KP)
            poll_issue(e, vFL, vFO, SRD_WS, "s14")
        if W32:
            red1(e, vLs, "v_add_f32", 4)
            e("v_rcp_f32 v%d, v%d" % (vLs, vLs)); e("v_and_b32 v4, 16, v%d" % vLANE); e("v_cmp_ne_u32 vcc, 0, v4")
            e("v_cndmask_b32 v4, v%d, v%d, vcc" % (vG[0], vG[1])); e("v_mul_f32 v4, v4, v%d" % vLs); e("v_mov_b32 v5, v4")
            e("s_lshl_b32 s6, s%d, 14" % S_H); e("s_add_u32 s6, s6, s%d" % S_AP)
            for js in range(4):
                for t_ in range(2):
                    t = FR + 4 * ((2 * js + t_) % 8)
                    for hb in range(2):
                        a = O + 16 * js + 4 * (t_ + 2 * hb)
                        e("v_pk_mul_f32 %s, %s, v[4:5]" % (vr(a, 2), vr(a, 2))); e("v_pk_mul_f32 %s, %s, v[4:5]" % (vr(a + 2, 2), vr(a + 2, 2)))
                        e("v_cvt_pk_bf16_f32 v%d, v%d, v%d" % (t + 2 * hb, a, a + 1)); e("v_cvt_pk_bf16_f32 v%d, v%d, v%d" % (t + 2 * hb + 1, a + 2, a + 3))
                    e("buffer_store_dwordx4 %s, v%d, %s, s6 offen offset:%d sc1" % (vr(t, 4), vLs + 1, sr(SRD_WS, 4), 512 * t_))
                if js < 3: e("s_add_u32 s6, s6, 4096")
        else:
            red2(e, vLs, vLs + 1, "v_add_f32", E_)
            for qb in range(2):
                e("v_rcp_f32 v%d, v%d" % (vLs + qb, vLs + qb)); e("v_mul_f32 v%d, v%d, v%d" % (E_ + 2 * qb, vLs + qb, vG[qb])); e("v_mov_b32 v%d, v%d" % (E_ + 2 * qb + 1, E_ + 2 * qb))
            e("s_lshl_b32 s6, s%d, 14" % S_H); e("s_add_u32 s6, s6, s%d" % S_AP)
            for js in range(4):
                for qb in range(2):
                    t = FR + 4 * ((2 * js + qb) % 8)
                    for hb in range(2):
                        a = O + 8 * (2 * js + hb) + 4 * qb
                        e("v_pk_mul_f32 %s, %s, %s" % (vr(a, 2), vr(a, 2), vr(E_ + 2 * qb, 2))); e("v_pk_mul_f32 %s, %s, %s" % (vr(a + 2, 2), vr(a + 2, 2), vr(E_ + 2 * qb, 2)))
                        e("v_cvt_pk_bf16_f32 v%d, v%d, v%d" % (t + 2 * hb, a, a + 1)); e("v_cvt_pk_bf16_f32 v%d, v%d, v%d" % (t + 2 * hb + 1, a + 2, a + 3))
                    e("buffer_store_dwordx4 %s, v%d, %s, s6 offen offset:%d sc1" % (vr(t, 4), vL16, sr(SRD_WS, 4), 1024 * qb))
                if js < 3: e("s_add_u32 s6, s6, 4096")
        ST(e, 25)
        if role == 0:
            e("s_sub_u32 s6, s%d, %d" % (S_J, JLO)); e("s_cmp_ge_u32 s6, %d" % JN); e("s_cbranch_scc1 A_LD")
            e("s_mul_i32 s8, s%d, %d" % (S_H, JN)); e("s_add_u32 s6, s6, s8"); e("s_lshl_b32 s6, s6, 2"); e("s_add_u32 s6, s6, s%d" % S_W); e("s_mul_i32 s%d, s6, %d" % (S_JU, sum(JG)))
            e("s_mov_b32 s%d, %d" % (S_WOSZ, 4096 * 1152)); e("s_mov_b32 s%d, 0x00020000" % (SRD_J + 3))
            mk_srd(e, SRD_WS2, P_WS, WS_WP + 16 * 37 * 9728)
            e("s_cmp_ge_u32 s%d, 2" % S_W); e("s_cbranch_scc1 A_J0")
            e("s_add_u32 s%d, s%d, 1" % (S_T, S_T)); e.ext(sync_block(0, "JP"))
            e.label("A_J0")
            assert sum(JG) * JN * 128 >= 5256 and sum(JG) * JN * 128 <= 6144
            jb = [j2(i, 56 + 4 * (i % 10), 96, 100 + (i % 10)) for i in range(sum(JG))]
            grp = [range(sum(JG[:k]), sum(JG[:k + 1])) for k in range(len(JG))]
            G_ = len(JG); nops = [(JG[k] if k < G_ else 0) + (JG[k - 1] if 1 <= k <= G_ else 0) for k in range(G_ + 3)]
            assert 2 * (JLO + JN - 1) + 2 + G_ + 2 < 31 - 2 * (JLO + JN - 1) - 3
            for st_ in range(G_ + 3):
                e("s_add_u32 s%d, s%d, 1" % (S_T, S_T))
                x_ = (nops[st_ - 1] if st_ >= 1 else 0) + (nops[st_ - 2] if st_ >= 2 else 0)
                e.ext(sync_block(0, "J%d" % st_, xtra=x_, strict=8 if st_ == G_ + 2 else None, always=True, prev=nops[st_ - 1] if st_ else 0))
                if 1 <= st_ <= G_:
                    e("s_waitcnt vmcnt(8)")
                    for i in grp[st_ - 1]: e.ext(jb[i][1])
                if st_ < G_:
                    for i in grp[st_]: e.ext(jb[i][0])
            z = Seq(); z("v_mov_b32 v24, s%d" % S_HUGE); fill2(z, 24, 25); z("v_mov_b32 v25, 1")
            z("buffer_atomic_add v25, v24, %s, 0 offen" % sr(SRD_DBG, 4))
            e("s_cmp_lg_u32 s%d, 0" % S_W); e("s_cbranch_scc1 A_LD"); e.ext(z)
            e.label("A_LD")
            e("s_add_u32 s%d, s%d, 1" % (S_T, S_T)); e("s_cmp_ge_u32 s%d, s%d" % (S_T, S_TBM)); e("s_cbranch_scc1 A_FIN")
            e.ext(sync_block(0, "LD"))
            e("s_cmp_ge_u32 s%d, 2" % S_W); e("s_cbranch_scc1 A_LD")
            e("s_cmp_eq_u32 s%d, 3" % S_R); e("s_cbranch_scc0 A_N3")
            e("s_waitcnt vmcnt(0)")
            poll_issue(e, vFL, vFO, SRD_WS, "s14")
            e("s_branch A_LD")
            e.label("A_N3")
            e("s_cmp_eq_u32 s%d, 2" % S_R); e("s_cbranch_scc0 A_LD")
            e("s_waitcnt vmcnt(0)")
            poll_check(e, "P3A", vFL, vFN, vFO, SRD_WS, "s14")
            KR_ = 56
            e("s_mul_i32 s6, s%d, 49152" % S_H); e("s_mul_i32 s8, s%d, 3072" % S_W); e("s_add_u32 s6, s6, s8"); e("s_add_u32 s6, s6, %d" % WS_KVP)
            for p in range(8):
                for mu in range(3): e("buffer_load_dwordx4 %s, v%d, %s, s6 offen offset:%d sc1" % (vr(KR_ + 12 * p + 4 * mu, 4), vL16, sr(SRD_WS, 4), 1024 * mu))
                if p < 7: e("s_add_u32 s6, s6, 6144")
            for p in range(1, 8):
                for i in range(12): e("v_add_f32 v%d, v%d, v%d" % (KR_ + i, KR_ + i, KR_ + 12 * p + i))
            for i in range(6): e("v_cvt_pk_bf16_f32 v%d, v%d, v%d" % (FR + i, KR_ + 2 * i, KR_ + 2 * i + 1))
            e("v_mov_b32 v%d, 0" % (FR + 6)); e("v_mov_b32 v%d, 0" % (FR + 7))
            e("s_lshl_b32 s6, s%d, 11" % S_W); e("s_add_u32 s6, s6, %d" % KVX); e("v_add_u32 v21, s6, v%d" % vL16)
            e("ds_write_b128 v21, %s" % vr(FR, 4)); e("ds_write_b128 v21, %s offset:1024" % vr(FR + 4, 4))
            e("s_waitcnt lgkmcnt(0)")
            e("s_branch A_LD")
            e.label("A_FIN"); e("s_waitcnt vmcnt(0)"); e("s_branch F_FIN")
        le, _ = resolve_waits(e.l, s4)
        outl += main + le
        for rb in rares: cold += rb.l
    W32 = False
    e = Seq(); e.label("F_FIN"); e("s_setprio 0")
    e("s_waitcnt lgkmcnt(0)")
    e("v_lshrrev_b32 v4, 2, v%d" % vL16); poll_issue(e, 5, 4, SRD_DBG, "0")
    RAW, PH, PK, EE, T8, LQ, KF_, ND = 56, 72, 80, 96, 116, 120, 136, 152
    y = phi_gather(e, RAW, PH, RAW + 12, RAW + 13)
    e("v_add_u32 v6, %d, v%d" % (KVX, vL16))
    for i in range(4): e("ds_read_b128 %s, v6 offset:%d" % (vr(KF_ + 4 * i, 4), 1024 * i))
    e.ext(y)
    for mu in range(2):
        for rho in range(2): e("%s %s, %s, %s, 0" % (MF, vr(PK + 8 * mu + 4 * rho, 4), vr(PH + 4 * mu, 4), vr(TK + 4 * rho, 4)))
    softmax5(e, PK, EE, T8, LQ)
    for rho in range(2): e("v_mov_b32 v%d, 0" % (LQ + 8 * rho + 6)); e("v_mov_b32 v%d, 0" % (LQ + 8 * rho + 7))
    for rho in range(2):
        for nu in range(2):
            d = vr(ND + 8 * rho + 4 * nu, 4)
            e("%s %s, %s, %s, 0" % (MF, d, vr(KF_ + 8 * nu, 4), vr(LQ + 8 * rho, 4)))
            e("%s %s, %s, %s, %s" % (MF, d, vr(KF_ + 8 * nu + 4, 4), vr(LQ + 8 * rho + 4, 4), d))
    e("s_lshr_b32 s6, s%d, 1" % S_H); e("s_add_u32 s6, s6, 128"); e("s_lshl_b32 s6, s6, 12"); e("s_add_u32 s6, s6, s%d" % S_AP)
    e("s_and_b32 s8, s%d, 1" % S_H); e("s_lshl_b32 s8, s8, 9"); e("s_add_u32 s6, s6, s8")
    e("s_lshr_b32 s8, s%d, 4" % S_H); e("s_add_u32 s8, s8, 144"); e("s_lshl_b32 s8, s8, 12"); e("s_add_u32 s8, s8, s%d" % S_AP)
    e("s_lshr_b32 s9, s%d, 2" % S_H); e("s_and_b32 s9, s9, 3"); e("s_lshl_b32 s9, s9, 8"); e("s_add_u32 s8, s8, s9")
    e("s_and_b32 s9, s%d, 3" % S_H); e("s_lshl_b32 s9, s9, 2"); e("s_add_u32 s8, s8, s9")
    e("v_and_b32 v6, 15, v%d" % vLANE); e("v_lshlrev_b32 v6, 4, v6"); e("v_lshrrev_b32 v7, 4, v%d" % vLANE)
    e("v_lshl_add_u32 v10, v7, 7, v6"); e("v_and_b32 v9, 1, v7")
    e("v_mov_b32 v8, s%d" % S_HUGE); e("v_cmp_ne_u32 vcc, 1, v7"); e("v_cndmask_b32 v6, v6, v8, vcc")
    e("v_cmp_ne_u32 vcc, 0, v9"); e("v_cndmask_b32 v10, v10, v8, vcc")
    e("s_mov_b32 s9, 0x%x" % f2u(1e-6))
    for rho in range(2):
        n = ND + 8 * rho
        e("v_add_f32 v8, s9, v%d" % (n + 6)); e("v_rcp_f32 v8, v8"); e("v_sub_f32 v9, 1.0, v%d" % vG[rho]); e("v_mul_f32 v8, v8, v9")
        for i in range(6): e("v_mul_f32 v%d, v%d, v8" % (n + i, n + i))
        for i in range(2): e("v_cvt_pk_bf16_f32 v%d, v%d, v%d" % (n + i, n + 2 * i, n + 2 * i + 1))
        e("v_cvt_pk_bf16_f32 v%d, v%d, v%d" % (n + 4, n + 4, n + 5))
        e("v_mov_b32 v%d, v%d" % (n + 2, n)); e("v_mov_b32 v%d, v%d" % (n + 3, n + 1))
        e("v_permlane16_swap_b32 v%d, v%d" % (n, n + 2)); e("v_permlane16_swap_b32 v%d, v%d" % (n + 1, n + 3))
        e("buffer_store_dwordx4 %s, v10, %s, s6 offen offset:%d sc1" % (vr(n, 4), sr(SRD_WS, 4), 1024 * rho), tag="APS")
        e("buffer_store_dword v%d, v6, %s, s8 offen offset:%d sc1" % (n + 4, sr(SRD_WS, 4), 1024 * rho), tag="APS")
    ST(e, 26)
    if DIAG: e("v_writelane_b32 v0, s96, 40"); e("v_writelane_b32 v0, s98, 41"); e("v_writelane_b32 v0, s98, 42")
    SRD_W3, SRD_OUT, S_KQ, S_A, S_WM, S_G, S_SO, S_R16 = 56, 60, 64, 65, 68, 69, 72, 76
    WR0 = 65536; NS = 37; IMG = 9728
    e("s_and_b32 s%d, s%d, 3" % (S_KQ, S_H))
    e("s_lshl_b32 s8, s%d, 1" % S_J); e("s_sub_u32 s9, 30, s8"); e("s_bitcmp1_b32 s%d, 2" % S_H); e("s_cselect_b32 s10, s9, s8")
    e("s_lshr_b32 s6, s%d, 2" % S_W); e("s_add_u32 s6, s6, s10"); e("s_mul_i32 s6, s6, %d" % (NSTEP * 4096)); e("s_lshl_b32 s8, s%d, 10" % S_RG)
    e("s_add_u32 s6, s6, s8"); e("s_add_u32 s6, s6, %d" % WS_AP)
    e("s_lshl_b32 s8, s%d, 17" % S_KQ); e("s_add_u32 s%d, s6, s8" % S_A)
    e("s_lshl_b32 s8, s%d, 14" % S_KQ); e("s_add_u32 s%d, s6, s8" % (S_A + 1)); e("s_add_u32 s%d, s%d, %d" % (S_A + 1, S_A + 1, 128 * 4096))
    e("s_lshl_b32 s8, s%d, 11" % S_KQ); e("s_add_u32 s8, s6, s8"); e("s_add_u32 s8, s8, %d" % (144 * 4096))
    e("s_bitcmp1_b32 s%d, 0" % S_KQ); e("s_cselect_b32 s%d, s%d, s8" % (S_A + 2, S_HUGE))
    e("s_cselect_b32 s9, 36, 37"); e("s_cselect_b32 s11, 8, 16")
    e("s_lshr_b32 s6, s%d, 3" % S_H); e("s_lshl_b32 s6, s6, 2"); e("s_add_u32 s6, s6, s%d" % S_KQ); e("s_mul_i32 s6, s6, %d" % (37 * IMG)); e("s_add_u32 s6, s6, %d" % WS_WP)
    mk_srd(e, SRD_W3, P_WS, 0, add="s6"); e("s_mul_i32 s%d, s9, %d" % (SRD_W3 + 2, IMG))
    mk_srd(e, SRD_OUT, P_OUT, 2048 * 1152)
    e("s_lshl_b32 s%d, s%d, 10" % (S_WM, S_RG))
    vH, vT, vA, vO, vO5 = 18, 12, 14, 10, 11
    e("v_add_u32 v%d, s%d, v%d" % (vH, S_MB, vL16)); e("v_add_u32 v%d, s%d, v%d" % (vH + 1, S_WM, vL16))
    e("v_bfe_u32 v10, v%d, 2, 2" % vLANE); e("v_lshl_add_u32 v10, v7, 3, v10"); e("v_mul_u32_u24 v10, 288, v10"); e("v_lshl_add_u32 v10, v7, 7, v10")
    e("v_and_b32 v11, 3, v%d" % vLANE); e("v_lshl_add_u32 v10, v11, 3, v10")
    e("s_lshr_b32 s6, s%d, 2" % S_W); e("s_mul_i32 s6, s6, 160"); e("s_add_u32 s6, s6, %d" % WR0)
    e("v_add_u32 v%d, s6, v10" % vT); e("v_add_u32 v%d, %d, v%d" % (vT + 1, 4 * IMG, vT))
    e("s_lshl_b32 s6, s%d, 11" % S_RG); e("v_add_u32 v%d, s6, v%d" % (vA, vL16))
    e("v_cmp_le_u32 vcc, 48, v%d" % vLANE); e("v_cndmask_b32 v6, 0, %d, vcc" % (4 * JN)); e("v_cmp_le_u32 vcc, 56, v%d" % vLANE); e("v_mov_b32 v9, 0x200020"); e("v_cndmask_b32 v6, v6, v9, vcc")
    poll_check(e, "P4", 5, 6, 4, SRD_DBG, "0")
    e("s_lshl_b32 s6, s%d, 3" % S_KQ); e("v_subrev_u32 v9, s6, v%d" % vLANE); e("v_cmp_gt_u32 vcc, s11, v9")
    e("v_mov_b32 v6, s%d" % S_HUGE); e("v_cndmask_b32 v4, v6, v4, vcc"); e("v_cndmask_b32 v6, 0, 1, vcc")
    e("s_lshl_b32 s11, s%d, 7" % S_J); e("s_add_u32 s11, s11, %d" % FL_AP)
    AG, WG, AC = 24, 40, 80
    S_ROT = 88
    for t in range(4):
        e("s_lshr_b32 s6, s%d, %d" % (S_H, 3 if ROT else 8)); e("s_add_u32 s6, s6, %d" % t); e("s_and_b32 s6, s6, 3"); e("s_lshl_b32 s6, s6, 15"); e("s_add_u32 s%d, s%d, s6" % (S_ROT + t, S_A))
    def dmaw(qq, nw=8):
        z = Seq(); base = (nw * qq) % 76
        sm = S_MB if nw == 8 else S_WM
        z("s_add_u32 m0, s%d, %d" % (sm, WR0 + base * 1024))
        if base + nw - 1 >= 76:
            z("s_sub_u32 s9, m0, %d" % (76 * 1024)); z("s_cmp_ge_u32 m0, %d" % (WR0 + 76 * 1024)); z("s_cselect_b32 m0, s9, m0")
        z("s_mov_b32 s9, %d" % (nw * qq * 1024))
        z("buffer_load_dwordx4 v%d, %s, s9 offen sc1 lds" % (vH if nw == 8 else vH + 1, sr(SRD_W3, 4)), tag="P%d" % (nw * qq // 4))
        return z
    def dmaa(n):
        z = Seq()
        z("s_add_u32 m0, s%d, %d" % (S_MB, (n % 8) * 8192))
        if n < 36: z("s_add_u32 s8, s%d, %d" % ((S_ROT + (n >> 3), (n & 7) * 4096) if n < 32 else (S_A + 1, (n - 32) * 4096)))
        z("buffer_load_dwordx4 v%d, %s, s%d offen sc1 lds" % (vL16, sr(SRD_WS, 4), 8 if n < 36 else S_A + 2), tag="Q%d" % n)
        return z
    def rds(n, nf):
        sl = n % 8; hi = sl >> 2; out = []
        for rho in range(2): out.append(Seq()("ds_read_b128 %s, v%d offset:%d" % (vr(AG + 8 * (n % 2) + 4 * rho, 4), vA, sl * 8192 + 1024 * rho)).l)
        for fi in range(nf):
            out.append(Seq()("\n".join("ds_read_b64_tr_b16 %s, v%d offset:%d" % (vr(WG + 20 * (n % 2) + 4 * fi + 2 * hh, 2), vT + hi, (sl & 3) * IMG + 32 * fi + 1152 * hh) for hh in range(2))).l)
        return out
    e.waitv("APS")
    e("s_barrier")
    fb = Seq(); fb("s_lshl_b32 s6, s%d, 7" % S_J); fb("s_lshl_b32 s8, s%d, 2" % S_H); fb("s_add_u32 s6, s6, s8"); fb("s_add_u32 s6, s6, %d" % FL_AP)
    e.ext(w7_block("F_FAP", flag_store(fb, 10, 11)))
    ST(e, 27)
    nq0 = 9; na0 = 8; NQ = 88
    for qq in range(nq0): e.ext(dmaw(qq))
    e("v_and_b32 v16, 15, v%d" % vLANE); e("s_lshl_b32 s6, s10, 6"); e("s_lshl_b32 s8, s%d, 5" % S_RG); e("s_add_u32 s6, s6, s8")
    e("v_add_u32 v16, s6, v16"); e("v_mul_u32_u24 v16, 1152, v16"); e("v_lshl_add_u32 v16, v7, 3, v16")
    e("s_lshr_b32 s6, s%d, 3" % S_H); e("s_mul_i32 s6, s6, 288"); e("s_lshr_b32 s8, s%d, 2" % S_W); e("s_mul_i32 s8, s8, 160"); e("s_add_u32 s6, s6, s8")
    e("v_add_u32 v%d, s6, v16" % vO)
    e("s_mov_b32 s%d, %d" % (S_R16, 16 * 1152))
    px_group(e, S_G, 6)
    e("s_lshl_b32 s6, s%d, 5" % S_G); e("s_add_u32 s6, s6, s%d" % S_W); e("s_mul_i32 s6, s6, 5120"); e("s_add_u32 s10, s6, %d" % WS_PX)
    for t in range(4): e("s_add_u32 s%d, s10, %d" % (S_SO + t, t * 40960))
    z = Seq(); z("v_mov_b32 v5, 0")
    poll_check(z, "P5", 5, 6, 4, SRD_WS, "s11")
    e.ext(w7_block("F_P5", z))
    e("s_barrier")
    ST(e, 28)
    for n in range(na0): e.ext(dmaa(n))
    def pub(m):
        z = Seq(); z.waitv(*(["P%d" % k for k in range(min(NQ - 1, (19 * m + 18) // 4) + 1)] + ["Q%d" % min(NS - 1, 2 * m + 1)])); z("s_waitcnt lgkmcnt(0)"); z("s_barrier")
        return z.l
    e.ext(pub(0))
    e("s_cmp_ge_u32 s%d, 4" % S_W); e("s_cbranch_scc1 G_B")
    le, stp = resolve_waits(e.l, Pend(vm=[("vm_st", (), "APS")] * 8))
    tail = []
    for role in range(2):
        RN = "AB"[role]; nf = 5 - role; nb = 2 * nf; na = na0; nq = 2 * nq0
        e = Seq()
        if role: e.label("G_B")
        e.ext(flat(rds(0, nf)))
        later = []
        for n in range(NS):
            fill = {k: [] for k in range(nb)}
            for k, l in enumerate(later): fill[min(nb - 1, 2 + k)].append(l)
            later = []
            if n + 1 < NS:
                if n % 2 == 1:
                    m = (n + 1) // 2
                    fill[0].extend(pub(m))
                    k = nb - 3
                    while na < NS and na <= 2 * m + 7: fill[k].extend(dmaa(na).l); na += 1; k = min(nb - 1, k + 1)
                    while nq < NQ and nq <= (19 * m + 72) // 4:
                        if role: later.append(dmaw(nq, 4).l)
                        nq += 1
                rl = flat(rds(n + 1, nf)); per = [[] for _ in range(nb)]
                for k, x_ in enumerate(rl): per[k if k < nb else 2 * (k - nb) + 1].append(x_)
                order = {id(x_): k for k, x_ in enumerate(rl)}
                it = iter(rl); per = [[next(it) for _ in p_] for p_ in per]
                for k, l in enumerate(per): fill[k] = (fill[k] + l) if (k == 0 and n % 2 == 1) else (l + fill[k])
            fill = {k: [y_ for x_ in v_ for y_ in (x_ if isinstance(x_, list) else [x_])] for k, v_ in fill.items()}
            for fi in range(nf):
                for rho in range(2):
                    acc = vr(AC + 4 * (2 * fi + rho), 4)
                    e("%s %s, %s, %s, %s" % (MF, acc, vr(WG + 20 * (n % 2) + 4 * fi, 4), vr(AG + 8 * (n % 2) + 4 * rho, 4), "0" if n == 0 else acc))
                    e.ext(fill[2 * fi + rho])
            if n % 8 == 0 and n < 32: ST(e, 29 + n // 8)
        assert na == NS and nq == NQ, (na, nq)
        ST(e, 34)
        e("s_mul_i32 s6, s%d, 40960" % S_KQ); e("s_add_u32 s84, s6, s10"); e("s_add_u32 s85, s84, 4096")
        e("v_lshrrev_b32 v16, 1, v%d" % vL16)
        PKX = 120
        for b in range(nb):
            d = PKX + 4 * (b & 3) + 2 * (b >> 2) if b < 8 else PKX + 16 + 2 * (b - 8)
            e("v_cvt_pk_bf16_f32 v%d, v%d, v%d" % (d, AC + 4 * b, AC + 4 * b + 1)); e("v_cvt_pk_bf16_f32 v%d, v%d, v%d" % (d + 1, AC + 4 * b + 2, AC + 4 * b + 3))
        for o in range(4):
            e("s_cmp_eq_u32 s%d, %d" % (S_KQ, o)); e("s_cbranch_scc1 %s_XS%d" % (RN, o))
            e("buffer_store_dwordx4 %s, v%d, %s, s84 offen offset:%d sc1" % (vr(PKX + 4 * o, 4), vL16, sr(SRD_WS, 4), o * 1024), tag="OPT")
            if nb == 10 and o < 2: e("buffer_store_dwordx2 %s, v16, %s, s85 offen offset:%d sc1" % (vr(PKX + 16 + 2 * o, 2), sr(SRD_WS, 4), o * 512), tag="OPT")
            e.label("%s_XS%d" % (RN, o))
        e("s_mov_b32 s%d, 4000" % S_SPIN); e("s_mov_b32 s86, 0xffff0000")
        ST(e, 33)
        lz, stx = resolve_waits(e.l, stp); tail += lz
        for kq in range(4):
            z = Seq()
            if kq < 3: z("s_cmp_lg_u32 s%d, %d" % (S_KQ, kq)); z("s_cbranch_scc1 %s_XL%d" % (RN, kq))
            own = [b for b in range(nb) if b & 3 == kq]; srcs = [t for t in range(4) if t != kq]
            z.label("%s_XR%d" % (RN, kq))
            LD, SM_ = 24, 48
            for k, t in enumerate(srcs):
                z("buffer_load_dwordx4 %s, v%d, %s, s%d offen offset:%d sc1" % (vr(LD + 8 * k, 4), vL16, sr(SRD_WS, 4), S_SO + t, kq * 1024))
                if len(own) == 3:
                    z("s_add_u32 s6, s%d, 4096" % (S_SO + t))
                    z("buffer_load_dwordx2 %s, v16, %s, s6 offen offset:%d sc1" % (vr(LD + 8 * k + 4, 2), sr(SRD_WS, 4), kq * 512))
            for k in range(3):
                for i, b in enumerate(own):
                    for hh in range(2):
                        src = LD + 8 * k + 2 * i + hh
                        z("v_lshlrev_b32 v60, 16, v%d" % src); z("v_and_b32 v61, s86, v%d" % src)
                        for x in range(2):
                            dd = SM_ + 4 * i + 2 * hh + x
                            z("v_add_f32 v%d, v%d, v%d" % (dd, 60 + x, (AC + 4 * b + 2 * hh + x) if k == 0 else dd))
            n_ = 4 * len(own)
            z("v_add_f32 v62, v%d, v%d" % (SM_, SM_ + 1))
            for x in range(2, n_): z("v_add_f32 v62, v62, v%d" % (SM_ + x))
            z("v_cmp_u_f32 vcc, v62, v62"); z("s_cbranch_vccz %s_XK%d" % (RN, kq))
            z("s_sleep 4")
            z("s_sub_u32 s%d, s%d, 1" % (S_SPIN, S_SPIN)); z("s_cmp_lg_u32 s%d, 0" % S_SPIN); z("s_cbranch_scc1 %s_XR%d" % (RN, kq))
            z.label("%s_XK%d" % (RN, kq))
            for i, b in enumerate(own):
                t = SM_ + 4 * i
                z("v_cvt_pk_bf16_f32 v%d, v%d, v%d" % (t, t, t + 1)); z("v_cvt_pk_bf16_f32 v%d, v%d, v%d" % (t + 1, t + 2, t + 3))
                fi, rho = b >> 1, b & 1
                z("buffer_store_dwordx2 %s, v%d, %s, %s offen offset:%d" % (vr(t, 2), vO, sr(SRD_OUT, 4), "s%d" % S_R16 if rho else "0", 32 * fi))
            if kq < 3 or role == 0: z("s_branch F_XLD")
            if kq < 3: z.label("%s_XL%d" % (RN, kq))
            lz, _ = resolve_waits(z.l, stx); tail += lz
    e = Seq(); e.label("F_XLD")
    if stamp: e.ext(STAMP(35)); e("s_waitcnt vmcnt(0)"); e.ext(STAMP(36)); e.ext(RSTAMP(61)); e.ext(STAMPOUT(S_W, vLANE, SRD_WS, 6, base=1 << 20))
    e.label("F_END"); e("s_endpgm")
    return fix_hazards(outl + le + tail + e.l + Seq().label("F_COLD").l + cold)
```

```python
from gen_common import *
from gen_k1 import wg_decode, fmt_job
MF = "v_mfma_f32_16x16x32_bf16"
SLOT = 16384
PHL = 9 * SLOT
KVX = PHL + 2048
K2_LDS = KVX + 4096

S_H, S_J, S_W, S_ROW0 = 3, 4, 5, 7
SRD_WS, SRD_DBG, S_HUGE, S_TMP, S_RG, S_SPIN = 44, 48, 52, 53, 54, 55
SRD_CK, SRD_W, SRD_X, SRD_WB, SRD_GATE, SRD_WO = 56, 60, 64, 68, 72, 76
S_W4K, S_ST, M1, M2 = 80, 82, 88, 90
SRD_WQ, S_MW, S_MB, S_WBG, S_XB = 92, 96, 97, 98, 99
SRD_PHI, S_KG, S_VG, S_KL, S_VL, S_KR, S_T, S_TL, S_TBM, S_L2E, S_AP, S_C, S_R = 56, 60, 61, 62, 63, 64, 65, 66, 67, 68, 69, 70, 72
S_ST2 = 86
SRD_WS2, S_WOSZ, SRD_J, S_JU = 92, 81, 84, 73
MK = [74, 76, 78, 90]
vLANE, vL16, vWo, vWR, vBR, vKA, vVA, vQ, vLs, vPS, vTM, vNINF, vM5 = 1, 2, 3, 4, 12, 13, 14, 15, 17, 19, 21, 22, 23
vG = [3, 12]
FR, DB, Q, TK, O = 24, 160, 216, 248, 128
XRS = [88, 96, 104, 112, 120]
NXR = 5
FR2 = [120, 124, 192, 196, 200, 204, 208, 212]
def qacc(cb, rho):
    n = 2 * cb + rho
    return 56 + 4 * n if n < 8 else 128 + 4 * (n - 8)
P_, S_, NEGM, E_ = 56, 72, 104, 112
import os
DRD = 12; W2 = 4; E64 = 0; NRING = 16; NODMA = 0
SC = " sc1"
XS0, XSP, XSB = eval(os.environ.get("XS", "(0, 1, 0)"))
B32 = int(os.environ.get("B32", 0))
SNT = 0x7FC17FC1
S_PXO = 13
JMODE = int(os.environ.get("JMODE", 0))
YSTEP = int(os.environ.get("YSTEP", 2))
AL8 = int(os.environ.get("AL8", 0))
ALN = int(os.environ.get("ALN", 4))
JLO, JN, JG = eval(os.environ.get("JCFG", "(1, 5, [3, 3, 3])"))
PRIO = int(os.environ.get("PRIO", 0))
PXW = int(os.environ.get("PXW", 0))
TLB = int(os.environ.get("TLB", 0))
YPOS = int(os.environ.get("YPOS", 158))
LPOS = int(os.environ.get("LPOS", 56))
LSTEP = int(os.environ.get("LSTEP", 2))
GAP = int(os.environ.get("GAP", 90))
TOUCH = int(os.environ.get("TOUCH", 1))
CODE_BYTES = 110 * 1024
S_TQ, vTQ = 55, 12
ROT = int(os.environ.get("ROT", 0))
K3BAR = int(os.environ.get("K3BAR", 4))
XQ = os.environ.get("XQ", "")
def freg(n):
    n %= NRING
    return FR + 4 * n if n < 8 else FR2[n - 8]
WS_FLG = 80 * MB
FL_KV, FL_KP, FL_AP, FL_PX = WS_FLG, WS_FLG + 4096, WS_FLG + 8192, WS_FLG + 16384
WS_PX = 96 * MB
WS_WH = WS_WP + 5 * MB
F_LDS = 163840

def red4(q, a, b, c, d, op, t0, t1, t2):
    q("v_permlane16_swap_b32 v%d, v%d" % (a, b)); q("v_permlane16_swap_b32 v%d, v%d" % (c, d))
    q("%s v%d, v%d, v%d" % (op, a, a, b)); q("%s v%d, v%d, v%d" % (op, c, c, d))
    q("v_permlane32_swap_b32 v%d, v%d" % (a, c))
    q("%s v%d, v%d, v%d" % (op, a, a, c))
    q("v_mov_b32 v%d, v%d" % (c, a))
    q("v_permlane32_swap_b32 v%d, v%d" % (a, c))
    q("v_mov_b32 v%d, v%d" % (b, a)); q("v_mov_b32 v%d, v%d" % (d, c))
    q("v_permlane16_swap_b32 v%d, v%d" % (a, b)); q("v_permlane16_swap_b32 v%d, v%d" % (c, d))

def red2(q, a, b, op, t):
    q("v_permlane16_swap_b32 v%d, v%d" % (a, b))
    q("%s v%d, v%d, v%d" % (op, a, a, b))
    q("v_mov_b32 v%d, v%d" % (t, a))
    q("v_permlane32_swap_b32 v%d, v%d" % (a, t))
    q("%s v%d, v%d, v%d" % (op, a, a, t))
    q("v_mov_b32 v%d, v%d" % (b, a))
    q("v_permlane16_swap_b32 v%d, v%d" % (a, b))

def phi_gather(q, raw, PH, va, vb):
    q("v_and_b32 v%d, 15, v%d" % (va, vLANE)); q("v_lshrrev_b32 v%d, 4, v%d" % (vb, vLANE))
    q("v_mul_u32_u24 v%d, 144, v%d" % (raw, vb)); q("v_add_u32 v%d, %d, v%d" % (raw, PHL, raw))
    q("v_mov_b32 v%d, 512" % vb)
    for (c, f) in ((0, 16), (4, 17), (8, 8), (12, 12)):
        q("v_cmp_eq_u32 vcc, %d, v%d" % (c, va)); q("v_cndmask_b32 v%d, v%d, %d, vcc" % (vb, vb, f))
    q("v_lshl_add_u32 v%d, v%d, 1, v%d" % (vb, vb, raw)); q("v_lshl_add_u32 v%d, v%d, 1, v%d" % (va, va, raw))
    for mu, a in ((0, va), (1, vb)):
        for i in range(6):
            q("ds_read_u16 v%d, v%d offset:%d" % (raw + 6 * mu + i, a, (i if i < 4 else 12 + i) * 36))
    y = Seq()
    for mu in range(2):
        for i in range(3): y("v_lshl_or_b32 v%d, v%d, 16, v%d" % (PH + 4 * mu + i, raw + 6 * mu + 2 * i + 1, raw + 6 * mu + 2 * i))
        y("v_mov_b32 v%d, 0" % (PH + 4 * mu + 3))
    return y

def softmax5(q, PK, EE, T, OUT):
    vals = [[PK + 4 * r + i for i in range(4)] + [PK + 8 + 4 * r] for r in range(2)]
    for r in range(2):
        v = vals[r]
        q("v_max3_f32 v%d, v%d, v%d, v%d" % (T + 2 * r, v[0], v[1], v[2])); q("v_max3_f32 v%d, -v%d, -v%d, -v%d" % (T + 2 * r + 1, v[0], v[1], v[2]))
        q("v_max3_f32 v%d, v%d, v%d, v%d" % (T + 2 * r, T + 2 * r, v[3], v[4])); q("v_max3_f32 v%d, v%d, -v%d, -v%d" % (T + 2 * r + 1, T + 2 * r + 1, v[3], v[4]))
    red4(q, T, T + 1, T + 2, T + 3, "v_max_f32", 0, 0, 0)
    for i in range(4): q("v_mul_f32 v%d, s%d, v%d" % (T + i, S_L2E, T + i))
    for r in range(2):
        for i in range(5):
            q("v_fma_f32 v%d, v%d, s%d, -v%d" % (EE + 10 * r + i, vals[r][i], S_L2E, T + 2 * r))
            q("v_fma_f32 v%d, -v%d, s%d, -v%d" % (EE + 10 * r + 5 + i, vals[r][i], S_L2E, T + 2 * r + 1))
    for i in range(20): q("v_exp_f32 v%d, v%d" % (EE + i, EE + i))
    for k in range(4): q("v_mul_f32 v%d, v%d, v%d" % (EE + 5 * k + 4, EE + 5 * k + 4, vM5))
    for k in range(4): q("v_add_f32 v%d, v%d, v%d" % (T + k, EE + 5 * k, EE + 5 * k + 1))
    for i in range(2, 5):
        for k in range(4): q("v_add_f32 v%d, v%d, v%d" % (T + k, T + k, EE + 5 * k + i))
    red4(q, T, T + 1, T + 2, T + 3, "v_add_f32", 0, 0, 0)
    for k in range(4): q("v_rcp_f32 v%d, v%d" % (T + k, T + k))
    for k in range(4):
        for i in range(5): q("v_mul_f32 v%d, v%d, v%d" % (EE + 5 * k + i, EE + 5 * k + i, T + k))
    for r in range(2):
        e = EE + 10 * r; o = OUT + 8 * r
        q("v_cvt_pk_bf16_f32 v%d, v%d, v%d" % (o, e, e + 1)); q("v_cvt_pk_bf16_f32 v%d, v%d, v%d" % (o + 1, e + 2, e + 3))
        q("v_cvt_pk_bf16_f32 v%d, v%d, v%d" % (o + 2, e + 5, e + 6)); q("v_cvt_pk_bf16_f32 v%d, v%d, v%d" % (o + 3, e + 7, e + 8))
        q("v_cvt_pk_bf16_f32 v%d, v%d, v%d" % (o + 4, e + 4, e + 9)); q("v_mov_b32 v%d, 0" % (o + 5))

W32 = False
MF32 = "v_mfma_f32_32x32x16_bf16"
E32 = 4
def red1(q, a, op, t):
    q("v_mov_b32 v%d, v%d" % (t, a)); q("v_permlane32_swap_b32 v%d, v%d" % (a, t)); q("%s v%d, v%d, v%d" % (op, a, a, t))

def sreg(buf, e):
    if W32: return S_ + 16 * buf + 4 * [0, 2, 1, 3][e >> 2] + (e & 3)
    qb, kb, r = e >> 3, (e >> 2) & 1, e & 3
    return S_ + 16 * buf + 8 * kb + 4 * qb + r

def mask_ops(buf, u):
    z = Seq()
    for e0 in range(0, 16, 4):
        for e in range(e0, e0 + 4):
            qb, kb, r = e >> 3, (e >> 2) & 1, e & 3
            key, th = (32 * u + 8 * [0, 2, 1, 3][e >> 2] + r, vQ) if W32 else (32 * u + 16 * kb + r, vQ + qb)
            z("v_cmp_gt_i32 s[%d:%d], %d, v%d" % (MK[e & 3], MK[e & 3] + 1, key, th))
        for e in range(e0, e0 + 4):
            z("v_cndmask_b32 v%d, v%d, v%d, s[%d:%d]" % (sreg(buf, e), sreg(buf, e), vNINF, MK[e & 3], MK[e & 3] + 1))
    return z

def sm_parts(buf):
    ex = []; post = []
    er = (lambda e: E32 + (e & 3)) if W32 else (lambda e: E_ + (e & 7))
    for e in range(16):
        ps = vPS if W32 else vPS + (e >> 3); k = e if W32 else e & 7
        ex.append(I("v_exp_f32 v%d, v%d" % (er(e), sreg(buf, e))))
        z = Seq()
        if k == 1: z("v_add_f32 v%d, v%d, v%d" % (ps, er(e - 1), er(e)))
        elif k > 1: z("v_add_f32 v%d, v%d, v%d" % (ps, ps, er(e)))
        if e & 1: z("v_cvt_pk_bf16_f32 v%d, v%d, v%d" % (P_ + 8 * buf + (e >> 1), er(e - 1), er(e)))
        post.append(z.l[::-1] if AL8 else z.l)
    return ex, post

def row_max(z, X, floor0):
    groups = [(E32, range(16))] if W32 else [(E_, range(8)), (E_ + 1, range(8, 16))]
    for d, es in groups:
        r = [sreg(X, e) for e in es] + (["0"] if floor0 else [])
        f = lambda x: x if x == "0" else "v%d" % x
        z("v_max3_f32 v%d, %s, %s, %s" % (d, f(r[0]), f(r[1]), f(r[2]))); r = r[3:]
        while len(r) >= 2: z("v_max3_f32 v%d, v%d, %s, %s" % (d, d, f(r[0]), f(r[1]))); r = r[2:]
        if r: z("v_max_f32 v%d, %s, v%d" % (d, f(r[0]), d))
    if W32: return [(E32, range(16), range(O, O + 64), range(NEGM, NEGM + 16), vLs)]
    return [(E_ + qb, range(8 * qb, 8 * qb + 8), [O + 8 * db + 4 * qb + i for db in range(8) for i in range(4)], range(NEGM + 4 * qb, NEGM + 4 * qb + 4), vLs + qb) for qb in range(2)]
def row_red(z, op):
    if W32: red1(z, E32, op, E32 + 1)
    else: red2(z, E_, E_ + 1, op, E_ + 2)

def rare_block(name, X, Y):
    z = Seq(); z.label(name); z("s_nop 12")
    G = row_max(z, X, True); row_red(z, "v_max_f32")
    for k, (d, es, os_, ng, l_) in enumerate(G):
        f = d + (2 if W32 else 4)
        z("v_exp_f32 v%d, -v%d" % (f, d))
        for e in es:
            z("v_sub_f32 v%d, v%d, v%d" % (sreg(X, e), sreg(X, e), d)); z("v_sub_f32 v%d, v%d, v%d" % (sreg(Y, e), sreg(Y, e), d))
        for r in ng: z("v_sub_f32 v%d, v%d, v%d" % (r, r, d))
        z("v_mul_f32 v%d, v%d, v%d" % (l_, l_, f))
        for r in os_: z("v_mul_f32 v%d, v%d, v%d" % (r, r, f))
    ex, post = sm_parts(X)
    for e in range(16):
        z.ext([ex[e]]); z("s_nop 0"); z.ext(post[e])
    z("s_nop 1")
    z("s_branch %s_R" % name)
    return z

def rd_frag(kind, idx, ring):
    base = vKA if kind == "K" else vVA
    off = 1024 * idx
    if W32: off = (idx >> 3) * 8192 + ((idx & 7) >> 1) * (1024 if kind == "K" else 2048) + (idx & 1) * 512
    return I("ds_read_b128 %s, v%d offset:%d" % (vr(freg(ring), 4), base, off))

def qk_mfmas(k, buf, ring, first_c):
    if W32:
        d = vr(S_ + 16 * buf, 16)
        return [I("%s %s, %s, %s, %s" % (MF32, d, vr(freg(ring), 4), vr(Q + 16 * (k & 1) + 4 * (k >> 1), 4), d if k else first_c(0)))]
    kb, js = k >> 2, k & 3
    out = []
    for qb in range(2):
        d = vr(S_ + 16 * buf + 8 * kb + 4 * qb, 4)
        c = d if js else first_c(qb)
        out.append(I("%s %s, %s, %s, %s" % (MF, d, vr(freg(ring), 4), vr(Q + 16 * qb + 4 * js, 4), c)))
    return out
def pv_mfmas(db, buf, ring):
    if W32:
        o = vr(O + 16 * (db >> 1), 16)
        return [I("%s %s, %s, %s, %s" % (MF32, o, vr(freg(ring), 4), vr(P_ + 8 * buf + 4 * (db & 1), 4), o))]
    return [I("%s %s, %s, %s, %s" % (MF, vr(O + 8 * db + 4 * qb, 4), vr(freg(ring), 4), vr(P_ + 8 * buf + 4 * qb, 4), vr(O + 8 * db + 4 * qb, 4))) for qb in range(2)]
NEGC = lambda qb: vr(NEGM, 16) if W32 else vr(NEGM + 4 * qb, 4)

def pkg(tag=None):
    z = Seq()
    for (sl, sg, hi) in ((S_VL, S_VG, 1), (S_KL, S_KG, 0)):
        z("s_mov_b32 m0, s%d" % sl)
        z("s_add_u32 s%d, s%d, %d" % (sl, sl, SLOT))
        for e in range(4):
            if not NODMA: z("buffer_load_dwordx4 v%d, %s, s%d offen offset:%d%s lds" % (vL16, sr(SRD_WS, 4), sg, 1024 * e, SC), tag=tag)
        z("s_add_u32 s%d, s%d, %d" % (sg, sg, SLOT))
        z("s_and_b32 s%d, s%d, 0xffff" % (sl, sl))
        if hi: z("s_or_b32 s%d, s%d, 0x10000" % (sl, sl))
    return z

DIAG = int(os.environ.get('DIAG', 0))
def tick(z, acc):
    z("s_memtime s[100:101]"); z("s_waitcnt lgkmcnt(0)")
    if acc is not None: z("s_sub_u32 s101, s100, s99"); z("s_add_u32 s%d, s%d, s101" % (acc, acc))
    z("s_mov_b32 s99, s100")
def sync_block(role, uid, cond=False, xtra=0, strict=None, always=False, prev=0):
    z = Seq()
    if DIAG: tick(z, None)
    if role == 0:
        z("s_sub_u32 s%d, s%d, s%d" % (S_R, S_TBM, S_T))
        if not always:
            z("s_cmp_ge_u32 s%d, 2" % S_R); z("s_cbranch_scc1 W12_%s" % uid)
            z("s_waitcnt vmcnt(4)")
        z.label("W12_%s" % uid)
        if strict is None:
            z("s_cmp_eq_u32 s%d, 4" % S_T); z("s_cbranch_scc1 W22_%s" % uid)
        z("s_waitcnt vmcnt(%d)" % (12 + xtra if strict is None else strict))
        if strict is None: z.label("W22_%s" % uid); z("s_waitcnt vmcnt(%d)" % (22 + xtra))
        if DIAG: tick(z, 96)
        z("s_barrier")
        if DIAG: tick(z, 98)
        if not always: z("s_cmp_lt_u32 s%d, 3" % S_R); z("s_cbranch_scc1 NP_%s" % uid)
        z("s_and_b32 s8, s%d, 3" % S_T); z("s_cmp_eq_u32 s8, 2"); z("s_cbranch_scc1 CQ_%s" % uid)
        z("s_cmp_lg_u32 s8, 1"); z("s_cbranch_scc1 NQ_%s" % uid)
        poll_issue(z, 9, 8, SRD_WS, "s15", tag="OPT")
        z("s_lshl_b32 s8, s%d, 8" % S_T); z("s_or_b32 s8, s8, s%d" % S_W)
        z("s_cmp_lg_u32 s8, %d" % (9 * 256)); z("s_cbranch_scc1 N9_%s" % uid)
        z("s_and_b32 s8, s2, 7"); z("s_lshl_b32 s8, s8, 2"); z("s_add_u32 s8, s8, 224"); z("v_mov_b32 v%d, 0x10000" % vTM); z("s_mov_b64 exec, 1")
        z("buffer_atomic_add v%d, off, %s, s8" % (vTM, sr(SRD_DBG, 4)), tag="OPT"); z("s_mov_b64 exec, -1"); z("s_branch NQ_%s" % uid)
        z.label("N9_%s" % uid)
        if not always:
            z("s_cmp_lg_u32 s8, 256"); z("s_cbranch_scc1 NQ_%s" % uid)
            fb = Seq(); fb("s_lshl_b32 s8, s%d, 2" % S_J); fb("s_add_u32 s8, s8, s15"); fb("s_add_u32 s8, s8, %d" % (FL_KP - FL_KV))
            z.ext(flag_store(fb, vTM, 0, so=8))
        z("s_branch NQ_%s" % uid)
        z.label("CQ_%s" % uid)
        z("s_add_u32 s8, s%d, 6" % S_T); z("s_lshr_b32 s8, s8, 2"); z("s_sub_u32 s8, 7, s8")
        z("v_cmp_eq_u32 vcc, s8, v%d" % vLANE); z("v_cndmask_b32 v7, 0, 1, vcc")
        z("s_waitcnt vmcnt(%d)" % (8 + prev))
        poll_check(z, "PQ_%s" % uid, 9, 7, 8, SRD_WS, "s15")
        z.label("NQ_%s" % uid)
        z.ext(pkg())
        z("s_sub_u32 s8, s%d, 2" % S_T); z("s_cmp_ge_u32 s8, 2"); z("s_cbranch_scc1 NP_%s" % uid)
        for i in range(4): z("v_mov_b32 v%d, 0x%x" % (FR + i, SNT))
        z("s_mul_i32 s8, s8, 20480"); z("s_add_u32 s8, s8, s%d" % S_PXO); z("s_add_u32 s9, s8, 4096")
        for i in range(5): z("buffer_store_dwordx4 %s, v%d, %s, s%d offen offset:%d sc1" % (vr(FR, 4), vL16, sr(SRD_WS, 4), 8 + i // 4, (i & 3) * 1024), tag="OPT")
        z.label("NP_%s" % uid)
    else:
        if cond:
            z("s_cmp_eq_u32 s%d, s%d" % (S_T, S_TBM)); z("s_cbranch_scc1 NB_%s" % uid)
        z("s_waitcnt vmcnt(0)")
        z("s_barrier")
        if cond: z.label("NB_%s" % uid)
        if DIAG: tick(z, 98)
    return z

def adv(vreg):
    z = Seq()
    z("v_add_u32 v%d, 0x4000, v%d" % (vreg, vreg))
    if vreg == vKA: z("v_and_b32 v%d, 0xffff, v%d" % (vreg, vreg))
    else: z("v_and_or_b32 v%d, v%d, s%d, v%d" % (vreg, vreg, S_KR, vC64))
    return z

def check(name):
    z = Seq()
    if not W32: z("v_max_f32 v%d, v%d, v%d" % (vTM, vPS, vPS + 1))
    z("v_cmp_nle_f32 vcc, v%d, v%d" % (vPS if W32 else vTM, vTHR()))
    z("s_cbranch_vccnz %s" % name)
    z.label(name + "_R")
    return z
def ladd(qb): return I("v_add_f32 v%d, v%d, v%d" % (vLs + qb, vLs + qb, vPS + qb))
def ladds(): return [ladd(0)] if W32 else [ladd(0), ladd(1)]
vC64 = 10
def vTHR(): return 11

def place_sm(slots, lo, hi, buf, mask_u, chk, carry=True):
    ex, post = sm_parts(buf)
    n = hi - lo
    pre = mask_ops(buf, mask_u).l if mask_u is not None else []
    groups = [pre[8 * g:8 * g + 8] for g in range(4)]
    if carry:
        slots[lo]["post"].append(ladd(0))
        if not W32: slots[lo + (8 if n == 16 else 0)]["post"].append(ladd(1))
    for e in range(16):
        s = lo + (e * n) // 16
        if pre and e % 4 == 0: slots[s]["mid"].extend(groups[e // 4])
        slots[s]["mid"].append(ex[e])
        if W32 and n == 16: slots[s + 1]["post"].extend(post[e]) if s + 1 < hi else slots[s]["end"].extend(post[e])
        else: slots[s]["post"].extend(post[e])
    if chk: slots[hi - 1]["end"].extend(check(chk).l)

def emit_slots(slots, w2=False):
    out = []
    for n, s in enumerate(slots):
        out += s["pre"]
        if w2 and W2 and n % W2 == 0:
            w = I("v_nop"); w.kind = "touch"; w.rd = list(slots[n + W2 - 1]["m"][0].srcA); w.text = ""
            out.append(w)
        if len(s["m"]) == 1: out += s["m"] + s["rd"] + s["mid"] + s["post"] + s["end"]
        else: out += [s["m"][0]] + s["mid"] + [s["m"][1]] + s["rd"] + s["post"] + s["end"]
    return out
def mkslot(m): return {"pre": [], "m": m, "mid": [], "rd": [], "post": [], "end": []}

def iteration(role, var, rares):
    uid = "%s%s" % ("AB"[role], var)
    slots = []; plan = []
    if var != "S2":
        for k in range(8): slots.append(mkslot(qk_mfmas(k, 0, len(slots), NEGC))); plan.append(("K", k))
    for db in range(8): slots.append(mkslot(pv_mfmas(db, 0, len(slots)))); plan.append(("V", db))
    a_hi = len(slots)
    if var != "S2":
        for k in range(8): slots.append(mkslot(qk_mfmas(k, 1, len(slots), NEGC))); plan.append(("K", 8 + k))
    for db in range(8): slots.append(mkslot(pv_mfmas(db, 1, len(slots)))); plan.append(("V", 8 + db))
    N = len(slots)
    nxt = {"S": "K", "S1": "V", "S2": None}[var]
    assert DRD > 8
    for n in range(N):
        g = n + DRD
        if g < N: slots[n]["rd"].append(rd_frag(plan[g][0], plan[g][1], g))
        elif nxt:
            if g == N:
                slots[n]["rd"].extend(sync_block(role, uid).l)
            if nxt == "K" and g - N >= 8: slots[n]["rd"].append(rd_frag("V", g - N - 8, g))
            else: slots[n]["rd"].append(rd_frag(nxt, g - N, g))
    if nxt == "K":
        slots[N - DRD - 2]["post"].extend(adv(vKA).l)
        slots[N - DRD + 2]["post"].extend(adv(vVA).l)
    elif nxt == "V": slots[N - DRD - 1]["end"].extend(adv(vVA).l)
    if var == "S2": slots[9]["rd"].extend(sync_block(role, uid, cond=True).l)
    place_sm(slots, 0, a_hi, 1, 1 if var == "S2" else None, "R%sa" % uid); rares.append(rare_block("R%sa" % uid, 1, 0))
    if var != "S2":
        place_sm(slots, a_hi, N, 0, 0 if var == "S1" else None, "R%sb" % uid); rares.append(rare_block("R%sb" % uid, 0, 1))
    else:
        slots[a_hi]["post"].extend(ladds())
    if var == "S":
        slots[N - 3]["post"].extend(Seq()("s_add_u32 s%d, s%d, 1" % (S_T, S_T))("s_add_u32 s6, s%d, 1" % S_T).l)
    out = emit_slots(slots, True)
    return out

def poll_issue(z, vp, voff, srd, soff, tag="POLL"):
    z("buffer_load_dword v%d, v%d, %s, %s offen sc1" % (vp, voff, sr(srd, 4), soff), tag=tag)
def poll_check(z, name, vp, vneed, voff, srd, soff):
    z("v_cmp_lt_u32 vcc, v%d, v%d" % (vp, vneed))
    z("s_cbranch_vccz %s_OK" % name)
    z("s_mov_b32 s%d, 0x40000" % S_SPIN)
    z.label("%s_SP" % name)
    z("s_sleep 2")
    z("buffer_load_dword v%d, v%d, %s, %s offen sc1" % (vp, voff, sr(srd, 4), soff), tag="OPT")
    z("s_waitcnt vmcnt(0)", tag="OPT")
    z("v_cmp_lt_u32 vcc, v%d, v%d" % (vp, vneed))
    z("s_cbranch_vccz %s_OK" % name)
    z("s_sub_u32 s%d, s%d, 1" % (S_SPIN, S_SPIN))
    z("s_cmp_lg_u32 s%d, 0" % S_SPIN)
    z("s_cbranch_scc1 %s_SP" % name)
    z.label("%s_OK" % name)
def w7_block(name, body):
    z = Seq(); z("s_cmp_lg_u32 s%d, 7" % S_W); z("s_cbranch_scc1 %s" % name); z.ext(body); z.label(name)
    return z
def flag_store(base_expr, va, vb, so=6):
    z = Seq(); z.ext(base_expr)
    z("v_mov_b32 v%d, 1" % va); z("s_mov_b64 exec, 1")
    z("buffer_store_dword v%d, off, %s, s%d sc1" % (va, sr(SRD_WS, 4), so), tag="OPT")
    z("s_mov_b64 exec, -1")
    return z
def px_group(z, d, t):
    z("s_lshl_b32 s%d, s%d, 3" % (d, S_J)); z("s_and_b32 s%d, s%d, 4" % (t, S_H)); z("s_add_u32 s%d, s%d, s%d" % (d, d, t))
    z("s_lshr_b32 s%d, s%d, 3" % (t, S_H)); z("s_add_u32 s%d, s%d, s%d" % (d, d, t))
def px_flag(z, d, t):
    px_group(z, d, t); z("s_lshl_b32 s%d, s%d, 3" % (d, d)); z("s_add_u32 s%d, s%d, s%d" % (d, d, S_W)); z("s_lshl_b32 s%d, s%d, 7" % (d, d)); z("s_and_b32 s%d, s%d, 3" % (t, S_H)); z("s_lshl_b32 s%d, s%d, 2" % (t, t))
    z("s_add_u32 s%d, s%d, s%d" % (d, d, t)); z("s_add_u32 s%d, s%d, %d" % (d, d, FL_PX))
flat = lambda g: [x for l in g for x in l]
def cp(s):
    out = []
    for x in (s.l if isinstance(s, Seq) else s):
        if isinstance(x, list): out.append(cp(x))
        elif x.kind == "waitv": out.append(x)
        else:
            n_ = I(x.text, tag=x.tag); n_.nowaw = x.nowaw; out.append(n_)
    return out

def gen_f(stamp=False):
    ST = (lambda z, i: z.ext(STAMP(i))) if stamp else (lambda z, i: None)
    q = Seq()
    vAo0, vAo1, vAR, JT, WF, NWF, AF, RW, CH, GT, ACC, WB = 13, 14, 15, 20, 32, 6, 56, 88, 104, 112, 128, 98304
    vWB, vGD, vGA, vBB = 19, 20, 21, [12, 16, 17, 18]
    q("s_cmp_ge_u32 s2, 256"); q("s_cbranch_scc1 F_END")
    load_args(q)
    wg_decode(q, S_H, S_J)
    q("v_lshrrev_b32 v20, 6, v0"); q("v_and_b32 v%d, 63, v0" % vLANE)
    q("v_readfirstlane_b32 s%d, v20" % S_W)
    q("s_and_b32 s%d, s%d, 3" % (S_RG, S_W))
    q("v_lshrrev_b32 v20, 3, v%d" % vLANE)
    q("s_xor_b32 s6, s%d, 7" % S_J); q("s_lshl_b32 s6, s6, 8"); q("s_lshl_b32 s8, s%d, 5" % S_W); q("s_add_u32 s6, s6, s8")
    q("v_add_u32 v20, s6, v20")
    q("v_lshrrev_b32 v21, 4, v%d" % vLANE); q("v_and_b32 v22, 7, v%d" % vLANE); q("v_xor_b32 v22, v21, v22")
    q("v_lshlrev_b32 v22, 4, v22"); q("v_lshl_add_u32 v%d, v20, 10, v22" % vAo0); q("v_xor_b32 v%d, 64, v%d" % (vAo1, vAo0))
    q("s_lshl_b32 s6, s%d, 3" % S_RG); q("v_add_u32 v20, s6, v21")
    q("s_and_b32 s6, s%d, 1" % S_RG); q("s_lshl_b32 s6, s6, 2"); q("v_add_u32 v22, s6, v21")
    q("v_lshlrev_b32 v22, 1, v22"); q("v_and_b32 v23, 15, v%d" % vLANE); q("v_xor_b32 v22, v22, v23")
    q("v_lshlrev_b32 v22, 4, v22"); q("v_lshl_add_u32 v%d, v20, 13, v22" % vWo)
    q("s_lshl_b32 s6, s%d, 8" % S_H); q("v_add_u32 v%d, s6, v%d" % (vWo, vWo))
    q("s_lshl_b32 s%d, s%d, 12" % (S_W4K, S_W)); q("s_lshl_b32 s%d, s%d, 11" % (S_MW, S_W))
    mk_srd(q, SRD_CK, P_CKV, 2048 * 1024)
    q("s_cmp_lt_u32 s%d, 4" % S_W)
    q("s_cselect_b32 s%d, s%d, s%d" % (SRD_W, P_UK, P_UV)); q("s_cselect_b32 s%d, s%d, s%d" % (SRD_W + 1, P_UK + 1, P_UV + 1))
    q("s_mov_b32 s%d, %d" % (SRD_W + 2, 512 * 8192)); q("s_mov_b32 s%d, 0x00020000" % (SRD_W + 3))
    if stamp: q.ext(STAMP(0)); q.ext(RSTAMP(60))
    def dma_a(I_, sec=0):
        g = []
        for e in range(4):
            z = Seq()
            if e == 0: z("s_add_u32 m0, s%d, %d" % (S_W4K, (I_ % 3) * 32768 + sec * 16384))
            z("s_mov_b32 s%d, %d" % (S_TMP, I_ * 128 + e * (8192 - 1024) + sec * 131072))
            z("buffer_load_dwordx4 v%d, %s, s%d offen offset:%d lds" % ([vAo0, vAo1][e & 1], sr(SRD_CK, 4), S_TMP, e * 1024), tag="A%d" % I_)
            g.append(z.l)
        return g
    def dma_w(i, sec=0):
        g = []
        for e in range(2):
            z = Seq()
            if e == 0: z("s_add_u32 m0, s%d, %d" % (S_MW, WB + (i % 4) * 16384 + sec * 8192))
            z("s_mov_b32 s%d, %d" % (S_TMP, i * 32 * 8192 + e * (4 * 8192 - 1024)))
            z("buffer_load_dwordx4 v%d, %s, s%d offen offset:%d lds" % (vWo, sr(SRD_X if sec else SRD_W, 4), S_TMP, e * 1024), tag="U%d" % i)
            g.append(z.l)
        return g
    q.ext(flat(dma_w(0))); q.ext(flat(dma_a(0))); q.ext(flat(dma_w(1)))
    q("s_barrier")
    q.ext(flat(dma_a(1))); q.ext(flat(dma_w(2))); q.ext(flat(dma_w(3))); q.ext(flat(dma_a(2)))
    if TOUCH:
        q("s_lshr_b32 s8, s2, 3"); q("s_lshl_b32 s9, s8, 3"); q("s_add_u32 s9, s9, s%d" % S_W)
        q("s_getpc_b64 s[12:13]"); q.label("F_PC"); q("s_mov_b32 s14, F_COLD-F_PC"); q("s_mov_b32 s15, 0x00020000")
        q("v_lshlrev_b32 v24, 7, v%d" % vLANE); q("s_lshl_b32 s10, s9, 13")
        q("s_cmp_ge_u32 s10, s14"); q("s_cbranch_scc1 F_NCT")
        q("buffer_load_dword v31, v24, s[12:15], s10 offen", tag="OPT")
        q.label("F_NCT")
    mk_srd(q, SRD_X, P_X, 2048 * 1152); mk_srd(q, SRD_WB, P_WQKV, 576 * 3456); mk_srd(q, SRD_GATE, P_GATE, 1152)
    mk_srd(q, SRD_WS, P_WS, WS_SIZE); mk_srd(q, SRD_DBG, P_DBG, 256); mk_srd(q, SRD_WQ, P_WQ, 576 * 8192)
    q("s_mov_b32 s%d, 0x%x" % (S_HUGE, HUGE))
    q("v_lshlrev_b32 v%d, 4, v%d" % (vL16, vLANE))
    q("s_lshl_b32 s6, s%d, 7" % S_H); q("s_lshl_b32 s8, s%d, 2" % S_J); q("s_add_u32 s6, s6, s8"); q("s_add_u32 s6, s6, %d" % FL_KV)
    q("s_lshl_b32 s8, s%d, 7" % S_J); q("s_lshl_b32 s9, s%d, 2" % S_H); q("s_add_u32 s8, s8, s9"); q("s_add_u32 s8, s8, %d" % FL_AP)
    q("v_lshlrev_b32 v20, 12, v%d" % vLANE); q("v_add_u32 v20, s6, v20"); q("v_mov_b32 v22, s8")
    q("v_cmp_eq_u32 vcc, 2, v%d" % vLANE); q("v_cndmask_b32 v20, v20, v22, vcc")
    q("v_mov_b32 v22, s%d" % S_HUGE); q("v_cmp_gt_u32 vcc, %d, v0" % (7 * 64)); q("v_cndmask_b32 v20, v20, v22, vcc")
    q("v_cmp_lt_u32 vcc, 3, v%d" % vLANE); q("v_cndmask_b32 v20, v20, v22, vcc")
    px_flag(q, 8, 9); q("v_mov_b32 v22, s8"); q("v_cmp_eq_u32 vcc, 3, v%d" % vLANE); q("v_cndmask_b32 v20, v20, v22, vcc")
    q("v_mov_b32 v22, 0")
    q("buffer_store_dword v22, v20, %s, 0 offen sc1" % sr(SRD_WS, 4), tag="J13")
    q("v_and_b32 v20, 15, v%d" % vLANE); q("v_lshrrev_b32 v22, 1, v20"); q("v_xor_b32 v22, v22, v21")
    q("s_lshl_b32 s6, s%d, 6" % S_RG); q("v_add_u32 v20, s6, v20"); q("v_lshlrev_b32 v20, 7, v20")
    q("v_lshl_add_u32 v%d, v22, 4, v20" % vAR); q("v_xor_b32 v%d, 64, v%d" % (vAR + 1, vAR))
    q("v_add_u32 v%d, 0x10000, v%d" % (vAR + 2, vAR)); q("v_add_u32 v%d, 0x10000, v%d" % (vAR + 3, vAR + 1))
    q("v_bfe_u32 v20, v%d, 2, 2" % vLANE); q("v_lshl_add_u32 v22, v21, 3, v20"); q("v_lshlrev_b32 v22, 8, v22")
    q("v_and_b32 v23, 1, v21"); q("v_lshl_add_u32 v20, v23, 2, v20"); q("v_lshl_add_u32 v22, v20, 5, v22")
    q("v_and_b32 v20, 3, v%d" % vLANE); q("v_lshl_add_u32 v22, v20, 3, v22")
    q("s_lshr_b32 s6, s%d, 2" % S_W); q("s_lshl_b32 s6, s6, 13"); q("s_add_u32 s6, s6, %d" % WB)
    q("v_add_u32 v%d, s6, v22" % vWR)
    for cb in range(1, 8): q("v_xor_b32 v%d, %d, v%d" % (vWR + cb, 32 * cb, vWR))
    q("s_lshr_b32 s6, s%d, 2" % S_W); q("s_lshl_b32 s6, s6, 24"); q("s_lshl_b32 s8, s%d, 19" % S_H); q("s_add_u32 s6, s6, s8")
    q("s_xor_b32 s8, s%d, 7" % S_J); q("s_lshl_b32 s8, s8, 2"); q("s_add_u32 s8, s8, s%d" % S_RG); q("s_lshl_b32 s8, s8, 14"); q("s_add_u32 s%d, s6, s8" % S_ST)
    for i in range(1, 4): q("s_add_u32 s%d, s%d, %d" % (S_ST + i, S_ST, 4096 * i))
    q("s_sub_u32 s6, 15, s%d" % S_J); q("s_cmp_lt_u32 s%d, 4" % S_W); q("s_cselect_b32 s6, s%d, s6" % S_J)
    q("s_lshl_b32 s6, s6, 7"); q("s_lshl_b32 s8, s%d, 5" % S_RG); q("s_add_u32 s%d, s6, s8" % S_ROW0)
    q("s_lshl_b32 s%d, s%d, 10" % (S_MB, S_W))
    q("s_mul_i32 s6, s%d, %d" % (S_H, 576 * 128)); q("s_add_u32 s6, s6, s%d" % S_MB); q("s_add_u32 s%d, s6, %d" % (S_WBG, WS_WBF))
    q("s_lshr_b32 s6, s%d, 4" % S_ROW0); q("s_mul_i32 s6, s6, %d" % (18 * 1024)); q("s_add_u32 s%d, s6, %d" % (S_XB, WS_XF))

    def j1(k):
        z = Seq(); a, b = JT, JT + 1; d = 112 + 4 * k; tg = "OPT" if k == 2 else None
        z("s_lshr_b32 s8, s2, 1"); z("s_and_b32 s9, s2, 1"); z("s_mul_i32 s9, s9, 9")
        z("s_add_u32 s9, s9, %s" % ("s%d" % S_RG if k < 2 else "8"))
        if k == 1: z("s_add_u32 s9, s9, 4")
        z("v_lshrrev_b32 v%d, 2, v%d" % (a, vLANE)); z("s_lshl_b32 s10, s8, 4"); z("v_add_u32 v%d, s10, v%d" % (a, a))
        z("v_mul_u32_u24 v%d, 1152, v%d" % (a, a)); z("v_and_b32 v%d, 3, v%d" % (b, vLANE)); z("v_lshl_add_u32 v%d, v%d, 4, v%d" % (a, b, a))
        if k == 0: z("v_and_b32 v127, 15, v%d" % vLANE); z("v_lshlrev_b32 v127, 4, v127"); z("v_lshrrev_b32 v%d, 4, v%d" % (b, vLANE)); z("v_lshl_add_u32 v127, v%d, 2, v127" % b)
        z("s_lshl_b32 s10, s9, 6"); z("v_add_u32 v%d, s10, v%d" % (d, a))
        z("s_mul_i32 s8, s8, 18"); z("s_add_u32 s8, s8, s9"); z("s_lshl_b32 s8, s8, 10"); z("s_add_u32 s%d, s8, %d" % (86 + k, WS_XF))
        ld = Seq()("buffer_load_dwordx4 %s, v%d, %s, 0 offen" % (vr(d, 4), d, sr(SRD_X, 4)), tag=tg)
        y = Seq()
        for i in range(4): y("ds_bpermute_b32 v%d, v127, v%d" % (d + i, d + i), tag=tg)
        if k == 2: y("s_waitcnt lgkmcnt(0)", tag="OPT")
        y("buffer_store_dwordx4 %s, v%d, %s, s%d offen sc1" % (vr(d, 4), vL16, sr(SRD_WS, 4), 86 + k), tag=tg or "J13")
        return z, y, ld
    def j2(i, d, t0, dst):
        z = Seq(); t1, t2, t3 = t0 + 1, t0 + 2, t0 + 3
        z("s_add_u32 s8, s%d, %d" % (S_JU, i))
        z("s_mul_i32 s9, s8, 12769"); z("s_lshr_b32 s9, s9, 24")
        z("s_mul_i32 s10, s9, 1314"); z("s_sub_u32 s8, s8, s10")
        z("s_mul_i32 s10, s8, 7282"); z("s_lshr_b32 s10, s10, 16")
        z("s_mul_i32 s11, s10, 9"); z("s_sub_u32 s8, s8, s11"); z("s_lshl_b32 s8, s8, 6")
        z("v_add_u32 v%d, s8, v%d" % (t0, vLANE))
        z("v_mul_u32_u24 v%d, 3641, v%d" % (t1, t0)); z("v_lshrrev_b32 v%d, 16, v%d" % (t1, t1))
        z("v_mul_u32_u24 v%d, 18, v%d" % (t2, t1)); z("v_sub_u32 v%d, v%d, v%d" % (t2, t0, t2))
        z("v_lshrrev_b32 v%d, 3, v%d" % (t3, t1)); z("v_lshl_add_u32 v%d, v%d, 3, v%d" % (t0, t3, t0))
        z("v_and_b32 v%d, 3, v%d" % (d, t1)); z("v_lshl_add_u32 v%d, v%d, 2, v%d" % (t3, t3, d))
        z("v_bfe_u32 v%d, v%d, 2, 1" % (d, t1)); z("v_lshl_add_u32 v%d, v%d, 4, v%d" % (t3, d, t3))
        z("s_lshl_b32 s8, s10, 5")
        for k in range(3): z("s_mov_b32 s%d, s%d" % (SRD_J + k, [P_WO, P_WO + 1, S_WOSZ][k]))
        z("s_cmp_lt_u32 s10, 128"); z("s_cbranch_scc1 J2_%d" % i)
        z("s_mov_b32 s%d, s%d" % (SRD_J, P_WO2)); z("s_mov_b32 s%d, s%d" % (SRD_J + 1, P_WO2 + 1)); z("s_mov_b32 s%d, %d" % (SRD_J + 2, 576 * 1152))
        z("v_lshrrev_b32 v%d, 4, v%d" % (t3, t1)); z("v_lshl_add_u32 v%d, v%d, 1, v%d" % (t3, t3, t1))
        z("s_mul_i32 s8, s10, 36"); z("s_sub_u32 s8, s8, %d" % (36 * 128))
        z("s_cmp_lt_u32 s10, 144"); z("s_cbranch_scc1 J2_%d" % i)
        z("v_lshrrev_b32 v%d, 1, v%d" % (t3, t1)); z("v_mul_u32_u24 v%d, 18, v%d" % (t3, t3)); z("v_and_b32 v%d, 1, v%d" % (t1, t1)); z("v_add_u32 v%d, v%d, v%d" % (t3, t3, t1))
        z("s_mul_i32 s8, s10, 288"); z("s_sub_u32 s8, s8, %d" % (288 * 144 - 16))
        z.label("J2_%d" % i)
        z("v_add_u32 v%d, s8, v%d" % (t3, t3)); z("v_mul_u32_u24 v%d, 1152, v%d" % (t3, t3)); z("v_lshl_add_u32 v%d, v%d, 4, v%d" % (t3, t2, t3))
        z("s_mul_i32 s8, s9, 288")
        z("buffer_load_dwordx4 %s, v%d, %s, s8 offen" % (vr(d, 4), t3, sr(SRD_J, 4)))
        z("s_lshr_b32 s8, s10, 5"); z("s_mul_i32 s8, s8, 37")
        z("s_lshl_b32 s11, s9, %d" % (3 if ROT else 8)); z("s_sub_u32 s11, s10, s11"); z("s_and_b32 s11, s11, 31"); z("s_add_u32 s8, s8, s11")
        z("s_sub_u32 s11, s10, 128"); z("s_lshr_b32 s6, s11, 2"); z("s_mul_i32 s6, s6, 37"); z("s_and_b32 s11, s11, 3"); z("s_add_u32 s6, s6, s11"); z("s_add_u32 s6, s6, 32")
        z("s_cmp_ge_u32 s10, 128"); z("s_cselect_b32 s8, s6, s8")
        z("s_mul_i32 s6, s10, 74"); z("s_sub_u32 s6, s6, %d" % (74 * 144 - 36))
        z("s_cmp_ge_u32 s10, 144"); z("s_cselect_b32 s8, s6, s8")
        z("s_mul_i32 s9, s9, 148"); z("s_add_u32 s9, s9, s8")
        z("s_mul_i32 s9, s9, 9728"); z("s_add_u32 s9, s9, %d" % WS_WP)
        z("v_lshlrev_b32 v%d, 4, v%d" % (t0, t0)); z("v_add_u32 v%d, s9, v%d" % (dst, t0))
        y = Seq()
        y("buffer_store_dwordx4 %s, v%d, %s, 0 offen sc1" % (vr(d, 4), dst, sr(SRD_WS2, 4)))
        return z, y
    def j3(ps):
        z = Seq(); d = RW + 8 * ps; tg = "OPT" if ps == 2 else None
        t0, t1, t2, t3, dst = JT + 1, JT + 2, JT + 3, JT + 9, 124 + ps
        z("s_mul_i32 s8, s%d, 72" % S_J); z("s_lshl_b32 s9, s%d, 3" % S_RG); z("s_add_u32 s8, s8, %s" % ("s9" if ps < 2 else "64"))
        if ps == 1: z("s_add_u32 s8, s8, 32")
        z("v_lshrrev_b32 v%d, 3, v%d" % (t0, vLANE)); z("v_add_u32 v%d, s8, v%d" % (t0, t0))
        z("v_bfe_u32 v%d, v%d, 1, 1" % (t1, t0)); z("v_bfe_u32 v%d, v%d, 3, 1" % (t2, t0)); z("v_lshl_add_u32 v%d, v%d, 1, v%d" % (t1, t2, t1))
        z("v_and_b32 v%d, 7, v%d" % (t2, vLANE)); z("v_lshlrev_b32 v%d, 1, v%d" % (t1, t1)); z("v_xor_b32 v%d, v%d, v%d" % (t1, t1, t2))
        z("s_mul_i32 s8, s%d, %d" % (S_H, 576 * 128)); z("s_add_u32 s8, s8, %d" % WS_WBF)
        z("v_lshlrev_b32 v%d, 4, v%d" % (t2, t2)); z("v_lshl_add_u32 v%d, v%d, 7, v%d" % (t2, t0, t2)); z("v_add_u32 v%d, s8, v%d" % (dst, t2))
        z("s_mul_i32 s8, s%d, 36" % S_H)
        z("v_mul_u32_u24 v%d, 3456, v%d" % (t2, t0)); z("v_add_u32 v%d, s8, v%d" % (d + 5, t2))
        z("v_lshlrev_b32 v%d, 1, v%d" % (d + 6, t0)); z("v_mov_b32 v%d, v%d" % (d + 7, t1))
        for k in range(4): z("v_mov_b32 v%d, 0" % (d + k))
        z("v_lshrrev_b32 v%d, 1, v%d" % (t0, t1)); z("v_and_b32 v%d, 1, v%d" % (t3, t1)); z("v_lshl_add_u32 v%d, v%d, 4, v%d" % (t2, t3, d + 5))
        z("v_mov_b32 v%d, 2304" % t3); z("v_cmp_eq_u32 vcc, 1, v%d" % t0); z("v_cndmask_b32 v%d, 0, v%d, vcc" % (t3, t3)); z("v_add_u32 v%d, v%d, v%d" % (t2, t2, t3))
        z("v_mov_b32 v%d, 1152" % t3); z("v_cmp_eq_u32 vcc, 2, v%d" % t0); z("v_cndmask_b32 v%d, 0, v%d, vcc" % (t3, t3)); z("v_add_u32 v%d, v%d, v%d" % (d + 4, t2, t3))
        ld = Seq()
        ld("v_cmp_eq_u32 vcc, 6, v%d" % (d + 7)); ld("v_cmp_gt_u32 s[8:9], 6, v%d" % (d + 7)); ld("s_mov_b64 exec, vcc")
        ld("buffer_load_ushort v%d, v%d, %s, 0 offen" % (d + 3, d + 6, sr(SRD_GATE, 4)), tag=tg)
        for k in range(3): ld("buffer_load_dword v%d, v%d, %s, 0 offen offset:%d" % (d + k, d + 5, sr(SRD_WB, 4), 1152 * k + 32), tag=tg)
        ld("s_mov_b64 exec, s[8:9]")
        x = I("buffer_load_dwordx4 %s, v%d, %s, 0 offen" % (vr(d, 4), d + 4, sr(SRD_WB, 4)), tag=tg); x.nowaw = True
        ld.l.append(x)
        ld("s_mov_b64 exec, -1")
        y = Seq()
        y("buffer_store_dwordx4 %s, v%d, %s, 0 offen sc1" % (vr(d, 4), dst, sr(SRD_WS, 4)), tag=tg or "J13")
        return z, y, ld
    def touch(n, dst):
        z = Seq(); na = 64 if n == 0 else 96
        g = Seq()
        g("s_lshr_b32 s8, s2, 3"); g("s_lshl_b32 s8, s8, 2"); g("s_add_u32 s8, s8, s%d" % S_RG)
        g("s_and_b32 s9, s8, 31"); g("s_lshl_b32 s9, s9, 16"); g("s_lshr_b32 s10, s8, 5"); g("s_lshl_b32 s10, s10, 7"); g("s_add_u32 s9, s9, s10"); g("s_add_u32 s9, s9, %d" % ((3 if n == 0 else 5) * 128))
        g("s_sub_u32 s10, s8, %d" % na); g("s_lshr_b32 s10, s10, 3"); g("s_add_u32 s10, s10, %d" % (4 if n == 0 else 12)); g("s_lshl_b32 s10, s10, 18")
        g("s_bfe_u32 s11, s8, 0x20001"); g("s_lshl_b32 s11, s11, 11"); g("s_add_u32 s10, s10, s11"); g("s_and_b32 s11, s2, 7"); g("s_lshl_b32 s11, s11, 8"); g("s_add_u32 s10, s10, s11")
        g("s_bitcmp1_b32 s8, 0"); g("s_cselect_b32 s12, s%d, s%d" % (P_UV, P_UK)); g("s_cselect_b32 s13, s%d, s%d" % (P_UV + 1, P_UK + 1))
        g("s_cmp_lt_u32 s8, %d" % na); g("s_cselect_b32 s12, s%d, s12" % P_CKV); g("s_cselect_b32 s13, s%d, s13" % (P_CKV + 1)); g("s_cselect_b32 s9, s9, s10")
        g("s_cselect_b32 s14, %d, s%d" % (2048 * 1024, SRD_W + 2)); g("s_cselect_b64 vcc, -1, 0")
        g("v_lshlrev_b32 v%d, 10, v%d" % (dst, vLANE)); g("v_lshrrev_b32 v24, 1, v%d" % vLANE); g("v_lshlrev_b32 v24, 13, v24"); g("v_and_b32 v25, 1, v%d" % vLANE)
        g("v_lshl_add_u32 v24, v25, 7, v24"); g("v_cndmask_b32 v%d, v24, v%d, vcc" % (dst, dst))
        g("buffer_load_dword v%d, v%d, s[12:15], s9 offen" % (dst, dst))
        return g.l
    def touch_wq(n, dst):
        g = Seq()
        g("s_lshr_b32 s8, s2, 3"); g("s_lshl_b32 s8, s8, 2"); g("s_add_u32 s8, s8, s%d" % S_RG); g("s_add_u32 s8, s8, %d" % (128 * n)); g("s_lshl_b32 s8, s8, 15")
        g("v_and_b32 v24, 1, v%d" % vLANE); g("v_lshlrev_b32 v24, 7, v24"); g("v_lshrrev_b32 v25, 4, v%d" % vLANE); g("v_lshl_add_u32 v24, v25, 13, v24")
        g("v_bfe_u32 v25, v%d, 2, 2" % vLANE); g("v_lshl_add_u32 v24, v25, 11, v24"); g("s_and_b32 s11, s2, 7"); g("s_lshl_b32 s11, s11, 8"); g("v_add_u32 v24, s11, v24")
        g("buffer_load_dword v%d, v24, %s, s8 offen" % (dst, sr(SRD_WQ, 4)))
        return g.l

    q("s_cmp_ge_u32 s%d, 4" % S_W); q("s_cbranch_scc1 F_B")
    pre, st0 = resolve_waits(q.l)
    outl = list(pre); cold = []
    WQS = [4, 5, 7, 1, 2, 3, 4, 5, 7]
    WBS = [6 * SLOT, 6 * SLOT + 8192, 0, 8192, 8 * SLOT, 8 * SLOT + 8192, 6 * SLOT, 6 * SLOT + 8192, 9 * SLOT + 8192]
    global W32
    for role in range(2):
        RN = "AB"[role]
        W32 = bool(role == 1 and B32)
        r = Seq()
        if role == 1: r.label("F_B")
        def dma_wq(i):
            g = []
            for e in range(2):
                z = Seq()
                if e == 0: z("s_add_u32 m0, s%d, %d" % (S_MW, WQS[i] * SLOT))
                z("s_mov_b32 s%d, %d" % (S_TMP, (i * 64 + role * 32) * 8192 + e * (4 * 8192 - 1024)))
                z("buffer_load_dwordx4 v%d, %s, s%d offen offset:%d lds" % (vWo, sr(SRD_WQ, 4), S_TMP, e * 1024), tag="W%d" % i)
                g.append(z.l)
            return g
        def dma_wb(i):
            z = Seq()
            z("s_add_u32 m0, s%d, %d" % (S_MB, WBS[i])); z("s_add_u32 s%d, s%d, %d" % (S_TMP, S_WBG, i * 8192))
            z("buffer_load_dwordx4 v%d, %s, s%d offen sc1 lds" % (vL16, sr(SRD_WS, 4), S_TMP), tag="W%d" % i)
            return [z.l]
        def ld_x(ks):
            g = []
            for rr in range(2):
                z = Seq()
                z("s_add_u32 s%d, s%d, %d" % (S_TMP, S_XB, (rr * 18 + ks) * 1024))
                z("buffer_load_dwordx4 %s, v%d, %s, s%d offen sc1" % (vr(XRS[ks % NXR] + 4 * rr, 4), vL16, sr(SRD_WS, 4), S_TMP))
                g.append(z.l)
            return g
        NM = 512
        extra = {f: [] for f in range(NM)}
        streams = []
        def spread(lst, a, per=int(os.environ.get("PER", 1))):
            streams.append([y_ for x_ in lst for y_ in (x_ if isinstance(x_, list) else [x_])])
            for k, ins in enumerate(lst): extra[a + k // per].extend(ins if isinstance(ins, list) else [ins])
            return a + (len(lst) + per - 1) // per
        def rd_w(i, cb):
            w = WF + 4 * ((8 * i + cb) % NWF); off = (i % 4) * 16384
            return Seq()("ds_read_b64_tr_b16 %s, v%d offset:%d" % (vr(w, 2), vWR + cb, off))("ds_read_b64_tr_b16 %s, v%d offset:%d" % (vr(w + 2, 2), vWR + cb, off + 1024)).l
        def rd_a(i, rbk):
            sl = (i >> 1) % 3
            base = vAR + (i & 1) + (2 if sl == 2 else 0); off = (32768 if sl == 1 else 0) + rbk * 2048
            return Seq()("ds_read_b128 %s, v%d offset:%d" % (vr(AF + 16 * (i & 1) + 4 * rbk, 4), base, off)).l
        B1, B2 = int(os.environ.get('B1', 9)), 10
        def arrive(name, fill, ta=30, tb=31):
            z = Seq(); z("v_mov_b32 v%d, s%d" % (ta, S_HUGE)); fill(z, ta, tb); z("v_mov_b32 v%d, 1" % tb)
            z("buffer_atomic_add v%d, v%d, %s, 0 offen" % (tb, ta, sr(SRD_DBG, 4)), tag="OPT")
            return w7_block(name, z).l
        def fill1(z, ta, tb):
            z("s_lshl_b32 s11, s%d, 2" % S_H); z("v_mov_b32 v%d, s11" % tb); z("v_cmp_eq_u32 vcc, 0, v%d" % vLANE); z("v_cndmask_b32 v%d, v%d, v%d, vcc" % (ta, ta, tb))
            z("s_lshr_b32 s11, s2, 4"); z("s_lshl_b32 s11, s11, 2"); z("s_add_u32 s11, s11, 128"); z("v_mov_b32 v%d, s11" % tb)
            z("v_cmp_eq_u32 vcc, 1, v%d" % vLANE); z("v_cndmask_b32 v%d, v%d, v%d, vcc" % (ta, ta, tb))
            z("s_and_b32 s11, s2, 7"); z("s_lshl_b32 s11, s11, 2"); z("s_add_u32 s11, s11, 224"); z("v_mov_b32 v%d, s11" % tb)
            z("v_cmp_eq_u32 vcc, 2, v%d" % vLANE); z("v_cndmask_b32 v%d, v%d, v%d, vcc" % (ta, ta, tb))
        def fill2(z, ta, tb):
            z("s_and_b32 s11, s2, 7"); z("s_lshl_b32 s11, s11, 2"); z("s_add_u32 s11, s11, 192"); z("v_mov_b32 v%d, s11" % tb)
            z("v_cmp_eq_u32 vcc, 0, v%d" % vLANE); z("v_cndmask_b32 v%d, v%d, v%d, vcc" % (ta, ta, tb))
        def publish1(i):
            z = Seq(); tags = ["U%d" % i] + (["A%d" % (i >> 1)] if i % 2 == 0 else [])
            if i == B1: tags += ["J13"]
            z.waitv(*tags)
            if i == 14 and role == 1:
                y_ = Seq(); y_("s_waitcnt vmcnt(4)", tag="OPT"); poll_check(y_, "P1", 26, 25, 24, SRD_DBG, "0"); z.ext(w7_block("F_P1C", y_))
            z("s_barrier")
            if i % 2 == 0: ST(z, 1 + i // 2)
            return z.l
        DW = 4
        for i in range(16):
            for cb in range(8):
                n = 8 * i + cb - DW
                if n >= 0:
                    if cb == 0: extra[4 * n].extend(publish1(i))
                    t_ = rd_w(i, cb); extra[4 * n].insert(len(extra[4 * n]) if cb == 0 else 0, t_[0]); extra[4 * n + 1].insert(0, t_[1])
            if i > 0:
                for rbk in range(4): extra[32 * (i - 1) + 18 + 4 * rbk].insert(0, rd_a(i, rbk)[0])
                g = []
                if i == 12 and role == 1:
                    z = Seq()
                    z("v_lshrrev_b32 v24, 2, v%d" % vL16); poll_issue(z, 26, 24, SRD_DBG, "0", tag="OPT")
                    z("v_cmp_eq_u32 vcc, s%d, v%d" % (S_H, vLANE)); z("v_cndmask_b32 v25, 0, 8, vcc")
                    z("s_add_u32 s8, s%d, 32" % S_J); z("v_cmp_eq_u32 vcc, s8, v%d" % vLANE); z("v_cndmask_b32 v25, v25, 16, vcc")
                    z("s_sub_u32 s8, 47, s%d" % S_J); z("v_cmp_eq_u32 vcc, s8, v%d" % vLANE); z("v_cndmask_b32 v25, v25, 16, vcc")
                    g.append(w7_block("F_P1I", z).l)
                if role == 0:
                    if i + 2 < 16 and i >= 2: g += dma_w(i + 2) + dma_w(i + 2, 1)
                    if i % 2 == 1 and i >= 3 and (i >> 1) + 2 < 8: g += dma_a((i >> 1) + 2) + dma_a((i >> 1) + 2, 1)
                if i == 13: g += dma_wq(0) + dma_wq(1)
                if i == 14: g += dma_wb(0) + dma_wb(1)
                if i == 15: g += dma_wq(2) + dma_wq(3) + dma_wb(2) + dma_wb(3)
                if role == 1 and i == B1: g.append(arrive("F_AR1", fill1))
                for k, l in enumerate(g): extra[32 * (i - 1) + 17 + (2 if len(g) < 8 else 1) * k].extend(l)
        if role == 0: mk_srd(r, SRD_X, P_UV, 512 * 8192)
        else:
            J = [j1(k) for k in range(3)] + [j3(k) for k in range(3)]
            if TOUCH > 1: r.ext(touch(0, 27))
            w4 = lambda nm, k: Seq()("s_cmp_lg_u32 s%d, 4" % S_W)("s_cbranch_scc1 %s" % nm).l + cp(J[2][k]) + cp(J[5][k]) + Seq().label(nm).l
            lds_ = [w4("F_Z4", 2)] + [cp(J[k][2]) for k in (0, 1, 3, 4)]
            if JMODE == 0:
                p = 2
                for x_ in J: p = spread(cp(x_[0]), p, 2)
                for l in lds_: extra[p].extend(l); p += LSTEP
            else:
                for x_ in J: r.ext(cp(x_[0]))
                for l in lds_: r.ext(l)
                p = 0
            p += GAP
            for l in [cp(J[4][1]), w4("F_Y4", 1)] + [cp(J[k][1]) for k in (0, 1, 3)]: extra[p].extend(l); p += YSTEP
            assert p < 32 * (B1 - 1) + 8, p
            if TOUCH: extra[p + 8].extend(touch_wq(0, 29)); extra[p + 16].extend(Seq()("s_cmp_ge_u32 s2, 32")("s_cbranch_scc1 F_TQ").l + [I(x.text, tag="OPT") for x in touch_wq(1, 19)] + Seq().label("F_TQ").l)
        for ks in range(5):
            for k, l in enumerate(ld_x(ks)): extra[32 * 13 + 24 + 4 * ks + 2 * k].extend(l)
        r.ext(publish1(0))
        for rbk in range(4): r.ext(rd_a(0, rbk))
        for cb in range(DW): r.ext(rd_w(0, cb))
        for f in range(NM):
            i, cb, rbk = f >> 5, (f >> 2) & 7, f & 3
            acc = vr(ACC + 4 * (4 * cb + rbk), 4); w = vr(WF + 4 * ((8 * i + cb) % NWF), 4); a = vr(AF + 16 * (i & 1) + 4 * rbk, 4)
            ops = (w, a) if role == 0 else (a, w)
            r("%s %s, %s, %s, %s" % (MF, acc, ops[0], ops[1], "0" if i == 0 else acc))
            r.ext(extra[f])
        ST(r, 9)
        NF = 216
        extra = {f: [] for f in range(2 * NF)}
        FO = [(n // 12, n % 12) for n in range(192)] + [(k, p) for k in (16, 17) for p in range(8, 12)] + [(k, p) for k in (16, 17) for p in range(8)]
        def rd_q(n):
            ks, ph = FO[n]; s1 = ks & 1; w = FR + 4 * (n % 8)
            if ph < 8:
                return Seq()("ds_read_b64_tr_b16 %s, v%d offset:%d" % (vr(w, 2), vWR + ph, s1 * 8192))("ds_read_b64_tr_b16 %s, v%d offset:%d" % (vr(w + 2, 2), vWR + ph, s1 * 8192 + 1024)).l
            return Seq()("ds_read_b64_tr_b16 %s, v%d offset:%d" % (vr(w, 2), vBB[ph - 8], s1 * 4096))("ds_read_b64_tr_b16 %s, v%d offset:%d" % (vr(w + 2, 2), vBB[ph - 8], s1 * 4096 + 512)).l
        BKV = 5
        def publish(i):
            z = Seq()
            d = ((WQS[i] - WQS[i - 1]) * SLOT if i else WQS[0] * SLOT - WB - role * 8192) & 0xffffffff
            for cb in range(8):
                if "r" not in XQ or i == 0: z("v_add_u32 v%d, 0x%x, v%d" % (vWR + cb, d, vWR + cb))
            if i and "r" in XQ: pass
            elif i:
                for b in vBB: z("v_add_u32 v%d, 0x%x, v%d" % (b, (WBS[i] - WBS[i - 1]) & 0xffffffff, b))
            else:
                z("v_lshrrev_b32 v13, 4, v%d" % vLANE); z("v_bfe_u32 v14, v%d, 2, 2" % vLANE); z("v_lshl_add_u32 v15, v13, 3, v14"); z("v_lshlrev_b32 v15, 7, v15")
                z("v_lshrrev_b32 v14, 1, v14"); z("v_and_b32 v13, 1, v13"); z("v_lshl_add_u32 v14, v13, 1, v14"); z("v_lshl_add_u32 v15, v14, 5, v15")
                z("v_and_b32 v14, 3, v%d" % vLANE); z("v_lshl_add_u32 v15, v14, 3, v15"); z("v_add_u32 v%d, %d, v15" % (vBB[0], WBS[0]))
                for b in range(1, 4): z("v_xor_b32 v%d, %d, v%d" % (vBB[b], 32 * b, vBB[0]))
            z.waitv(*(["W%d" % i] + (["KVS"] if i == BKV else [])))
            z("s_barrier")
            ST(z, 10 + i)
            return z.l
        def kv_obj(kind, t, slot):
            z = Seq()
            z("s_add_u32 m0, s%d, %d" % (S_W4K, slot * SLOT)); z("s_add_u32 s%d, s%d, %d" % (S_TMP, S_KG if kind == "K" else S_VG, t * SLOT))
            for e in range(4): z("buffer_load_dwordx4 v%d, %s, s%d offen offset:%d sc1 lds" % (vL16, sr(SRD_WS, 4), S_TMP, 1024 * e), tag="%s%d" % (kind, t))
            return [z.l]
        phl = Seq()
        phl("s_mul_i32 s6, s%d, 648" % S_H); mk_srd(phl, SRD_PHI, P_PHI, 648, add="s6")
        phl("s_lshl_b32 s6, s%d, 8" % S_W); phl("s_add_u32 m0, s6, %d" % PHL); phl("v_lshrrev_b32 v13, 2, v%d" % vL16)
        phl("buffer_load_dword v13, %s, s6 offen lds" % sr(SRD_PHI, 4), tag="W5")
        DWQ = 5
        after = {0: dma_wq(4) + dma_wb(4) + dma_wq(5) + dma_wb(5) + [phl.l], 2: dma_wq(6) + dma_wb(8), 3: dma_wq(7) + dma_wb(6) + dma_wb(7), 4: dma_wq(8)}
        if role == 1:
            fb = Seq(); fb("s_lshl_b32 s6, s%d, 7" % S_H); fb("s_lshl_b32 s8, s%d, 2" % S_J); fb("s_add_u32 s6, s6, s8"); fb("s_add_u32 s6, s6, %d" % FL_KV)
            fbe = Seq().ext(cp(fb)); fbe("s_cmp_ge_u32 s%d, 6" % S_J); fbe("s_cselect_b32 s6, s6, s%d" % S_HUGE)
            after[BKV] = [w7_block("F_FKV", flag_store(fbe, 13, 14)).l]
            fkv_late = w7_block("F_FKV2", flag_store(fb, 8, 9))
        else:
            z = Seq()
            z("v_lshrrev_b32 v13, 2, v%d" % vL16); z("v_mov_b32 v15, s%d" % S_HUGE); z("v_xor_b32 v14, 7, v%d" % vLANE); z("v_cmp_gt_u32 vcc, 2, v14")
            z("v_cndmask_b32 v13, v15, v13, vcc"); z("v_cndmask_b32 v15, 0, 1, vcc")
            z("s_lshl_b32 s9, s%d, 7" % S_H); z("s_add_u32 s9, s9, %d" % FL_KV)
            poll_issue(z, 14, 13, SRD_WS, "s9")
            after[6] = [z.l]
            z = Seq(); poll_check(z, "P2A", 14, 15, 13, SRD_WS, "s9")
            after[7] = [z.l] + kv_obj("K", 0, 0) + kv_obj("K", 1, 1)
            after[8] = kv_obj("V", 0, 4) + kv_obj("K", 2, 2)
        for n in range(DWQ, NF):
            pos = 2 * (n - DWQ)
            if n % 24 == 0:
                extra[pos].extend(publish(n // 24))
                for k, l in enumerate(after.get(n // 24, [])): extra[pos + 2 + k].extend(l)
            t_ = rd_q(n); extra[pos].insert(len(extra[pos]) if n % 24 == 0 else 0, t_[0]); extra[pos + 1].insert(0, t_[1])
        for k, l in enumerate(after[0]): extra[1 + k].extend(l)
        pk = Seq(); sts = []
        order = list(range(8, 16)) + list(range(8))
        free = []
        for n in order:
            if role == 0:
                j, rbk = n >> 2, n & 3
                b0, b1 = ACC + 4 * (8 * j + rbk), ACC + 4 * (8 * j + 4 + rbk); fi = 4 * rbk + j
            else:
                cb, u = n >> 1, n & 1
                b0, b1 = ACC + 4 * (4 * cb + 2 * u), ACC + 4 * (4 * cb + 2 * u + 1); fi = 8 * u + cb
            if n >= 8: t = b0; free.append(b1)
            else: t = free.pop(0)
            pk("v_cvt_pk_bf16_f32 v%d, v%d, v%d" % (t, b0, b0 + 1)); pk("v_cvt_pk_bf16_f32 v%d, v%d, v%d" % (t + 1, b0 + 2, b0 + 3))
            pk("v_cvt_pk_bf16_f32 v%d, v%d, v%d" % (t + 2, b1, b1 + 1)); pk("v_cvt_pk_bf16_f32 v%d, v%d, v%d" % (t + 3, b1 + 2, b1 + 3))
            sts.append((t, fi))
        sts.sort()
        mkst = lambda t, fi, base, tag: I("buffer_store_dwordx4 %s, v%d, %s, s%d offen offset:%d sc1" % (vr(t, 4), vL16, sr(SRD_WS, 4), base + (fi >> 2), (fi & 3) * 1024), tag=tag)
        for k, (t, fi) in enumerate(sts):
            for (pos, br, nm) in ((8 + 10 * k, "scc0", "E"), (13 + 20 * k, "scc1", "L")):
                z = Seq(); z("s_cmp_ge_u32 s%d, 6" % S_J); z("s_cbranch_%s KS%s%s%d" % (br, RN, nm, k))
                z.ext([mkst(t, fi, S_ST, "OPT")]); z.label("KS%s%s%d" % (RN, nm, k))
                if "s" not in XQ: extra[pos].extend(z.l)
        for ks in range(18 - NXR):
            for k, l in enumerate(ld_x(ks + NXR)):
                if ks == 6: l[-1].tag = "KVS"
                if "x" not in XQ: extra[24 * ks + 24 + XS0 + XSP * k + XSB * role].extend(l)
        z = Seq()
        z("s_lshl_b32 s6, s%d, 19" % S_H); z("s_add_u32 s%d, s6, s%d" % (S_KG, S_W4K)); z("s_add_u32 s%d, s%d, %d" % (S_VG, S_KG, WS_VF))
        z("s_lshr_b32 s%d, s%d, 6" % (S_TL, S_ROW0))
        z("s_lshl_b32 s6, s%d, 1" % S_J); z("s_sub_u32 s%d, 31, s6" % S_TBM)
        c = f2u(LOG2E / (128 ** 0.5))
        z("s_mov_b32 s%d, 0x%x" % (S_C, c)); z("s_mov_b32 s%d, 0x%x" % (S_C + 1, c)); z("s_mov_b32 s%d, 0x%x" % (S_L2E, f2u(LOG2E)))
        z("s_mul_i32 s6, s%d, %d" % (S_TL, NSTEP * 4096)); z("s_lshr_b32 s8, s%d, 4" % S_ROW0); z("s_and_b32 s8, s8, 3"); z("s_lshl_b32 s8, s8, 10")
        z("s_add_u32 s6, s6, s8"); z("s_add_u32 s%d, s6, %d" % (S_AP, WS_AP))
        z("v_lshrrev_b32 v22, 4, v%d" % vLANE); z("v_cmp_gt_u32 vcc, 2, v22"); z("v_cndmask_b32 v%d, 0, 1.0, vcc" % vM5)
        z("v_mov_b32 v%d, 0xff800000" % vNINF)
        streams.append(z.l)
        for k, ins in enumerate(z.l): extra[200 + k].append(ins)
        RAW, PH = 192, 208
        z = Seq(); y = phi_gather(z, RAW, PH, RAW + 12, RAW + 13); streams.append(z.l)
        for k, ins in enumerate(z.l): extra[340 + k].append(ins)
        U, VM, PK, EE, T8, LK = 88, 112, 216, 160, 120, 192
        blk = lambda b, rho: DB + 4 * (2 * b + rho)
        t_ = Seq(); t_.ext(y)
        t_("v_and_b32 v%d, 15, v%d" % (T8, vLANE)); t_("v_lshlrev_b32 v%d, 2, v%d" % (T8, T8)); t_("v_add_u32 v%d, 64, v%d" % (T8, T8))
        for rho in range(2):
            t, u = TK + 4 * rho, U + 4 * rho
            for (d, b) in ((u, 2), (t + 2, 3)):
                t_("v_cvt_pk_bf16_f32 v%d, v%d, v%d" % (d, blk(b, rho), blk(b, rho) + 1)); t_("v_cvt_pk_bf16_f32 v%d, v%d, v%d" % (d + 1, blk(b, rho) + 2, blk(b, rho) + 3))
            t_("v_mov_b32 v%d, v%d" % (u + 2, t + 3)); t_("v_mov_b32 v%d, v%d" % (u + 3, t + 2))
        for rho in range(2): t_("ds_bpermute_b32 v%d, v%d, v%d" % (vG[rho], T8, blk(3, rho) + 2))
        for mu in range(2):
            for rho in range(2): t_("%s %s, %s, %s, 0" % (MF, vr(PK + 8 * mu + 4 * rho, 4), vr(PH + 4 * mu, 4), vr(U + 4 * rho, 4)))
        for rho in range(2):
            t = TK + 4 * rho
            for (d, b) in ((t, 0), (VM + 4 * rho, 1)):
                t_("v_cvt_pk_bf16_f32 v%d, v%d, v%d" % (d, blk(b, rho), blk(b, rho) + 1)); t_("v_cvt_pk_bf16_f32 v%d, v%d, v%d" % (d + 1, blk(b, rho) + 2, blk(b, rho) + 3))
            t_("v_mov_b32 v%d, v%d" % (VM + 4 * rho + 2, t + 2)); t_("v_mov_b32 v%d, 0x3f80" % (VM + 4 * rho + 3))
        for rho in range(2):
            g = vG[rho]
            t_("v_mul_f32 v%d, s%d, v%d" % (g, S_L2E, g)); t_("v_exp_f32 v%d, -v%d" % (g, g)); t_("v_add_f32 v%d, 1.0, v%d" % (g, g)); t_("v_rcp_f32 v%d, v%d" % (g, g))
        softmax5(t_, PK, EE, T8, LK)
        streams.append(t_.l)
        t0_ = 2 * 200 + 2; span = 2 * NF - t0_
        for k, ins in enumerate(t_.l): extra[t0_ + (k * span) // len(t_.l)].append(ins)
        r.ext(publish(0))
        for n in range(DWQ): r.ext(rd_q(n))
        r.ext(pk)
        for n in range(NF):
            ks, ph = FO[n]
            for rho in range(2):
                acc = vr(qacc(ph, rho) if ph < 8 else (DB + 4 * (2 * (ph - 8) + rho)), 4)
                r("%s %s, %s, %s, %s" % (MF, acc, vr(FR + 4 * (n % 8), 4), vr(XRS[ks % NXR] + 4 * rho, 4), "0" if ks == 0 else acc))
                xl = extra[2 * n + rho]
                if "d" in XQ and 48 <= 2 * n < 300: xl = [x_ for x_ in xl if x_.kind != "dma"]
                if "b" in XQ and 48 <= 2 * n < 300: xl = [x_ for x_ in xl if x_.kind != "barrier"]
                r.ext(xl)
        ST(r, 20)
        vF = 4
        FB0 = 6 * SLOT
        r("v_and_b32 v6, 15, v%d" % vLANE); r("v_lshrrev_b32 v7, 4, v%d" % vLANE)
        r("s_mul_i32 s6, s%d, 5376" % S_W); r("s_add_u32 s6, s6, %d" % FB0)
        r("v_mul_u32_u24 v8, 168, v6"); r("v_lshl_add_u32 v8, v7, 3, v8"); r("v_add_u32 v%d, s6, v8" % vF)
        if W32:
            r("v_lshlrev_b32 v9, 4, v6"); r("v_lshrrev_b32 v8, 1, v7"); r("v_lshl_add_u32 v9, v8, 8, v9"); r("v_and_b32 v8, 1, v7")
            r("v_lshl_add_u32 v%d, v8, 12, v9" % vKA); r("v_lshl_add_u32 v%d, v8, 10, v9" % (vLs + 1))
        else: r("v_mov_b32 v%d, v%d" % (vKA, vL16))
        if role == 0: r.waitv("K0")
        else: r("s_waitcnt vmcnt(0)")
        r("s_barrier")
        for rho in range(2):
            for b in range(3): r("ds_write_b64 v%d, %s offset:%d" % (vF, vr(LK + 8 * rho + 2 * b, 2), 2688 * rho + 32 * b), tag="FW")
            for b in range(2): r("ds_write_b64 v%d, %s offset:%d" % (vF, vr(VM + 4 * rho + 2 * b, 2), 2688 * rho + 96 + 32 * b), tag="FW")
        if role == 0: r.ext(flat(kv_obj("V", 1, 5)))
        else: r.ext(fkv_late)
        for n in range(8): r.ext([rd_frag("K", n, n)])
        for qb in range(2):
            for js in range(4):
                for hb in range(2):
                    a = qacc(2 * js + hb, qb)
                    r("v_pk_mul_f32 %s, %s, s[%d:%d]" % (vr(a, 2), vr(a, 2), S_C, S_C + 1)); r("v_pk_mul_f32 %s, %s, s[%d:%d]" % (vr(a + 2, 2), vr(a + 2, 2), S_C, S_C + 1))
                    d = Q + 16 * qb + 4 * js + 2 * hb
                    r("v_cvt_pk_bf16_f32 v%d, v%d, v%d" % (d, a, a + 1)); r("v_cvt_pk_bf16_f32 v%d, v%d, v%d" % (d + 1, a + 2, a + 3))
        if W32:
            for op in ("v_permlane16_swap_b32", "v_permlane32_swap_b32"):
                for i in range(16): r("%s v%d, v%d" % (op, Q + i, Q + 16 + i))
            r("v_and_b32 v8, 31, v%d" % vLANE); r("v_lshrrev_b32 v9, 5, v%d" % vLANE); r("v_lshlrev_b32 v9, 2, v9"); r("v_sub_u32 v8, v8, v9")
            r("v_add_u32 v%d, s%d, v8" % (vQ, S_ROW0)); r("v_mov_b32 v%d, 0" % vLs)
        else:
            r("v_lshlrev_b32 v8, 2, v7"); r("v_sub_u32 v8, v6, v8")
            r("v_add_u32 v%d, s%d, v8" % (vQ, S_ROW0)); r("v_add_u32 v%d, 16, v%d" % (vQ + 1, vQ))
            r("v_mov_b32 v%d, 0" % vLs); r("v_mov_b32 v%d, 0" % (vLs + 1))
        r("v_mov_b32 v%d, 0x44800000" % vTHR())
        r("s_mov_b32 s%d, 0xffff" % S_KR); r("v_mov_b32 v%d, 0x10000" % vC64); r("v_add_u32 v%d, 0x10000, v%d" % (vVA, vLs + 1 if W32 else vL16)); r("s_mov_b32 s%d, 0" % S_T)
        CA, CB, CD, ZR = 128, 160, 64, 68
        r("s_cmp_ge_u32 s%d, 3" % S_W); r("s_cselect_b32 s6, 1, 0"); r("s_mul_i32 s8, s6, 3"); r("s_sub_u32 s8, s%d, s8" % S_W)
        r("v_bfe_u32 v8, v%d, 2, 2" % vLANE); r("v_lshl_add_u32 v8, v7, 3, v8")
        r("v_and_b32 v9, 3, v%d" % vLANE); r("v_lshlrev_b32 v9, 3, v9")
        r("v_mul_u32_u24 v21, 168, v8"); r("v_add_u32 v21, v21, v9")
        r("s_lshl_b32 s9, s8, 5"); r("s_add_u32 s9, s9, %d" % FB0); r("v_add_u32 v4, s9, v21")
        r("s_lshl_b32 s9, s6, 5"); r("s_add_u32 s9, s9, %d" % (FB0 + 96)); r("v_add_u32 v6, s9, v21")
        for i in range(4): r("v_mov_b32 v%d, 0" % (ZR + i))
        ST(r, 21)
        r.waitv("FW")
        r("s_barrier")
        ST(r, 22)
        for n in range(8, DRD): r.ext([rd_frag("K", n, n)])
        crd = []
        for ks in range(8):
            for (dst, a) in ((CA, 4), (CB, 6)):
                crd += Seq()("ds_read_b64_tr_b16 %s, v%d offset:%d" % (vr(dst + 4 * ks, 2), a, 5376 * ks))("ds_read_b64_tr_b16 %s, v%d offset:%d" % (vr(dst + 4 * ks + 2, 2), a, 5376 * ks + 4 * 168)).l
        slots = []
        for k in range(8): slots.append(mkslot(qk_mfmas(k, 0, k, lambda qb: "0")))
        for n in range(8):
            if n + DRD < 16: slots[n]["rd"].append(rd_frag("K", n + DRD, n + DRD))
            slots[n]["mid"].extend(crd[4 * n:4 * n + 2]); slots[n]["rd"].extend(crd[4 * n + 2:4 * n + 4])
        if W32: slots[7]["end"].append(I("s_nop 3"))
        r.ext(emit_slots(slots))
        for ks in range(8): r("%s %s, %s, %s, %s" % (MF, vr(CD, 4), vr(CA + 4 * ks, 4), vr(CB + 4 * ks, 4), "0" if ks == 0 else vr(CD, 4)))
        r("s_cmp_lg_u32 s%d, 0" % S_TL); r("s_cbranch_scc1 %s_NM" % RN)
        r("s_nop 4")
        r.ext(mask_ops(0, 0))
        r.label("%s_NM" % RN)
        G0 = row_max(r, 0, False)
        r("s_lshl_b32 s9, s%d, 3" % S_H); r("s_add_u32 s9, s9, s%d" % S_J); r("s_mul_i32 s9, s9, 6144"); r("s_add_u32 s9, s9, s%d" % S_MB); r("s_add_u32 s9, s9, %d" % WS_KVP)
        if role == 1: r("s_cmp_ge_u32 s%d, 6" % S_W); r("s_cselect_b32 s9, s%d, s9" % S_HUGE)
        zs = [I("%s %s, %s, %s, 0" % (MF, vr(O + 4 * i, 4), vr(ZR, 4), vr(ZR, 4))) for i in range(16)]
        z = Seq(); row_red(z, "v_max_f32")
        z("buffer_store_dwordx4 %s, v%d, %s, s9 offen sc1" % (vr(CD, 4), vL16, sr(SRD_WS, 4)))
        for (d, es, os_, ng, l_) in G0:
            for x_ in ng: z("v_sub_f32 v%d, 0, v%d" % (x_, d))
        for (d, es, os_, ng, l_) in G0:
            for e_ in es: z("v_sub_f32 v%d, v%d, v%d" % (sreg(0, e_), sreg(0, e_), d))
        r.ext(interleave([[x_] for x_ in zs], z.l))
        r("s_lshl_b32 s6, s%d, 6" % S_TL)
        r("v_subrev_u32 v%d, s6, v%d" % (vQ, vQ))
        if not W32: r("v_subrev_u32 v%d, s6, v%d" % (vQ + 1, vQ + 1))
        slots = []
        for k in range(8): slots.append(mkslot(qk_mfmas(k, 1, 8 + k, NEGC)))
        place_sm(slots, 0, 8, 0, None, None, carry=False)
        r.ext(emit_slots(slots))
        r.waitv("K1", "V0")
        r("s_barrier")
        if role == 0:
            r("s_add_u32 s%d, s%d, %d" % (S_KL, S_W4K, 3 * SLOT)); r("s_add_u32 s%d, s%d, %d" % (S_VL, S_W4K, 6 * SLOT))
            r("s_add_u32 s%d, s%d, %d" % (S_KG, S_KG, 3 * SLOT)); r("s_add_u32 s%d, s%d, %d" % (S_VG, S_VG, 2 * SLOT))
            r("v_lshrrev_b32 v8, 2, v%d" % vL16); r("v_mov_b32 v7, s%d" % S_HUGE); r("v_cmp_gt_u32 vcc, 8, v%d" % vLANE)
            r("v_cndmask_b32 v8, v7, v8, vcc"); r("v_cndmask_b32 v7, 0, 1, vcc"); r("s_lshl_b32 s15, s%d, 7" % S_H); r("s_add_u32 s15, s15, %d" % FL_KV)
            px_group(r, S_PXO, 8); r("s_lshl_b32 s%d, s%d, 2" % (S_PXO, S_PXO)); r("s_and_b32 s8, s%d, 3" % S_H); r("s_add_u32 s%d, s%d, s8" % (S_PXO, S_PXO))
            r("s_mul_i32 s%d, s%d, 40960" % (S_PXO, S_PXO)); r("s_mul_i32 s8, s%d, 5120" % S_W); r("s_add_u32 s%d, s%d, s8" % (S_PXO, S_PXO)); r("s_add_u32 s%d, s%d, %d" % (S_PXO, S_PXO, WS_PX))
            r("s_mov_b32 m0, s%d" % S_KL)
            for e in range(4): r("buffer_load_dwordx4 v%d, %s, s%d offen offset:%d sc1 lds" % (vL16, sr(SRD_WS, 4), S_KG, 1024 * e))
            r("s_add_u32 s%d, s%d, %d" % (S_KG, S_KG, SLOT)); r("s_mov_b32 s%d, s%d" % (S_KL, S_W4K))
            r.ext(pkg())
        if (role == 1 and PRIO) or PRIO == 2: r("s_setprio 1")
        if stamp: r.ext(STAMP(23)); r.ext(RSTAMP(62))
        if DIAG: r("s_mov_b32 s96, 600"); r("s_mov_b32 s98, 600")
        main, st1 = resolve_waits(r.l, st0)
        verify_streams(main, streams, "f")
        st1.vm = []
        rares = []
        z = Seq()
        z("s_cmp_eq_u32 s%d, 0" % S_TL); z("s_cbranch_scc1 %s_PV" % RN)
        z.ext(adv(vKA))
        for n in range(DRD): z.ext([rd_frag("K", n, n) if n < 8 else rd_frag("V", n - 8, n)])
        z("s_cmp_le_u32 s%d, 1" % S_TL); z("s_cbranch_scc1 %s_S1" % RN)
        lz, stl = resolve_waits(z.l, st1)
        main += lz
        tmp = []
        b1, s1 = resolve_waits(iteration(role, "S", tmp), stl); s1.vm = []
        b2, s2 = resolve_waits(iteration(role, "S", rares), s1); s2.vm = []
        assert [x.text for x in b1] == [x.text for x in b2] and s1.sig() == s2.sig(), "loop not steady"
        if ALN >= 0: main += Seq()(".p2align 6").l + [I("s_nop 0") for _ in range(ALN)]
        if AL8: b2 = align8(fix_hazards(b2))
        main += Seq().label("%s_LOOP" % RN).l + b2 + Seq()("s_cmp_lt_u32 s6, s%d" % S_TL)("s_cbranch_scc1 %s_LOOP" % RN)("s_branch %s_S1" % RN).l
        z = Seq(); z.label("%s_PV" % RN)
        for n in range(DRD): z.ext([rd_frag("V", n, n)])
        z("s_branch %s_S2" % RN)
        lz, _ = resolve_waits(z.l, st1)
        main += lz
        b, s3 = resolve_waits(iteration(role, "S1", rares), s1); s3.vm = []
        main += Seq().label("%s_S1" % RN).l + b + Seq()("s_add_u32 s%d, s%d, 1" % (S_T, S_T)).l
        b, s4 = resolve_waits(iteration(role, "S2", rares), s3); s4.vm = []
        main += Seq().label("%s_S2" % RN).l + b
        e = Seq()
        if stamp: e.ext(STAMP(24)); e.ext(RSTAMP(63))
        vFL, vFO, vFN = 4, 5, 6
        if role == 0:
            e("s_setprio 0")
            e("v_lshrrev_b32 v%d, 2, v%d" % (vFO, vL16)); e("v_mov_b32 v%d, s%d" % (vFN, S_HUGE)); e("v_cmp_gt_u32 vcc, 8, v%d" % vLANE)
            e("v_cndmask_b32 v%d, v%d, v%d, vcc" % (vFO, vFN, vFO)); e("v_cndmask_b32 v%d, 0, 1, vcc" % vFN)
            e("s_lshl_b32 s14, s%d, 7" % S_H); e("s_add_u32 s14, s14, %d" % FL_KP)
            poll_issue(e, vFL, vFO, SRD_WS, "s14")
        if W32:
            red1(e, vLs, "v_add_f32", 4)
            e("v_rcp_f32 v%d, v%d" % (vLs, vLs)); e("v_and_b32 v4, 16, v%d" % vLANE); e("v_cmp_ne_u32 vcc, 0, v4")
            e("v_cndmask_b32 v4, v%d, v%d, vcc" % (vG[0], vG[1])); e("v_mul_f32 v4, v4, v%d" % vLs); e("v_mov_b32 v5, v4")
            e("s_lshl_b32 s6, s%d, 14" % S_H); e("s_add_u32 s6, s6, s%d" % S_AP)
            for js in range(4):
                for t_ in range(2):
                    t = FR + 4 * ((2 * js + t_) % 8)
                    for hb in range(2):
                        a = O + 16 * js + 4 * (t_ + 2 * hb)
                        e("v_pk_mul_f32 %s, %s, v[4:5]" % (vr(a, 2), vr(a, 2))); e("v_pk_mul_f32 %s, %s, v[4:5]" % (vr(a + 2, 2), vr(a + 2, 2)))
                        e("v_cvt_pk_bf16_f32 v%d, v%d, v%d" % (t + 2 * hb, a, a + 1)); e("v_cvt_pk_bf16_f32 v%d, v%d, v%d" % (t + 2 * hb + 1, a + 2, a + 3))
                    e("buffer_store_dwordx4 %s, v%d, %s, s6 offen offset:%d sc1" % (vr(t, 4), vLs + 1, sr(SRD_WS, 4), 512 * t_))
                if js < 3: e("s_add_u32 s6, s6, 4096")
        else:
            red2(e, vLs, vLs + 1, "v_add_f32", E_)
            for qb in range(2):
                e("v_rcp_f32 v%d, v%d" % (vLs + qb, vLs + qb)); e("v_mul_f32 v%d, v%d, v%d" % (E_ + 2 * qb, vLs + qb, vG[qb])); e("v_mov_b32 v%d, v%d" % (E_ + 2 * qb + 1, E_ + 2 * qb))
            e("s_lshl_b32 s6, s%d, 14" % S_H); e("s_add_u32 s6, s6, s%d" % S_AP)
            for js in range(4):
                for qb in range(2):
                    t = FR + 4 * ((2 * js + qb) % 8)
                    for hb in range(2):
                        a = O + 8 * (2 * js + hb) + 4 * qb
                        e("v_pk_mul_f32 %s, %s, %s" % (vr(a, 2), vr(a, 2), vr(E_ + 2 * qb, 2))); e("v_pk_mul_f32 %s, %s, %s" % (vr(a + 2, 2), vr(a + 2, 2), vr(E_ + 2 * qb, 2)))
                        e("v_cvt_pk_bf16_f32 v%d, v%d, v%d" % (t + 2 * hb, a, a + 1)); e("v_cvt_pk_bf16_f32 v%d, v%d, v%d" % (t + 2 * hb + 1, a + 2, a + 3))
                    e("buffer_store_dwordx4 %s, v%d, %s, s6 offen offset:%d sc1" % (vr(t, 4), vL16, sr(SRD_WS, 4), 1024 * qb))
                if js < 3: e("s_add_u32 s6, s6, 4096")
        ST(e, 25)
        if role == 0:
            e("s_sub_u32 s6, s%d, %d" % (S_J, JLO)); e("s_cmp_ge_u32 s6, %d" % JN); e("s_cbranch_scc1 A_LD")
            e("s_mul_i32 s8, s%d, %d" % (S_H, JN)); e("s_add_u32 s6, s6, s8"); e("s_lshl_b32 s6, s6, 2"); e("s_add_u32 s6, s6, s%d" % S_W); e("s_mul_i32 s%d, s6, %d" % (S_JU, sum(JG)))
            e("s_mov_b32 s%d, %d" % (S_WOSZ, 4096 * 1152)); e("s_mov_b32 s%d, 0x00020000" % (SRD_J + 3))
            mk_srd(e, SRD_WS2, P_WS, WS_WP + 16 * 37 * 9728)
            e("s_cmp_ge_u32 s%d, 2" % S_W); e("s_cbranch_scc1 A_J0")
            e("s_add_u32 s%d, s%d, 1" % (S_T, S_T)); e.ext(sync_block(0, "JP"))
            e.label("A_J0")
            assert sum(JG) * JN * 128 >= 5256 and sum(JG) * JN * 128 <= 6144
            jb = [j2(i, 56 + 4 * (i % 10), 96, 100 + (i % 10)) for i in range(sum(JG))]
            grp = [range(sum(JG[:k]), sum(JG[:k + 1])) for k in range(len(JG))]
            G_ = len(JG); nops = [(JG[k] if k < G_ else 0) + (JG[k - 1] if 1 <= k <= G_ else 0) for k in range(G_ + 3)]
            assert 2 * (JLO + JN - 1) + 2 + G_ + 2 < 31 - 2 * (JLO + JN - 1) - 3
            for st_ in range(G_ + 3):
                e("s_add_u32 s%d, s%d, 1" % (S_T, S_T))
                x_ = (nops[st_ - 1] if st_ >= 1 else 0) + (nops[st_ - 2] if st_ >= 2 else 0)
                e.ext(sync_block(0, "J%d" % st_, xtra=x_, strict=8 if st_ == G_ + 2 else None, always=True, prev=nops[st_ - 1] if st_ else 0))
                if 1 <= st_ <= G_:
                    e("s_waitcnt vmcnt(8)")
                    for i in grp[st_ - 1]: e.ext(jb[i][1])
                if st_ < G_:
                    for i in grp[st_]: e.ext(jb[i][0])
            z = Seq(); z("v_mov_b32 v24, s%d" % S_HUGE); fill2(z, 24, 25); z("v_mov_b32 v25, 1")
            z("buffer_atomic_add v25, v24, %s, 0 offen" % sr(SRD_DBG, 4))
            e("s_cmp_lg_u32 s%d, 0" % S_W); e("s_cbranch_scc1 A_LD"); e.ext(z)
            e.label("A_LD")
            e("s_add_u32 s%d, s%d, 1" % (S_T, S_T)); e("s_cmp_ge_u32 s%d, s%d" % (S_T, S_TBM)); e("s_cbranch_scc1 A_FIN")
            e.ext(sync_block(0, "LD"))
            e("s_cmp_ge_u32 s%d, 2" % S_W); e("s_cbranch_scc1 A_LD")
            e("s_cmp_eq_u32 s%d, 3" % S_R); e("s_cbranch_scc0 A_N3")
            e("s_waitcnt vmcnt(0)")
            poll_issue(e, vFL, vFO, SRD_WS, "s14")
            e("s_branch A_LD")
            e.label("A_N3")
            e("s_cmp_eq_u32 s%d, 2" % S_R); e("s_cbranch_scc0 A_LD")
            e("s_waitcnt vmcnt(0)")
            poll_check(e, "P3A", vFL, vFN, vFO, SRD_WS, "s14")
            KR_ = 56
            e("s_mul_i32 s6, s%d, 49152" % S_H); e("s_mul_i32 s8, s%d, 3072" % S_W); e("s_add_u32 s6, s6, s8"); e("s_add_u32 s6, s6, %d" % WS_KVP)
            for p in range(8):
                for mu in range(3): e("buffer_load_dwordx4 %s, v%d, %s, s6 offen offset:%d sc1" % (vr(KR_ + 12 * p + 4 * mu, 4), vL16, sr(SRD_WS, 4), 1024 * mu))
                if p < 7: e("s_add_u32 s6, s6, 6144")
            for p in range(1, 8):
                for i in range(12): e("v_add_f32 v%d, v%d, v%d" % (KR_ + i, KR_ + i, KR_ + 12 * p + i))
            for i in range(6): e("v_cvt_pk_bf16_f32 v%d, v%d, v%d" % (FR + i, KR_ + 2 * i, KR_ + 2 * i + 1))
            e("v_mov_b32 v%d, 0" % (FR + 6)); e("v_mov_b32 v%d, 0" % (FR + 7))
            e("s_lshl_b32 s6, s%d, 11" % S_W); e("s_add_u32 s6, s6, %d" % KVX); e("v_add_u32 v21, s6, v%d" % vL16)
            e("ds_write_b128 v21, %s" % vr(FR, 4)); e("ds_write_b128 v21, %s offset:1024" % vr(FR + 4, 4))
            e("s_waitcnt lgkmcnt(0)")
            e("s_branch A_LD")
            e.label("A_FIN"); e("s_waitcnt vmcnt(0)"); e("s_branch F_FIN")
        le, _ = resolve_waits(e.l, s4)
        outl += main + le
        for rb in rares: cold += rb.l
    W32 = False
    e = Seq(); e.label("F_FIN"); e("s_setprio 0")
    e("s_waitcnt lgkmcnt(0)")
    e("v_lshrrev_b32 v4, 2, v%d" % vL16); poll_issue(e, 5, 4, SRD_DBG, "0")
    RAW, PH, PK, EE, T8, LQ, KF_, ND = 56, 72, 80, 96, 116, 120, 136, 152
    y = phi_gather(e, RAW, PH, RAW + 12, RAW + 13)
    e("v_add_u32 v6, %d, v%d" % (KVX, vL16))
    for i in range(4): e("ds_read_b128 %s, v6 offset:%d" % (vr(KF_ + 4 * i, 4), 1024 * i))
    e.ext(y)
    for mu in range(2):
        for rho in range(2): e("%s %s, %s, %s, 0" % (MF, vr(PK + 8 * mu + 4 * rho, 4), vr(PH + 4 * mu, 4), vr(TK + 4 * rho, 4)))
    softmax5(e, PK, EE, T8, LQ)
    for rho in range(2): e("v_mov_b32 v%d, 0" % (LQ + 8 * rho + 6)); e("v_mov_b32 v%d, 0" % (LQ + 8 * rho + 7))
    for rho in range(2):
        for nu in range(2):
            d = vr(ND + 8 * rho + 4 * nu, 4)
            e("%s %s, %s, %s, 0" % (MF, d, vr(KF_ + 8 * nu, 4), vr(LQ + 8 * rho, 4)))
            e("%s %s, %s, %s, %s" % (MF, d, vr(KF_ + 8 * nu + 4, 4), vr(LQ + 8 * rho + 4, 4), d))
    e("s_lshr_b32 s6, s%d, 1" % S_H); e("s_add_u32 s6, s6, 128"); e("s_lshl_b32 s6, s6, 12"); e("s_add_u32 s6, s6, s%d" % S_AP)
    e("s_and_b32 s8, s%d, 1" % S_H); e("s_lshl_b32 s8, s8, 9"); e("s_add_u32 s6, s6, s8")
    e("s_lshr_b32 s8, s%d, 4" % S_H); e("s_add_u32 s8, s8, 144"); e("s_lshl_b32 s8, s8, 12"); e("s_add_u32 s8, s8, s%d" % S_AP)
    e("s_lshr_b32 s9, s%d, 2" % S_H); e("s_and_b32 s9, s9, 3"); e("s_lshl_b32 s9, s9, 8"); e("s_add_u32 s8, s8, s9")
    e("s_and_b32 s9, s%d, 3" % S_H); e("s_lshl_b32 s9, s9, 2"); e("s_add_u32 s8, s8, s9")
    e("v_and_b32 v6, 15, v%d" % vLANE); e("v_lshlrev_b32 v6, 4, v6"); e("v_lshrrev_b32 v7, 4, v%d" % vLANE)
    e("v_lshl_add_u32 v10, v7, 7, v6"); e("v_and_b32 v9, 1, v7")
    e("v_mov_b32 v8, s%d" % S_HUGE); e("v_cmp_ne_u32 vcc, 1, v7"); e("v_cndmask_b32 v6, v6, v8, vcc")
    e("v_cmp_ne_u32 vcc, 0, v9"); e("v_cndmask_b32 v10, v10, v8, vcc")
    e("s_mov_b32 s9, 0x%x" % f2u(1e-6))
    for rho in range(2):
        n = ND + 8 * rho
        e("v_add_f32 v8, s9, v%d" % (n + 6)); e("v_rcp_f32 v8, v8"); e("v_sub_f32 v9, 1.0, v%d" % vG[rho]); e("v_mul_f32 v8, v8, v9")
        for i in range(6): e("v_mul_f32 v%d, v%d, v8" % (n + i, n + i))
        for i in range(2): e("v_cvt_pk_bf16_f32 v%d, v%d, v%d" % (n + i, n + 2 * i, n + 2 * i + 1))
        e("v_cvt_pk_bf16_f32 v%d, v%d, v%d" % (n + 4, n + 4, n + 5))
        e("v_mov_b32 v%d, v%d" % (n + 2, n)); e("v_mov_b32 v%d, v%d" % (n + 3, n + 1))
        e("v_permlane16_swap_b32 v%d, v%d" % (n, n + 2)); e("v_permlane16_swap_b32 v%d, v%d" % (n + 1, n + 3))
        e("buffer_store_dwordx4 %s, v10, %s, s6 offen offset:%d sc1" % (vr(n, 4), sr(SRD_WS, 4), 1024 * rho), tag="APS")
        e("buffer_store_dword v%d, v6, %s, s8 offen offset:%d sc1" % (n + 4, sr(SRD_WS, 4), 1024 * rho), tag="APS")
    ST(e, 26)
    if DIAG: e("v_writelane_b32 v0, s96, 40"); e("v_writelane_b32 v0, s98, 41"); e("v_writelane_b32 v0, s98, 42")
    SRD_W3, SRD_OUT, S_KQ, S_A, S_WM, S_G, S_SO, S_R16 = 56, 60, 64, 65, 68, 69, 72, 76
    WR0 = 65536; NS = 37; IMG = 9728
    e("s_and_b32 s%d, s%d, 3" % (S_KQ, S_H))
    e("s_lshl_b32 s8, s%d, 1" % S_J); e("s_sub_u32 s9, 30, s8"); e("s_bitcmp1_b32 s%d, 2" % S_H); e("s_cselect_b32 s10, s9, s8")
    e("s_lshr_b32 s6, s%d, 2" % S_W); e("s_add_u32 s6, s6, s10"); e("s_mul_i32 s6, s6, %d" % (NSTEP * 4096)); e("s_lshl_b32 s8, s%d, 10" % S_RG)
    e("s_add_u32 s6, s6, s8"); e("s_add_u32 s6, s6, %d" % WS_AP)
    e("s_lshl_b32 s8, s%d, 17" % S_KQ); e("s_add_u32 s%d, s6, s8" % S_A)
    e("s_lshl_b32 s8, s%d, 14" % S_KQ); e("s_add_u32 s%d, s6, s8" % (S_A + 1)); e("s_add_u32 s%d, s%d, %d" % (S_A + 1, S_A + 1, 128 * 4096))
    e("s_lshl_b32 s8, s%d, 11" % S_KQ); e("s_add_u32 s8, s6, s8"); e("s_add_u32 s8, s8, %d" % (144 * 4096))
    e("s_bitcmp1_b32 s%d, 0" % S_KQ); e("s_cselect_b32 s%d, s%d, s8" % (S_A + 2, S_HUGE))
    e("s_cselect_b32 s9, 36, 37"); e("s_cselect_b32 s11, 8, 16")
    e("s_lshr_b32 s6, s%d, 3" % S_H); e("s_lshl_b32 s6, s6, 2"); e("s_add_u32 s6, s6, s%d" % S_KQ); e("s_mul_i32 s6, s6, %d" % (37 * IMG)); e("s_add_u32 s6, s6, %d" % WS_WP)
    mk_srd(e, SRD_W3, P_WS, 0, add="s6"); e("s_mul_i32 s%d, s9, %d" % (SRD_W3 + 2, IMG))
    mk_srd(e, SRD_OUT, P_OUT, 2048 * 1152)
    e("s_lshl_b32 s%d, s%d, 10" % (S_WM, S_RG))
    vH, vT, vA, vO, vO5 = 18, 12, 14, 10, 11
    e("v_add_u32 v%d, s%d, v%d" % (vH, S_MB, vL16)); e("v_add_u32 v%d, s%d, v%d" % (vH + 1, S_WM, vL16))
    e("v_bfe_u32 v10, v%d, 2, 2" % vLANE); e("v_lshl_add_u32 v10, v7, 3, v10"); e("v_mul_u32_u24 v10, 288, v10"); e("v_lshl_add_u32 v10, v7, 7, v10")
    e("v_and_b32 v11, 3, v%d" % vLANE); e("v_lshl_add_u32 v10, v11, 3, v10")
    e("s_lshr_b32 s6, s%d, 2" % S_W); e("s_mul_i32 s6, s6, 160"); e("s_add_u32 s6, s6, %d" % WR0)
    e("v_add_u32 v%d, s6, v10" % vT); e("v_add_u32 v%d, %d, v%d" % (vT + 1, 4 * IMG, vT))
    e("s_lshl_b32 s6, s%d, 11" % S_RG); e("v_add_u32 v%d, s6, v%d" % (vA, vL16))
    e("v_cmp_le_u32 vcc, 48, v%d" % vLANE); e("v_cndmask_b32 v6, 0, %d, vcc" % (4 * JN)); e("v_cmp_le_u32 vcc, 56, v%d" % vLANE); e("v_mov_b32 v9, 0x200020"); e("v_cndmask_b32 v6, v6, v9, vcc")
    poll_check(e, "P4", 5, 6, 4, SRD_DBG, "0")
    e("s_lshl_b32 s6, s%d, 3" % S_KQ); e("v_subrev_u32 v9, s6, v%d" % vLANE); e("v_cmp_gt_u32 vcc, s11, v9")
    e("v_mov_b32 v6, s%d" % S_HUGE); e("v_cndmask_b32 v4, v6, v4, vcc"); e("v_cndmask_b32 v6, 0, 1, vcc")
    e("s_lshl_b32 s11, s%d, 7" % S_J); e("s_add_u32 s11, s11, %d" % FL_AP)
    AG, WG, AC = 24, 40, 80
    S_ROT = 88
    for t in range(4):
        e("s_lshr_b32 s6, s%d, %d" % (S_H, 3 if ROT else 8)); e("s_add_u32 s6, s6, %d" % t); e("s_and_b32 s6, s6, 3"); e("s_lshl_b32 s6, s6, 15"); e("s_add_u32 s%d, s%d, s6" % (S_ROT + t, S_A))
    def dmaw(qq, nw=8):
        z = Seq(); base = (nw * qq) % 76
        sm = S_MB if nw == 8 else S_WM
        z("s_add_u32 m0, s%d, %d" % (sm, WR0 + base * 1024))
        if base + nw - 1 >= 76:
            z("s_sub_u32 s9, m0, %d" % (76 * 1024)); z("s_cmp_ge_u32 m0, %d" % (WR0 + 76 * 1024)); z("s_cselect_b32 m0, s9, m0")
        z("s_mov_b32 s9, %d" % (nw * qq * 1024))
        z("buffer_load_dwordx4 v%d, %s, s9 offen sc1 lds" % (vH if nw == 8 else vH + 1, sr(SRD_W3, 4)), tag="P%d" % (nw * qq // 4))
        return z
    def dmaa(n):
        z = Seq()
        z("s_add_u32 m0, s%d, %d" % (S_MB, (n % 8) * 8192))
        if n < 36: z("s_add_u32 s8, s%d, %d" % ((S_ROT + (n >> 3), (n & 7) * 4096) if n < 32 else (S_A + 1, (n - 32) * 4096)))
        z("buffer_load_dwordx4 v%d, %s, s%d offen sc1 lds" % (vL16, sr(SRD_WS, 4), 8 if n < 36 else S_A + 2), tag="Q%d" % n)
        return z
    def rds(n, nf):
        sl = n % 8; hi = sl >> 2; out = []
        for rho in range(2): out.append(Seq()("ds_read_b128 %s, v%d offset:%d" % (vr(AG + 8 * (n % 2) + 4 * rho, 4), vA, sl * 8192 + 1024 * rho)).l)
        for fi in range(nf):
            out.append(Seq()("\n".join("ds_read_b64_tr_b16 %s, v%d offset:%d" % (vr(WG + 20 * (n % 2) + 4 * fi + 2 * hh, 2), vT + hi, (sl & 3) * IMG + 32 * fi + 1152 * hh) for hh in range(2))).l)
        return out
    e.waitv("APS")
    e("s_barrier")
    fb = Seq(); fb("s_lshl_b32 s6, s%d, 7" % S_J); fb("s_lshl_b32 s8, s%d, 2" % S_H); fb("s_add_u32 s6, s6, s8"); fb("s_add_u32 s6, s6, %d" % FL_AP)
    e.ext(w7_block("F_FAP", flag_store(fb, 10, 11)))
    ST(e, 27)
    nq0 = 9; na0 = 8; NQ = 88
    for qq in range(nq0): e.ext(dmaw(qq))
    e("v_and_b32 v16, 15, v%d" % vLANE); e("s_lshl_b32 s6, s10, 6"); e("s_lshl_b32 s8, s%d, 5" % S_RG); e("s_add_u32 s6, s6, s8")
    e("v_add_u32 v16, s6, v16"); e("v_mul_u32_u24 v16, 1152, v16"); e("v_lshl_add_u32 v16, v7, 3, v16")
    e("s_lshr_b32 s6, s%d, 3" % S_H); e("s_mul_i32 s6, s6, 288"); e("s_lshr_b32 s8, s%d, 2" % S_W); e("s_mul_i32 s8, s8, 160"); e("s_add_u32 s6, s6, s8")
    e("v_add_u32 v%d, s6, v16" % vO)
    e("s_mov_b32 s%d, %d" % (S_R16, 16 * 1152))
    px_group(e, S_G, 6)
    e("s_lshl_b32 s6, s%d, 5" % S_G); e("s_add_u32 s6, s6, s%d" % S_W); e("s_mul_i32 s6, s6, 5120"); e("s_add_u32 s10, s6, %d" % WS_PX)
    for t in range(4): e("s_add_u32 s%d, s10, %d" % (S_SO + t, t * 40960))
    z = Seq(); z("v_mov_b32 v5, 0")
    poll_check(z, "P5", 5, 6, 4, SRD_WS, "s11")
    e.ext(w7_block("F_P5", z))
    e("s_barrier")
    ST(e, 28)
    for n in range(na0): e.ext(dmaa(n))
    def pub(m):
        z = Seq(); z.waitv(*(["P%d" % k for k in range(min(NQ - 1, (19 * m + 18) // 4) + 1)] + ["Q%d" % min(NS - 1, 2 * m + 1)])); z("s_waitcnt lgkmcnt(0)"); z("s_barrier")
        return z.l
    e.ext(pub(0))
    e("s_cmp_ge_u32 s%d, 4" % S_W); e("s_cbranch_scc1 G_B")
    le, stp = resolve_waits(e.l, Pend(vm=[("vm_st", (), "APS")] * 8))
    tail = []
    for role in range(2):
        RN = "AB"[role]; nf = 5 - role; nb = 2 * nf; na = na0; nq = 2 * nq0
        e = Seq()
        if role: e.label("G_B")
        e.ext(flat(rds(0, nf)))
        later = []
        for n in range(NS):
            fill = {k: [] for k in range(nb)}
            for k, l in enumerate(later): fill[min(nb - 1, 2 + k)].append(l)
            later = []
            if n + 1 < NS:
                if n % 2 == 1:
                    m = (n + 1) // 2
                    fill[0].extend(pub(m))
                    k = nb - 3
                    while na < NS and na <= 2 * m + 7: fill[k].extend(dmaa(na).l); na += 1; k = min(nb - 1, k + 1)
                    while nq < NQ and nq <= (19 * m + 72) // 4:
                        if role: later.append(dmaw(nq, 4).l)
                        nq += 1
                rl = flat(rds(n + 1, nf)); per = [[] for _ in range(nb)]
                for k, x_ in enumerate(rl): per[k if k < nb else 2 * (k - nb) + 1].append(x_)
                order = {id(x_): k for k, x_ in enumerate(rl)}
                it = iter(rl); per = [[next(it) for _ in p_] for p_ in per]
                for k, l in enumerate(per): fill[k] = (fill[k] + l) if (k == 0 and n % 2 == 1) else (l + fill[k])
            fill = {k: [y_ for x_ in v_ for y_ in (x_ if isinstance(x_, list) else [x_])] for k, v_ in fill.items()}
            for fi in range(nf):
                for rho in range(2):
                    acc = vr(AC + 4 * (2 * fi + rho), 4)
                    e("%s %s, %s, %s, %s" % (MF, acc, vr(WG + 20 * (n % 2) + 4 * fi, 4), vr(AG + 8 * (n % 2) + 4 * rho, 4), "0" if n == 0 else acc))
                    e.ext(fill[2 * fi + rho])
            if n % 8 == 0 and n < 32: ST(e, 29 + n // 8)
        assert na == NS and nq == NQ, (na, nq)
        ST(e, 34)
        e("s_mul_i32 s6, s%d, 40960" % S_KQ); e("s_add_u32 s84, s6, s10"); e("s_add_u32 s85, s84, 4096")
        e("v_lshrrev_b32 v16, 1, v%d" % vL16)
        PKX = 120
        for b in range(nb):
            d = PKX + 4 * (b & 3) + 2 * (b >> 2) if b < 8 else PKX + 16 + 2 * (b - 8)
            e("v_cvt_pk_bf16_f32 v%d, v%d, v%d" % (d, AC + 4 * b, AC + 4 * b + 1)); e("v_cvt_pk_bf16_f32 v%d, v%d, v%d" % (d + 1, AC + 4 * b + 2, AC + 4 * b + 3))
        for o in range(4):
            e("s_cmp_eq_u32 s%d, %d" % (S_KQ, o)); e("s_cbranch_scc1 %s_XS%d" % (RN, o))
            e("buffer_store_dwordx4 %s, v%d, %s, s84 offen offset:%d sc1" % (vr(PKX + 4 * o, 4), vL16, sr(SRD_WS, 4), o * 1024), tag="OPT")
            if nb == 10 and o < 2: e("buffer_store_dwordx2 %s, v16, %s, s85 offen offset:%d sc1" % (vr(PKX + 16 + 2 * o, 2), sr(SRD_WS, 4), o * 512), tag="OPT")
            e.label("%s_XS%d" % (RN, o))
        e("s_mov_b32 s%d, 4000" % S_SPIN); e("s_mov_b32 s86, 0xffff0000")
        ST(e, 33)
        lz, stx = resolve_waits(e.l, stp); tail += lz
        for kq in range(4):
            z = Seq()
            if kq < 3: z("s_cmp_lg_u32 s%d, %d" % (S_KQ, kq)); z("s_cbranch_scc1 %s_XL%d" % (RN, kq))
            own = [b for b in range(nb) if b & 3 == kq]; srcs = [t for t in range(4) if t != kq]
            z.label("%s_XR%d" % (RN, kq))
            LD, SM_ = 24, 48
            for k, t in enumerate(srcs):
                z("buffer_load_dwordx4 %s, v%d, %s, s%d offen offset:%d sc1" % (vr(LD + 8 * k, 4), vL16, sr(SRD_WS, 4), S_SO + t, kq * 1024))
                if len(own) == 3:
                    z("s_add_u32 s6, s%d, 4096" % (S_SO + t))
                    z("buffer_load_dwordx2 %s, v16, %s, s6 offen offset:%d sc1" % (vr(LD + 8 * k + 4, 2), sr(SRD_WS, 4), kq * 512))
            for k in range(3):
                for i, b in enumerate(own):
                    for hh in range(2):
                        src = LD + 8 * k + 2 * i + hh
                        z("v_lshlrev_b32 v60, 16, v%d" % src); z("v_and_b32 v61, s86, v%d" % src)
                        for x in range(2):
                            dd = SM_ + 4 * i + 2 * hh + x
                            z("v_add_f32 v%d, v%d, v%d" % (dd, 60 + x, (AC + 4 * b + 2 * hh + x) if k == 0 else dd))
            n_ = 4 * len(own)
            z("v_add_f32 v62, v%d, v%d" % (SM_, SM_ + 1))
            for x in range(2, n_): z("v_add_f32 v62, v62, v%d" % (SM_ + x))
            z("v_cmp_u_f32 vcc, v62, v62"); z("s_cbranch_vccz %s_XK%d" % (RN, kq))
            z("s_sleep 4")
            z("s_sub_u32 s%d, s%d, 1" % (S_SPIN, S_SPIN)); z("s_cmp_lg_u32 s%d, 0" % S_SPIN); z("s_cbranch_scc1 %s_XR%d" % (RN, kq))
            z.label("%s_XK%d" % (RN, kq))
            for i, b in enumerate(own):
                t = SM_ + 4 * i
                z("v_cvt_pk_bf16_f32 v%d, v%d, v%d" % (t, t, t + 1)); z("v_cvt_pk_bf16_f32 v%d, v%d, v%d" % (t + 1, t + 2, t + 3))
                fi, rho = b >> 1, b & 1
                z("buffer_store_dwordx2 %s, v%d, %s, %s offen offset:%d" % (vr(t, 2), vO, sr(SRD_OUT, 4), "s%d" % S_R16 if rho else "0", 32 * fi))
            if kq < 3 or role == 0: z("s_branch F_XLD")
            if kq < 3: z.label("%s_XL%d" % (RN, kq))
            lz, _ = resolve_waits(z.l, stx); tail += lz
    e = Seq(); e.label("F_XLD")
    if stamp and os.environ.get("DBGOUT"):
        e.ext(STAMP(36)); e.ext(RSTAMP(61))
        e("s_lshl_b32 s6, s2, 3"); e("s_add_u32 s6, s6, s%d" % S_W); e("s_cmp_lg_u32 s6, %d" % int(os.environ["DBGOUT"])); e("s_cbranch_scc1 F_END")
        sel = [60, 62, 63, 61, 0, 1, 9, 20, 23, 24, 27, 28, 34, 36, 5, 14]
        for k, x_ in enumerate(sel): e("v_readlane_b32 s8, v0, %d" % x_); e("v_readlane_b32 s9, v0, %d" % (60 if x_ >= 60 else 0)); e("s_sub_u32 s8, s8, s9"); e("v_writelane_b32 v3, s8, %d" % k)
        e("v_lshrrev_b32 v4, 2, v%d" % vL16); e("s_mov_b64 exec, 0xffff")
        e("buffer_store_dword v3, v4, %s, 0 offen sc1" % sr(SRD_DBG, 4))
        e("s_endpgm")
    if stamp: e.ext(STAMP(35)); e("s_waitcnt vmcnt(0)"); e.ext(STAMP(36)); e.ext(RSTAMP(61)); e.ext(STAMPOUT(S_W, vLANE, SRD_WS, 6, base=1 << 20))
    e.label("F_END"); e("s_endpgm")
    return fix_hazards(outl + le + tail + e.l + Seq().label("F_COLD").l + cold)
```

```python
from gen_common import *
from gen_k1 import wg_decode, fmt_job
MF = "v_mfma_f32_16x16x32_bf16"
SLOT = 16384
PHL = 9 * SLOT
KVX = PHL + 2048
K2_LDS = KVX + 4096

S_H, S_J, S_W, S_ROW0 = 3, 4, 5, 7
SRD_WS, SRD_DBG, S_HUGE, S_TMP, S_RG, S_SPIN = 44, 48, 52, 53, 54, 55
SRD_CK, SRD_W, SRD_X, SRD_WB, SRD_GATE, SRD_WO = 56, 60, 64, 68, 72, 76
S_W4K, S_ST, M1, M2 = 80, 82, 88, 90
SRD_WQ, S_MW, S_MB, S_WBG, S_XB = 92, 96, 97, 98, 99
SRD_PHI, S_KG, S_VG, S_KL, S_VL, S_KR, S_T, S_TL, S_TBM, S_L2E, S_AP, S_C, S_R = 56, 60, 61, 62, 63, 64, 65, 66, 67, 68, 69, 70, 72
S_ST2 = 86
SRD_WS2, S_WOSZ, SRD_J, S_JU = 92, 81, 84, 73
MK = [74, 76, 78, 90]
vLANE, vL16, vWo, vWR, vBR, vKA, vVA, vQ, vLs, vPS, vTM, vNINF, vM5 = 1, 2, 3, 4, 12, 13, 14, 15, 17, 19, 21, 22, 23
vG = [3, 12]
FR, DB, Q, TK, O = 24, 160, 216, 248, 128
XRS = [88, 96, 104, 112, 120]
NXR = 5
FR2 = [120, 124, 192, 196, 200, 204, 208, 212]
def qacc(cb, rho):
    n = 2 * cb + rho
    return 56 + 4 * n if n < 8 else 128 + 4 * (n - 8)
P_, S_, NEGM, E_ = 56, 72, 104, 112
import os
DRD = 12; W2 = 4; E64 = 0; NRING = 16; NODMA = 0
SC = " sc1"
FASTJ = int(os.environ.get("FASTJ", 7))
FSP, LSP = eval(os.environ.get("SP", "(10, 20)"))
SKIP = int(os.environ.get("SKIP", 1))
K3L = int(os.environ.get("K3L", 0))
K3P = int(os.environ.get("K3P", 0))
LMIN = int(os.environ.get("LMIN", 0))
GP = int(os.environ.get("GP", 0))
XS0, XSP, XSB = eval(os.environ.get("XS", "(0, 1, 0)"))
B32 = int(os.environ.get("B32", 0))
SNT = 0x7FC17FC1
S_PXO = 13
JMODE = int(os.environ.get("JMODE", 1))
YSTEP = int(os.environ.get("YSTEP", 2))
AL8 = int(os.environ.get("AL8", 0))
ALN = int(os.environ.get("ALN", 4))
JLO, JN, JG = eval(os.environ.get("JCFG", "(1, 5, [3, 3, 3])"))
PRIO = int(os.environ.get("PRIO", 0))
PXW = int(os.environ.get("PXW", 0))
TLB = int(os.environ.get("TLB", 0))
YPOS = int(os.environ.get("YPOS", 158))
LPOS = int(os.environ.get("LPOS", 56))
LSTEP = int(os.environ.get("LSTEP", 2))
GAP = int(os.environ.get("GAP", 100))
TOUCH = int(os.environ.get("TOUCH", 1))
CODE_BYTES = 110 * 1024
S_TQ, vTQ = 55, 12
ROT = int(os.environ.get("ROT", 0))
K3BAR = int(os.environ.get("K3BAR", 4))
XQ = os.environ.get("XQ", "")
def freg(n):
    n %= NRING
    return FR + 4 * n if n < 8 else FR2[n - 8]
WS_FLG = 80 * MB
FL_KV, FL_KP, FL_AP, FL_PX = WS_FLG, WS_FLG + 4096, WS_FLG + 8192, WS_FLG + 16384
WS_PX = 96 * MB
WS_WH = WS_WP + 5 * MB
F_LDS = 163840

def red4(q, a, b, c, d, op, t0, t1, t2):
    q("v_permlane16_swap_b32 v%d, v%d" % (a, b)); q("v_permlane16_swap_b32 v%d, v%d" % (c, d))
    q("%s v%d, v%d, v%d" % (op, a, a, b)); q("%s v%d, v%d, v%d" % (op, c, c, d))
    q("v_permlane32_swap_b32 v%d, v%d" % (a, c))
    q("%s v%d, v%d, v%d" % (op, a, a, c))
    q("v_mov_b32 v%d, v%d" % (c, a))
    q("v_permlane32_swap_b32 v%d, v%d" % (a, c))
    q("v_mov_b32 v%d, v%d" % (b, a)); q("v_mov_b32 v%d, v%d" % (d, c))
    q("v_permlane16_swap_b32 v%d, v%d" % (a, b)); q("v_permlane16_swap_b32 v%d, v%d" % (c, d))

def red2(q, a, b, op, t):
    q("v_permlane16_swap_b32 v%d, v%d" % (a, b))
    q("%s v%d, v%d, v%d" % (op, a, a, b))
    q("v_mov_b32 v%d, v%d" % (t, a))
    q("v_permlane32_swap_b32 v%d, v%d" % (a, t))
    q("%s v%d, v%d, v%d" % (op, a, a, t))
    q("v_mov_b32 v%d, v%d" % (b, a))
    q("v_permlane16_swap_b32 v%d, v%d" % (a, b))

def phi_gather(q, raw, PH, va, vb):
    q("v_and_b32 v%d, 15, v%d" % (va, vLANE)); q("v_lshrrev_b32 v%d, 4, v%d" % (vb, vLANE))
    q("v_mul_u32_u24 v%d, 144, v%d" % (raw, vb)); q("v_add_u32 v%d, %d, v%d" % (raw, PHL, raw))
    q("v_mov_b32 v%d, 512" % vb)
    for (c, f) in ((0, 16), (4, 17), (8, 8), (12, 12)):
        q("v_cmp_eq_u32 vcc, %d, v%d" % (c, va)); q("v_cndmask_b32 v%d, v%d, %d, vcc" % (vb, vb, f))
    q("v_lshl_add_u32 v%d, v%d, 1, v%d" % (vb, vb, raw)); q("v_lshl_add_u32 v%d, v%d, 1, v%d" % (va, va, raw))
    for mu, a in ((0, va), (1, vb)):
        for i in range(6):
            q("ds_read_u16 v%d, v%d offset:%d" % (raw + 6 * mu + i, a, (i if i < 4 else 12 + i) * 36))
    y = Seq()
    for mu in range(2):
        for i in range(3): y("v_lshl_or_b32 v%d, v%d, 16, v%d" % (PH + 4 * mu + i, raw + 6 * mu + 2 * i + 1, raw + 6 * mu + 2 * i))
        y("v_mov_b32 v%d, 0" % (PH + 4 * mu + 3))
    return y

def softmax5(q, PK, EE, T, OUT):
    vals = [[PK + 4 * r + i for i in range(4)] + [PK + 8 + 4 * r] for r in range(2)]
    for r in range(2):
        v = vals[r]
        q("v_max3_f32 v%d, v%d, v%d, v%d" % (T + 2 * r, v[0], v[1], v[2])); q("v_max3_f32 v%d, -v%d, -v%d, -v%d" % (T + 2 * r + 1, v[0], v[1], v[2]))
        q("v_max3_f32 v%d, v%d, v%d, v%d" % (T + 2 * r, T + 2 * r, v[3], v[4])); q("v_max3_f32 v%d, v%d, -v%d, -v%d" % (T + 2 * r + 1, T + 2 * r + 1, v[3], v[4]))
    red4(q, T, T + 1, T + 2, T + 3, "v_max_f32", 0, 0, 0)
    for i in range(4): q("v_mul_f32 v%d, s%d, v%d" % (T + i, S_L2E, T + i))
    for r in range(2):
        for i in range(5):
            q("v_fma_f32 v%d, v%d, s%d, -v%d" % (EE + 10 * r + i, vals[r][i], S_L2E, T + 2 * r))
            q("v_fma_f32 v%d, -v%d, s%d, -v%d" % (EE + 10 * r + 5 + i, vals[r][i], S_L2E, T + 2 * r + 1))
    for i in range(20): q("v_exp_f32 v%d, v%d" % (EE + i, EE + i))
    for k in range(4): q("v_mul_f32 v%d, v%d, v%d" % (EE + 5 * k + 4, EE + 5 * k + 4, vM5))
    for k in range(4): q("v_add_f32 v%d, v%d, v%d" % (T + k, EE + 5 * k, EE + 5 * k + 1))
    for i in range(2, 5):
        for k in range(4): q("v_add_f32 v%d, v%d, v%d" % (T + k, T + k, EE + 5 * k + i))
    red4(q, T, T + 1, T + 2, T + 3, "v_add_f32", 0, 0, 0)
    for k in range(4): q("v_rcp_f32 v%d, v%d" % (T + k, T + k))
    for k in range(4):
        for i in range(5): q("v_mul_f32 v%d, v%d, v%d" % (EE + 5 * k + i, EE + 5 * k + i, T + k))
    for r in range(2):
        e = EE + 10 * r; o = OUT + 8 * r
        q("v_cvt_pk_bf16_f32 v%d, v%d, v%d" % (o, e, e + 1)); q("v_cvt_pk_bf16_f32 v%d, v%d, v%d" % (o + 1, e + 2, e + 3))
        q("v_cvt_pk_bf16_f32 v%d, v%d, v%d" % (o + 2, e + 5, e + 6)); q("v_cvt_pk_bf16_f32 v%d, v%d, v%d" % (o + 3, e + 7, e + 8))
        q("v_cvt_pk_bf16_f32 v%d, v%d, v%d" % (o + 4, e + 4, e + 9)); q("v_mov_b32 v%d, 0" % (o + 5))

W32 = False
MF32 = "v_mfma_f32_32x32x16_bf16"
E32 = 4
def red1(q, a, op, t):
    q("v_mov_b32 v%d, v%d" % (t, a)); q("v_permlane32_swap_b32 v%d, v%d" % (a, t)); q("%s v%d, v%d, v%d" % (op, a, a, t))

def sreg(buf, e):
    if W32: return S_ + 16 * buf + 4 * [0, 2, 1, 3][e >> 2] + (e & 3)
    qb, kb, r = e >> 3, (e >> 2) & 1, e & 3
    return S_ + 16 * buf + 8 * kb + 4 * qb + r

def mask_ops(buf, u):
    z = Seq()
    for e0 in range(0, 16, 4):
        for e in range(e0, e0 + 4):
            qb, kb, r = e >> 3, (e >> 2) & 1, e & 3
            key, th = (32 * u + 8 * [0, 2, 1, 3][e >> 2] + r, vQ) if W32 else (32 * u + 16 * kb + r, vQ + qb)
            z("v_cmp_gt_i32 s[%d:%d], %d, v%d" % (MK[e & 3], MK[e & 3] + 1, key, th))
        for e in range(e0, e0 + 4):
            z("v_cndmask_b32 v%d, v%d, v%d, s[%d:%d]" % (sreg(buf, e), sreg(buf, e), vNINF, MK[e & 3], MK[e & 3] + 1))
    return z

def sm_parts(buf):
    ex = []; post = []
    er = (lambda e: E32 + (e & 3)) if W32 else (lambda e: E_ + (e & 7))
    for e in range(16):
        ps = vPS if W32 else vPS + (e >> 3); k = e if W32 else e & 7
        ex.append(I("v_exp_f32 v%d, v%d" % (er(e), sreg(buf, e))))
        z = Seq()
        if k == 1: z("v_add_f32 v%d, v%d, v%d" % (ps, er(e - 1), er(e)))
        elif k > 1: z("v_add_f32 v%d, v%d, v%d" % (ps, ps, er(e)))
        if e & 1: z("v_cvt_pk_bf16_f32 v%d, v%d, v%d" % (P_ + 8 * buf + (e >> 1), er(e - 1), er(e)))
        post.append(z.l[::-1] if AL8 else z.l)
    return ex, post

def row_max(z, X, floor0):
    groups = [(E32, range(16))] if W32 else [(E_, range(8)), (E_ + 1, range(8, 16))]
    for d, es in groups:
        r = [sreg(X, e) for e in es] + (["0"] if floor0 else [])
        f = lambda x: x if x == "0" else "v%d" % x
        z("v_max3_f32 v%d, %s, %s, %s" % (d, f(r[0]), f(r[1]), f(r[2]))); r = r[3:]
        while len(r) >= 2: z("v_max3_f32 v%d, v%d, %s, %s" % (d, d, f(r[0]), f(r[1]))); r = r[2:]
        if r: z("v_max_f32 v%d, %s, v%d" % (d, f(r[0]), d))
    if W32: return [(E32, range(16), range(O, O + 64), range(NEGM, NEGM + 16), vLs)]
    return [(E_ + qb, range(8 * qb, 8 * qb + 8), [O + 8 * db + 4 * qb + i for db in range(8) for i in range(4)], range(NEGM + 4 * qb, NEGM + 4 * qb + 4), vLs + qb) for qb in range(2)]
def row_red(z, op):
    if W32: red1(z, E32, op, E32 + 1)
    else: red2(z, E_, E_ + 1, op, E_ + 2)

def rare_block(name, X, Y):
    z = Seq(); z.label(name); z("s_nop 12")
    G = row_max(z, X, True); row_red(z, "v_max_f32")
    for k, (d, es, os_, ng, l_) in enumerate(G):
        f = d + (2 if W32 else 4)
        z("v_exp_f32 v%d, -v%d" % (f, d))
        for e in es:
            z("v_sub_f32 v%d, v%d, v%d" % (sreg(X, e), sreg(X, e), d)); z("v_sub_f32 v%d, v%d, v%d" % (sreg(Y, e), sreg(Y, e), d))
        for r in ng: z("v_sub_f32 v%d, v%d, v%d" % (r, r, d))
        z("v_mul_f32 v%d, v%d, v%d" % (l_, l_, f))
        for r in os_: z("v_mul_f32 v%d, v%d, v%d" % (r, r, f))
    ex, post = sm_parts(X)
    for e in range(16):
        z.ext([ex[e]]); z("s_nop 0"); z.ext(post[e])
    z("s_nop 1")
    z("s_branch %s_R" % name)
    return z

def rd_frag(kind, idx, ring):
    base = vKA if kind == "K" else vVA
    off = 1024 * idx
    if W32: off = (idx >> 3) * 8192 + ((idx & 7) >> 1) * (1024 if kind == "K" else 2048) + (idx & 1) * 512
    return I("ds_read_b128 %s, v%d offset:%d" % (vr(freg(ring), 4), base, off))

def qk_mfmas(k, buf, ring, first_c):
    if W32:
        d = vr(S_ + 16 * buf, 16)
        return [I("%s %s, %s, %s, %s" % (MF32, d, vr(freg(ring), 4), vr(Q + 16 * (k & 1) + 4 * (k >> 1), 4), d if k else first_c(0)))]
    kb, js = k >> 2, k & 3
    out = []
    for qb in range(2):
        d = vr(S_ + 16 * buf + 8 * kb + 4 * qb, 4)
        c = d if js else first_c(qb)
        out.append(I("%s %s, %s, %s, %s" % (MF, d, vr(freg(ring), 4), vr(Q + 16 * qb + 4 * js, 4), c)))
    return out
def pv_mfmas(db, buf, ring):
    if W32:
        o = vr(O + 16 * (db >> 1), 16)
        return [I("%s %s, %s, %s, %s" % (MF32, o, vr(freg(ring), 4), vr(P_ + 8 * buf + 4 * (db & 1), 4), o))]
    return [I("%s %s, %s, %s, %s" % (MF, vr(O + 8 * db + 4 * qb, 4), vr(freg(ring), 4), vr(P_ + 8 * buf + 4 * qb, 4), vr(O + 8 * db + 4 * qb, 4))) for qb in range(2)]
NEGC = lambda qb: vr(NEGM, 16) if W32 else vr(NEGM + 4 * qb, 4)

def pkg(tag=None):
    z = Seq()
    for (sl, sg, hi) in ((S_VL, S_VG, 1), (S_KL, S_KG, 0)):
        z("s_mov_b32 m0, s%d" % sl)
        z("s_add_u32 s%d, s%d, %d" % (sl, sl, SLOT))
        for e in range(4):
            if not NODMA: z("buffer_load_dwordx4 v%d, %s, s%d offen offset:%d%s lds" % (vL16, sr(SRD_WS, 4), sg, 1024 * e, SC), tag=tag)
        z("s_add_u32 s%d, s%d, %d" % (sg, sg, SLOT))
        z("s_and_b32 s%d, s%d, 0xffff" % (sl, sl))
        if hi: z("s_or_b32 s%d, s%d, 0x10000" % (sl, sl))
    return z

DIAG = int(os.environ.get('DIAG', 0))
def tick(z, acc):
    z("s_memtime s[100:101]"); z("s_waitcnt lgkmcnt(0)")
    if acc is not None: z("s_sub_u32 s101, s100, s99"); z("s_add_u32 s%d, s%d, s101" % (acc, acc))
    z("s_mov_b32 s99, s100")
def sync_block(role, uid, cond=False, xtra=0, strict=None, always=False, prev=0, fq=FR):
    z = Seq()
    if DIAG: tick(z, None)
    if role == 0:
        z("s_sub_u32 s%d, s%d, s%d" % (S_R, S_TBM, S_T))
        if not always:
            z("s_cmp_ge_u32 s%d, 2" % S_R); z("s_cbranch_scc1 W12_%s" % uid)
            z("s_waitcnt vmcnt(4)")
        z.label("W12_%s" % uid)
        if strict is None:
            z("s_cmp_eq_u32 s%d, 4" % S_T); z("s_cbranch_scc1 W22_%s" % uid)
        z("s_waitcnt vmcnt(%d)" % (12 + xtra if strict is None else strict))
        if strict is None: z.label("W22_%s" % uid); z("s_waitcnt vmcnt(%d)" % (22 + xtra))
        if DIAG: tick(z, 96)
        z("s_barrier")
        if DIAG: tick(z, 98)
        if not always: z("s_cmp_lt_u32 s%d, 3" % S_R); z("s_cbranch_scc1 NP_%s" % uid)
        z("s_and_b32 s8, s%d, 3" % S_T); z("s_cmp_eq_u32 s8, 2"); z("s_cbranch_scc1 CQ_%s" % uid)
        z("s_cmp_lg_u32 s8, 1"); z("s_cbranch_scc1 NQ_%s" % uid)
        poll_issue(z, 9, 8, SRD_WS, "s15", tag="OPT")
        z("s_lshl_b32 s8, s%d, 8" % S_T); z("s_or_b32 s8, s8, s%d" % S_W)
        z("s_cmp_lg_u32 s8, %d" % (9 * 256)); z("s_cbranch_scc1 N9_%s" % uid)
        z("s_and_b32 s8, s2, 7"); z("s_lshl_b32 s8, s8, 2"); z("s_add_u32 s8, s8, 224"); z("v_mov_b32 v%d, 0x10000" % vTM); z("s_mov_b64 exec, 1")
        z("buffer_atomic_add v%d, off, %s, s8" % (vTM, sr(SRD_DBG, 4)), tag="OPT"); z("s_mov_b64 exec, -1"); z("s_branch NQ_%s" % uid)
        z.label("N9_%s" % uid)
        if not always:
            z("s_cmp_lg_u32 s8, 256"); z("s_cbranch_scc1 NQ_%s" % uid)
            fb = Seq(); fb("s_lshl_b32 s8, s%d, 2" % S_J); fb("s_add_u32 s8, s8, s15"); fb("s_add_u32 s8, s8, %d" % (FL_KP - FL_KV))
            z.ext(flag_store(fb, vTM, 0, so=8))
        z("s_branch NQ_%s" % uid)
        z.label("CQ_%s" % uid)
        z("s_add_u32 s8, s%d, 6" % S_T); z("s_lshr_b32 s8, s8, 2"); z("s_sub_u32 s8, 7, s8")
        z("v_cmp_eq_u32 vcc, s8, v%d" % vLANE); z("v_cndmask_b32 v7, 0, 1, vcc")
        z("s_waitcnt vmcnt(%d)" % (8 + prev))
        poll_check(z, "PQ_%s" % uid, 9, 7, 8, SRD_WS, "s15")
        z.label("NQ_%s" % uid)
        z.ext(pkg())
        z("s_sub_u32 s8, s%d, 2" % S_T); z("s_cmp_ge_u32 s8, 2"); z("s_cbranch_scc1 NP_%s" % uid)
        for i in range(4): z("v_mov_b32 v%d, 0x%x" % (fq + i, SNT))
        z("s_mul_i32 s8, s8, 20480"); z("s_add_u32 s8, s8, s%d" % S_PXO); z("s_add_u32 s9, s8, 4096")
        for i in range(5): z("buffer_store_dwordx4 %s, v%d, %s, s%d offen offset:%d sc1" % (vr(fq, 4), vL16, sr(SRD_WS, 4), 8 + i // 4, (i & 3) * 1024), tag="OPT")
        z.label("NP_%s" % uid)
    else:
        if cond:
            z("s_cmp_eq_u32 s%d, s%d" % (S_T, S_TBM)); z("s_cbranch_scc1 NB_%s" % uid)
        z("s_waitcnt vmcnt(0)")
        z("s_barrier")
        if cond: z.label("NB_%s" % uid)
        if DIAG: tick(z, 98)
    return z

def adv(vreg):
    z = Seq()
    z("v_add_u32 v%d, 0x4000, v%d" % (vreg, vreg))
    if vreg == vKA: z("v_and_b32 v%d, 0xffff, v%d" % (vreg, vreg))
    else: z("v_and_or_b32 v%d, v%d, s%d, v%d" % (vreg, vreg, S_KR, vC64))
    return z

def check(name):
    z = Seq()
    if not W32: z("v_max_f32 v%d, v%d, v%d" % (vTM, vPS, vPS + 1))
    z("v_cmp_nle_f32 vcc, v%d, v%d" % (vPS if W32 else vTM, vTHR()))
    z("s_cbranch_vccnz %s" % name)
    z.label(name + "_R")
    return z
def ladd(qb): return I("v_add_f32 v%d, v%d, v%d" % (vLs + qb, vLs + qb, vPS + qb))
def ladds(): return [ladd(0)] if W32 else [ladd(0), ladd(1)]
vC64 = 10
def vTHR(): return 11

def place_sm(slots, lo, hi, buf, mask_u, chk, carry=True):
    ex, post = sm_parts(buf)
    n = hi - lo
    pre = mask_ops(buf, mask_u).l if mask_u is not None else []
    groups = [pre[8 * g:8 * g + 8] for g in range(4)]
    if carry:
        slots[lo]["post"].append(ladd(0))
        if not W32: slots[lo + (8 if n == 16 else 0)]["post"].append(ladd(1))
    for e in range(16):
        s = lo + (e * n) // 16
        if pre and e % 4 == 0: slots[s]["mid"].extend(groups[e // 4])
        slots[s]["mid"].append(ex[e])
        if W32 and n == 16: slots[s + 1]["post"].extend(post[e]) if s + 1 < hi else slots[s]["end"].extend(post[e])
        else: slots[s]["post"].extend(post[e])
    if chk: slots[hi - 1]["end"].extend(check(chk).l)

def emit_slots(slots, w2=False):
    out = []
    for n, s in enumerate(slots):
        out += s["pre"]
        if w2 and W2 and n % W2 == 0:
            w = I("v_nop"); w.kind = "touch"; w.rd = list(slots[n + W2 - 1]["m"][0].srcA); w.text = ""
            out.append(w)
        if len(s["m"]) == 1: out += s["m"] + s["rd"] + s["mid"] + s["post"] + s["end"]
        else: out += [s["m"][0]] + s["mid"] + [s["m"][1]] + s["rd"] + s["post"] + s["end"]
    return out
def mkslot(m): return {"pre": [], "m": m, "mid": [], "rd": [], "post": [], "end": []}

def iteration(role, var, rares):
    uid = "%s%s" % ("AB"[role], var)
    rb = 24 if var == "E2" else 0
    slots = []; plan = []
    if var not in ("S2", "E2"):
        for k in range(8): slots.append(mkslot(qk_mfmas(k, 0, len(slots), NEGC))); plan.append(("K", k))
    for db in range(8): slots.append(mkslot(pv_mfmas(db, 0, rb + len(slots)))); plan.append(("V", db))
    a_hi = len(slots)
    if var in ("S", "S1"):
        for k in range(8): slots.append(mkslot(qk_mfmas(k, 1, len(slots), NEGC))); plan.append(("K", 8 + k))
    if var != "E2":
        for db in range(8): slots.append(mkslot(pv_mfmas(db, 1, len(slots)))); plan.append(("V", 8 + db))
    N = len(slots)
    nxt = {"S": "K", "S1": "V", "S2": None, "E1": "V", "E2": None}[var]
    assert DRD > 8
    for n in range(N):
        g = n + DRD
        if g < N: slots[n]["rd"].append(rd_frag(plan[g][0], plan[g][1], g))
        elif nxt:
            if g == N:
                slots[n]["rd"].extend(sync_block(role, uid, fq=freg(N)).l)
            if nxt == "K" and g - N >= 8: slots[n]["rd"].append(rd_frag("V", g - N - 8, g))
            elif var != "E1" or g - N < 8: slots[n]["rd"].append(rd_frag(nxt, g - N, g))
    if nxt == "K":
        slots[N - DRD - 2]["post"].extend(adv(vKA).l)
        slots[N - DRD + 2]["post"].extend(adv(vVA).l)
    elif nxt == "V": slots[N - DRD - 1]["end"].extend(adv(vVA).l)
    if var == "S2": slots[9]["rd"].extend(sync_block(role, uid, cond=True).l)
    if var == "E2":
        slots[4]["rd"].extend(sync_block(role, uid, cond=True, fq=freg(rb)).l); slots[0]["post"].extend(ladds())
        return emit_slots(slots, True)
    place_sm(slots, 0, a_hi, 1, 1 if var == "S2" else None, "R%sa" % uid); rares.append(rare_block("R%sa" % uid, 1, 0))
    if var != "S2":
        if var == "E1": slots[a_hi]["post"].extend(ladds())
        place_sm(slots, a_hi, N, 0, 0 if var != "S" else None, "R%sb" % uid, carry=var != "E1"); rares.append(rare_block("R%sb" % uid, 0, 1))
    else:
        slots[a_hi]["post"].extend(ladds())
    if var == "S":
        slots[N - 3]["post"].extend(Seq()("s_add_u32 s%d, s%d, 1" % (S_T, S_T))("s_add_u32 s6, s%d, 1" % S_T).l)
    out = emit_slots(slots, True)
    return out

def poll_issue(z, vp, voff, srd, soff, tag="POLL"):
    z("buffer_load_dword v%d, v%d, %s, %s offen sc1" % (vp, voff, sr(srd, 4), soff), tag=tag)
def poll_check(z, name, vp, vneed, voff, srd, soff):
    z("v_cmp_lt_u32 vcc, v%d, v%d" % (vp, vneed))
    z("s_cbranch_vccz %s_OK" % name)
    z("s_mov_b32 s%d, 0x40000" % S_SPIN)
    z.label("%s_SP" % name)
    z("s_sleep 2")
    z("buffer_load_dword v%d, v%d, %s, %s offen sc1" % (vp, voff, sr(srd, 4), soff), tag="OPT")
    z("s_waitcnt vmcnt(0)", tag="OPT")
    z("v_cmp_lt_u32 vcc, v%d, v%d" % (vp, vneed))
    z("s_cbranch_vccz %s_OK" % name)
    z("s_sub_u32 s%d, s%d, 1" % (S_SPIN, S_SPIN))
    z("s_cmp_lg_u32 s%d, 0" % S_SPIN)
    z("s_cbranch_scc1 %s_SP" % name)
    z.label("%s_OK" % name)
def w7_block(name, body):
    z = Seq(); z("s_cmp_lg_u32 s%d, 7" % S_W); z("s_cbranch_scc1 %s" % name); z.ext(body); z.label(name)
    return z
def flag_store(base_expr, va, vb, so=6):
    z = Seq(); z.ext(base_expr)
    z("v_mov_b32 v%d, 1" % va); z("s_mov_b64 exec, 1")
    z("buffer_store_dword v%d, off, %s, s%d sc1" % (va, sr(SRD_WS, 4), so), tag="OPT")
    z("s_mov_b64 exec, -1")
    return z
def px_group(z, d, t):
    z("s_lshl_b32 s%d, s%d, 3" % (d, S_J)); z("s_and_b32 s%d, s%d, 4" % (t, S_H)); z("s_add_u32 s%d, s%d, s%d" % (d, d, t))
    z("s_lshr_b32 s%d, s%d, 3" % (t, S_H)); z("s_add_u32 s%d, s%d, s%d" % (d, d, t))
def px_flag(z, d, t):
    px_group(z, d, t); z("s_lshl_b32 s%d, s%d, 3" % (d, d)); z("s_add_u32 s%d, s%d, s%d" % (d, d, S_W)); z("s_lshl_b32 s%d, s%d, 7" % (d, d)); z("s_and_b32 s%d, s%d, 3" % (t, S_H)); z("s_lshl_b32 s%d, s%d, 2" % (t, t))
    z("s_add_u32 s%d, s%d, s%d" % (d, d, t)); z("s_add_u32 s%d, s%d, %d" % (d, d, FL_PX))
flat = lambda g: [x for l in g for x in l]
def cp(s):
    out = []
    for x in (s.l if isinstance(s, Seq) else s):
        if isinstance(x, list): out.append(cp(x))
        elif x.kind == "waitv": out.append(x)
        else:
            n_ = I(x.text, tag=x.tag); n_.nowaw = x.nowaw; out.append(n_)
    return out

def gen_f(stamp=False):
    ST = (lambda z, i: z.ext(STAMP(i))) if stamp else (lambda z, i: None)
    q = Seq()
    vAo0, vAo1, vAR, JT, WF, NWF, AF, RW, CH, GT, ACC, WB = 13, 14, 15, 20, 32, 6, 56, 88, 104, 112, 128, 98304
    vWB, vGD, vGA, vBB = 19, 20, 21, [12, 16, 17, 18]
    q("s_cmp_ge_u32 s2, 256"); q("s_cbranch_scc1 F_END")
    load_args(q)
    wg_decode(q, S_H, S_J)
    q("v_lshrrev_b32 v20, 6, v0"); q("v_and_b32 v%d, 63, v0" % vLANE)
    q("v_readfirstlane_b32 s%d, v20" % S_W)
    q("s_and_b32 s%d, s%d, 3" % (S_RG, S_W))
    q("v_lshrrev_b32 v20, 3, v%d" % vLANE)
    q("s_xor_b32 s6, s%d, 7" % S_J); q("s_lshl_b32 s6, s6, 8"); q("s_lshl_b32 s8, s%d, 5" % S_W); q("s_add_u32 s6, s6, s8")
    q("v_add_u32 v20, s6, v20")
    q("v_lshrrev_b32 v21, 4, v%d" % vLANE); q("v_and_b32 v22, 7, v%d" % vLANE); q("v_xor_b32 v22, v21, v22")
    q("v_lshlrev_b32 v22, 4, v22"); q("v_lshl_add_u32 v%d, v20, 10, v22" % vAo0); q("v_xor_b32 v%d, 64, v%d" % (vAo1, vAo0))
    q("s_lshl_b32 s6, s%d, 3" % S_RG); q("v_add_u32 v20, s6, v21")
    q("s_and_b32 s6, s%d, 1" % S_RG); q("s_lshl_b32 s6, s6, 2"); q("v_add_u32 v22, s6, v21")
    q("v_lshlrev_b32 v22, 1, v22"); q("v_and_b32 v23, 15, v%d" % vLANE); q("v_xor_b32 v22, v22, v23")
    q("v_lshlrev_b32 v22, 4, v22"); q("v_lshl_add_u32 v%d, v20, 13, v22" % vWo)
    q("s_lshl_b32 s6, s%d, 8" % S_H); q("v_add_u32 v%d, s6, v%d" % (vWo, vWo))
    q("s_lshl_b32 s%d, s%d, 12" % (S_W4K, S_W)); q("s_lshl_b32 s%d, s%d, 11" % (S_MW, S_W))
    mk_srd(q, SRD_CK, P_CKV, 2048 * 1024)
    q("s_cmp_lt_u32 s%d, 4" % S_W)
    q("s_cselect_b32 s%d, s%d, s%d" % (SRD_W, P_UK, P_UV)); q("s_cselect_b32 s%d, s%d, s%d" % (SRD_W + 1, P_UK + 1, P_UV + 1))
    q("s_mov_b32 s%d, %d" % (SRD_W + 2, 512 * 8192)); q("s_mov_b32 s%d, 0x00020000" % (SRD_W + 3))
    if stamp: q.ext(STAMP(0)); q.ext(RSTAMP(60))
    def dma_a(I_, sec=0):
        g = []
        for e in range(4):
            z = Seq()
            if e == 0: z("s_add_u32 m0, s%d, %d" % (S_W4K, (I_ % 3) * 32768 + sec * 16384))
            z("s_mov_b32 s%d, %d" % (S_TMP, I_ * 128 + e * (8192 - 1024) + sec * 131072))
            z("buffer_load_dwordx4 v%d, %s, s%d offen offset:%d lds" % ([vAo0, vAo1][e & 1], sr(SRD_CK, 4), S_TMP, e * 1024), tag="A%d" % I_)
            g.append(z.l)
        return g
    def dma_w(i, sec=0):
        g = []
        for e in range(2):
            z = Seq()
            if e == 0: z("s_add_u32 m0, s%d, %d" % (S_MW, WB + (i % 4) * 16384 + sec * 8192))
            z("s_mov_b32 s%d, %d" % (S_TMP, i * 32 * 8192 + e * (4 * 8192 - 1024)))
            z("buffer_load_dwordx4 v%d, %s, s%d offen offset:%d lds" % (vWo, sr(SRD_X if sec else SRD_W, 4), S_TMP, e * 1024), tag="U%d" % i)
            g.append(z.l)
        return g
    q.ext(flat(dma_w(0))); q.ext(flat(dma_a(0))); q.ext(flat(dma_w(1)))
    q("s_barrier")
    q.ext(flat(dma_a(1))); q.ext(flat(dma_w(2))); q.ext(flat(dma_w(3))); q.ext(flat(dma_a(2)))
    if TOUCH:
        q("s_lshr_b32 s8, s2, 3"); q("s_lshl_b32 s9, s8, 3"); q("s_add_u32 s9, s9, s%d" % S_W)
        q("s_getpc_b64 s[12:13]"); q.label("F_PC"); q("s_mov_b32 s14, F_COLD-F_PC"); q("s_mov_b32 s15, 0x00020000")
        q("v_lshlrev_b32 v24, 7, v%d" % vLANE); q("s_lshl_b32 s10, s9, 13")
        q("s_cmp_ge_u32 s10, s14"); q("s_cbranch_scc1 F_NCT")
        q("buffer_load_dword v31, v24, s[12:15], s10 offen", tag="OPT")
        q.label("F_NCT")
    mk_srd(q, SRD_X, P_X, 2048 * 1152); mk_srd(q, SRD_WB, P_WQKV, 576 * 3456); mk_srd(q, SRD_GATE, P_GATE, 1152)
    mk_srd(q, SRD_WS, P_WS, WS_SIZE); mk_srd(q, SRD_DBG, P_DBG, 256); mk_srd(q, SRD_WQ, P_WQ, 576 * 8192)
    q("s_mov_b32 s%d, 0x%x" % (S_HUGE, HUGE))
    q("v_lshlrev_b32 v%d, 4, v%d" % (vL16, vLANE))
    q("s_lshl_b32 s6, s%d, 7" % S_H); q("s_lshl_b32 s8, s%d, 2" % S_J); q("s_add_u32 s6, s6, s8"); q("s_add_u32 s6, s6, %d" % FL_KV)
    q("s_lshl_b32 s8, s%d, 7" % S_J); q("s_lshl_b32 s9, s%d, 2" % S_H); q("s_add_u32 s8, s8, s9"); q("s_add_u32 s8, s8, %d" % FL_AP)
    q("v_lshlrev_b32 v20, 12, v%d" % vLANE); q("v_add_u32 v20, s6, v20"); q("v_mov_b32 v22, s8")
    q("v_cmp_eq_u32 vcc, 2, v%d" % vLANE); q("v_cndmask_b32 v20, v20, v22, vcc")
    q("v_mov_b32 v22, s%d" % S_HUGE); q("v_cmp_gt_u32 vcc, %d, v0" % (7 * 64)); q("v_cndmask_b32 v20, v20, v22, vcc")
    q("v_cmp_lt_u32 vcc, 3, v%d" % vLANE); q("v_cndmask_b32 v20, v20, v22, vcc")
    px_flag(q, 8, 9); q("v_mov_b32 v22, s8"); q("v_cmp_eq_u32 vcc, 3, v%d" % vLANE); q("v_cndmask_b32 v20, v20, v22, vcc")
    q("v_mov_b32 v22, 0")
    q("buffer_store_dword v22, v20, %s, 0 offen sc1" % sr(SRD_WS, 4), tag="J13")
    q("v_and_b32 v20, 15, v%d" % vLANE); q("v_lshrrev_b32 v22, 1, v20"); q("v_xor_b32 v22, v22, v21")
    q("s_lshl_b32 s6, s%d, 6" % S_RG); q("v_add_u32 v20, s6, v20"); q("v_lshlrev_b32 v20, 7, v20")
    q("v_lshl_add_u32 v%d, v22, 4, v20" % vAR); q("v_xor_b32 v%d, 64, v%d" % (vAR + 1, vAR))
    q("v_add_u32 v%d, 0x10000, v%d" % (vAR + 2, vAR)); q("v_add_u32 v%d, 0x10000, v%d" % (vAR + 3, vAR + 1))
    q("v_bfe_u32 v20, v%d, 2, 2" % vLANE); q("v_lshl_add_u32 v22, v21, 3, v20"); q("v_lshlrev_b32 v22, 8, v22")
    q("v_and_b32 v23, 1, v21"); q("v_lshl_add_u32 v20, v23, 2, v20"); q("v_lshl_add_u32 v22, v20, 5, v22")
    q("v_and_b32 v20, 3, v%d" % vLANE); q("v_lshl_add_u32 v22, v20, 3, v22")
    q("s_lshr_b32 s6, s%d, 2" % S_W); q("s_lshl_b32 s6, s6, 13"); q("s_add_u32 s6, s6, %d" % WB)
    q("v_add_u32 v%d, s6, v22" % vWR)
    for cb in range(1, 8): q("v_xor_b32 v%d, %d, v%d" % (vWR + cb, 32 * cb, vWR))
    q("s_lshr_b32 s6, s%d, 2" % S_W); q("s_lshl_b32 s6, s6, 24"); q("s_lshl_b32 s8, s%d, 19" % S_H); q("s_add_u32 s6, s6, s8")
    q("s_xor_b32 s8, s%d, 7" % S_J); q("s_lshl_b32 s8, s8, 2"); q("s_add_u32 s8, s8, s%d" % S_RG); q("s_lshl_b32 s8, s8, 14"); q("s_add_u32 s%d, s6, s8" % S_ST)
    for i in range(1, 4): q("s_add_u32 s%d, s%d, %d" % (S_ST + i, S_ST, 4096 * i))
    q("s_sub_u32 s6, 15, s%d" % S_J); q("s_cmp_lt_u32 s%d, 4" % S_W); q("s_cselect_b32 s6, s%d, s6" % S_J)
    q("s_lshl_b32 s6, s6, 7"); q("s_lshl_b32 s8, s%d, 5" % S_RG); q("s_add_u32 s%d, s6, s8" % S_ROW0)
    q("s_lshl_b32 s%d, s%d, 10" % (S_MB, S_W))
    q("s_mul_i32 s6, s%d, %d" % (S_H, 576 * 128)); q("s_add_u32 s6, s6, s%d" % S_MB); q("s_add_u32 s%d, s6, %d" % (S_WBG, WS_WBF))
    q("s_lshr_b32 s6, s%d, 4" % S_ROW0); q("s_mul_i32 s6, s6, %d" % (18 * 1024)); q("s_add_u32 s%d, s6, %d" % (S_XB, WS_XF))

    def j1(k):
        z = Seq(); a, b = JT, JT + 1; d = 112 + 4 * k; tg = "OPT" if k == 2 else None
        z("s_lshr_b32 s8, s2, 1"); z("s_and_b32 s9, s2, 1"); z("s_mul_i32 s9, s9, 9")
        z("s_add_u32 s9, s9, %s" % ("s%d" % S_RG if k < 2 else "8"))
        if k == 1: z("s_add_u32 s9, s9, 4")
        z("v_lshrrev_b32 v%d, 2, v%d" % (a, vLANE)); z("s_lshl_b32 s10, s8, 4"); z("v_add_u32 v%d, s10, v%d" % (a, a))
        z("v_mul_u32_u24 v%d, 1152, v%d" % (a, a)); z("v_and_b32 v%d, 3, v%d" % (b, vLANE)); z("v_lshl_add_u32 v%d, v%d, 4, v%d" % (a, b, a))
        if k == 0: z("v_and_b32 v127, 15, v%d" % vLANE); z("v_lshlrev_b32 v127, 4, v127"); z("v_lshrrev_b32 v%d, 4, v%d" % (b, vLANE)); z("v_lshl_add_u32 v127, v%d, 2, v127" % b)
        z("s_lshl_b32 s10, s9, 6"); z("v_add_u32 v%d, s10, v%d" % (d, a))
        z("s_mul_i32 s8, s8, 18"); z("s_add_u32 s8, s8, s9"); z("s_lshl_b32 s8, s8, 10"); z("s_add_u32 s%d, s8, %d" % (86 + k, WS_XF))
        ld = Seq()("buffer_load_dwordx4 %s, v%d, %s, 0 offen" % (vr(d, 4), d, sr(SRD_X, 4)), tag=tg)
        y = Seq()
        for i in range(4): y("ds_bpermute_b32 v%d, v127, v%d" % (d + i, d + i), tag=tg)
        if k == 2: y("s_waitcnt lgkmcnt(0)", tag="OPT")
        y("buffer_store_dwordx4 %s, v%d, %s, s%d offen sc1" % (vr(d, 4), vL16, sr(SRD_WS, 4), 86 + k), tag=tg or "J13")
        return z, y, ld
    def j2(i, d, t0, dst):
        z = Seq(); t1, t2, t3 = t0 + 1, t0 + 2, t0 + 3
        z("s_add_u32 s8, s%d, %d" % (S_JU, i))
        z("s_mul_i32 s9, s8, 12769"); z("s_lshr_b32 s9, s9, 24")
        z("s_mul_i32 s10, s9, 1314"); z("s_sub_u32 s8, s8, s10")
        z("s_mul_i32 s10, s8, 7282"); z("s_lshr_b32 s10, s10, 16")
        z("s_mul_i32 s11, s10, 9"); z("s_sub_u32 s8, s8, s11"); z("s_lshl_b32 s8, s8, 6")
        z("v_add_u32 v%d, s8, v%d" % (t0, vLANE))
        z("v_mul_u32_u24 v%d, 3641, v%d" % (t1, t0)); z("v_lshrrev_b32 v%d, 16, v%d" % (t1, t1))
        z("v_mul_u32_u24 v%d, 18, v%d" % (t2, t1)); z("v_sub_u32 v%d, v%d, v%d" % (t2, t0, t2))
        z("v_lshrrev_b32 v%d, 3, v%d" % (t3, t1)); z("v_lshl_add_u32 v%d, v%d, 3, v%d" % (t0, t3, t0))
        z("v_and_b32 v%d, 3, v%d" % (d, t1)); z("v_lshl_add_u32 v%d, v%d, 2, v%d" % (t3, t3, d))
        z("v_bfe_u32 v%d, v%d, 2, 1" % (d, t1)); z("v_lshl_add_u32 v%d, v%d, 4, v%d" % (t3, d, t3))
        z("s_lshl_b32 s8, s10, 5")
        for k in range(3): z("s_mov_b32 s%d, s%d" % (SRD_J + k, [P_WO, P_WO + 1, S_WOSZ][k]))
        z("s_cmp_lt_u32 s10, 128"); z("s_cbranch_scc1 J2_%d" % i)
        z("s_mov_b32 s%d, s%d" % (SRD_J, P_WO2)); z("s_mov_b32 s%d, s%d" % (SRD_J + 1, P_WO2 + 1)); z("s_mov_b32 s%d, %d" % (SRD_J + 2, 576 * 1152))
        z("v_lshrrev_b32 v%d, 4, v%d" % (t3, t1)); z("v_lshl_add_u32 v%d, v%d, 1, v%d" % (t3, t3, t1))
        z("s_mul_i32 s8, s10, 36"); z("s_sub_u32 s8, s8, %d" % (36 * 128))
        z("s_cmp_lt_u32 s10, 144"); z("s_cbranch_scc1 J2_%d" % i)
        z("v_lshrrev_b32 v%d, 1, v%d" % (t3, t1)); z("v_mul_u32_u24 v%d, 18, v%d" % (t3, t3)); z("v_and_b32 v%d, 1, v%d" % (t1, t1)); z("v_add_u32 v%d, v%d, v%d" % (t3, t3, t1))
        z("s_mul_i32 s8, s10, 288"); z("s_sub_u32 s8, s8, %d" % (288 * 144 - 16))
        z.label("J2_%d" % i)
        z("v_add_u32 v%d, s8, v%d" % (t3, t3)); z("v_mul_u32_u24 v%d, 1152, v%d" % (t3, t3)); z("v_lshl_add_u32 v%d, v%d, 4, v%d" % (t3, t2, t3))
        z("s_mul_i32 s8, s9, 288")
        z("buffer_load_dwordx4 %s, v%d, %s, s8 offen" % (vr(d, 4), t3, sr(SRD_J, 4)))
        z("s_lshr_b32 s8, s10, 5"); z("s_mul_i32 s8, s8, 37")
        z("s_lshl_b32 s11, s9, %d" % (3 if ROT else 8)); z("s_sub_u32 s11, s10, s11"); z("s_and_b32 s11, s11, 31"); z("s_add_u32 s8, s8, s11")
        z("s_sub_u32 s11, s10, 128"); z("s_lshr_b32 s6, s11, 2"); z("s_mul_i32 s6, s6, 37"); z("s_and_b32 s11, s11, 3"); z("s_add_u32 s6, s6, s11"); z("s_add_u32 s6, s6, 32")
        z("s_cmp_ge_u32 s10, 128"); z("s_cselect_b32 s8, s6, s8")
        z("s_mul_i32 s6, s10, 74"); z("s_sub_u32 s6, s6, %d" % (74 * 144 - 36))
        z("s_cmp_ge_u32 s10, 144"); z("s_cselect_b32 s8, s6, s8")
        z("s_mul_i32 s9, s9, 148"); z("s_add_u32 s9, s9, s8")
        z("s_mul_i32 s9, s9, 9728"); z("s_add_u32 s9, s9, %d" % WS_WP)
        z("v_lshlrev_b32 v%d, 4, v%d" % (t0, t0)); z("v_add_u32 v%d, s9, v%d" % (dst, t0))
        y = Seq()
        y("buffer_store_dwordx4 %s, v%d, %s, 0 offen sc1" % (vr(d, 4), dst, sr(SRD_WS2, 4)))
        return z, y
    def j3(ps):
        z = Seq(); d = RW + 8 * ps; tg = "OPT" if ps == 2 else None
        t0, t1, t2, t3, dst = JT + 1, JT + 2, JT + 3, JT + 9, 124 + ps
        z("s_mul_i32 s8, s2, 9"); z("s_add_u32 s8, s8, %s" % ("s%d" % S_RG if ps < 2 else "8"))
        if ps == 1: z("s_add_u32 s8, s8, 4")
        z("s_lshr_b32 s9, s8, 2"); z("s_and_b32 s8, s8, 3"); z("s_lshl_b32 s8, s8, 3")
        z("v_lshrrev_b32 v%d, 3, v%d" % (t0, vLANE)); z("v_add_u32 v%d, s8, v%d" % (t0, t0))
        z("s_bfe_u32 s10, s9, 0x10001"); z("s_bfe_u32 s11, s9, 0x10003"); z("s_lshl_b32 s11, s11, 1"); z("s_or_b32 s10, s10, s11"); z("s_lshl_b32 s10, s10, 1")
        z("v_and_b32 v%d, 7, v%d" % (t1, vLANE)); z("v_xor_b32 v%d, s10, v%d" % (t2, t1))
        z("s_lshl_b32 s8, s9, 7"); z("s_add_u32 s8, s8, %d" % WS_WBF)
        z("v_mul_u32_u24 v%d, %d, v%d" % (dst, 576 * 128, t0)); z("v_lshl_add_u32 v%d, v%d, 4, v%d" % (dst, t2, dst)); z("v_add_u32 v%d, s8, v%d" % (dst, dst))
        z("s_mul_i32 s8, s9, 3456")
        z("v_mul_u32_u24 v%d, 36, v%d" % (t2, t0)); z("v_add_u32 v%d, s8, v%d" % (d + 5, t2))
        z("s_lshl_b32 s8, s9, 1"); z("v_mov_b32 v%d, s8" % (d + 6)); z("v_mov_b32 v%d, v%d" % (d + 7, t1))
        for k in range(4): z("v_mov_b32 v%d, 0" % (d + k))
        z("v_lshrrev_b32 v%d, 1, v%d" % (t0, t1)); z("v_and_b32 v%d, 1, v%d" % (t3, t1)); z("v_lshl_add_u32 v%d, v%d, 4, v%d" % (t2, t3, d + 5))
        z("v_mov_b32 v%d, 2304" % t3); z("v_cmp_eq_u32 vcc, 1, v%d" % t0); z("v_cndmask_b32 v%d, 0, v%d, vcc" % (t3, t3)); z("v_add_u32 v%d, v%d, v%d" % (t2, t2, t3))
        z("v_mov_b32 v%d, 1152" % t3); z("v_cmp_eq_u32 vcc, 2, v%d" % t0); z("v_cndmask_b32 v%d, 0, v%d, vcc" % (t3, t3)); z("v_add_u32 v%d, v%d, v%d" % (d + 4, t2, t3))
        ld = Seq()
        ld("v_cmp_eq_u32 vcc, 6, v%d" % (d + 7)); ld("v_cmp_gt_u32 s[8:9], 6, v%d" % (d + 7)); ld("s_mov_b64 exec, vcc")
        ld("buffer_load_ushort v%d, v%d, %s, 0 offen" % (d + 3, d + 6, sr(SRD_GATE, 4)), tag=tg)
        for k in range(3): ld("buffer_load_dword v%d, v%d, %s, 0 offen offset:%d" % (d + k, d + 5, sr(SRD_WB, 4), 1152 * k + 32), tag=tg)
        ld("s_mov_b64 exec, s[8:9]")
        x = I("buffer_load_dwordx4 %s, v%d, %s, 0 offen" % (vr(d, 4), d + 4, sr(SRD_WB, 4)), tag=tg); x.nowaw = True
        ld.l.append(x)
        ld("s_mov_b64 exec, -1")
        y = Seq()
        y("buffer_store_dwordx4 %s, v%d, %s, 0 offen sc1" % (vr(d, 4), dst, sr(SRD_WS, 4)), tag=tg or "J13")
        return z, y, ld
    def touch(n, dst):
        z = Seq(); na = 64 if n == 0 else 96
        g = Seq()
        g("s_lshr_b32 s8, s2, 3"); g("s_lshl_b32 s8, s8, 2"); g("s_add_u32 s8, s8, s%d" % S_RG)
        g("s_and_b32 s9, s8, 31"); g("s_lshl_b32 s9, s9, 16"); g("s_lshr_b32 s10, s8, 5"); g("s_lshl_b32 s10, s10, 7"); g("s_add_u32 s9, s9, s10"); g("s_add_u32 s9, s9, %d" % ((3 if n == 0 else 5) * 128))
        g("s_sub_u32 s10, s8, %d" % na); g("s_lshr_b32 s10, s10, 3"); g("s_add_u32 s10, s10, %d" % (4 if n == 0 else 12)); g("s_lshl_b32 s10, s10, 18")
        g("s_bfe_u32 s11, s8, 0x20001"); g("s_lshl_b32 s11, s11, 11"); g("s_add_u32 s10, s10, s11"); g("s_and_b32 s11, s2, 7"); g("s_lshl_b32 s11, s11, 8"); g("s_add_u32 s10, s10, s11")
        g("s_bitcmp1_b32 s8, 0"); g("s_cselect_b32 s12, s%d, s%d" % (P_UV, P_UK)); g("s_cselect_b32 s13, s%d, s%d" % (P_UV + 1, P_UK + 1))
        g("s_cmp_lt_u32 s8, %d" % na); g("s_cselect_b32 s12, s%d, s12" % P_CKV); g("s_cselect_b32 s13, s%d, s13" % (P_CKV + 1)); g("s_cselect_b32 s9, s9, s10")
        g("s_cselect_b32 s14, %d, s%d" % (2048 * 1024, SRD_W + 2)); g("s_cselect_b64 vcc, -1, 0")
        g("v_lshlrev_b32 v%d, 10, v%d" % (dst, vLANE)); g("v_lshrrev_b32 v24, 1, v%d" % vLANE); g("v_lshlrev_b32 v24, 13, v24"); g("v_and_b32 v25, 1, v%d" % vLANE)
        g("v_lshl_add_u32 v24, v25, 7, v24"); g("v_cndmask_b32 v%d, v24, v%d, vcc" % (dst, dst))
        g("buffer_load_dword v%d, v%d, s[12:15], s9 offen" % (dst, dst))
        return g.l
    def touch_wq(n, dst):
        g = Seq()
        g("s_lshr_b32 s8, s2, 3"); g("s_lshl_b32 s8, s8, 2"); g("s_add_u32 s8, s8, s%d" % S_RG); g("s_add_u32 s8, s8, %d" % (128 * n)); g("s_lshl_b32 s8, s8, 15")
        g("v_and_b32 v24, 1, v%d" % vLANE); g("v_lshlrev_b32 v24, 7, v24"); g("v_lshrrev_b32 v25, 4, v%d" % vLANE); g("v_lshl_add_u32 v24, v25, 13, v24")
        g("v_bfe_u32 v25, v%d, 2, 2" % vLANE); g("v_lshl_add_u32 v24, v25, 11, v24"); g("s_and_b32 s11, s2, 7"); g("s_lshl_b32 s11, s11, 8"); g("v_add_u32 v24, s11, v24")
        g("buffer_load_dword v%d, v24, %s, s8 offen" % (dst, sr(SRD_WQ, 4)))
        return g.l

    q("s_cmp_ge_u32 s%d, 4" % S_W); q("s_cbranch_scc1 F_B")
    pre, st0 = resolve_waits(q.l)
    outl = list(pre); cold = []
    WQS = [4, 5, 7, 1, 2, 3, 4, 5, 7]
    WBS = [6 * SLOT, 6 * SLOT + 8192, 0, 8192, 8 * SLOT, 8 * SLOT + 8192, 6 * SLOT, 6 * SLOT + 8192, 9 * SLOT + 8192]
    global W32
    for role in range(2):
        RN = "AB"[role]
        W32 = bool(role == 1 and B32)
        r = Seq()
        if role == 1: r.label("F_B")
        if GP & (1 << role): r("s_setprio 1")
        def dma_wq(i):
            g = []
            for e in range(2):
                z = Seq()
                if e == 0: z("s_add_u32 m0, s%d, %d" % (S_MW, WQS[i] * SLOT))
                z("s_mov_b32 s%d, %d" % (S_TMP, (i * 64 + role * 32) * 8192 + e * (4 * 8192 - 1024)))
                z("buffer_load_dwordx4 v%d, %s, s%d offen offset:%d lds" % (vWo, sr(SRD_WQ, 4), S_TMP, e * 1024), tag="W%d" % i)
                g.append(z.l)
            return g
        def dma_wb(i):
            z = Seq()
            z("s_add_u32 m0, s%d, %d" % (S_MB, WBS[i])); z("s_add_u32 s%d, s%d, %d" % (S_TMP, S_WBG, i * 8192))
            z("buffer_load_dwordx4 v%d, %s, s%d offen sc1 lds" % (vL16, sr(SRD_WS, 4), S_TMP), tag="W%d" % i)
            return [z.l]
        def ld_x(ks):
            g = []
            for rr in range(2):
                z = Seq()
                z("s_add_u32 s%d, s%d, %d" % (S_TMP, S_XB, (rr * 18 + ks) * 1024))
                z("buffer_load_dwordx4 %s, v%d, %s, s%d offen sc1" % (vr(XRS[ks % NXR] + 4 * rr, 4), vL16, sr(SRD_WS, 4), S_TMP))
                g.append(z.l)
            return g
        NM = 512
        extra = {f: [] for f in range(NM)}
        streams = []
        def spread(lst, a, per=int(os.environ.get("PER", 1))):
            streams.append([y_ for x_ in lst for y_ in (x_ if isinstance(x_, list) else [x_])])
            for k, ins in enumerate(lst): extra[a + k // per].extend(ins if isinstance(ins, list) else [ins])
            return a + (len(lst) + per - 1) // per
        def rd_w(i, cb):
            w = WF + 4 * ((8 * i + cb) % NWF); off = (i % 4) * 16384
            return Seq()("ds_read_b64_tr_b16 %s, v%d offset:%d" % (vr(w, 2), vWR + cb, off))("ds_read_b64_tr_b16 %s, v%d offset:%d" % (vr(w + 2, 2), vWR + cb, off + 1024)).l
        def rd_a(i, rbk):
            sl = (i >> 1) % 3
            base = vAR + (i & 1) + (2 if sl == 2 else 0); off = (32768 if sl == 1 else 0) + rbk * 2048
            return Seq()("ds_read_b128 %s, v%d offset:%d" % (vr(AF + 16 * (i & 1) + 4 * rbk, 4), base, off)).l
        B1, B2 = int(os.environ.get('B1', 8)), 10
        def arrive(name, fill, ta=30, tb=31):
            z = Seq(); z("v_mov_b32 v%d, s%d" % (ta, S_HUGE)); fill(z, ta, tb); z("v_mov_b32 v%d, 1" % tb)
            z("buffer_atomic_add v%d, v%d, %s, 0 offen" % (tb, ta, sr(SRD_DBG, 4)), tag="OPT")
            return w7_block(name, z).l
        def fill1(z, ta, tb):
            z("s_and_b32 s11, s2, 7"); z("s_lshl_b32 s11, s11, 2"); z("s_add_u32 s11, s11, 224"); z("v_mov_b32 v%d, s11" % tb)
            z("v_cmp_eq_u32 vcc, 0, v%d" % vLANE); z("v_cndmask_b32 v%d, v%d, v%d, vcc" % (ta, ta, tb))
        def fill2(z, ta, tb):
            z("s_and_b32 s11, s2, 7"); z("s_lshl_b32 s11, s11, 2"); z("s_add_u32 s11, s11, 192"); z("v_mov_b32 v%d, s11" % tb)
            z("v_cmp_eq_u32 vcc, 0, v%d" % vLANE); z("v_cndmask_b32 v%d, v%d, v%d, vcc" % (ta, ta, tb))
        def publish1(i):
            z = Seq(); tags = ["U%d" % i] + (["A%d" % (i >> 1)] if i % 2 == 0 else [])
            if i == B1: tags += ["J13"]
            z.waitv(*tags)
            if i == 14 and role == 1:
                y_ = Seq(); y_("s_waitcnt vmcnt(4)", tag="OPT"); poll_check(y_, "P1", 26, 25, 24, SRD_DBG, "0"); z.ext(w7_block("F_P1C", y_))
            z("s_barrier")
            if i % 2 == 0: ST(z, 1 + i // 2)
            return z.l
        DW = 4
        for i in range(16):
            for cb in range(8):
                n = 8 * i + cb - DW
                if n >= 0:
                    if cb == 0: extra[4 * n].extend(publish1(i))
                    t_ = rd_w(i, cb); extra[4 * n].insert(len(extra[4 * n]) if cb == 0 else 0, t_[0]); extra[4 * n + 1].insert(0, t_[1])
            if i > 0:
                for rbk in range(4): extra[32 * (i - 1) + 18 + 4 * rbk].insert(0, rd_a(i, rbk)[0])
                g = []
                if i == 12 and role == 1:
                    z = Seq()
                    z("v_lshrrev_b32 v24, 2, v%d" % vL16); z("v_mov_b32 v25, s%d" % S_HUGE); z("v_cmp_le_u32 vcc, 56, v%d" % vLANE)
                    z("v_cndmask_b32 v24, v25, v24, vcc"); z("v_cndmask_b32 v25, 0, 32, vcc")
                    poll_issue(z, 26, 24, SRD_DBG, "0", tag="OPT")
                    g.append(w7_block("F_P1I", z).l)
                if role == 0:
                    if i + 2 < 16 and i >= 2: g += dma_w(i + 2) + dma_w(i + 2, 1)
                    if i % 2 == 1 and i >= 3 and (i >> 1) + 2 < 8: g += dma_a((i >> 1) + 2) + dma_a((i >> 1) + 2, 1)
                if i == 13: g += dma_wq(0) + dma_wq(1)
                if i == 14: g += dma_wb(0) + dma_wb(1)
                if i == 15: g += dma_wq(2) + dma_wq(3) + dma_wb(2) + dma_wb(3)
                if role == 1 and i == B1: g.append(arrive("F_AR1", fill1))
                for k, l in enumerate(g): extra[32 * (i - 1) + 17 + (2 if len(g) < 8 else 1) * k].extend(l)
        if role == 0: mk_srd(r, SRD_X, P_UV, 512 * 8192)
        else:
            J = [j1(k) for k in range(3)] + [j3(k) for k in range(3)]
            if TOUCH > 1: r.ext(touch(0, 27))
            w4 = lambda nm, k: Seq()("s_cmp_lg_u32 s%d, 4" % S_W)("s_cbranch_scc1 %s" % nm).l + cp(J[2][k]) + cp(J[5][k]) + Seq().label(nm).l
            lds_ = [w4("F_Z4", 2)] + [cp(J[k][2]) for k in (0, 1, 3, 4)]
            if JMODE == 0:
                p = 2
                for x_ in J: p = spread(cp(x_[0]), p, 2)
                p = max(p, LMIN)
                for l in lds_: extra[p].extend(l); p += LSTEP
            else:
                for x_ in J: r.ext(cp(x_[0]))
                for l in lds_: r.ext(l)
                p = 0
            p += GAP
            for l in [cp(J[4][1]), w4("F_Y4", 1)] + [cp(J[k][1]) for k in (0, 1, 3)]: extra[p].extend(l); p += YSTEP
            assert p < 32 * (B1 - 1) + 8, p
            if TOUCH: extra[p + 8].extend(touch_wq(0, 29)); extra[p + 16].extend(Seq()("s_cmp_ge_u32 s2, 32")("s_cbranch_scc1 F_TQ").l + [I(x.text, tag="OPT") for x in touch_wq(1, 19)] + Seq().label("F_TQ").l)
        for ks in range(5):
            for k, l in enumerate(ld_x(ks)): extra[32 * 13 + 24 + 4 * ks + 2 * k].extend(l)
        r.ext(publish1(0))
        for rbk in range(4): r.ext(rd_a(0, rbk))
        for cb in range(DW): r.ext(rd_w(0, cb))
        for f in range(NM):
            i, cb, rbk = f >> 5, (f >> 2) & 7, f & 3
            acc = vr(ACC + 4 * (4 * cb + rbk), 4); w = vr(WF + 4 * ((8 * i + cb) % NWF), 4); a = vr(AF + 16 * (i & 1) + 4 * rbk, 4)
            ops = (w, a) if role == 0 else (a, w)
            r("%s %s, %s, %s, %s" % (MF, acc, ops[0], ops[1], "0" if i == 0 else acc))
            r.ext(extra[f])
        ST(r, 9)
        NF = 216
        extra = {f: [] for f in range(2 * NF)}
        FO = [(n // 12, n % 12) for n in range(192)] + [(k, p) for k in (16, 17) for p in range(8, 12)] + [(k, p) for k in (16, 17) for p in range(8)]
        def rd_q(n):
            ks, ph = FO[n]; s1 = ks & 1; w = FR + 4 * (n % 8)
            if ph < 8:
                return Seq()("ds_read_b64_tr_b16 %s, v%d offset:%d" % (vr(w, 2), vWR + ph, s1 * 8192))("ds_read_b64_tr_b16 %s, v%d offset:%d" % (vr(w + 2, 2), vWR + ph, s1 * 8192 + 1024)).l
            return Seq()("ds_read_b64_tr_b16 %s, v%d offset:%d" % (vr(w, 2), vBB[ph - 8], s1 * 4096))("ds_read_b64_tr_b16 %s, v%d offset:%d" % (vr(w + 2, 2), vBB[ph - 8], s1 * 4096 + 512)).l
        BKV = 5
        def publish(i):
            z = Seq()
            d = ((WQS[i] - WQS[i - 1]) * SLOT if i else WQS[0] * SLOT - WB - role * 8192) & 0xffffffff
            for cb in range(8):
                if "r" not in XQ or i == 0: z("v_add_u32 v%d, 0x%x, v%d" % (vWR + cb, d, vWR + cb))
            if i and "r" in XQ: pass
            elif i:
                for b in vBB: z("v_add_u32 v%d, 0x%x, v%d" % (b, (WBS[i] - WBS[i - 1]) & 0xffffffff, b))
            else:
                z("v_lshrrev_b32 v13, 4, v%d" % vLANE); z("v_bfe_u32 v14, v%d, 2, 2" % vLANE); z("v_lshl_add_u32 v15, v13, 3, v14"); z("v_lshlrev_b32 v15, 7, v15")
                z("v_lshrrev_b32 v14, 1, v14"); z("v_and_b32 v13, 1, v13"); z("v_lshl_add_u32 v14, v13, 1, v14"); z("v_lshl_add_u32 v15, v14, 5, v15")
                z("v_and_b32 v14, 3, v%d" % vLANE); z("v_lshl_add_u32 v15, v14, 3, v15"); z("v_add_u32 v%d, %d, v15" % (vBB[0], WBS[0]))
                for b in range(1, 4): z("v_xor_b32 v%d, %d, v%d" % (vBB[b], 32 * b, vBB[0]))
            z.waitv(*(["W%d" % i] + (["KVS"] if i == BKV else [])))
            z("s_barrier")
            ST(z, 10 + i)
            return z.l
        def kv_obj(kind, t, slot):
            z = Seq()
            z("s_add_u32 m0, s%d, %d" % (S_W4K, slot * SLOT)); z("s_add_u32 s%d, s%d, %d" % (S_TMP, S_KG if kind == "K" else S_VG, t * SLOT))
            for e in range(4): z("buffer_load_dwordx4 v%d, %s, s%d offen offset:%d sc1 lds" % (vL16, sr(SRD_WS, 4), S_TMP, 1024 * e), tag="%s%d" % (kind, t))
            return [z.l]
        phl = Seq()
        phl("s_mul_i32 s6, s%d, 648" % S_H); mk_srd(phl, SRD_PHI, P_PHI, 648, add="s6")
        phl("s_lshl_b32 s6, s%d, 8" % S_W); phl("s_add_u32 m0, s6, %d" % PHL); phl("v_lshrrev_b32 v13, 2, v%d" % vL16)
        phl("buffer_load_dword v13, %s, s6 offen lds" % sr(SRD_PHI, 4), tag="W5")
        DWQ = 5
        after = {0: dma_wq(4) + dma_wb(4) + dma_wq(5) + dma_wb(5) + [phl.l], 2: dma_wq(6) + dma_wb(8), 3: dma_wq(7) + dma_wb(6) + dma_wb(7), 4: dma_wq(8)}
        if role == 1:
            fb = Seq(); fb("s_lshl_b32 s6, s%d, 7" % S_H); fb("s_lshl_b32 s8, s%d, 2" % S_J); fb("s_add_u32 s6, s6, s8"); fb("s_add_u32 s6, s6, %d" % FL_KV)
            fbe = Seq().ext(cp(fb)); fbe("s_cmp_ge_u32 s%d, %d" % (S_J, FASTJ)); fbe("s_cselect_b32 s6, s6, s%d" % S_HUGE)
            after[BKV] = [w7_block("F_FKV", flag_store(fbe, 13, 14)).l]
            fkv_late = w7_block("F_FKV2", flag_store(fb, 8, 9))
        else:
            z = Seq()
            z("v_lshrrev_b32 v13, 2, v%d" % vL16); z("v_mov_b32 v15, s%d" % S_HUGE); z("v_xor_b32 v14, 7, v%d" % vLANE); z("v_cmp_gt_u32 vcc, %d, v14" % (8 - FASTJ))
            z("v_cndmask_b32 v13, v15, v13, vcc"); z("v_cndmask_b32 v15, 0, 1, vcc")
            z("s_lshl_b32 s9, s%d, 7" % S_H); z("s_add_u32 s9, s9, %d" % FL_KV)
            poll_issue(z, 14, 13, SRD_WS, "s9")
            after[6] = [z.l]
            z = Seq(); poll_check(z, "P2A", 14, 15, 13, SRD_WS, "s9")
            after[7] = [z.l] + kv_obj("K", 0, 0) + kv_obj("K", 1, 1)
            after[8] = kv_obj("V", 0, 4) + kv_obj("K", 2, 2)
        for n in range(DWQ, NF):
            pos = 2 * (n - DWQ)
            if n % 24 == 0:
                extra[pos].extend(publish(n // 24))
                for k, l in enumerate(after.get(n // 24, [])): extra[pos + 2 + k].extend(l)
            t_ = rd_q(n); extra[pos].insert(len(extra[pos]) if n % 24 == 0 else 0, t_[0]); extra[pos + 1].insert(0, t_[1])
        for k, l in enumerate(after[0]): extra[1 + k].extend(l)
        pk = Seq(); sts = []
        order = list(range(8, 16)) + list(range(8))
        free = []
        for n in order:
            if role == 0:
                j, rbk = n >> 2, n & 3
                b0, b1 = ACC + 4 * (8 * j + rbk), ACC + 4 * (8 * j + 4 + rbk); fi = 4 * rbk + j
            else:
                cb, u = n >> 1, n & 1
                b0, b1 = ACC + 4 * (4 * cb + 2 * u), ACC + 4 * (4 * cb + 2 * u + 1); fi = 8 * u + cb
            if n >= 8: t = b0; free.append(b1)
            else: t = free.pop(0)
            pk("v_cvt_pk_bf16_f32 v%d, v%d, v%d" % (t, b0, b0 + 1)); pk("v_cvt_pk_bf16_f32 v%d, v%d, v%d" % (t + 1, b0 + 2, b0 + 3))
            pk("v_cvt_pk_bf16_f32 v%d, v%d, v%d" % (t + 2, b1, b1 + 1)); pk("v_cvt_pk_bf16_f32 v%d, v%d, v%d" % (t + 3, b1 + 2, b1 + 3))
            sts.append((t, fi))
        sts.sort()
        mkst = lambda t, fi, base, tag: I("buffer_store_dwordx4 %s, v%d, %s, s%d offen offset:%d%s" % (vr(t, 4), vL16, sr(SRD_WS, 4), base + (fi >> 2), (fi & 3) * 1024, os.environ.get("KVF", " sc1")), tag=tag)
        for k, (t, fi) in enumerate(sts):
            for (pos, br, nm) in ((8 + FSP * k, "scc0", "E"), (13 + LSP * k, "scc1", "L")):
                z = Seq(); z("s_cmp_ge_u32 s%d, %d" % (S_J, FASTJ)); z("s_cbranch_%s KS%s%s%d" % (br, RN, nm, k))
                z.ext([mkst(t, fi, S_ST, "OPT")]); z.label("KS%s%s%d" % (RN, nm, k))
                if "s" not in XQ: extra[pos].extend(z.l)
        for ks in range(18 - NXR):
            for k, l in enumerate(ld_x(ks + NXR)):
                if ks == (8 + 15 * FSP) // 24: l[-1].tag = "KVS"
                if "x" not in XQ: extra[24 * ks + 24 + XS0 + XSP * k + XSB * role].extend(l)
        z = Seq()
        z("s_lshl_b32 s6, s%d, 19" % S_H); z("s_add_u32 s%d, s6, s%d" % (S_KG, S_W4K)); z("s_add_u32 s%d, s%d, %d" % (S_VG, S_KG, WS_VF))
        z("s_lshr_b32 s%d, s%d, 6" % (S_TL, S_ROW0))
        z("s_lshl_b32 s6, s%d, 1" % S_J); z("s_sub_u32 s%d, 31, s6" % S_TBM)
        c = f2u(LOG2E / (128 ** 0.5))
        z("s_mov_b32 s%d, 0x%x" % (S_C, c)); z("s_mov_b32 s%d, 0x%x" % (S_C + 1, c)); z("s_mov_b32 s%d, 0x%x" % (S_L2E, f2u(LOG2E)))
        z("s_mul_i32 s6, s%d, %d" % (S_TL, NSTEP * 4096)); z("s_lshr_b32 s8, s%d, 4" % S_ROW0); z("s_and_b32 s8, s8, 3"); z("s_lshl_b32 s8, s8, 10")
        z("s_add_u32 s6, s6, s8"); z("s_add_u32 s%d, s6, %d" % (S_AP, WS_AP))
        z("v_lshrrev_b32 v22, 4, v%d" % vLANE); z("v_cmp_gt_u32 vcc, 2, v22"); z("v_cndmask_b32 v%d, 0, 1.0, vcc" % vM5)
        z("v_mov_b32 v%d, 0xff800000" % vNINF)
        streams.append(z.l)
        for k, ins in enumerate(z.l): extra[200 + k].append(ins)
        RAW, PH = 192, 208
        z = Seq(); y = phi_gather(z, RAW, PH, RAW + 12, RAW + 13); streams.append(z.l)
        for k, ins in enumerate(z.l): extra[340 + k].append(ins)
        U, VM, PK, EE, T8, LK = 88, 112, 216, 160, 120, 192
        blk = lambda b, rho: DB + 4 * (2 * b + rho)
        t_ = Seq(); t_.ext(y)
        t_("v_and_b32 v%d, 15, v%d" % (T8, vLANE)); t_("v_lshlrev_b32 v%d, 2, v%d" % (T8, T8)); t_("v_add_u32 v%d, 64, v%d" % (T8, T8))
        for rho in range(2):
            t, u = TK + 4 * rho, U + 4 * rho
            for (d, b) in ((u, 2), (t + 2, 3)):
                t_("v_cvt_pk_bf16_f32 v%d, v%d, v%d" % (d, blk(b, rho), blk(b, rho) + 1)); t_("v_cvt_pk_bf16_f32 v%d, v%d, v%d" % (d + 1, blk(b, rho) + 2, blk(b, rho) + 3))
            t_("v_mov_b32 v%d, v%d" % (u + 2, t + 3)); t_("v_mov_b32 v%d, v%d" % (u + 3, t + 2))
        for rho in range(2): t_("ds_bpermute_b32 v%d, v%d, v%d" % (vG[rho], T8, blk(3, rho) + 2))
        for mu in range(2):
            for rho in range(2): t_("%s %s, %s, %s, 0" % (MF, vr(PK + 8 * mu + 4 * rho, 4), vr(PH + 4 * mu, 4), vr(U + 4 * rho, 4)))
        for rho in range(2):
            t = TK + 4 * rho
            for (d, b) in ((t, 0), (VM + 4 * rho, 1)):
                t_("v_cvt_pk_bf16_f32 v%d, v%d, v%d" % (d, blk(b, rho), blk(b, rho) + 1)); t_("v_cvt_pk_bf16_f32 v%d, v%d, v%d" % (d + 1, blk(b, rho) + 2, blk(b, rho) + 3))
            t_("v_mov_b32 v%d, v%d" % (VM + 4 * rho + 2, t + 2)); t_("v_mov_b32 v%d, 0x3f80" % (VM + 4 * rho + 3))
        for rho in range(2):
            g = vG[rho]
            t_("v_mul_f32 v%d, s%d, v%d" % (g, S_L2E, g)); t_("v_exp_f32 v%d, -v%d" % (g, g)); t_("v_add_f32 v%d, 1.0, v%d" % (g, g)); t_("v_rcp_f32 v%d, v%d" % (g, g))
        softmax5(t_, PK, EE, T8, LK)
        streams.append(t_.l)
        t0_ = 2 * 200 + 2; span = 2 * NF - t0_
        for k, ins in enumerate(t_.l): extra[t0_ + (k * span) // len(t_.l)].append(ins)
        r.ext(publish(0))
        for n in range(DWQ): r.ext(rd_q(n))
        r.ext(pk)
        for n in range(NF):
            ks, ph = FO[n]
            for rho in range(2):
                acc = vr(qacc(ph, rho) if ph < 8 else (DB + 4 * (2 * (ph - 8) + rho)), 4)
                r("%s %s, %s, %s, %s" % (MF, acc, vr(FR + 4 * (n % 8), 4), vr(XRS[ks % NXR] + 4 * rho, 4), "0" if ks == 0 else acc))
                xl = extra[2 * n + rho]
                if "d" in XQ and 48 <= 2 * n < 300: xl = [x_ for x_ in xl if x_.kind != "dma"]
                if "b" in XQ and 48 <= 2 * n < 300: xl = [x_ for x_ in xl if x_.kind != "barrier"]
                r.ext(xl)
        ST(r, 20)
        vF = 4
        FB0 = 6 * SLOT
        r("v_and_b32 v6, 15, v%d" % vLANE); r("v_lshrrev_b32 v7, 4, v%d" % vLANE)
        r("s_mul_i32 s6, s%d, 5376" % S_W); r("s_add_u32 s6, s6, %d" % FB0)
        r("v_mul_u32_u24 v8, 168, v6"); r("v_lshl_add_u32 v8, v7, 3, v8"); r("v_add_u32 v%d, s6, v8" % vF)
        if W32:
            r("v_lshlrev_b32 v9, 4, v6"); r("v_lshrrev_b32 v8, 1, v7"); r("v_lshl_add_u32 v9, v8, 8, v9"); r("v_and_b32 v8, 1, v7")
            r("v_lshl_add_u32 v%d, v8, 12, v9" % vKA); r("v_lshl_add_u32 v%d, v8, 10, v9" % (vLs + 1))
        else: r("v_mov_b32 v%d, v%d" % (vKA, vL16))
        if role == 0: r.waitv("K0")
        else: r("s_waitcnt vmcnt(0)")
        r("s_barrier")
        for rho in range(2):
            for b in range(3): r("ds_write_b64 v%d, %s offset:%d" % (vF, vr(LK + 8 * rho + 2 * b, 2), 2688 * rho + 32 * b), tag="FW")
            for b in range(2): r("ds_write_b64 v%d, %s offset:%d" % (vF, vr(VM + 4 * rho + 2 * b, 2), 2688 * rho + 96 + 32 * b), tag="FW")
        if role == 0: r.ext(flat(kv_obj("V", 1, 5)))
        else: r.ext(fkv_late)
        for n in range(8): r.ext([rd_frag("K", n, n)])
        for qb in range(2):
            for js in range(4):
                for hb in range(2):
                    a = qacc(2 * js + hb, qb)
                    r("v_pk_mul_f32 %s, %s, s[%d:%d]" % (vr(a, 2), vr(a, 2), S_C, S_C + 1)); r("v_pk_mul_f32 %s, %s, s[%d:%d]" % (vr(a + 2, 2), vr(a + 2, 2), S_C, S_C + 1))
                    d = Q + 16 * qb + 4 * js + 2 * hb
                    r("v_cvt_pk_bf16_f32 v%d, v%d, v%d" % (d, a, a + 1)); r("v_cvt_pk_bf16_f32 v%d, v%d, v%d" % (d + 1, a + 2, a + 3))
        if W32:
            for op in ("v_permlane16_swap_b32", "v_permlane32_swap_b32"):
                for i in range(16): r("%s v%d, v%d" % (op, Q + i, Q + 16 + i))
            r("v_and_b32 v8, 31, v%d" % vLANE); r("v_lshrrev_b32 v9, 5, v%d" % vLANE); r("v_lshlrev_b32 v9, 2, v9"); r("v_sub_u32 v8, v8, v9")
            r("v_add_u32 v%d, s%d, v8" % (vQ, S_ROW0)); r("v_mov_b32 v%d, 0" % vLs)
        else:
            r("v_lshlrev_b32 v8, 2, v7"); r("v_sub_u32 v8, v6, v8")
            r("v_add_u32 v%d, s%d, v8" % (vQ, S_ROW0)); r("v_add_u32 v%d, 16, v%d" % (vQ + 1, vQ))
            r("v_mov_b32 v%d, 0" % vLs); r("v_mov_b32 v%d, 0" % (vLs + 1))
        r("v_mov_b32 v%d, 0x44800000" % vTHR())
        r("s_mov_b32 s%d, 0xffff" % S_KR); r("v_mov_b32 v%d, 0x10000" % vC64); r("v_add_u32 v%d, 0x10000, v%d" % (vVA, vLs + 1 if W32 else vL16)); r("s_mov_b32 s%d, 0" % S_T)
        CA, CB, CD, ZR = 128, 160, 64, 68
        r("s_cmp_ge_u32 s%d, 3" % S_W); r("s_cselect_b32 s6, 1, 0"); r("s_mul_i32 s8, s6, 3"); r("s_sub_u32 s8, s%d, s8" % S_W)
        r("v_bfe_u32 v8, v%d, 2, 2" % vLANE); r("v_lshl_add_u32 v8, v7, 3, v8")
        r("v_and_b32 v9, 3, v%d" % vLANE); r("v_lshlrev_b32 v9, 3, v9")
        r("v_mul_u32_u24 v21, 168, v8"); r("v_add_u32 v21, v21, v9")
        r("s_lshl_b32 s9, s8, 5"); r("s_add_u32 s9, s9, %d" % FB0); r("v_add_u32 v4, s9, v21")
        r("s_lshl_b32 s9, s6, 5"); r("s_add_u32 s9, s9, %d" % (FB0 + 96)); r("v_add_u32 v6, s9, v21")
        for i in range(4): r("v_mov_b32 v%d, 0" % (ZR + i))
        ST(r, 21)
        r.waitv("FW")
        r("s_barrier")
        ST(r, 22)
        if role == 0:
            r("v_lshrrev_b32 v8, 2, v%d" % vL16); r("v_mov_b32 v7, s%d" % S_HUGE); r("v_cmp_gt_u32 vcc, 8, v%d" % vLANE)
            r("v_cndmask_b32 v8, v7, v8, vcc"); r("v_cmp_eq_u32 vcc, 6, v%d" % vLANE); r("v_cndmask_b32 v7, 0, 1, vcc")
            r("s_lshl_b32 s15, s%d, 7" % S_H); r("s_add_u32 s15, s15, %d" % FL_KV)
        for n in range(8, DRD): r.ext([rd_frag("K", n, n)])
        crd = []
        for ks in range(8):
            for (dst, a) in ((CA, 4), (CB, 6)):
                crd += Seq()("ds_read_b64_tr_b16 %s, v%d offset:%d" % (vr(dst + 4 * ks, 2), a, 5376 * ks))("ds_read_b64_tr_b16 %s, v%d offset:%d" % (vr(dst + 4 * ks + 2, 2), a, 5376 * ks + 4 * 168)).l
        slots = []
        for k in range(8): slots.append(mkslot(qk_mfmas(k, 0, k, lambda qb: "0")))
        for n in range(8):
            if n + DRD < 16: slots[n]["rd"].append(rd_frag("K", n + DRD, n + DRD))
            slots[n]["mid"].extend(crd[4 * n:4 * n + 2]); slots[n]["rd"].extend(crd[4 * n + 2:4 * n + 4])
        if W32: slots[7]["end"].append(I("s_nop 3"))
        r.ext(emit_slots(slots))
        for ks in range(8): r("%s %s, %s, %s, %s" % (MF, vr(CD, 4), vr(CA + 4 * ks, 4), vr(CB + 4 * ks, 4), "0" if ks == 0 else vr(CD, 4)))
        r("s_cmp_lg_u32 s%d, 0" % S_TL); r("s_cbranch_scc1 %s_NM" % RN)
        r("s_nop 4")
        r.ext(mask_ops(0, 0))
        r.label("%s_NM" % RN)
        G0 = row_max(r, 0, False)
        r("s_lshl_b32 s9, s%d, 3" % S_H); r("s_add_u32 s9, s9, s%d" % S_J); r("s_mul_i32 s9, s9, 6144"); r("s_add_u32 s9, s9, s%d" % S_MB); r("s_add_u32 s9, s9, %d" % WS_KVP)
        if role == 1: r("s_cmp_ge_u32 s%d, 6" % S_W); r("s_cselect_b32 s9, s%d, s9" % S_HUGE)
        zs = [I("%s %s, %s, %s, 0" % (MF, vr(O + 4 * i, 4), vr(ZR, 4), vr(ZR, 4))) for i in range(16)]
        z = Seq(); row_red(z, "v_max_f32")
        z("buffer_store_dwordx4 %s, v%d, %s, s9 offen sc1" % (vr(CD, 4), vL16, sr(SRD_WS, 4)))
        for (d, es, os_, ng, l_) in G0:
            for x_ in ng: z("v_sub_f32 v%d, 0, v%d" % (x_, d))
        for (d, es, os_, ng, l_) in G0:
            for e_ in es: z("v_sub_f32 v%d, v%d, v%d" % (sreg(0, e_), sreg(0, e_), d))
        r.ext(interleave([[x_] for x_ in zs], z.l))
        r("s_lshl_b32 s6, s%d, 6" % S_TL)
        r("v_subrev_u32 v%d, s6, v%d" % (vQ, vQ))
        if not W32: r("v_subrev_u32 v%d, s6, v%d" % (vQ + 1, vQ + 1))
        if role == 0 and FASTJ == 7: poll_issue(r, 9, 8, SRD_WS, "s15")
        slots = []
        for k in range(8): slots.append(mkslot(qk_mfmas(k, 1, 8 + k, NEGC)))
        place_sm(slots, 0, 8, 0, None, None, carry=False)
        r.ext(emit_slots(slots))
        r.waitv("K1", "V0")
        r("s_barrier")
        if role == 0:
            r("s_add_u32 s%d, s%d, %d" % (S_KL, S_W4K, 3 * SLOT)); r("s_add_u32 s%d, s%d, %d" % (S_VL, S_W4K, 6 * SLOT))
            r("s_add_u32 s%d, s%d, %d" % (S_KG, S_KG, 3 * SLOT)); r("s_add_u32 s%d, s%d, %d" % (S_VG, S_VG, 2 * SLOT))
            px_group(r, S_PXO, 8); r("s_lshl_b32 s%d, s%d, 2" % (S_PXO, S_PXO)); r("s_and_b32 s8, s%d, 3" % S_H); r("s_add_u32 s%d, s%d, s8" % (S_PXO, S_PXO))
            r("s_mul_i32 s%d, s%d, 40960" % (S_PXO, S_PXO)); r("s_mul_i32 s8, s%d, 5120" % S_W); r("s_add_u32 s%d, s%d, s8" % (S_PXO, S_PXO)); r("s_add_u32 s%d, s%d, %d" % (S_PXO, S_PXO, WS_PX))
            r("s_mov_b32 m0, s%d" % S_KL)
            for e in range(4): r("buffer_load_dwordx4 v%d, %s, s%d offen offset:%d sc1 lds" % (vL16, sr(SRD_WS, 4), S_KG, 1024 * e))
            r("s_add_u32 s%d, s%d, %d" % (S_KG, S_KG, SLOT)); r("s_mov_b32 s%d, s%d" % (S_KL, S_W4K))
            if FASTJ == 7: poll_check(r, "P2B", 9, 7, 8, SRD_WS, "s15")
            r.ext(pkg())
        if GP & 3: r("s_setprio 0")
        if (role == 1 and PRIO) or PRIO == 2: r("s_setprio 1")
        if stamp: r.ext(STAMP(23)); r.ext(RSTAMP(62))
        if DIAG: r("s_mov_b32 s96, 600"); r("s_mov_b32 s98, 600")
        main, st1 = resolve_waits(r.l, st0)
        verify_streams(main, streams, "f")
        st1.vm = []
        rares = []
        z = Seq()
        z("s_cmp_eq_u32 s%d, 0" % S_TL); z("s_cbranch_scc1 %s_PV" % RN)
        z.ext(adv(vKA))
        for n in range(DRD): z.ext([rd_frag("K", n, n) if n < 8 else rd_frag("V", n - 8, n)])
        z("s_cmp_le_u32 s%d, 1" % S_TL); z("s_cbranch_scc1 %s_S1" % RN)
        lz, stl = resolve_waits(z.l, st1)
        main += lz
        tmp = []
        b1, s1 = resolve_waits(iteration(role, "S", tmp), stl); s1.vm = []
        b2, s2 = resolve_waits(iteration(role, "S", rares), s1); s2.vm = []
        assert [x.text for x in b1] == [x.text for x in b2] and s1.sig() == s2.sig(), "loop not steady"
        if ALN >= 0: main += Seq()(".p2align 6").l + [I("s_nop 0") for _ in range(ALN)]
        if AL8: b2 = align8(fix_hazards(b2))
        main += Seq().label("%s_LOOP" % RN).l + b2 + Seq()("s_cmp_lt_u32 s6, s%d" % S_TL)("s_cbranch_scc1 %s_LOOP" % RN)("s_branch %s_S1" % RN).l
        z = Seq(); z.label("%s_PV" % RN)
        if SKIP: z("s_bitcmp0_b32 s%d, 5" % S_ROW0); z("s_cbranch_scc1 %s_PE" % RN)
        for n in range(DRD): z.ext([rd_frag("V", n, n)])
        z("s_branch %s_S2" % RN)
        lz, _ = resolve_waits(z.l, st1)
        main += lz
        if SKIP:
            z = Seq(); z.label("%s_PE" % RN)
            for n in range(8): z.ext([rd_frag("V", n, 24 + n)])
            z("s_branch %s_E2" % RN)
            lz, _ = resolve_waits(z.l, st1)
            main += lz
            b, s3 = resolve_waits(iteration(role, "E1", rares), s1); s3.vm = []
            main += Seq().label("%s_E1" % RN).l + b + Seq()("s_add_u32 s%d, s%d, 1" % (S_T, S_T)).l
            z = Seq()
            s3.lg = [entry(rd_frag("V", n, 24 + n)) for n in range(8)]
            b, s4 = resolve_waits(iteration(role, "E2", rares), s3)
            main += Seq().label("%s_E2" % RN).l + b + Seq()("s_branch %s_EP" % RN).l
        b, s3 = resolve_waits(iteration(role, "S1", rares), s1); s3.vm = []
        main += Seq().label("%s_S1" % RN).l
        if SKIP: main += Seq()("s_bitcmp0_b32 s%d, 5" % S_ROW0)("s_cbranch_scc1 %s_E1" % RN).l
        main += b + Seq()("s_add_u32 s%d, s%d, 1" % (S_T, S_T)).l
        b, s4 = resolve_waits(iteration(role, "S2", rares), s3); s4.vm = []
        main += Seq().label("%s_S2" % RN).l + b + Seq().label("%s_EP" % RN)("s_nop 7").l
        e = Seq()
        if stamp: e.ext(STAMP(24)); e.ext(RSTAMP(63))
        vFL, vFO, vFN = 4, 5, 6
        if role == 0:
            e("s_setprio 0")
            e("v_lshrrev_b32 v%d, 2, v%d" % (vFO, vL16)); e("v_mov_b32 v%d, s%d" % (vFN, S_HUGE)); e("v_cmp_gt_u32 vcc, 8, v%d" % vLANE)
            e("v_cndmask_b32 v%d, v%d, v%d, vcc" % (vFO, vFN, vFO)); e("v_cndmask_b32 v%d, 0, 1, vcc" % vFN)
            e("s_lshl_b32 s14, s%d, 7" % S_H); e("s_add_u32 s14, s14, %d" % FL_KP)
            poll_issue(e, vFL, vFO, SRD_WS, "s14")
        if W32:
            red1(e, vLs, "v_add_f32", 4)
            e("v_rcp_f32 v%d, v%d" % (vLs, vLs)); e("v_and_b32 v4, 16, v%d" % vLANE); e("v_cmp_ne_u32 vcc, 0, v4")
            e("v_cndmask_b32 v4, v%d, v%d, vcc" % (vG[0], vG[1])); e("v_mul_f32 v4, v4, v%d" % vLs); e("v_mov_b32 v5, v4")
            e("s_lshl_b32 s6, s%d, 14" % S_H); e("s_add_u32 s6, s6, s%d" % S_AP)
            for js in range(4):
                for t_ in range(2):
                    t = FR + 4 * ((2 * js + t_) % 8)
                    for hb in range(2):
                        a = O + 16 * js + 4 * (t_ + 2 * hb)
                        e("v_pk_mul_f32 %s, %s, v[4:5]" % (vr(a, 2), vr(a, 2))); e("v_pk_mul_f32 %s, %s, v[4:5]" % (vr(a + 2, 2), vr(a + 2, 2)))
                        e("v_cvt_pk_bf16_f32 v%d, v%d, v%d" % (t + 2 * hb, a, a + 1)); e("v_cvt_pk_bf16_f32 v%d, v%d, v%d" % (t + 2 * hb + 1, a + 2, a + 3))
                    e("buffer_store_dwordx4 %s, v%d, %s, s6 offen offset:%d sc1" % (vr(t, 4), vLs + 1, sr(SRD_WS, 4), 512 * t_))
                if js < 3: e("s_add_u32 s6, s6, 4096")
        else:
            red2(e, vLs, vLs + 1, "v_add_f32", E_)
            for qb in range(2):
                e("v_rcp_f32 v%d, v%d" % (vLs + qb, vLs + qb)); e("v_mul_f32 v%d, v%d, v%d" % (E_ + 2 * qb, vLs + qb, vG[qb])); e("v_mov_b32 v%d, v%d" % (E_ + 2 * qb + 1, E_ + 2 * qb))
            e("s_lshl_b32 s6, s%d, 14" % S_H); e("s_add_u32 s6, s6, s%d" % S_AP)
            for js in range(4):
                for qb in range(2):
                    t = FR + 4 * ((2 * js + qb) % 8)
                    for hb in range(2):
                        a = O + 8 * (2 * js + hb) + 4 * qb
                        e("v_pk_mul_f32 %s, %s, %s" % (vr(a, 2), vr(a, 2), vr(E_ + 2 * qb, 2))); e("v_pk_mul_f32 %s, %s, %s" % (vr(a + 2, 2), vr(a + 2, 2), vr(E_ + 2 * qb, 2)))
                        e("v_cvt_pk_bf16_f32 v%d, v%d, v%d" % (t + 2 * hb, a, a + 1)); e("v_cvt_pk_bf16_f32 v%d, v%d, v%d" % (t + 2 * hb + 1, a + 2, a + 3))
                    e("buffer_store_dwordx4 %s, v%d, %s, s6 offen offset:%d sc1" % (vr(t, 4), vL16, sr(SRD_WS, 4), 1024 * qb))
                if js < 3: e("s_add_u32 s6, s6, 4096")
        ST(e, 25)
        if role == 0:
            e("s_sub_u32 s6, s%d, %d" % (S_J, JLO)); e("s_cmp_ge_u32 s6, %d" % JN); e("s_cbranch_scc1 A_LD")
            e("s_mul_i32 s8, s%d, %d" % (S_H, JN)); e("s_add_u32 s6, s6, s8"); e("s_lshl_b32 s6, s6, 2"); e("s_add_u32 s6, s6, s%d" % S_W); e("s_mul_i32 s%d, s6, %d" % (S_JU, sum(JG)))
            e("s_mov_b32 s%d, %d" % (S_WOSZ, 4096 * 1152)); e("s_mov_b32 s%d, 0x00020000" % (SRD_J + 3))
            mk_srd(e, SRD_WS2, P_WS, WS_WP + 16 * 37 * 9728)
            e("s_cmp_ge_u32 s%d, 2" % S_W); e("s_cbranch_scc1 A_J0")
            e("s_add_u32 s%d, s%d, 1" % (S_T, S_T)); e.ext(sync_block(0, "JP"))
            e.label("A_J0")
            assert sum(JG) * JN * 128 >= 5256 and sum(JG) * JN * 128 <= 6144
            jb = [j2(i, 56 + 4 * (i % 10), 96, 100 + (i % 10)) for i in range(sum(JG))]
            grp = [range(sum(JG[:k]), sum(JG[:k + 1])) for k in range(len(JG))]
            G_ = len(JG); nops = [(JG[k] if k < G_ else 0) + (JG[k - 1] if 1 <= k <= G_ else 0) for k in range(G_ + 3)]
            assert 2 * (JLO + JN - 1) + 2 + G_ + 2 < 31 - 2 * (JLO + JN - 1) - 3
            for st_ in range(G_ + 3):
                e("s_add_u32 s%d, s%d, 1" % (S_T, S_T))
                x_ = (nops[st_ - 1] if st_ >= 1 else 0) + (nops[st_ - 2] if st_ >= 2 else 0)
                e.ext(sync_block(0, "J%d" % st_, xtra=x_, strict=8 if st_ == G_ + 2 else None, always=True, prev=nops[st_ - 1] if st_ else 0))
                if 1 <= st_ <= G_:
                    e("s_waitcnt vmcnt(8)")
                    for i in grp[st_ - 1]: e.ext(jb[i][1])
                if st_ < G_:
                    for i in grp[st_]: e.ext(jb[i][0])
            z = Seq(); z("v_mov_b32 v24, s%d" % S_HUGE); fill2(z, 24, 25); z("v_mov_b32 v25, 1")
            z("buffer_atomic_add v25, v24, %s, 0 offen" % sr(SRD_DBG, 4))
            e("s_cmp_lg_u32 s%d, 0" % S_W); e("s_cbranch_scc1 A_LD"); e.ext(z)
            e.label("A_LD")
            e("s_add_u32 s%d, s%d, 1" % (S_T, S_T)); e("s_cmp_ge_u32 s%d, s%d" % (S_T, S_TBM)); e("s_cbranch_scc1 A_FIN")
            e.ext(sync_block(0, "LD"))
            e("s_cmp_ge_u32 s%d, 2" % S_W); e("s_cbranch_scc1 A_LD")
            e("s_cmp_eq_u32 s%d, 3" % S_R); e("s_cbranch_scc0 A_N3")
            e("s_waitcnt vmcnt(0)")
            poll_issue(e, vFL, vFO, SRD_WS, "s14")
            e("s_branch A_LD")
            e.label("A_N3")
            e("s_cmp_eq_u32 s%d, 2" % S_R); e("s_cbranch_scc0 A_LD")
            e("s_waitcnt vmcnt(0)")
            poll_check(e, "P3A", vFL, vFN, vFO, SRD_WS, "s14")
            KR_ = 56
            e("s_mul_i32 s6, s%d, 49152" % S_H); e("s_mul_i32 s8, s%d, 3072" % S_W); e("s_add_u32 s6, s6, s8"); e("s_add_u32 s6, s6, %d" % WS_KVP)
            for p in range(8):
                for mu in range(3): e("buffer_load_dwordx4 %s, v%d, %s, s6 offen offset:%d sc1" % (vr(KR_ + 12 * p + 4 * mu, 4), vL16, sr(SRD_WS, 4), 1024 * mu))
                if p < 7: e("s_add_u32 s6, s6, 6144")
            for p in range(1, 8):
                for i in range(12): e("v_add_f32 v%d, v%d, v%d" % (KR_ + i, KR_ + i, KR_ + 12 * p + i))
            for i in range(6): e("v_cvt_pk_bf16_f32 v%d, v%d, v%d" % (FR + i, KR_ + 2 * i, KR_ + 2 * i + 1))
            e("v_mov_b32 v%d, 0" % (FR + 6)); e("v_mov_b32 v%d, 0" % (FR + 7))
            e("s_lshl_b32 s6, s%d, 11" % S_W); e("s_add_u32 s6, s6, %d" % KVX); e("v_add_u32 v21, s6, v%d" % vL16)
            e("ds_write_b128 v21, %s" % vr(FR, 4)); e("ds_write_b128 v21, %s offset:1024" % vr(FR + 4, 4))
            e("s_waitcnt lgkmcnt(0)")
            e("s_branch A_LD")
            e.label("A_FIN"); e("s_waitcnt vmcnt(0)"); e("s_branch F_FIN")
        le, _ = resolve_waits(e.l, s4)
        outl += main + le
        for rb in rares: cold += rb.l
    W32 = False
    e = Seq(); e.label("F_FIN"); e("s_setprio 0")
    e("s_waitcnt lgkmcnt(0)")
    e("v_lshrrev_b32 v4, 2, v%d" % vL16); poll_issue(e, 5, 4, SRD_DBG, "0")
    RAW, PH, PK, EE, T8, LQ, KF_, ND = 56, 72, 80, 96, 116, 120, 136, 152
    y = phi_gather(e, RAW, PH, RAW + 12, RAW + 13)
    e("v_add_u32 v6, %d, v%d" % (KVX, vL16))
    for i in range(4): e("ds_read_b128 %s, v6 offset:%d" % (vr(KF_ + 4 * i, 4), 1024 * i))
    e.ext(y)
    for mu in range(2):
        for rho in range(2): e("%s %s, %s, %s, 0" % (MF, vr(PK + 8 * mu + 4 * rho, 4), vr(PH + 4 * mu, 4), vr(TK + 4 * rho, 4)))
    softmax5(e, PK, EE, T8, LQ)
    for rho in range(2): e("v_mov_b32 v%d, 0" % (LQ + 8 * rho + 6)); e("v_mov_b32 v%d, 0" % (LQ + 8 * rho + 7))
    for rho in range(2):
        for nu in range(2):
            d = vr(ND + 8 * rho + 4 * nu, 4)
            e("%s %s, %s, %s, 0" % (MF, d, vr(KF_ + 8 * nu, 4), vr(LQ + 8 * rho, 4)))
            e("%s %s, %s, %s, %s" % (MF, d, vr(KF_ + 8 * nu + 4, 4), vr(LQ + 8 * rho + 4, 4), d))
    e("s_lshr_b32 s6, s%d, 1" % S_H); e("s_add_u32 s6, s6, 128"); e("s_lshl_b32 s6, s6, 12"); e("s_add_u32 s6, s6, s%d" % S_AP)
    e("s_and_b32 s8, s%d, 1" % S_H); e("s_lshl_b32 s8, s8, 9"); e("s_add_u32 s6, s6, s8")
    e("s_lshr_b32 s8, s%d, 4" % S_H); e("s_add_u32 s8, s8, 144"); e("s_lshl_b32 s8, s8, 12"); e("s_add_u32 s8, s8, s%d" % S_AP)
    e("s_lshr_b32 s9, s%d, 2" % S_H); e("s_and_b32 s9, s9, 3"); e("s_lshl_b32 s9, s9, 8"); e("s_add_u32 s8, s8, s9")
    e("s_and_b32 s9, s%d, 3" % S_H); e("s_lshl_b32 s9, s9, 2"); e("s_add_u32 s8, s8, s9")
    e("v_and_b32 v6, 15, v%d" % vLANE); e("v_lshlrev_b32 v6, 4, v6"); e("v_lshrrev_b32 v7, 4, v%d" % vLANE)
    e("v_lshl_add_u32 v10, v7, 7, v6"); e("v_and_b32 v9, 1, v7")
    e("v_mov_b32 v8, s%d" % S_HUGE); e("v_cmp_ne_u32 vcc, 1, v7"); e("v_cndmask_b32 v6, v6, v8, vcc")
    e("v_cmp_ne_u32 vcc, 0, v9"); e("v_cndmask_b32 v10, v10, v8, vcc")
    e("s_mov_b32 s9, 0x%x" % f2u(1e-6))
    for rho in range(2):
        n = ND + 8 * rho
        e("v_add_f32 v8, s9, v%d" % (n + 6)); e("v_rcp_f32 v8, v8"); e("v_sub_f32 v9, 1.0, v%d" % vG[rho]); e("v_mul_f32 v8, v8, v9")
        for i in range(6): e("v_mul_f32 v%d, v%d, v8" % (n + i, n + i))
        for i in range(2): e("v_cvt_pk_bf16_f32 v%d, v%d, v%d" % (n + i, n + 2 * i, n + 2 * i + 1))
        e("v_cvt_pk_bf16_f32 v%d, v%d, v%d" % (n + 4, n + 4, n + 5))
        e("v_mov_b32 v%d, v%d" % (n + 2, n)); e("v_mov_b32 v%d, v%d" % (n + 3, n + 1))
        e("v_permlane16_swap_b32 v%d, v%d" % (n, n + 2)); e("v_permlane16_swap_b32 v%d, v%d" % (n + 1, n + 3))
        e("buffer_store_dwordx4 %s, v10, %s, s6 offen offset:%d sc1" % (vr(n, 4), sr(SRD_WS, 4), 1024 * rho), tag="APS")
        e("buffer_store_dword v%d, v6, %s, s8 offen offset:%d sc1" % (n + 4, sr(SRD_WS, 4), 1024 * rho), tag="APS")
    ST(e, 26)
    if DIAG: e("v_writelane_b32 v0, s96, 40"); e("v_writelane_b32 v0, s98, 41"); e("v_writelane_b32 v0, s98, 42")
    SRD_W3, SRD_OUT, S_KQ, S_A, S_WM, S_G, S_SO, S_R16 = 56, 60, 64, 65, 68, 69, 72, 76
    WR0 = 65536; NS = 37; IMG = 9728
    e("s_and_b32 s%d, s%d, 3" % (S_KQ, S_H))
    e("s_lshl_b32 s8, s%d, 1" % S_J); e("s_sub_u32 s9, 30, s8"); e("s_bitcmp1_b32 s%d, 2" % S_H); e("s_cselect_b32 s10, s9, s8")
    e("s_lshr_b32 s6, s%d, 2" % S_W); e("s_add_u32 s6, s6, s10"); e("s_mul_i32 s6, s6, %d" % (NSTEP * 4096)); e("s_lshl_b32 s8, s%d, 10" % S_RG)
    e("s_add_u32 s6, s6, s8"); e("s_add_u32 s6, s6, %d" % WS_AP)
    e("s_lshl_b32 s8, s%d, 17" % S_KQ); e("s_add_u32 s%d, s6, s8" % S_A)
    e("s_lshl_b32 s8, s%d, 14" % S_KQ); e("s_add_u32 s%d, s6, s8" % (S_A + 1)); e("s_add_u32 s%d, s%d, %d" % (S_A + 1, S_A + 1, 128 * 4096))
    e("s_lshl_b32 s8, s%d, 11" % S_KQ); e("s_add_u32 s8, s6, s8"); e("s_add_u32 s8, s8, %d" % (144 * 4096))
    e("s_bitcmp1_b32 s%d, 0" % S_KQ); e("s_cselect_b32 s%d, s%d, s8" % (S_A + 2, S_HUGE))
    e("s_cselect_b32 s9, 36, 37"); e("s_cselect_b32 s11, 8, 16")
    e("s_lshr_b32 s6, s%d, 3" % S_H); e("s_lshl_b32 s6, s6, 2"); e("s_add_u32 s6, s6, s%d" % S_KQ); e("s_mul_i32 s6, s6, %d" % (37 * IMG)); e("s_add_u32 s6, s6, %d" % WS_WP)
    mk_srd(e, SRD_W3, P_WS, 0, add="s6"); e("s_mul_i32 s%d, s9, %d" % (SRD_W3 + 2, IMG))
    mk_srd(e, SRD_OUT, P_OUT, 2048 * 1152)
    e("s_lshl_b32 s%d, s%d, 10" % (S_WM, S_RG))
    vH, vT, vA, vO, vO5 = 18, 12, 14, 10, 11
    e("v_add_u32 v%d, s%d, v%d" % (vH, S_MB, vL16)); e("v_add_u32 v%d, s%d, v%d" % (vH + 1, S_WM, vL16))
    e("v_bfe_u32 v10, v%d, 2, 2" % vLANE); e("v_lshl_add_u32 v10, v7, 3, v10"); e("v_mul_u32_u24 v10, 288, v10"); e("v_lshl_add_u32 v10, v7, 7, v10")
    e("v_and_b32 v11, 3, v%d" % vLANE); e("v_lshl_add_u32 v10, v11, 3, v10")
    e("s_lshr_b32 s6, s%d, 2" % S_W); e("s_mul_i32 s6, s6, 160"); e("s_add_u32 s6, s6, %d" % WR0)
    e("v_add_u32 v%d, s6, v10" % vT); e("v_add_u32 v%d, %d, v%d" % (vT + 1, 4 * IMG, vT))
    e("s_lshl_b32 s6, s%d, 11" % S_RG); e("v_add_u32 v%d, s6, v%d" % (vA, vL16))
    e("v_cmp_le_u32 vcc, 48, v%d" % vLANE); e("v_cndmask_b32 v6, 0, %d, vcc" % (4 * JN)); e("v_cmp_le_u32 vcc, 56, v%d" % vLANE); e("v_mov_b32 v9, 0x200020"); e("v_cndmask_b32 v6, v6, v9, vcc")
    poll_check(e, "P4", 5, 6, 4, SRD_DBG, "0")
    e("s_lshl_b32 s6, s%d, 3" % S_KQ); e("v_subrev_u32 v9, s6, v%d" % vLANE); e("v_cmp_gt_u32 vcc, s11, v9")
    e("v_mov_b32 v6, s%d" % S_HUGE); e("v_cndmask_b32 v4, v6, v4, vcc"); e("v_cndmask_b32 v6, 0, 1, vcc")
    e("s_lshl_b32 s11, s%d, 7" % S_J); e("s_add_u32 s11, s11, %d" % FL_AP)
    AG, WG, AC = 24, 40, 80
    S_ROT = 88
    for t in range(4):
        e("s_lshr_b32 s6, s%d, %d" % (S_H, 3 if ROT else 8)); e("s_add_u32 s6, s6, %d" % t); e("s_and_b32 s6, s6, 3"); e("s_lshl_b32 s6, s6, 15"); e("s_add_u32 s%d, s%d, s6" % (S_ROT + t, S_A))
    def dmaw(qq, nw=8):
        z = Seq(); base = (nw * qq) % 76
        sm = S_MB if nw == 8 else S_WM
        z("s_add_u32 m0, s%d, %d" % (sm, WR0 + base * 1024))
        if base + nw - 1 >= 76:
            z("s_sub_u32 s9, m0, %d" % (76 * 1024)); z("s_cmp_ge_u32 m0, %d" % (WR0 + 76 * 1024)); z("s_cselect_b32 m0, s9, m0")
        z("s_mov_b32 s9, %d" % (nw * qq * 1024))
        z("buffer_load_dwordx4 v%d, %s, s9 offen sc1 lds" % (vH if nw == 8 else vH + 1, sr(SRD_W3, 4)), tag="P%d" % (nw * qq // 4))
        return z
    def dmaa(n):
        z = Seq()
        z("s_add_u32 m0, s%d, %d" % (S_MB, (n % 8) * 8192))
        if n < 36: z("s_add_u32 s8, s%d, %d" % ((S_ROT + (n >> 3), (n & 7) * 4096) if n < 32 else (S_A + 1, (n - 32) * 4096)))
        z("buffer_load_dwordx4 v%d, %s, s%d offen sc1 lds" % (vL16, sr(SRD_WS, 4), 8 if n < 36 else S_A + 2), tag="Q%d" % n)
        return z
    def rds(n, nf):
        sl = n % 8; hi = sl >> 2; out = []
        for rho in range(2): out.append(Seq()("ds_read_b128 %s, v%d offset:%d" % (vr(AG + 8 * (n % 2) + 4 * rho, 4), vA, sl * 8192 + 1024 * rho)).l)
        for fi in range(nf):
            out.append(Seq()("\n".join("ds_read_b64_tr_b16 %s, v%d offset:%d" % (vr(WG + 20 * (n % 2) + 4 * fi + 2 * hh, 2), vT + hi, (sl & 3) * IMG + 32 * fi + 1152 * hh) for hh in range(2))).l)
        return out
    e.waitv("APS")
    e("s_barrier")
    fb = Seq(); fb("s_lshl_b32 s6, s%d, 7" % S_J); fb("s_lshl_b32 s8, s%d, 2" % S_H); fb("s_add_u32 s6, s6, s8"); fb("s_add_u32 s6, s6, %d" % FL_AP)
    e.ext(w7_block("F_FAP", flag_store(fb, 10, 11)))
    ST(e, 27)
    nq0 = 9; na0 = 8; NQ = 88
    for qq in range(nq0): e.ext(dmaw(qq))
    e("v_and_b32 v16, 15, v%d" % vLANE); e("s_lshl_b32 s6, s10, 6"); e("s_lshl_b32 s8, s%d, 5" % S_RG); e("s_add_u32 s6, s6, s8")
    e("v_add_u32 v16, s6, v16"); e("v_mul_u32_u24 v16, 1152, v16"); e("v_lshl_add_u32 v16, v7, 3, v16")
    e("s_lshr_b32 s6, s%d, 3" % S_H); e("s_mul_i32 s6, s6, 288"); e("s_lshr_b32 s8, s%d, 2" % S_W); e("s_mul_i32 s8, s8, 160"); e("s_add_u32 s6, s6, s8")
    e("v_add_u32 v%d, s6, v16" % vO)
    e("s_mov_b32 s%d, %d" % (S_R16, 16 * 1152))
    px_group(e, S_G, 6)
    e("s_lshl_b32 s6, s%d, 5" % S_G); e("s_add_u32 s6, s6, s%d" % S_W); e("s_mul_i32 s6, s6, 5120"); e("s_add_u32 s10, s6, %d" % WS_PX)
    for t in range(4): e("s_add_u32 s%d, s10, %d" % (S_SO + t, t * 40960))
    z = Seq(); z("v_mov_b32 v5, 0")
    poll_check(z, "P5", 5, 6, 4, SRD_WS, "s11")
    e.ext(w7_block("F_P5", z))
    e("s_barrier")
    ST(e, 28)
    for n in range(na0): e.ext(dmaa(n))
    def pub(m):
        z = Seq(); z.waitv(*(["P%d" % k for k in range(min(NQ - 1, (19 * m + 18) // 4) + 1)] + ["Q%d" % min(NS - 1, 2 * m + 1)]))
        if not K3L: z("s_waitcnt lgkmcnt(0)")
        z("s_barrier")
        return z.l
    e.ext(pub(0))
    e("s_cmp_ge_u32 s%d, 4" % S_W); e("s_cbranch_scc1 G_B")
    le, stp = resolve_waits(e.l, Pend(vm=[("vm_st", (), "APS")] * 8))
    tail = []
    for role in range(2):
        RN = "AB"[role]; nf = 5 - role; nb = 2 * nf; na = na0; nq = 2 * nq0
        e = Seq()
        if role: e.label("G_B")
        if GP & (4 << role): e("s_setprio 1")
        e.ext(flat(rds(0, nf)))
        later = []
        for n in range(NS):
            fill = {k: [] for k in range(nb)}
            for k, l in enumerate(later): fill[min(nb - 1, 2 + k)].append(l)
            later = []
            if n + 1 < NS:
                if n % 2 == 1:
                    m = (n + 1) // 2
                    if K3P: e.ext(pub(m))
                    else: fill[0].extend(pub(m))
                    k = nb - 3
                    while na < NS and na <= 2 * m + 7 - K3L: fill[k].extend(dmaa(na).l); na += 1; k = min(nb - 1, k + 1)
                    while nq < NQ and nq <= (19 * m + (62 if K3L else 72)) // 4:
                        if role: later.append(dmaw(nq, 4).l)
                        nq += 1
                rl = flat(rds(n + 1, nf)); per = [[] for _ in range(nb)]
                for k, x_ in enumerate(rl): per[k if k < nb else 2 * (k - nb) + 1].append(x_)
                order = {id(x_): k for k, x_ in enumerate(rl)}
                it = iter(rl); per = [[next(it) for _ in p_] for p_ in per]
                for k, l in enumerate(per): fill[k] = (fill[k] + l) if (k == 0 and n % 2 == 1) else (l + fill[k])
            fill = {k: [y_ for x_ in v_ for y_ in (x_ if isinstance(x_, list) else [x_])] for k, v_ in fill.items()}
            for fi in range(nf):
                for rho in range(2):
                    acc = vr(AC + 4 * (2 * fi + rho), 4)
                    e("%s %s, %s, %s, %s" % (MF, acc, vr(WG + 20 * (n % 2) + 4 * fi, 4), vr(AG + 8 * (n % 2) + 4 * rho, 4), "0" if n == 0 else acc))
                    e.ext(fill[2 * fi + rho])
            if n % 8 == 0 and n < 32: ST(e, 29 + n // 8)
        assert na == NS and nq == NQ, (na, nq)
        ST(e, 34)
        e("s_mul_i32 s6, s%d, 40960" % S_KQ); e("s_add_u32 s84, s6, s10"); e("s_add_u32 s85, s84, 4096")
        e("v_lshrrev_b32 v16, 1, v%d" % vL16)
        PKX = 120
        for b in range(nb):
            d = PKX + 4 * (b & 3) + 2 * (b >> 2) if b < 8 else PKX + 16 + 2 * (b - 8)
            e("v_cvt_pk_bf16_f32 v%d, v%d, v%d" % (d, AC + 4 * b, AC + 4 * b + 1)); e("v_cvt_pk_bf16_f32 v%d, v%d, v%d" % (d + 1, AC + 4 * b + 2, AC + 4 * b + 3))
        for o in range(4):
            e("s_cmp_eq_u32 s%d, %d" % (S_KQ, o)); e("s_cbranch_scc1 %s_XS%d" % (RN, o))
            e("buffer_store_dwordx4 %s, v%d, %s, s84 offen offset:%d sc1" % (vr(PKX + 4 * o, 4), vL16, sr(SRD_WS, 4), o * 1024), tag="OPT")
            if nb == 10 and o < 2: e("buffer_store_dwordx2 %s, v16, %s, s85 offen offset:%d sc1" % (vr(PKX + 16 + 2 * o, 2), sr(SRD_WS, 4), o * 512), tag="OPT")
            e.label("%s_XS%d" % (RN, o))
        e("s_mov_b32 s%d, 4000" % S_SPIN); e("s_mov_b32 s86, 0xffff0000")
        ST(e, 33)
        lz, stx = resolve_waits(e.l, stp); tail += lz
        for kq in range(4):
            z = Seq()
            if kq < 3: z("s_cmp_lg_u32 s%d, %d" % (S_KQ, kq)); z("s_cbranch_scc1 %s_XL%d" % (RN, kq))
            own = [b for b in range(nb) if b & 3 == kq]; srcs = [t for t in range(4) if t != kq]
            z.label("%s_XR%d" % (RN, kq))
            LD, SM_ = 24, 48
            for k, t in enumerate(srcs):
                z("buffer_load_dwordx4 %s, v%d, %s, s%d offen offset:%d sc1" % (vr(LD + 8 * k, 4), vL16, sr(SRD_WS, 4), S_SO + t, kq * 1024))
                if len(own) == 3:
                    z("s_add_u32 s6, s%d, 4096" % (S_SO + t))
                    z("buffer_load_dwordx2 %s, v16, %s, s6 offen offset:%d sc1" % (vr(LD + 8 * k + 4, 2), sr(SRD_WS, 4), kq * 512))
            for k in range(3):
                for i, b in enumerate(own):
                    for hh in range(2):
                        src = LD + 8 * k + 2 * i + hh
                        z("v_lshlrev_b32 v60, 16, v%d" % src); z("v_and_b32 v61, s86, v%d" % src)
                        for x in range(2):
                            dd = SM_ + 4 * i + 2 * hh + x
                            z("v_add_f32 v%d, v%d, v%d" % (dd, 60 + x, (AC + 4 * b + 2 * hh + x) if k == 0 else dd))
            n_ = 4 * len(own)
            z("v_add_f32 v62, v%d, v%d" % (SM_, SM_ + 1))
            for x in range(2, n_): z("v_add_f32 v62, v62, v%d" % (SM_ + x))
            z("v_cmp_u_f32 vcc, v62, v62"); z("s_cbranch_vccz %s_XK%d" % (RN, kq))
            z("s_sleep 4")
            z("s_sub_u32 s%d, s%d, 1" % (S_SPIN, S_SPIN)); z("s_cmp_lg_u32 s%d, 0" % S_SPIN); z("s_cbranch_scc1 %s_XR%d" % (RN, kq))
            z.label("%s_XK%d" % (RN, kq))
            for i, b in enumerate(own):
                t = SM_ + 4 * i
                z("v_cvt_pk_bf16_f32 v%d, v%d, v%d" % (t, t, t + 1)); z("v_cvt_pk_bf16_f32 v%d, v%d, v%d" % (t + 1, t + 2, t + 3))
                fi, rho = b >> 1, b & 1
                z("buffer_store_dwordx2 %s, v%d, %s, %s offen offset:%d" % (vr(t, 2), vO, sr(SRD_OUT, 4), "s%d" % S_R16 if rho else "0", 32 * fi))
            if kq < 3 or role == 0: z("s_branch F_XLD")
            if kq < 3: z.label("%s_XL%d" % (RN, kq))
            lz, _ = resolve_waits(z.l, stx); tail += lz
    e = Seq(); e.label("F_XLD")
    if stamp and os.environ.get("DBGOUT"):
        e.ext(STAMP(36)); e.ext(RSTAMP(61))
        e("s_lshl_b32 s6, s2, 3"); e("s_add_u32 s6, s6, s%d" % S_W); e("s_cmp_lg_u32 s6, %d" % int(os.environ["DBGOUT"])); e("s_cbranch_scc1 F_END")
        sel = [60, 62, 63, 61, 0, 1, 9, 20, 23, 24, 27, 28, 34, 36, 5, 14]
        for k, x_ in enumerate(sel): e("v_readlane_b32 s8, v0, %d" % x_); e("v_readlane_b32 s9, v0, %d" % (60 if x_ >= 60 else 0)); e("s_sub_u32 s8, s8, s9"); e("v_writelane_b32 v3, s8, %d" % k)
        e("v_lshrrev_b32 v4, 2, v%d" % vL16); e("s_mov_b64 exec, 0xffff")
        e("buffer_store_dword v3, v4, %s, 0 offen sc1" % sr(SRD_DBG, 4))
        e("s_endpgm")
    if stamp: e.ext(STAMP(35)); e("s_waitcnt vmcnt(0)"); e.ext(STAMP(36)); e.ext(RSTAMP(61)); e.ext(STAMPOUT(S_W, vLANE, SRD_WS, 6, base=1 << 20))
    e.label("F_END"); e("s_endpgm")
    return fix_hazards(outl + le + tail + e.l + Seq().label("F_COLD").l + cold)
```

```python
import sys
from gen_common import *
from gen_k1 import gen_k1

NAME = "gated_mix__compressed_kv_cla__linear_kernel_hedgehog__prompt"
NOTES = """; One persistent launch, 256 workgroups x 8 waves, workgroup = (head h, row-block pair j). Generated by the author's own script.
"""
def build(which, out):
    ks = []
    if "1" in which: ks.append(("k1_kernel", gen_k1(stamp=("s" in which)), 256, 256, 256, 512, 163840))
    if "2" in which:
        from gen_k2 import gen_k2
        from gen_k2 import K2_LDS
        ks.append(("k2_kernel", gen_k2(stamp=("s" in which)), 256, 256, 256, 512, K2_LDS))
    if "3" in which:
        from gen_k3 import gen_k3
        ks.append(("k3_kernel", gen_k3(stamp=("s" in which)), 336, 256, 256, 256, 81920))
    if "f" in which:
        from gen_f import gen_f, F_LDS
        ks.append((NAME + "_kernel", gen_f(stamp=("s" in which)), 256, 256, 256, 512, F_LDS))
    head = open("cdna_kernels/%s.s.ref" % NAME).read().split("; Override launch")[0]
    txt = head
    for (n, l, nv, acc, grid, blk, lds) in ks:
        if "f" in which and "l" not in which: txt += "; @launch grid=(%d,1,1) block=(%d,1,1) lds=%d\n" % (grid, blk, lds)
        else: txt += "; @launch kernel=%s grid=(%d,1,1) block=(%d,1,1) lds=%d\n" % (n, grid, blk, lds)
    txt += '.amdgcn_target "amdgcn-amd-amdhsa--gfx950"\n'
    if "f" in which: txt += NOTES
    txt += '.text\n'
    descs = ""; np_ = 0
    for (n, l, nv, acc, grid, blk, lds) in ks:
        b, d, p = kernel_text(n, l, nv, acc)
        print(n, "instructions:", len(l), "problems:", p)
        txt += b; descs += ".p2align 6\n" + d; np_ += p
    txt += '.section .rodata,"a"\n' + descs
    open(out, "w").write(txt)
if __name__ == "__main__":
    build(sys.argv[1], sys.argv[2])
```

```python
from gen_common import *
from gen_k1 import wg_decode, fmt_job
MF = "v_mfma_f32_16x16x32_bf16"
SLOT = 16384
PHL = 9 * SLOT
KVX = PHL + 2048
K2_LDS = KVX + 4096

S_H, S_J, S_W, S_ROW0 = 3, 4, 5, 7
SRD_WS, SRD_DBG, S_HUGE, S_TMP, S_RG, S_SPIN = 44, 48, 52, 53, 54, 55
SRD_CK, SRD_W, SRD_X, SRD_WB, SRD_GATE, SRD_WO = 56, 60, 64, 68, 72, 76
S_W4K, S_ST, M1, M2 = 80, 82, 88, 90
SRD_WQ, S_MW, S_MB, S_WBG, S_XB = 92, 96, 97, 98, 99
SRD_PHI, S_KG, S_VG, S_KL, S_VL, S_KR, S_T, S_TL, S_TBM, S_L2E, S_AP, S_C, S_R = 56, 60, 61, 62, 63, 64, 65, 66, 67, 68, 69, 70, 72
S_ST2 = 86
SRD_WS2, S_WOSZ, SRD_J, S_JU = 92, 81, 84, 73
MK = [74, 76, 78, 90]
vLANE, vL16, vWo, vWR, vBR, vKA, vVA, vQ, vLs, vPS, vTM, vNINF, vM5 = 1, 2, 3, 4, 12, 13, 14, 15, 17, 19, 21, 22, 23
vG = [3, 12]
FR, DB, Q, TK, O = 24, 160, 216, 248, 128
XRS = [88, 96, 104, 112, 120]
NXR = 5
FR2 = [120, 124, 192, 196, 200, 204, 208, 212]
def qacc(cb, rho):
    n = 2 * cb + rho
    return 56 + 4 * n if n < 8 else 128 + 4 * (n - 8)
P_, S_, NEGM, E_ = 56, 72, 104, 112
import os
DRD = 12; W2 = 4; E64 = 0; NRING = 16; NODMA = 0
SC = " sc1"
QP = int(os.environ.get("QP", 0))
HMAP = int(os.environ.get("HMAP", 1))
PW = int(os.environ.get("PW", 7))
SLP = int(os.environ.get("SLP", 2))
CT = int(os.environ.get("CT", 1))
T0P, T1P = eval(os.environ.get("TP", "(2, 60)"))
FASTJ = int(os.environ.get("FASTJ", 7))
FSP, LSP = eval(os.environ.get("SP", "(10, 20)"))
SKIP = int(os.environ.get("SKIP", 1))
K3L = int(os.environ.get("K3L", 0))
K3P = int(os.environ.get("K3P", 0))
LMIN = int(os.environ.get("LMIN", 0))
GP = int(os.environ.get("GP", 0))
XS0, XSP, XSB = eval(os.environ.get("XS", "(0, 1, 0)"))
B32 = int(os.environ.get("B32", 0))
SNT = 0x7FC17FC1
S_PXO = 13
JMODE = int(os.environ.get("JMODE", 1))
YSTEP = int(os.environ.get("YSTEP", 2))
AL8 = int(os.environ.get("AL8", 0))
ALN = int(os.environ.get("ALN", 4))
JLO, JN, JG = eval(os.environ.get("JCFG", "(1, 5, [3, 3, 3])"))
PRIO = int(os.environ.get("PRIO", 0))
PXW = int(os.environ.get("PXW", 0))
TLB = int(os.environ.get("TLB", 0))
YPOS = int(os.environ.get("YPOS", 158))
LPOS = int(os.environ.get("LPOS", 56))
LSTEP = int(os.environ.get("LSTEP", 2))
GAP = int(os.environ.get("GAP", 100))
TOUCH = int(os.environ.get("TOUCH", 1))
CODE_BYTES = 110 * 1024
S_TQ, vTQ = 55, 12
ROT = int(os.environ.get("ROT", 0))
K3BAR = int(os.environ.get("K3BAR", 4))
XQ = os.environ.get("XQ", "")
def freg(n):
    n %= NRING
    return FR + 4 * n if n < 8 else FR2[n - 8]
WS_FLG = 80 * MB
FL_KV, FL_KP, FL_AP, FL_PX = WS_FLG, WS_FLG + 4096, WS_FLG + 8192, WS_FLG + 16384
WS_PX = 96 * MB
WS_WH = WS_WP + 5 * MB
F_LDS = 163840

def red4(q, a, b, c, d, op, t0, t1, t2):
    q("v_permlane16_swap_b32 v%d, v%d" % (a, b)); q("v_permlane16_swap_b32 v%d, v%d" % (c, d))
    q("%s v%d, v%d, v%d" % (op, a, a, b)); q("%s v%d, v%d, v%d" % (op, c, c, d))
    q("v_permlane32_swap_b32 v%d, v%d" % (a, c))
    q("%s v%d, v%d, v%d" % (op, a, a, c))
    q("v_mov_b32 v%d, v%d" % (c, a))
    q("v_permlane32_swap_b32 v%d, v%d" % (a, c))
    q("v_mov_b32 v%d, v%d" % (b, a)); q("v_mov_b32 v%d, v%d" % (d, c))
    q("v_permlane16_swap_b32 v%d, v%d" % (a, b)); q("v_permlane16_swap_b32 v%d, v%d" % (c, d))

def red2(q, a, b, op, t):
    q("v_permlane16_swap_b32 v%d, v%d" % (a, b))
    q("%s v%d, v%d, v%d" % (op, a, a, b))
    q("v_mov_b32 v%d, v%d" % (t, a))
    q("v_permlane32_swap_b32 v%d, v%d" % (a, t))
    q("%s v%d, v%d, v%d" % (op, a, a, t))
    q("v_mov_b32 v%d, v%d" % (b, a))
    q("v_permlane16_swap_b32 v%d, v%d" % (a, b))

def phi_gather(q, raw, PH, va, vb):
    q("v_and_b32 v%d, 15, v%d" % (va, vLANE)); q("v_lshrrev_b32 v%d, 4, v%d" % (vb, vLANE))
    q("v_mul_u32_u24 v%d, 144, v%d" % (raw, vb)); q("v_add_u32 v%d, %d, v%d" % (raw, PHL, raw))
    q("v_mov_b32 v%d, 512" % vb)
    for (c, f) in ((0, 16), (4, 17), (8, 8), (12, 12)):
        q("v_cmp_eq_u32 vcc, %d, v%d" % (c, va)); q("v_cndmask_b32 v%d, v%d, %d, vcc" % (vb, vb, f))
    q("v_lshl_add_u32 v%d, v%d, 1, v%d" % (vb, vb, raw)); q("v_lshl_add_u32 v%d, v%d, 1, v%d" % (va, va, raw))
    for mu, a in ((0, va), (1, vb)):
        for i in range(6):
            q("ds_read_u16 v%d, v%d offset:%d" % (raw + 6 * mu + i, a, (i if i < 4 else 12 + i) * 36))
    y = Seq()
    for mu in range(2):
        for i in range(3): y("v_lshl_or_b32 v%d, v%d, 16, v%d" % (PH + 4 * mu + i, raw + 6 * mu + 2 * i + 1, raw + 6 * mu + 2 * i))
        y("v_mov_b32 v%d, 0" % (PH + 4 * mu + 3))
    return y

def softmax5(q, PK, EE, T, OUT):
    vals = [[PK + 4 * r + i for i in range(4)] + [PK + 8 + 4 * r] for r in range(2)]
    for r in range(2):
        v = vals[r]
        q("v_max3_f32 v%d, v%d, v%d, v%d" % (T + 2 * r, v[0], v[1], v[2])); q("v_max3_f32 v%d, -v%d, -v%d, -v%d" % (T + 2 * r + 1, v[0], v[1], v[2]))
        q("v_max3_f32 v%d, v%d, v%d, v%d" % (T + 2 * r, T + 2 * r, v[3], v[4])); q("v_max3_f32 v%d, v%d, -v%d, -v%d" % (T + 2 * r + 1, T + 2 * r + 1, v[3], v[4]))
    red4(q, T, T + 1, T + 2, T + 3, "v_max_f32", 0, 0, 0)
    for i in range(4): q("v_mul_f32 v%d, s%d, v%d" % (T + i, S_L2E, T + i))
    for r in range(2):
        for i in range(5):
            q("v_fma_f32 v%d, v%d, s%d, -v%d" % (EE + 10 * r + i, vals[r][i], S_L2E, T + 2 * r))
            q("v_fma_f32 v%d, -v%d, s%d, -v%d" % (EE + 10 * r + 5 + i, vals[r][i], S_L2E, T + 2 * r + 1))
    for i in range(20): q("v_exp_f32 v%d, v%d" % (EE + i, EE + i))
    for k in range(4): q("v_mul_f32 v%d, v%d, v%d" % (EE + 5 * k + 4, EE + 5 * k + 4, vM5))
    for k in range(4): q("v_add_f32 v%d, v%d, v%d" % (T + k, EE + 5 * k, EE + 5 * k + 1))
    for i in range(2, 5):
        for k in range(4): q("v_add_f32 v%d, v%d, v%d" % (T + k, T + k, EE + 5 * k + i))
    red4(q, T, T + 1, T + 2, T + 3, "v_add_f32", 0, 0, 0)
    for k in range(4): q("v_rcp_f32 v%d, v%d" % (T + k, T + k))
    for k in range(4):
        for i in range(5): q("v_mul_f32 v%d, v%d, v%d" % (EE + 5 * k + i, EE + 5 * k + i, T + k))
    for r in range(2):
        e = EE + 10 * r; o = OUT + 8 * r
        q("v_cvt_pk_bf16_f32 v%d, v%d, v%d" % (o, e, e + 1)); q("v_cvt_pk_bf16_f32 v%d, v%d, v%d" % (o + 1, e + 2, e + 3))
        q("v_cvt_pk_bf16_f32 v%d, v%d, v%d" % (o + 2, e + 5, e + 6)); q("v_cvt_pk_bf16_f32 v%d, v%d, v%d" % (o + 3, e + 7, e + 8))
        q("v_cvt_pk_bf16_f32 v%d, v%d, v%d" % (o + 4, e + 4, e + 9)); q("v_mov_b32 v%d, 0" % (o + 5))

W32 = False
MF32 = "v_mfma_f32_32x32x16_bf16"
E32 = 4
def red1(q, a, op, t):
    q("v_mov_b32 v%d, v%d" % (t, a)); q("v_permlane32_swap_b32 v%d, v%d" % (a, t)); q("%s v%d, v%d, v%d" % (op, a, a, t))

def sreg(buf, e):
    if W32: return S_ + 16 * buf + 4 * [0, 2, 1, 3][e >> 2] + (e & 3)
    qb, kb, r = e >> 3, (e >> 2) & 1, e & 3
    return S_ + 16 * buf + 8 * kb + 4 * qb + r

def mask_ops(buf, u):
    z = Seq()
    for e0 in range(0, 16, 4):
        for e in range(e0, e0 + 4):
            qb, kb, r = e >> 3, (e >> 2) & 1, e & 3
            key, th = (32 * u + 8 * [0, 2, 1, 3][e >> 2] + r, vQ) if W32 else (32 * u + 16 * kb + r, vQ + qb)
            z("v_cmp_gt_i32 s[%d:%d], %d, v%d" % (MK[e & 3], MK[e & 3] + 1, key, th))
        for e in range(e0, e0 + 4):
            z("v_cndmask_b32 v%d, v%d, v%d, s[%d:%d]" % (sreg(buf, e), sreg(buf, e), vNINF, MK[e & 3], MK[e & 3] + 1))
    return z

def sm_parts(buf):
    ex = []; post = []
    er = (lambda e: E32 + (e & 3)) if W32 else (lambda e: E_ + (e & 7))
    for e in range(16):
        ps = vPS if W32 else vPS + (e >> 3); k = e if W32 else e & 7
        ex.append(I("v_exp_f32 v%d, v%d" % (er(e), sreg(buf, e))))
        z = Seq()
        if k == 1: z("v_add_f32 v%d, v%d, v%d" % (ps, er(e - 1), er(e)))
        elif k > 1: z("v_add_f32 v%d, v%d, v%d" % (ps, ps, er(e)))
        if e & 1: z("v_cvt_pk_bf16_f32 v%d, v%d, v%d" % (P_ + 8 * buf + (e >> 1), er(e - 1), er(e)))
        post.append(z.l[::-1] if AL8 else z.l)
    return ex, post

def row_max(z, X, floor0):
    groups = [(E32, range(16))] if W32 else [(E_, range(8)), (E_ + 1, range(8, 16))]
    for d, es in groups:
        r = [sreg(X, e) for e in es] + (["0"] if floor0 else [])
        f = lambda x: x if x == "0" else "v%d" % x
        z("v_max3_f32 v%d, %s, %s, %s" % (d, f(r[0]), f(r[1]), f(r[2]))); r = r[3:]
        while len(r) >= 2: z("v_max3_f32 v%d, v%d, %s, %s" % (d, d, f(r[0]), f(r[1]))); r = r[2:]
        if r: z("v_max_f32 v%d, %s, v%d" % (d, f(r[0]), d))
    if W32: return [(E32, range(16), range(O, O + 64), range(NEGM, NEGM + 16), vLs)]
    return [(E_ + qb, range(8 * qb, 8 * qb + 8), [O + 8 * db + 4 * qb + i for db in range(8) for i in range(4)], range(NEGM + 4 * qb, NEGM + 4 * qb + 4), vLs + qb) for qb in range(2)]
def row_red(z, op):
    if W32: red1(z, E32, op, E32 + 1)
    else: red2(z, E_, E_ + 1, op, E_ + 2)

def rare_block(name, X, Y):
    z = Seq(); z.label(name); z("s_nop 12")
    G = row_max(z, X, True); row_red(z, "v_max_f32")
    for k, (d, es, os_, ng, l_) in enumerate(G):
        f = d + (2 if W32 else 4)
        z("v_exp_f32 v%d, -v%d" % (f, d))
        for e in es:
            z("v_sub_f32 v%d, v%d, v%d" % (sreg(X, e), sreg(X, e), d)); z("v_sub_f32 v%d, v%d, v%d" % (sreg(Y, e), sreg(Y, e), d))
        for r in ng: z("v_sub_f32 v%d, v%d, v%d" % (r, r, d))
        z("v_mul_f32 v%d, v%d, v%d" % (l_, l_, f))
        for r in os_: z("v_mul_f32 v%d, v%d, v%d" % (r, r, f))
    ex, post = sm_parts(X)
    for e in range(16):
        z.ext([ex[e]]); z("s_nop 0"); z.ext(post[e])
    z("s_nop 1")
    z("s_branch %s_R" % name)
    return z

def rd_frag(kind, idx, ring):
    base = vKA if kind == "K" else vVA
    off = 1024 * idx
    if W32: off = (idx >> 3) * 8192 + ((idx & 7) >> 1) * (1024 if kind == "K" else 2048) + (idx & 1) * 512
    return I("ds_read_b128 %s, v%d offset:%d" % (vr(freg(ring), 4), base, off))

def qk_mfmas(k, buf, ring, first_c):
    if W32:
        d = vr(S_ + 16 * buf, 16)
        return [I("%s %s, %s, %s, %s" % (MF32, d, vr(freg(ring), 4), vr(Q + 16 * (k & 1) + 4 * (k >> 1), 4), d if k else first_c(0)))]
    kb, js = k >> 2, k & 3
    out = []
    for qb in range(2):
        d = vr(S_ + 16 * buf + 8 * kb + 4 * qb, 4)
        c = d if js else first_c(qb)
        out.append(I("%s %s, %s, %s, %s" % (MF, d, vr(freg(ring), 4), vr(Q + 16 * qb + 4 * js, 4), c)))
    return out
def pv_mfmas(db, buf, ring):
    if W32:
        o = vr(O + 16 * (db >> 1), 16)
        return [I("%s %s, %s, %s, %s" % (MF32, o, vr(freg(ring), 4), vr(P_ + 8 * buf + 4 * (db & 1), 4), o))]
    return [I("%s %s, %s, %s, %s" % (MF, vr(O + 8 * db + 4 * qb, 4), vr(freg(ring), 4), vr(P_ + 8 * buf + 4 * qb, 4), vr(O + 8 * db + 4 * qb, 4))) for qb in range(2)]
NEGC = lambda qb: vr(NEGM, 16) if W32 else vr(NEGM + 4 * qb, 4)

def pkg(tag=None):
    z = Seq()
    for (sl, sg, hi) in ((S_VL, S_VG, 1), (S_KL, S_KG, 0)):
        z("s_mov_b32 m0, s%d" % sl)
        z("s_add_u32 s%d, s%d, %d" % (sl, sl, SLOT))
        for e in range(4):
            if not NODMA: z("buffer_load_dwordx4 v%d, %s, s%d offen offset:%d%s lds" % (vL16, sr(SRD_WS, 4), sg, 1024 * e, SC), tag=tag)
        z("s_add_u32 s%d, s%d, %d" % (sg, sg, SLOT))
        z("s_and_b32 s%d, s%d, 0xffff" % (sl, sl))
        if hi: z("s_or_b32 s%d, s%d, 0x10000" % (sl, sl))
    return z

DIAG = int(os.environ.get('DIAG', 0))
def tick(z, acc):
    z("s_memtime s[100:101]"); z("s_waitcnt lgkmcnt(0)")
    if acc is not None: z("s_sub_u32 s101, s100, s99"); z("s_add_u32 s%d, s%d, s101" % (acc, acc))
    z("s_mov_b32 s99, s100")
def sync_block(role, uid, cond=False, xtra=0, strict=None, always=False, prev=0, fq=FR):
    z = Seq()
    if DIAG: tick(z, None)
    if role == 0:
        z("s_sub_u32 s%d, s%d, s%d" % (S_R, S_TBM, S_T))
        if not always:
            z("s_cmp_ge_u32 s%d, 2" % S_R); z("s_cbranch_scc1 W12_%s" % uid)
            z("s_waitcnt vmcnt(4)")
        z.label("W12_%s" % uid)
        if strict is None:
            z("s_cmp_eq_u32 s%d, 4" % S_T); z("s_cbranch_scc1 W22_%s" % uid)
        z("s_waitcnt vmcnt(%d)" % (12 + xtra if strict is None else strict))
        if strict is None: z.label("W22_%s" % uid); z("s_waitcnt vmcnt(%d)" % (22 + xtra))
        if DIAG: tick(z, 96)
        z("s_barrier")
        if DIAG: tick(z, 98)
        if not always: z("s_cmp_lt_u32 s%d, 3" % S_R); z("s_cbranch_scc1 NP_%s" % uid)
        z("s_and_b32 s8, s%d, 3" % S_T); z("s_cmp_eq_u32 s8, 2"); z("s_cbranch_scc1 CQ_%s" % uid)
        z("s_cmp_lg_u32 s8, 1"); z("s_cbranch_scc1 NQ_%s" % uid)
        poll_issue(z, 9, 8, SRD_WS, "s15", tag="OPT")
        z("s_lshl_b32 s8, s%d, 8" % S_T); z("s_or_b32 s8, s8, s%d" % S_W)
        z("s_cmp_lg_u32 s8, %d" % (9 * 256)); z("s_cbranch_scc1 N9_%s" % uid)
        z.ext(arrive_byte(3, vTM)); z("s_branch NQ_%s" % uid)
        z.label("N9_%s" % uid)
        if not always:
            z("s_cmp_lg_u32 s8, 256"); z("s_cbranch_scc1 NQ_%s" % uid)
            fb = Seq(); fb("s_lshl_b32 s8, s%d, 2" % S_J); fb("s_add_u32 s8, s8, s15"); fb("s_add_u32 s8, s8, %d" % (FL_KP - FL_KV))
            z.ext(flag_store(fb, vTM, 0, so=8))
        z("s_branch NQ_%s" % uid)
        z.label("CQ_%s" % uid)
        z("s_add_u32 s8, s%d, 6" % S_T); z("s_lshr_b32 s8, s8, 2"); z("s_sub_u32 s8, 7, s8")
        z("v_cmp_eq_u32 vcc, s8, v%d" % vLANE); z("v_cndmask_b32 v7, 0, 1, vcc")
        z("s_waitcnt vmcnt(%d)" % (8 + prev))
        poll_check(z, "PQ_%s" % uid, 9, 7, 8, SRD_WS, "s15")
        z.label("NQ_%s" % uid)
        z.ext(pkg())
        z("s_sub_u32 s8, s%d, 2" % S_T); z("s_cmp_ge_u32 s8, 2"); z("s_cbranch_scc1 NP_%s" % uid)
        for i in range(4): z("v_mov_b32 v%d, 0x%x" % (fq + i, SNT))
        z("s_mul_i32 s8, s8, 20480"); z("s_add_u32 s8, s8, s%d" % S_PXO); z("s_add_u32 s9, s8, 4096")
        for i in range(5): z("buffer_store_dwordx4 %s, v%d, %s, s%d offen offset:%d sc1" % (vr(fq, 4), vL16, sr(SRD_WS, 4), 8 + i // 4, (i & 3) * 1024), tag="OPT")
        z.label("NP_%s" % uid)
    else:
        if cond:
            z("s_cmp_eq_u32 s%d, s%d" % (S_T, S_TBM)); z("s_cbranch_scc1 NB_%s" % uid)
        z("s_waitcnt vmcnt(0)")
        z("s_barrier")
        if cond: z.label("NB_%s" % uid)
        if DIAG: tick(z, 98)
    return z

def adv(vreg):
    z = Seq()
    z("v_add_u32 v%d, 0x4000, v%d" % (vreg, vreg))
    if vreg == vKA: z("v_and_b32 v%d, 0xffff, v%d" % (vreg, vreg))
    else: z("v_and_or_b32 v%d, v%d, s%d, v%d" % (vreg, vreg, S_KR, vC64))
    return z

def check(name):
    z = Seq()
    if not W32: z("v_max_f32 v%d, v%d, v%d" % (vTM, vPS, vPS + 1))
    z("v_cmp_nle_f32 vcc, v%d, v%d" % (vPS if W32 else vTM, vTHR()))
    z("s_cbranch_vccnz %s" % name)
    z.label(name + "_R")
    return z
def ladd(qb): return I("v_add_f32 v%d, v%d, v%d" % (vLs + qb, vLs + qb, vPS + qb))
def ladds(): return [ladd(0)] if W32 else [ladd(0), ladd(1)]
vC64 = 10
def vTHR(): return 11

def place_sm(slots, lo, hi, buf, mask_u, chk, carry=True):
    ex, post = sm_parts(buf)
    n = hi - lo
    pre = mask_ops(buf, mask_u).l if mask_u is not None else []
    groups = [pre[8 * g:8 * g + 8] for g in range(4)]
    if carry:
        slots[lo]["post"].append(ladd(0))
        if not W32: slots[lo + (8 if n == 16 else 0)]["post"].append(ladd(1))
    for e in range(16):
        s = lo + (e * n) // 16
        if pre and e % 4 == 0: slots[s]["mid"].extend(groups[e // 4])
        slots[s]["mid"].append(ex[e])
        if W32 and n == 16: slots[s + 1]["post"].extend(post[e]) if s + 1 < hi else slots[s]["end"].extend(post[e])
        else: slots[s]["post"].extend(post[e])
    if chk: slots[hi - 1]["end"].extend(check(chk).l)

def emit_slots(slots, w2=False):
    out = []
    for n, s in enumerate(slots):
        out += s["pre"]
        if w2 and W2 and n % W2 == 0:
            w = I("v_nop"); w.kind = "touch"; w.rd = list(slots[n + W2 - 1]["m"][0].srcA); w.text = ""
            out.append(w)
        if len(s["m"]) == 1: out += s["m"] + s["rd"] + s["mid"] + s["post"] + s["end"]
        else: out += [s["m"][0]] + s["mid"] + [s["m"][1]] + s["rd"] + s["post"] + s["end"]
    return out
def mkslot(m): return {"pre": [], "m": m, "mid": [], "rd": [], "post": [], "end": []}

def iteration(role, var, rares):
    uid = "%s%s" % ("AB"[role], var)
    rb = 24 if var == "E2" else 0
    slots = []; plan = []
    if var not in ("S2", "E2"):
        for k in range(8): slots.append(mkslot(qk_mfmas(k, 0, len(slots), NEGC))); plan.append(("K", k))
    for db in range(8): slots.append(mkslot(pv_mfmas(db, 0, rb + len(slots)))); plan.append(("V", db))
    a_hi = len(slots)
    if var in ("S", "S1"):
        for k in range(8): slots.append(mkslot(qk_mfmas(k, 1, len(slots), NEGC))); plan.append(("K", 8 + k))
    if var != "E2":
        for db in range(8): slots.append(mkslot(pv_mfmas(db, 1, len(slots)))); plan.append(("V", 8 + db))
    N = len(slots)
    nxt = {"S": "K", "S1": "V", "S2": None, "E1": "V", "E2": None}[var]
    assert DRD > 8
    for n in range(N):
        g = n + DRD
        if g < N: slots[n]["rd"].append(rd_frag(plan[g][0], plan[g][1], g))
        elif nxt:
            if g == N:
                slots[n]["rd"].extend(sync_block(role, uid, fq=freg(N)).l)
            if nxt == "K" and g - N >= 8: slots[n]["rd"].append(rd_frag("V", g - N - 8, g))
            elif var != "E1" or g - N < 8: slots[n]["rd"].append(rd_frag(nxt, g - N, g))
    if nxt == "K":
        slots[N - DRD - 2]["post"].extend(adv(vKA).l)
        slots[N - DRD + 2]["post"].extend(adv(vVA).l)
    elif nxt == "V": slots[N - DRD - 1]["end"].extend(adv(vVA).l)
    if var == "S2": slots[9]["rd"].extend(sync_block(role, uid, cond=True).l)
    if var == "E2":
        slots[4]["rd"].extend(sync_block(role, uid, cond=True, fq=freg(rb)).l); slots[0]["post"].extend(ladds())
        return emit_slots(slots, True)
    place_sm(slots, 0, a_hi, 1, 1 if var == "S2" else None, "R%sa" % uid); rares.append(rare_block("R%sa" % uid, 1, 0))
    if var != "S2":
        if var == "E1": slots[a_hi]["post"].extend(ladds())
        place_sm(slots, a_hi, N, 0, 0 if var != "S" else None, "R%sb" % uid, carry=var != "E1"); rares.append(rare_block("R%sb" % uid, 0, 1))
    else:
        slots[a_hi]["post"].extend(ladds())
    if var == "S":
        slots[N - 3]["post"].extend(Seq()("s_add_u32 s%d, s%d, 1" % (S_T, S_T))("s_add_u32 s6, s%d, 1" % S_T).l)
    out = emit_slots(slots, True)
    return out

def poll_issue(z, vp, voff, srd, soff, tag="POLL"):
    z("buffer_load_dword v%d, v%d, %s, %s offen sc1" % (vp, voff, sr(srd, 4), soff), tag=tag)
def poll_check(z, name, vp, vneed, voff, srd, soff):
    z("v_and_b32 v%d, v%d, v%d" % (vp, vp, vneed)); z("v_cmp_ne_u32 vcc, v%d, v%d" % (vp, vneed))
    z("s_cbranch_vccz %s_OK" % name)
    z("s_mov_b32 s%d, 0x40000" % S_SPIN)
    z.label("%s_SP" % name)
    z("s_sleep %d" % SLP)
    z("buffer_load_dword v%d, v%d, %s, %s offen sc1" % (vp, voff, sr(srd, 4), soff), tag="OPT")
    z("s_waitcnt vmcnt(0)", tag="OPT")
    z("v_and_b32 v%d, v%d, v%d" % (vp, vp, vneed)); z("v_cmp_ne_u32 vcc, v%d, v%d" % (vp, vneed))
    z("s_cbranch_vccz %s_OK" % name)
    z("s_sub_u32 s%d, s%d, 1" % (S_SPIN, S_SPIN))
    z("s_cmp_lg_u32 s%d, 0" % S_SPIN)
    z("s_cbranch_scc1 %s_SP" % name)
    z.label("%s_OK" % name)
def w7_block(name, body, w=7):
    z = Seq(); z("s_cmp_lg_u32 s%d, %d" % (S_W, w)); z("s_cbranch_scc1 %s" % name); z.ext(body); z.label(name)
    return z
def flag_store(base_expr, va, vb, so=6):
    z = Seq(); z.ext(base_expr)
    z("v_mov_b32 v%d, 1" % va); z("s_mov_b64 exec, 1")
    z("buffer_store_dword v%d, off, %s, s%d sc1" % (va, sr(SRD_WS, 4), so), tag="OPT")
    z("s_mov_b64 exec, -1")
    return z
def arrive_byte(val, va):
    inc = {1: 1, 3: 0x100, 7: 0x10000}[val]
    z = Seq(); z("v_mov_b32 v%d, 0x%x" % (va, inc)); z("s_and_b32 s8, s2, 7"); z("s_lshl_b32 s8, s8, 5"); z("s_mov_b64 exec, 1")
    z("buffer_atomic_add v%d, off, %s, s8" % (va, sr(SRD_DBG, 4)), tag="OPT"); z("s_mov_b64 exec, -1")
    return z
def px_group(z, d, t):
    z("s_lshl_b32 s%d, s%d, 3" % (d, S_J)); z("s_and_b32 s%d, s2, 4" % t); z("s_add_u32 s%d, s%d, s%d" % (d, d, t))
    z("s_lshr_b32 s%d, s2, 6" % t); z("s_add_u32 s%d, s%d, s%d" % (d, d, t))
def px_flag(z, d, t):
    px_group(z, d, t); z("s_lshl_b32 s%d, s%d, 3" % (d, d)); z("s_add_u32 s%d, s%d, s%d" % (d, d, S_W)); z("s_lshl_b32 s%d, s%d, 7" % (d, d)); z("s_and_b32 s%d, s2, 3" % t); z("s_lshl_b32 s%d, s%d, 2" % (t, t))
    z("s_add_u32 s%d, s%d, s%d" % (d, d, t)); z("s_add_u32 s%d, s%d, %d" % (d, d, FL_PX))
flat = lambda g: [x for l in g for x in l]
def cp(s):
    out = []
    for x in (s.l if isinstance(s, Seq) else s):
        if isinstance(x, list): out.append(cp(x))
        elif x.kind == "waitv": out.append(x)
        else:
            n_ = I(x.text, tag=x.tag); n_.nowaw = x.nowaw; out.append(n_)
    return out

def code_touch(q):
    q("s_lshr_b32 s10, s2, 3"); q("s_lshl_b32 s10, s10, 13")
    q("s_getpc_b64 s[12:13]"); q.label("F_PC"); q("s_mov_b32 s14, F_COLD-F_PC"); q("s_mov_b32 s15, 0x00020000")
    q("s_cmp_lg_u32 s%d, 7" % S_W); q("s_cselect_b32 s10, s14, s10")
    q("v_lshlrev_b32 v24, 7, v%d" % vLANE)
    q("s_cmp_ge_u32 s10, s14"); q("s_cbranch_scc1 F_NCT")
    q("buffer_load_dword v31, v24, s[12:15], s10 offen", tag="OPT")
    q.label("F_NCT")

def gen_f(stamp=False):
    ST = (lambda z, i: z.ext(STAMP(i))) if stamp else (lambda z, i: None)
    q = Seq()
    vAo0, vAo1, vAR, JT, WF, NWF, AF, RW, CH, GT, ACC, WB = 13, 14, 15, 20, 32, 6, 56, 88, 104, 112, 128, 98304
    vWB, vGD, vGA, vBB = 19, 20, 21, [12, 16, 17, 18]
    q("s_cmp_ge_u32 s2, 256"); q("s_cbranch_scc1 F_END")
    load_args(q)
    wg_decode(q, S_H, S_J)
    if HMAP: q("s_and_b32 s%d, s2, 7" % S_H); q("s_lshl_b32 s%d, s%d, 2" % (S_H, S_H)); q("s_lshr_b32 s6, s2, 6"); q("s_add_u32 s%d, s%d, s6" % (S_H, S_H))
    q("v_lshrrev_b32 v20, 6, v0"); q("v_and_b32 v%d, 63, v0" % vLANE)
    q("v_readfirstlane_b32 s%d, v20" % S_W)
    if CT == 1: code_touch(q)
    q("s_and_b32 s%d, s%d, 3" % (S_RG, S_W))
    q("v_lshrrev_b32 v20, 3, v%d" % vLANE)
    q("s_xor_b32 s6, s%d, 7" % S_J); q("s_lshl_b32 s6, s6, 8"); q("s_lshl_b32 s8, s%d, 5" % S_W); q("s_add_u32 s6, s6, s8")
    q("v_add_u32 v20, s6, v20")
    q("v_lshrrev_b32 v21, 4, v%d" % vLANE); q("v_and_b32 v22, 7, v%d" % vLANE); q("v_xor_b32 v22, v21, v22")
    q("v_lshlrev_b32 v22, 4, v22"); q("v_lshl_add_u32 v%d, v20, 10, v22" % vAo0); q("v_xor_b32 v%d, 64, v%d" % (vAo1, vAo0))
    q("s_lshl_b32 s6, s%d, 3" % S_RG); q("v_add_u32 v20, s6, v21")
    q("s_and_b32 s6, s%d, 1" % S_RG); q("s_lshl_b32 s6, s6, 2"); q("v_add_u32 v22, s6, v21")
    q("v_lshlrev_b32 v22, 1, v22"); q("v_and_b32 v23, 15, v%d" % vLANE); q("v_xor_b32 v22, v22, v23")
    q("v_lshlrev_b32 v22, 4, v22"); q("v_lshl_add_u32 v%d, v20, 13, v22" % vWo)
    q("s_lshl_b32 s6, s%d, 8" % S_H); q("v_add_u32 v%d, s6, v%d" % (vWo, vWo))
    q("s_lshl_b32 s%d, s%d, 12" % (S_W4K, S_W)); q("s_lshl_b32 s%d, s%d, 11" % (S_MW, S_W))
    mk_srd(q, SRD_CK, P_CKV, 2048 * 1024)
    q("s_cmp_lt_u32 s%d, 4" % S_W)
    q("s_cselect_b32 s%d, s%d, s%d" % (SRD_W, P_UK, P_UV)); q("s_cselect_b32 s%d, s%d, s%d" % (SRD_W + 1, P_UK + 1, P_UV + 1))
    q("s_mov_b32 s%d, %d" % (SRD_W + 2, 512 * 8192)); q("s_mov_b32 s%d, 0x00020000" % (SRD_W + 3))
    if stamp: q.ext(STAMP(0)); q.ext(RSTAMP(60))
    def dma_a(I_, sec=0):
        g = []
        for e in range(4):
            z = Seq()
            if e == 0: z("s_add_u32 m0, s%d, %d" % (S_W4K, (I_ % 3) * 32768 + sec * 16384))
            z("s_mov_b32 s%d, %d" % (S_TMP, I_ * 128 + e * (8192 - 1024) + sec * 131072))
            z("buffer_load_dwordx4 v%d, %s, s%d offen offset:%d lds" % ([vAo0, vAo1][e & 1], sr(SRD_CK, 4), S_TMP, e * 1024), tag="A%d" % I_)
            g.append(z.l)
        return g
    def dma_w(i, sec=0):
        g = []
        for e in range(2):
            z = Seq()
            if e == 0: z("s_add_u32 m0, s%d, %d" % (S_MW, WB + (i % 4) * 16384 + sec * 8192))
            z("s_mov_b32 s%d, %d" % (S_TMP, i * 32 * 8192 + e * (4 * 8192 - 1024)))
            z("buffer_load_dwordx4 v%d, %s, s%d offen offset:%d lds" % (vWo, sr(SRD_X if sec else SRD_W, 4), S_TMP, e * 1024), tag="U%d" % i)
            g.append(z.l)
        return g
    q.ext(flat(dma_w(0))); q.ext(flat(dma_a(0))); q.ext(flat(dma_w(1)))
    q("s_barrier")
    q.ext(flat(dma_a(1))); q.ext(flat(dma_w(2))); q.ext(flat(dma_w(3))); q.ext(flat(dma_a(2)))
    if CT == 0: code_touch(q)
    else: q("s_mov_b32 s15, 0x00020000")
    mk_srd(q, SRD_X, P_X, 2048 * 1152); mk_srd(q, SRD_WB, P_WQKV, 576 * 3456); mk_srd(q, SRD_GATE, P_GATE, 1152)
    mk_srd(q, SRD_WS, P_WS, WS_SIZE); mk_srd(q, SRD_DBG, P_DBG, 256); mk_srd(q, SRD_WQ, P_WQ, 576 * 8192)
    q("s_mov_b32 s%d, 0x%x" % (S_HUGE, HUGE))
    q("v_lshlrev_b32 v%d, 4, v%d" % (vL16, vLANE))
    q("s_lshl_b32 s6, s2, 7"); q("s_add_u32 s6, s6, %d" % WS_FLG); q("s_cmp_ge_u32 s2, 72"); q("s_cselect_b32 s6, s%d, s6" % S_HUGE)
    q("s_cmp_lg_u32 s%d, 7" % S_W); q("s_cbranch_scc1 F_NCL")
    q("v_mov_b32 v22, 0"); q("v_lshrrev_b32 v20, 2, v%d" % vL16); q("s_mov_b32 exec_hi, 0")
    q("buffer_store_dword v22, v20, %s, s6 offen sc1" % sr(SRD_WS, 4), tag="OPT")
    q("s_mov_b64 exec, -1")
    q.label("F_NCL")
    q("v_and_b32 v20, 15, v%d" % vLANE); q("v_lshrrev_b32 v22, 1, v20"); q("v_xor_b32 v22, v22, v21")
    q("s_lshl_b32 s6, s%d, 6" % S_RG); q("v_add_u32 v20, s6, v20"); q("v_lshlrev_b32 v20, 7, v20")
    q("v_lshl_add_u32 v%d, v22, 4, v20" % vAR); q("v_xor_b32 v%d, 64, v%d" % (vAR + 1, vAR))
    q("v_add_u32 v%d, 0x10000, v%d" % (vAR + 2, vAR)); q("v_add_u32 v%d, 0x10000, v%d" % (vAR + 3, vAR + 1))
    q("v_bfe_u32 v20, v%d, 2, 2" % vLANE); q("v_lshl_add_u32 v22, v21, 3, v20"); q("v_lshlrev_b32 v22, 8, v22")
    q("v_and_b32 v23, 1, v21"); q("v_lshl_add_u32 v20, v23, 2, v20"); q("v_lshl_add_u32 v22, v20, 5, v22")
    q("v_and_b32 v20, 3, v%d" % vLANE); q("v_lshl_add_u32 v22, v20, 3, v22")
    q("s_lshr_b32 s6, s%d, 2" % S_W); q("s_lshl_b32 s6, s6, 13"); q("s_add_u32 s6, s6, %d" % WB)
    q("v_add_u32 v%d, s6, v22" % vWR)
    for cb in range(1, 8): q("v_xor_b32 v%d, %d, v%d" % (vWR + cb, 32 * cb, vWR))
    q("s_lshr_b32 s6, s%d, 2" % S_W); q("s_lshl_b32 s6, s6, 24"); q("s_lshl_b32 s8, s%d, 19" % S_H); q("s_add_u32 s6, s6, s8")
    q("s_xor_b32 s8, s%d, 7" % S_J); q("s_lshl_b32 s8, s8, 2"); q("s_add_u32 s8, s8, s%d" % S_RG); q("s_lshl_b32 s8, s8, 14"); q("s_add_u32 s%d, s6, s8" % S_ST)
    for i in range(1, 4): q("s_add_u32 s%d, s%d, %d" % (S_ST + i, S_ST, 4096 * i))
    q("s_sub_u32 s6, 15, s%d" % S_J); q("s_cmp_lt_u32 s%d, 4" % S_W); q("s_cselect_b32 s6, s%d, s6" % S_J)
    q("s_lshl_b32 s6, s6, 7"); q("s_lshl_b32 s8, s%d, 5" % S_RG); q("s_add_u32 s%d, s6, s8" % S_ROW0)
    q("s_lshl_b32 s%d, s%d, 10" % (S_MB, S_W))
    q("s_mul_i32 s6, s%d, %d" % (S_H, 576 * 128)); q("s_add_u32 s6, s6, s%d" % S_MB); q("s_add_u32 s%d, s6, %d" % (S_WBG, WS_WBF))
    q("s_lshr_b32 s6, s%d, 4" % S_ROW0); q("s_mul_i32 s6, s6, %d" % (18 * 1024)); q("s_add_u32 s%d, s6, %d" % (S_XB, WS_XF))

    def j1(k):
        z = Seq(); a, b = JT, JT + 1; d = 112 + 4 * k; tg = "OPT" if k == 2 else None
        z("s_lshr_b32 s8, s2, 1"); z("s_and_b32 s9, s2, 1"); z("s_mul_i32 s9, s9, 9")
        z("s_add_u32 s9, s9, %s" % ("s%d" % S_RG if k < 2 else "8"))
        if k == 1: z("s_add_u32 s9, s9, 4")
        z("v_lshrrev_b32 v%d, 2, v%d" % (a, vLANE)); z("s_lshl_b32 s10, s8, 4"); z("v_add_u32 v%d, s10, v%d" % (a, a))
        z("v_mul_u32_u24 v%d, 1152, v%d" % (a, a)); z("v_and_b32 v%d, 3, v%d" % (b, vLANE)); z("v_lshl_add_u32 v%d, v%d, 4, v%d" % (a, b, a))
        if k == 0: z("v_and_b32 v127, 15, v%d" % vLANE); z("v_lshlrev_b32 v127, 4, v127"); z("v_lshrrev_b32 v%d, 4, v%d" % (b, vLANE)); z("v_lshl_add_u32 v127, v%d, 2, v127" % b)
        z("s_lshl_b32 s10, s9, 6"); z("v_add_u32 v%d, s10, v%d" % (d, a))
        z("s_mul_i32 s8, s8, 18"); z("s_add_u32 s8, s8, s9"); z("s_lshl_b32 s8, s8, 10"); z("s_add_u32 s%d, s8, %d" % (86 + k, WS_XF))
        ld = Seq()("buffer_load_dwordx4 %s, v%d, %s, 0 offen" % (vr(d, 4), d, sr(SRD_X, 4)), tag=tg)
        y = Seq()
        for i in range(4): y("ds_bpermute_b32 v%d, v127, v%d" % (d + i, d + i), tag=tg)
        if k == 2: y("s_waitcnt lgkmcnt(0)", tag="OPT")
        y("buffer_store_dwordx4 %s, v%d, %s, s%d offen sc1" % (vr(d, 4), vL16, sr(SRD_WS, 4), 86 + k), tag=tg or "J13")
        return z, y, ld
    def j2(i, d, t0, dst):
        z = Seq(); t1, t2, t3 = t0 + 1, t0 + 2, t0 + 3
        z("s_add_u32 s8, s%d, %d" % (S_JU, i))
        z("s_mul_i32 s9, s8, 12769"); z("s_lshr_b32 s9, s9, 24")
        z("s_mul_i32 s10, s9, 1314"); z("s_sub_u32 s8, s8, s10")
        z("s_mul_i32 s10, s8, 7282"); z("s_lshr_b32 s10, s10, 16")
        z("s_mul_i32 s11, s10, 9"); z("s_sub_u32 s8, s8, s11"); z("s_lshl_b32 s8, s8, 6")
        z("v_add_u32 v%d, s8, v%d" % (t0, vLANE))
        z("v_mul_u32_u24 v%d, 3641, v%d" % (t1, t0)); z("v_lshrrev_b32 v%d, 16, v%d" % (t1, t1))
        z("v_mul_u32_u24 v%d, 18, v%d" % (t2, t1)); z("v_sub_u32 v%d, v%d, v%d" % (t2, t0, t2))
        z("v_lshrrev_b32 v%d, 3, v%d" % (t3, t1)); z("v_lshl_add_u32 v%d, v%d, 3, v%d" % (t0, t3, t0))
        z("v_and_b32 v%d, 3, v%d" % (d, t1)); z("v_lshl_add_u32 v%d, v%d, 2, v%d" % (t3, t3, d))
        z("v_bfe_u32 v%d, v%d, 2, 1" % (d, t1)); z("v_lshl_add_u32 v%d, v%d, 4, v%d" % (t3, d, t3))
        z("s_lshl_b32 s8, s10, 5")
        for k in range(3): z("s_mov_b32 s%d, s%d" % (SRD_J + k, [P_WO, P_WO + 1, S_WOSZ][k]))
        z("s_cmp_lt_u32 s10, 128"); z("s_cbranch_scc1 J2_%d" % i)
        z("s_mov_b32 s%d, s%d" % (SRD_J, P_WO2)); z("s_mov_b32 s%d, s%d" % (SRD_J + 1, P_WO2 + 1)); z("s_mov_b32 s%d, %d" % (SRD_J + 2, 576 * 1152))
        z("v_lshrrev_b32 v%d, 4, v%d" % (t3, t1)); z("v_lshl_add_u32 v%d, v%d, 1, v%d" % (t3, t3, t1))
        z("s_mul_i32 s8, s10, 36"); z("s_sub_u32 s8, s8, %d" % (36 * 128))
        z("s_cmp_lt_u32 s10, 144"); z("s_cbranch_scc1 J2_%d" % i)
        z("v_lshrrev_b32 v%d, 1, v%d" % (t3, t1)); z("v_mul_u32_u24 v%d, 18, v%d" % (t3, t3)); z("v_and_b32 v%d, 1, v%d" % (t1, t1)); z("v_add_u32 v%d, v%d, v%d" % (t3, t3, t1))
        z("s_mul_i32 s8, s10, 288"); z("s_sub_u32 s8, s8, %d" % (288 * 144 - 16))
        z.label("J2_%d" % i)
        z("v_add_u32 v%d, s8, v%d" % (t3, t3)); z("v_mul_u32_u24 v%d, 1152, v%d" % (t3, t3)); z("v_lshl_add_u32 v%d, v%d, 4, v%d" % (t3, t2, t3))
        z("s_mul_i32 s8, s9, 288")
        z("buffer_load_dwordx4 %s, v%d, %s, s8 offen" % (vr(d, 4), t3, sr(SRD_J, 4)))
        z("s_lshr_b32 s8, s10, 5"); z("s_mul_i32 s8, s8, 37")
        z("s_lshl_b32 s11, s9, %d" % (3 if ROT else 8)); z("s_sub_u32 s11, s10, s11"); z("s_and_b32 s11, s11, 31"); z("s_add_u32 s8, s8, s11")
        z("s_sub_u32 s11, s10, 128"); z("s_lshr_b32 s6, s11, 2"); z("s_mul_i32 s6, s6, 37"); z("s_and_b32 s11, s11, 3"); z("s_add_u32 s6, s6, s11"); z("s_add_u32 s6, s6, 32")
        z("s_cmp_ge_u32 s10, 128"); z("s_cselect_b32 s8, s6, s8")
        z("s_mul_i32 s6, s10, 74"); z("s_sub_u32 s6, s6, %d" % (74 * 144 - 36))
        z("s_cmp_ge_u32 s10, 144"); z("s_cselect_b32 s8, s6, s8")
        z("s_mul_i32 s9, s9, 148"); z("s_add_u32 s9, s9, s8")
        z("s_mul_i32 s9, s9, 9728"); z("s_add_u32 s9, s9, %d" % WS_WP)
        z("v_lshlrev_b32 v%d, 4, v%d" % (t0, t0)); z("v_add_u32 v%d, s9, v%d" % (dst, t0))
        y = Seq()
        y("buffer_store_dwordx4 %s, v%d, %s, 0 offen sc1" % (vr(d, 4), dst, sr(SRD_WS2, 4)))
        return z, y
    def j3(ps):
        z = Seq(); d = RW + 8 * ps; tg = "OPT" if ps == 2 else None
        t0, t1, t2, t3, dst = JT + 1, JT + 2, JT + 3, JT + 9, 124 + ps
        z("s_mul_i32 s8, s2, 9"); z("s_add_u32 s8, s8, %s" % ("s%d" % S_RG if ps < 2 else "8"))
        if ps == 1: z("s_add_u32 s8, s8, 4")
        z("s_lshr_b32 s9, s8, 2"); z("s_and_b32 s8, s8, 3"); z("s_lshl_b32 s8, s8, 3")
        z("v_lshrrev_b32 v%d, 3, v%d" % (t0, vLANE)); z("v_add_u32 v%d, s8, v%d" % (t0, t0))
        z("s_bfe_u32 s10, s9, 0x10001"); z("s_bfe_u32 s11, s9, 0x10003"); z("s_lshl_b32 s11, s11, 1"); z("s_or_b32 s10, s10, s11"); z("s_lshl_b32 s10, s10, 1")
        z("v_and_b32 v%d, 7, v%d" % (t1, vLANE)); z("v_xor_b32 v%d, s10, v%d" % (t2, t1))
        z("s_lshl_b32 s8, s9, 7"); z("s_add_u32 s8, s8, %d" % WS_WBF)
        z("v_mul_u32_u24 v%d, %d, v%d" % (dst, 576 * 128, t0)); z("v_lshl_add_u32 v%d, v%d, 4, v%d" % (dst, t2, dst)); z("v_add_u32 v%d, s8, v%d" % (dst, dst))
        z("s_mul_i32 s8, s9, 3456")
        z("v_mul_u32_u24 v%d, 36, v%d" % (t2, t0)); z("v_add_u32 v%d, s8, v%d" % (d + 5, t2))
        z("s_lshl_b32 s8, s9, 1"); z("v_mov_b32 v%d, s8" % (d + 6)); z("v_mov_b32 v%d, v%d" % (d + 7, t1))
        for k in range(4): z("v_mov_b32 v%d, 0" % (d + k))
        z("v_lshrrev_b32 v%d, 1, v%d" % (t0, t1)); z("v_and_b32 v%d, 1, v%d" % (t3, t1)); z("v_lshl_add_u32 v%d, v%d, 4, v%d" % (t2, t3, d + 5))
        z("v_mov_b32 v%d, 2304" % t3); z("v_cmp_eq_u32 vcc, 1, v%d" % t0); z("v_cndmask_b32 v%d, 0, v%d, vcc" % (t3, t3)); z("v_add_u32 v%d, v%d, v%d" % (t2, t2, t3))
        z("v_mov_b32 v%d, 1152" % t3); z("v_cmp_eq_u32 vcc, 2, v%d" % t0); z("v_cndmask_b32 v%d, 0, v%d, vcc" % (t3, t3)); z("v_add_u32 v%d, v%d, v%d" % (d + 4, t2, t3))
        ld = Seq()
        ld("v_cmp_eq_u32 vcc, 6, v%d" % (d + 7)); ld("v_cmp_gt_u32 s[8:9], 6, v%d" % (d + 7)); ld("s_mov_b64 exec, vcc")
        ld("buffer_load_ushort v%d, v%d, %s, 0 offen" % (d + 3, d + 6, sr(SRD_GATE, 4)), tag=tg)
        for k in range(3): ld("buffer_load_dword v%d, v%d, %s, 0 offen offset:%d" % (d + k, d + 5, sr(SRD_WB, 4), 1152 * k + 32), tag=tg)
        ld("s_mov_b64 exec, s[8:9]")
        x = I("buffer_load_dwordx4 %s, v%d, %s, 0 offen" % (vr(d, 4), d + 4, sr(SRD_WB, 4)), tag=tg); x.nowaw = True
        ld.l.append(x)
        ld("s_mov_b64 exec, -1")
        y = Seq()
        y("buffer_store_dwordx4 %s, v%d, %s, 0 offen sc1" % (vr(d, 4), dst, sr(SRD_WS, 4)), tag=tg or "J13")
        return z, y, ld
    def touch(n, dst):
        g = Seq()
        g("s_lshr_b32 s8, s2, 3"); g("s_lshl_b32 s8, s8, 2"); g("s_add_u32 s8, s8, s%d" % S_RG)
        g("s_lshr_b32 s10, s8, 3"); g("s_add_u32 s10, s10, 4"); g("s_lshl_b32 s10, s10, 18")
        g("s_bfe_u32 s11, s8, 0x20001"); g("s_lshl_b32 s11, s11, %d" % (8 if HMAP else 11)); g("s_add_u32 s10, s10, s11")
        g("s_and_b32 s11, s2, 7"); g("s_lshl_b32 s11, s11, %d" % (10 if HMAP else 8)); g("s_add_u32 s10, s10, s11")
        g("s_bitcmp1_b32 s8, 0"); g("s_cselect_b32 s12, s%d, s%d" % (P_UV, P_UK)); g("s_cselect_b32 s13, s%d, s%d" % (P_UV + 1, P_UK + 1)); g("s_mov_b32 s14, s%d" % (SRD_W + 2))
        g("v_lshrrev_b32 v24, 1, v%d" % vLANE); g("v_lshlrev_b32 v24, 13, v24"); g("v_and_b32 v25, 1, v%d" % vLANE); g("v_lshl_add_u32 v24, v25, 7, v24")
        g("s_cmp_ge_u32 s8, 96"); g("s_cbranch_scc1 F_NTW")
        g("buffer_load_dword v%d, v24, s[12:15], s10 offen" % dst, tag="OPT")
        g.label("F_NTW")
        return g.l
    def touch_wq(n, dst):
        g = Seq()
        g("s_lshr_b32 s8, s2, 3"); g("s_lshl_b32 s8, s8, 2"); g("s_add_u32 s8, s8, s%d" % S_RG); g("s_add_u32 s8, s8, %d" % (128 * n)); g("s_lshl_b32 s8, s8, 15")
        g("v_and_b32 v24, 1, v%d" % vLANE); g("v_lshlrev_b32 v24, 7, v24"); g("v_lshrrev_b32 v25, 4, v%d" % vLANE); g("v_lshl_add_u32 v24, v25, 13, v24")
        g("v_bfe_u32 v25, v%d, 2, 2" % vLANE); g("v_lshl_add_u32 v24, v25, %d, v24" % (8 if HMAP else 11)); g("s_and_b32 s11, s2, 7"); g("s_lshl_b32 s11, s11, %d" % (10 if HMAP else 8)); g("v_add_u32 v24, s11, v24")
        g("buffer_load_dword v%d, v24, %s, s8 offen" % (dst, sr(SRD_WQ, 4)))
        return g.l

    q("s_cmp_ge_u32 s%d, 4" % S_W); q("s_cbranch_scc1 F_B")
    pre, st0 = resolve_waits(q.l)
    outl = list(pre); cold = []
    WQS = [4, 5, 7, 1, 2, 3, 4, 5, 7]
    WBS = [6 * SLOT, 6 * SLOT + 8192, 0, 8192, 8 * SLOT, 8 * SLOT + 8192, 6 * SLOT, 6 * SLOT + 8192, 9 * SLOT + 8192]
    global W32
    for role in range(2):
        RN = "AB"[role]
        W32 = bool(role == 1 and B32)
        r = Seq()
        if role == 1: r.label("F_B")
        if GP & (1 << role): r("s_setprio 1")
        def dma_wq(i):
            g = []
            for e in range(2):
                z = Seq()
                if e == 0: z("s_add_u32 m0, s%d, %d" % (S_MW, WQS[i] * SLOT))
                z("s_mov_b32 s%d, %d" % (S_TMP, (i * 64 + role * 32) * 8192 + e * (4 * 8192 - 1024)))
                z("buffer_load_dwordx4 v%d, %s, s%d offen offset:%d lds" % (vWo, sr(SRD_WQ, 4), S_TMP, e * 1024), tag="W%d" % i)
                g.append(z.l)
            return g
        def dma_wb(i):
            z = Seq()
            z("s_add_u32 m0, s%d, %d" % (S_MB, WBS[i])); z("s_add_u32 s%d, s%d, %d" % (S_TMP, S_WBG, i * 8192))
            z("buffer_load_dwordx4 v%d, %s, s%d offen sc1 lds" % (vL16, sr(SRD_WS, 4), S_TMP), tag="W%d" % i)
            return [z.l]
        def ld_x(ks):
            g = []
            for rr in range(2):
                z = Seq()
                z("s_add_u32 s%d, s%d, %d" % (S_TMP, S_XB, (rr * 18 + ks) * 1024))
                z("buffer_load_dwordx4 %s, v%d, %s, s%d offen sc1" % (vr(XRS[ks % NXR] + 4 * rr, 4), vL16, sr(SRD_WS, 4), S_TMP))
                g.append(z.l)
            return g
        NM = 512
        extra = {f: [] for f in range(NM)}
        streams = []
        def spread(lst, a, per=int(os.environ.get("PER", 1))):
            streams.append([y_ for x_ in lst for y_ in (x_ if isinstance(x_, list) else [x_])])
            for k, ins in enumerate(lst): extra[a + k // per].extend(ins if isinstance(ins, list) else [ins])
            return a + (len(lst) + per - 1) // per
        def rd_w(i, cb):
            w = WF + 4 * ((8 * i + cb) % NWF); off = (i % 4) * 16384
            return Seq()("ds_read_b64_tr_b16 %s, v%d offset:%d" % (vr(w, 2), vWR + cb, off))("ds_read_b64_tr_b16 %s, v%d offset:%d" % (vr(w + 2, 2), vWR + cb, off + 1024)).l
        def rd_a(i, rbk):
            sl = (i >> 1) % 3
            base = vAR + (i & 1) + (2 if sl == 2 else 0); off = (32768 if sl == 1 else 0) + rbk * 2048
            return Seq()("ds_read_b128 %s, v%d offset:%d" % (vr(AF + 16 * (i & 1) + 4 * rbk, 4), base, off)).l
        B1, B2 = int(os.environ.get('B1', 8)), 10
        def arrive(name, fill, ta=30, tb=31):
            z = Seq(); z("v_mov_b32 v%d, s%d" % (ta, S_HUGE)); fill(z, ta, tb); z("v_mov_b32 v%d, 1" % tb)
            z("buffer_atomic_add v%d, v%d, %s, 0 offen" % (tb, ta, sr(SRD_DBG, 4)), tag="OPT")
            return w7_block(name, z).l
        def fill1(z, ta, tb):
            z("s_and_b32 s11, s2, 7"); z("s_lshl_b32 s11, s11, 2"); z("s_add_u32 s11, s11, 224"); z("v_mov_b32 v%d, s11" % tb)
            z("v_cmp_eq_u32 vcc, 0, v%d" % vLANE); z("v_cndmask_b32 v%d, v%d, v%d, vcc" % (ta, ta, tb))
        def fill2(z, ta, tb):
            z("s_and_b32 s11, s2, 7"); z("s_lshl_b32 s11, s11, 2"); z("s_add_u32 s11, s11, 192"); z("v_mov_b32 v%d, s11" % tb)
            z("v_cmp_eq_u32 vcc, 0, v%d" % vLANE); z("v_cndmask_b32 v%d, v%d, v%d, vcc" % (ta, ta, tb))
        def publish1(i):
            z = Seq(); tags = ["U%d" % i] + (["A%d" % (i >> 1)] if i % 2 == 0 else [])
            if i == B1: tags += ["J13"]
            z.waitv(*tags)
            if i == 14 and role == 1:
                y_ = Seq(); y_("s_waitcnt vmcnt(4)", tag="OPT"); poll_check(y_, "P1", 26, 25, 24, SRD_DBG, "0"); z.ext(w7_block("F_P1C", y_))
            z("s_barrier")
            if i % 2 == 0: ST(z, 1 + i // 2)
            return z.l
        DW = 4
        for i in range(16):
            for cb in range(8):
                n = 8 * i + cb - DW
                if n >= 0:
                    if cb == 0: extra[4 * n].extend(publish1(i))
                    t_ = rd_w(i, cb); extra[4 * n].insert(len(extra[4 * n]) if cb == 0 else 0, t_[0]); extra[4 * n + 1].insert(0, t_[1])
            if i > 0:
                for rbk in range(4): extra[32 * (i - 1) + 18 + 4 * rbk].insert(0, rd_a(i, rbk)[0])
                g = []
                if i == 12 and role == 1:
                    z = Seq()
                    z("v_lshrrev_b32 v24, 2, v%d" % vL16); z("v_and_b32 v25, 7, v%d" % vLANE); z("v_cmp_eq_u32 vcc, 0, v25"); z("v_cndmask_b32 v25, 0, 32, vcc")
                    poll_issue(z, 26, 24, SRD_DBG, "0", tag="OPT")
                    g.append(w7_block("F_P1I", z).l)
                if role == 0:
                    if i + 2 < 16 and i >= 2: g += dma_w(i + 2) + dma_w(i + 2, 1)
                    if i % 2 == 1 and i >= 3 and (i >> 1) + 2 < 8: g += dma_a((i >> 1) + 2) + dma_a((i >> 1) + 2, 1)
                if i == 13: g += dma_wq(0) + dma_wq(1)
                if i == 14: g += dma_wb(0) + dma_wb(1)
                if i == 15: g += dma_wq(2) + dma_wq(3) + dma_wb(2) + dma_wb(3)
                if role == 1 and i == B1: g.append(w7_block("F_AR1", arrive_byte(1, 30)).l)
                for k, l in enumerate(g): extra[32 * (i - 1) + 17 + (2 if len(g) < 8 else 1) * k].extend(l)
        if role == 0: mk_srd(r, SRD_X, P_UV, 512 * 8192)
        else:
            J = [j1(k) for k in range(3)] + [j3(k) for k in range(3)]
            if TOUCH > 1: extra[T0P].extend(touch(0, 27))
            w4 = lambda nm, k: Seq()("s_cmp_lg_u32 s%d, 4" % S_W)("s_cbranch_scc1 %s" % nm).l + cp(J[2][k]) + cp(J[5][k]) + Seq().label(nm).l
            lds_ = [w4("F_Z4", 2)] + [cp(J[k][2]) for k in (0, 1, 3, 4)]
            if JMODE == 0:
                p = 2
                for x_ in J: p = spread(cp(x_[0]), p, 2)
                p = max(p, LMIN)
                for l in lds_: extra[p].extend(l); p += LSTEP
            else:
                for x_ in J: r.ext(cp(x_[0]))
                for l in lds_: r.ext(l)
                p = 0
            p += GAP
            for l in [cp(J[4][1]), w4("F_Y4", 1)] + [cp(J[k][1]) for k in (0, 1, 3)]: extra[p].extend(l); p += YSTEP
            assert p < 32 * (B1 - 1) + 8, p
            p = max(p, QP)
            if TOUCH: extra[p + 8].extend(touch_wq(0, 29)); extra[p + 16].extend(Seq()("s_cmp_ge_u32 s2, 32")("s_cbranch_scc1 F_TQ").l + [I(x.text, tag="OPT") for x in touch_wq(1, 19)] + Seq().label("F_TQ").l)
        for ks in range(5):
            for k, l in enumerate(ld_x(ks)): extra[32 * 13 + 24 + 4 * ks + 2 * k].extend(l)
        r.ext(publish1(0))
        for rbk in range(4): r.ext(rd_a(0, rbk))
        for cb in range(DW): r.ext(rd_w(0, cb))
        for f in range(NM):
            i, cb, rbk = f >> 5, (f >> 2) & 7, f & 3
            acc = vr(ACC + 4 * (4 * cb + rbk), 4); w = vr(WF + 4 * ((8 * i + cb) % NWF), 4); a = vr(AF + 16 * (i & 1) + 4 * rbk, 4)
            ops = (w, a) if role == 0 else (a, w)
            r("%s %s, %s, %s, %s" % (MF, acc, ops[0], ops[1], "0" if i == 0 else acc))
            r.ext(extra[f])
        ST(r, 9)
        NF = 216
        extra = {f: [] for f in range(2 * NF)}
        FO = [(n // 12, n % 12) for n in range(192)] + [(k, p) for k in (16, 17) for p in range(8, 12)] + [(k, p) for k in (16, 17) for p in range(8)]
        def rd_q(n):
            ks, ph = FO[n]; s1 = ks & 1; w = FR + 4 * (n % 8)
            if ph < 8:
                return Seq()("ds_read_b64_tr_b16 %s, v%d offset:%d" % (vr(w, 2), vWR + ph, s1 * 8192))("ds_read_b64_tr_b16 %s, v%d offset:%d" % (vr(w + 2, 2), vWR + ph, s1 * 8192 + 1024)).l
            return Seq()("ds_read_b64_tr_b16 %s, v%d offset:%d" % (vr(w, 2), vBB[ph - 8], s1 * 4096))("ds_read_b64_tr_b16 %s, v%d offset:%d" % (vr(w + 2, 2), vBB[ph - 8], s1 * 4096 + 512)).l
        BKV = 5
        def publish(i):
            z = Seq()
            d = ((WQS[i] - WQS[i - 1]) * SLOT if i else WQS[0] * SLOT - WB - role * 8192) & 0xffffffff
            for cb in range(8):
                if "r" not in XQ or i == 0: z("v_add_u32 v%d, 0x%x, v%d" % (vWR + cb, d, vWR + cb))
            if i and "r" in XQ: pass
            elif i:
                for b in vBB: z("v_add_u32 v%d, 0x%x, v%d" % (b, (WBS[i] - WBS[i - 1]) & 0xffffffff, b))
            else:
                z("v_lshrrev_b32 v13, 4, v%d" % vLANE); z("v_bfe_u32 v14, v%d, 2, 2" % vLANE); z("v_lshl_add_u32 v15, v13, 3, v14"); z("v_lshlrev_b32 v15, 7, v15")
                z("v_lshrrev_b32 v14, 1, v14"); z("v_and_b32 v13, 1, v13"); z("v_lshl_add_u32 v14, v13, 1, v14"); z("v_lshl_add_u32 v15, v14, 5, v15")
                z("v_and_b32 v14, 3, v%d" % vLANE); z("v_lshl_add_u32 v15, v14, 3, v15"); z("v_add_u32 v%d, %d, v15" % (vBB[0], WBS[0]))
                for b in range(1, 4): z("v_xor_b32 v%d, %d, v%d" % (vBB[b], 32 * b, vBB[0]))
            z.waitv(*(["W%d" % i] + (["KVS"] if i == BKV else [])))
            z("s_barrier")
            ST(z, 10 + i)
            return z.l
        def kv_obj(kind, t, slot):
            z = Seq()
            z("s_add_u32 m0, s%d, %d" % (S_W4K, slot * SLOT)); z("s_add_u32 s%d, s%d, %d" % (S_TMP, S_KG if kind == "K" else S_VG, t * SLOT))
            for e in range(4): z("buffer_load_dwordx4 v%d, %s, s%d offen offset:%d sc1 lds" % (vL16, sr(SRD_WS, 4), S_TMP, 1024 * e), tag="%s%d" % (kind, t))
            return [z.l]
        phl = Seq()
        phl("s_mul_i32 s6, s%d, 648" % S_H); mk_srd(phl, SRD_PHI, P_PHI, 648, add="s6")
        phl("s_lshl_b32 s6, s%d, 8" % S_W); phl("s_add_u32 m0, s6, %d" % PHL); phl("v_lshrrev_b32 v13, 2, v%d" % vL16)
        phl("buffer_load_dword v13, %s, s6 offen lds" % sr(SRD_PHI, 4), tag="W5")
        DWQ = 5
        after = {0: dma_wq(4) + dma_wb(4) + dma_wq(5) + dma_wb(5) + [phl.l], 2: dma_wq(6) + dma_wb(8), 3: dma_wq(7) + dma_wb(6) + dma_wb(7), 4: dma_wq(8)}
        if role == 1:
            fb = Seq(); fb("s_lshl_b32 s6, s%d, 7" % S_H); fb("s_lshl_b32 s8, s%d, 2" % S_J); fb("s_add_u32 s6, s6, s8"); fb("s_add_u32 s6, s6, %d" % FL_KV)
            fbe = Seq().ext(cp(fb)); fbe("s_cmp_ge_u32 s%d, %d" % (S_J, FASTJ)); fbe("s_cselect_b32 s6, s6, s%d" % S_HUGE)
            after[BKV] = [w7_block("F_FKV", flag_store(fbe, 13, 14)).l]
            fkv_late = w7_block("F_FKV2", flag_store(fb, 8, 9))
        else:
            z = Seq()
            z("v_lshrrev_b32 v13, 2, v%d" % vL16); z("v_mov_b32 v15, s%d" % S_HUGE); z("v_xor_b32 v14, 7, v%d" % vLANE); z("v_cmp_gt_u32 vcc, %d, v14" % (8 - FASTJ))
            z("v_cndmask_b32 v13, v15, v13, vcc"); z("v_cndmask_b32 v15, 0, 1, vcc")
            z("s_lshl_b32 s9, s%d, 7" % S_H); z("s_add_u32 s9, s9, %d" % FL_KV)
            poll_issue(z, 14, 13, SRD_WS, "s9")
            after[6] = [z.l]
            z = Seq(); poll_check(z, "P2A", 14, 15, 13, SRD_WS, "s9")
            after[7] = [z.l] + kv_obj("K", 0, 0) + kv_obj("K", 1, 1)
            after[8] = kv_obj("V", 0, 4) + kv_obj("K", 2, 2)
        for n in range(DWQ, NF):
            pos = 2 * (n - DWQ)
            if n % 24 == 0:
                extra[pos].extend(publish(n // 24))
                for k, l in enumerate(after.get(n // 24, [])): extra[pos + 2 + k].extend(l)
            t_ = rd_q(n); extra[pos].insert(len(extra[pos]) if n % 24 == 0 else 0, t_[0]); extra[pos + 1].insert(0, t_[1])
        for k, l in enumerate(after[0]): extra[1 + k].extend(l)
        pk = Seq(); sts = []
        order = list(range(8, 16)) + list(range(8))
        free = []
        for n in order:
            if role == 0:
                j, rbk = n >> 2, n & 3
                b0, b1 = ACC + 4 * (8 * j + rbk), ACC + 4 * (8 * j + 4 + rbk); fi = 4 * rbk + j
            else:
                cb, u = n >> 1, n & 1
                b0, b1 = ACC + 4 * (4 * cb + 2 * u), ACC + 4 * (4 * cb + 2 * u + 1); fi = 8 * u + cb
            if n >= 8: t = b0; free.append(b1)
            else: t = free.pop(0)
            pk("v_cvt_pk_bf16_f32 v%d, v%d, v%d" % (t, b0, b0 + 1)); pk("v_cvt_pk_bf16_f32 v%d, v%d, v%d" % (t + 1, b0 + 2, b0 + 3))
            pk("v_cvt_pk_bf16_f32 v%d, v%d, v%d" % (t + 2, b1, b1 + 1)); pk("v_cvt_pk_bf16_f32 v%d, v%d, v%d" % (t + 3, b1 + 2, b1 + 3))
            sts.append((t, fi))
        sts.sort()
        mkst = lambda t, fi, base, tag: I("buffer_store_dwordx4 %s, v%d, %s, s%d offen offset:%d%s" % (vr(t, 4), vL16, sr(SRD_WS, 4), base + (fi >> 2), (fi & 3) * 1024, os.environ.get("KVF", " sc1")), tag=tag)
        for k, (t, fi) in enumerate(sts):
            for (pos, br, nm) in ((8 + FSP * k, "scc0", "E"), (13 + LSP * k, "scc1", "L")):
                z = Seq(); z("s_cmp_ge_u32 s%d, %d" % (S_J, FASTJ))
                if nm == "E" and os.environ.get("OOL"):
                    z("s_cbranch_scc1 KO%s%d" % (RN, k)); z.label("KS%sE%d" % (RN, k))
                    cold += Seq().label("KO%s%d" % (RN, k)).l + [mkst(t, fi, S_ST, "OPT")] + Seq()("s_branch KS%sE%d" % (RN, k)).l
                else:
                    z("s_cbranch_%s KS%s%s%d" % (br, RN, nm, k))
                    z.ext([mkst(t, fi, S_ST, "OPT")]); z.label("KS%s%s%d" % (RN, nm, k))
                if "s" not in XQ: extra[pos].extend(z.l)
        for ks in range(18 - NXR):
            for k, l in enumerate(ld_x(ks + NXR)):
                if ks == (8 + 15 * FSP) // 24: l[-1].tag = "KVS"
                if "x" not in XQ: extra[24 * ks + 24 + XS0 + XSP * k + XSB * role].extend(l)
        z = Seq()
        z("s_lshl_b32 s6, s%d, 19" % S_H); z("s_add_u32 s%d, s6, s%d" % (S_KG, S_W4K)); z("s_add_u32 s%d, s%d, %d" % (S_VG, S_KG, WS_VF))
        z("s_lshr_b32 s%d, s%d, 6" % (S_TL, S_ROW0))
        z("s_lshl_b32 s6, s%d, 1" % S_J); z("s_sub_u32 s%d, 31, s6" % S_TBM)
        c = f2u(LOG2E / (128 ** 0.5))
        z("s_mov_b32 s%d, 0x%x" % (S_C, c)); z("s_mov_b32 s%d, 0x%x" % (S_C + 1, c)); z("s_mov_b32 s%d, 0x%x" % (S_L2E, f2u(LOG2E)))
        z("s_mul_i32 s6, s%d, %d" % (S_TL, NSTEP * 4096)); z("s_lshr_b32 s8, s%d, 4" % S_ROW0); z("s_and_b32 s8, s8, 3"); z("s_lshl_b32 s8, s8, 10")
        z("s_add_u32 s6, s6, s8"); z("s_add_u32 s%d, s6, %d" % (S_AP, WS_AP))
        z("v_lshrrev_b32 v22, 4, v%d" % vLANE); z("v_cmp_gt_u32 vcc, 2, v22"); z("v_cndmask_b32 v%d, 0, 1.0, vcc" % vM5)
        z("v_mov_b32 v%d, 0xff800000" % vNINF)
        streams.append(z.l)
        for k, ins in enumerate(z.l): extra[200 + k].append(ins)
        RAW, PH = 192, 208
        z = Seq(); y = phi_gather(z, RAW, PH, RAW + 12, RAW + 13); streams.append(z.l)
        for k, ins in enumerate(z.l): extra[340 + k].append(ins)
        U, VM, PK, EE, T8, LK = 88, 112, 216, 160, 120, 192
        blk = lambda b, rho: DB + 4 * (2 * b + rho)
        t_ = Seq(); t_.ext(y)
        t_("v_and_b32 v%d, 15, v%d" % (T8, vLANE)); t_("v_lshlrev_b32 v%d, 2, v%d" % (T8, T8)); t_("v_add_u32 v%d, 64, v%d" % (T8, T8))
        for rho in range(2):
            t, u = TK + 4 * rho, U + 4 * rho
            for (d, b) in ((u, 2), (t + 2, 3)):
                t_("v_cvt_pk_bf16_f32 v%d, v%d, v%d" % (d, blk(b, rho), blk(b, rho) + 1)); t_("v_cvt_pk_bf16_f32 v%d, v%d, v%d" % (d + 1, blk(b, rho) + 2, blk(b, rho) + 3))
            t_("v_mov_b32 v%d, v%d" % (u + 2, t + 3)); t_("v_mov_b32 v%d, v%d" % (u + 3, t + 2))
        for rho in range(2): t_("ds_bpermute_b32 v%d, v%d, v%d" % (vG[rho], T8, blk(3, rho) + 2))
        for mu in range(2):
            for rho in range(2): t_("%s %s, %s, %s, 0" % (MF, vr(PK + 8 * mu + 4 * rho, 4), vr(PH + 4 * mu, 4), vr(U + 4 * rho, 4)))
        for rho in range(2):
            t = TK + 4 * rho
            for (d, b) in ((t, 0), (VM + 4 * rho, 1)):
                t_("v_cvt_pk_bf16_f32 v%d, v%d, v%d" % (d, blk(b, rho), blk(b, rho) + 1)); t_("v_cvt_pk_bf16_f32 v%d, v%d, v%d" % (d + 1, blk(b, rho) + 2, blk(b, rho) + 3))
            t_("v_mov_b32 v%d, v%d" % (VM + 4 * rho + 2, t + 2)); t_("v_mov_b32 v%d, 0x3f80" % (VM + 4 * rho + 3))
        for rho in range(2):
            g = vG[rho]
            t_("v_mul_f32 v%d, s%d, v%d" % (g, S_L2E, g)); t_("v_exp_f32 v%d, -v%d" % (g, g)); t_("v_add_f32 v%d, 1.0, v%d" % (g, g)); t_("v_rcp_f32 v%d, v%d" % (g, g))
        softmax5(t_, PK, EE, T8, LK)
        streams.append(t_.l)
        t0_ = 2 * 200 + 2; span = 2 * NF - t0_
        for k, ins in enumerate(t_.l): extra[t0_ + (k * span) // len(t_.l)].append(ins)
        r.ext(publish(0))
        for n in range(DWQ): r.ext(rd_q(n))
        r.ext(pk)
        for n in range(NF):
            ks, ph = FO[n]
            for rho in range(2):
                acc = vr(qacc(ph, rho) if ph < 8 else (DB + 4 * (2 * (ph - 8) + rho)), 4)
                r("%s %s, %s, %s, %s" % (MF, acc, vr(FR + 4 * (n % 8), 4), vr(XRS[ks % NXR] + 4 * rho, 4), "0" if ks == 0 else acc))
                xl = extra[2 * n + rho]
                if "d" in XQ and 48 <= 2 * n < 300: xl = [x_ for x_ in xl if x_.kind != "dma"]
                if "b" in XQ and 48 <= 2 * n < 300: xl = [x_ for x_ in xl if x_.kind != "barrier"]
                r.ext(xl)
        ST(r, 20)
        vF = 4
        FB0 = 6 * SLOT
        r("v_and_b32 v6, 15, v%d" % vLANE); r("v_lshrrev_b32 v7, 4, v%d" % vLANE)
        r("s_mul_i32 s6, s%d, 5376" % S_W); r("s_add_u32 s6, s6, %d" % FB0)
        r("v_mul_u32_u24 v8, 168, v6"); r("v_lshl_add_u32 v8, v7, 3, v8"); r("v_add_u32 v%d, s6, v8" % vF)
        if W32:
            r("v_lshlrev_b32 v9, 4, v6"); r("v_lshrrev_b32 v8, 1, v7"); r("v_lshl_add_u32 v9, v8, 8, v9"); r("v_and_b32 v8, 1, v7")
            r("v_lshl_add_u32 v%d, v8, 12, v9" % vKA); r("v_lshl_add_u32 v%d, v8, 10, v9" % (vLs + 1))
        else: r("v_mov_b32 v%d, v%d" % (vKA, vL16))
        if role == 0: r.waitv("K0")
        else: r("s_waitcnt vmcnt(0)")
        r("s_barrier")
        for rho in range(2):
            for b in range(3): r("ds_write_b64 v%d, %s offset:%d" % (vF, vr(LK + 8 * rho + 2 * b, 2), 2688 * rho + 32 * b), tag="FW")
            for b in range(2): r("ds_write_b64 v%d, %s offset:%d" % (vF, vr(VM + 4 * rho + 2 * b, 2), 2688 * rho + 96 + 32 * b), tag="FW")
        if role == 0: r.ext(flat(kv_obj("V", 1, 5)))
        else: r.ext(fkv_late)
        for n in range(8): r.ext([rd_frag("K", n, n)])
        for qb in range(2):
            for js in range(4):
                for hb in range(2):
                    a = qacc(2 * js + hb, qb)
                    r("v_pk_mul_f32 %s, %s, s[%d:%d]" % (vr(a, 2), vr(a, 2), S_C, S_C + 1)); r("v_pk_mul_f32 %s, %s, s[%d:%d]" % (vr(a + 2, 2), vr(a + 2, 2), S_C, S_C + 1))
                    d = Q + 16 * qb + 4 * js + 2 * hb
                    r("v_cvt_pk_bf16_f32 v%d, v%d, v%d" % (d, a, a + 1)); r("v_cvt_pk_bf16_f32 v%d, v%d, v%d" % (d + 1, a + 2, a + 3))
        if W32:
            for op in ("v_permlane16_swap_b32", "v_permlane32_swap_b32"):
                for i in range(16): r("%s v%d, v%d" % (op, Q + i, Q + 16 + i))
            r("v_and_b32 v8, 31, v%d" % vLANE); r("v_lshrrev_b32 v9, 5, v%d" % vLANE); r("v_lshlrev_b32 v9, 2, v9"); r("v_sub_u32 v8, v8, v9")
            r("v_add_u32 v%d, s%d, v8" % (vQ, S_ROW0)); r("v_mov_b32 v%d, 0" % vLs)
        else:
            r("v_lshlrev_b32 v8, 2, v7"); r("v_sub_u32 v8, v6, v8")
            r("v_add_u32 v%d, s%d, v8" % (vQ, S_ROW0)); r("v_add_u32 v%d, 16, v%d" % (vQ + 1, vQ))
            r("v_mov_b32 v%d, 0" % vLs); r("v_mov_b32 v%d, 0" % (vLs + 1))
        r("v_mov_b32 v%d, 0x44800000" % vTHR())
        r("s_mov_b32 s%d, 0xffff" % S_KR); r("v_mov_b32 v%d, 0x10000" % vC64); r("v_add_u32 v%d, 0x10000, v%d" % (vVA, vLs + 1 if W32 else vL16)); r("s_mov_b32 s%d, 0" % S_T)
        CA, CB, CD, ZR = 128, 160, 64, 68
        r("s_cmp_ge_u32 s%d, 3" % S_W); r("s_cselect_b32 s6, 1, 0"); r("s_mul_i32 s8, s6, 3"); r("s_sub_u32 s8, s%d, s8" % S_W)
        r("v_bfe_u32 v8, v%d, 2, 2" % vLANE); r("v_lshl_add_u32 v8, v7, 3, v8")
        r("v_and_b32 v9, 3, v%d" % vLANE); r("v_lshlrev_b32 v9, 3, v9")
        r("v_mul_u32_u24 v21, 168, v8"); r("v_add_u32 v21, v21, v9")
        r("s_lshl_b32 s9, s8, 5"); r("s_add_u32 s9, s9, %d" % FB0); r("v_add_u32 v4, s9, v21")
        r("s_lshl_b32 s9, s6, 5"); r("s_add_u32 s9, s9, %d" % (FB0 + 96)); r("v_add_u32 v6, s9, v21")
        for i in range(4): r("v_mov_b32 v%d, 0" % (ZR + i))
        ST(r, 21)
        r.waitv("FW")
        r("s_barrier")
        ST(r, 22)
        if role == 0:
            r("v_lshrrev_b32 v8, 2, v%d" % vL16); r("v_mov_b32 v7, s%d" % S_HUGE); r("v_cmp_gt_u32 vcc, 8, v%d" % vLANE)
            r("v_cndmask_b32 v8, v7, v8, vcc"); r("v_cmp_eq_u32 vcc, 6, v%d" % vLANE); r("v_cndmask_b32 v7, 0, 1, vcc")
            r("s_lshl_b32 s15, s%d, 7" % S_H); r("s_add_u32 s15, s15, %d" % FL_KV)
        for n in range(8, DRD): r.ext([rd_frag("K", n, n)])
        crd = []
        for ks in range(8):
            for (dst, a) in ((CA, 4), (CB, 6)):
                crd += Seq()("ds_read_b64_tr_b16 %s, v%d offset:%d" % (vr(dst + 4 * ks, 2), a, 5376 * ks))("ds_read_b64_tr_b16 %s, v%d offset:%d" % (vr(dst + 4 * ks + 2, 2), a, 5376 * ks + 4 * 168)).l
        slots = []
        for k in range(8): slots.append(mkslot(qk_mfmas(k, 0, k, lambda qb: "0")))
        for n in range(8):
            if n + DRD < 16: slots[n]["rd"].append(rd_frag("K", n + DRD, n + DRD))
            slots[n]["mid"].extend(crd[4 * n:4 * n + 2]); slots[n]["rd"].extend(crd[4 * n + 2:4 * n + 4])
        if W32: slots[7]["end"].append(I("s_nop 3"))
        r.ext(emit_slots(slots))
        for ks in range(8): r("%s %s, %s, %s, %s" % (MF, vr(CD, 4), vr(CA + 4 * ks, 4), vr(CB + 4 * ks, 4), "0" if ks == 0 else vr(CD, 4)))
        r("s_cmp_lg_u32 s%d, 0" % S_TL); r("s_cbranch_scc1 %s_NM" % RN)
        r("s_nop 4")
        r.ext(mask_ops(0, 0))
        r.label("%s_NM" % RN)
        G0 = row_max(r, 0, False)
        r("s_lshl_b32 s9, s%d, 3" % S_H); r("s_add_u32 s9, s9, s%d" % S_J); r("s_mul_i32 s9, s9, 6144"); r("s_add_u32 s9, s9, s%d" % S_MB); r("s_add_u32 s9, s9, %d" % WS_KVP)
        if role == 1: r("s_cmp_ge_u32 s%d, 6" % S_W); r("s_cselect_b32 s9, s%d, s9" % S_HUGE)
        zs = [I("%s %s, %s, %s, 0" % (MF, vr(O + 4 * i, 4), vr(ZR, 4), vr(ZR, 4))) for i in range(16)]
        z = Seq(); row_red(z, "v_max_f32")
        z("buffer_store_dwordx4 %s, v%d, %s, s9 offen sc1" % (vr(CD, 4), vL16, sr(SRD_WS, 4)))
        for (d, es, os_, ng, l_) in G0:
            for x_ in ng: z("v_sub_f32 v%d, 0, v%d" % (x_, d))
        for (d, es, os_, ng, l_) in G0:
            for e_ in es: z("v_sub_f32 v%d, v%d, v%d" % (sreg(0, e_), sreg(0, e_), d))
        r.ext(interleave([[x_] for x_ in zs], z.l))
        r("s_lshl_b32 s6, s%d, 6" % S_TL)
        r("v_subrev_u32 v%d, s6, v%d" % (vQ, vQ))
        if not W32: r("v_subrev_u32 v%d, s6, v%d" % (vQ + 1, vQ + 1))
        if role == 0 and FASTJ == 7: poll_issue(r, 9, 8, SRD_WS, "s15")
        slots = []
        for k in range(8): slots.append(mkslot(qk_mfmas(k, 1, 8 + k, NEGC)))
        place_sm(slots, 0, 8, 0, None, None, carry=False)
        r.ext(emit_slots(slots))
        r.waitv("K1", "V0")
        r("s_barrier")
        if role == 0:
            r("s_add_u32 s%d, s%d, %d" % (S_KL, S_W4K, 3 * SLOT)); r("s_add_u32 s%d, s%d, %d" % (S_VL, S_W4K, 6 * SLOT))
            r("s_add_u32 s%d, s%d, %d" % (S_KG, S_KG, 3 * SLOT)); r("s_add_u32 s%d, s%d, %d" % (S_VG, S_VG, 2 * SLOT))
            px_group(r, S_PXO, 8); r("s_lshl_b32 s%d, s%d, 2" % (S_PXO, S_PXO)); r("s_and_b32 s8, s2, 3"); r("s_add_u32 s%d, s%d, s8" % (S_PXO, S_PXO))
            r("s_mul_i32 s%d, s%d, 40960" % (S_PXO, S_PXO)); r("s_mul_i32 s8, s%d, 5120" % S_W); r("s_add_u32 s%d, s%d, s8" % (S_PXO, S_PXO)); r("s_add_u32 s%d, s%d, %d" % (S_PXO, S_PXO, WS_PX))
            r("s_mov_b32 m0, s%d" % S_KL)
            for e in range(4): r("buffer_load_dwordx4 v%d, %s, s%d offen offset:%d sc1 lds" % (vL16, sr(SRD_WS, 4), S_KG, 1024 * e))
            r("s_add_u32 s%d, s%d, %d" % (S_KG, S_KG, SLOT)); r("s_mov_b32 s%d, s%d" % (S_KL, S_W4K))
            if FASTJ == 7: poll_check(r, "P2B", 9, 7, 8, SRD_WS, "s15")
            r.ext(pkg())
        if GP & 3: r("s_setprio 0")
        if (role == 1 and PRIO) or PRIO == 2: r("s_setprio 1")
        if stamp: r.ext(STAMP(23)); r.ext(RSTAMP(62))
        if DIAG: r("s_mov_b32 s96, 600"); r("s_mov_b32 s98, 600")
        main, st1 = resolve_waits(r.l, st0)
        verify_streams(main, streams, "f")
        st1.vm = []
        rares = []
        z = Seq()
        z("s_cmp_eq_u32 s%d, 0" % S_TL); z("s_cbranch_scc1 %s_PV" % RN)
        z.ext(adv(vKA))
        for n in range(DRD): z.ext([rd_frag("K", n, n) if n < 8 else rd_frag("V", n - 8, n)])
        z("s_cmp_le_u32 s%d, 1" % S_TL); z("s_cbranch_scc1 %s_S1" % RN)
        lz, stl = resolve_waits(z.l, st1)
        main += lz
        tmp = []
        b1, s1 = resolve_waits(iteration(role, "S", tmp), stl); s1.vm = []
        b2, s2 = resolve_waits(iteration(role, "S", rares), s1); s2.vm = []
        assert [x.text for x in b1] == [x.text for x in b2] and s1.sig() == s2.sig(), "loop not steady"
        if ALN >= 0: main += Seq()(".p2align 6").l + [I("s_nop 0") for _ in range(ALN)]
        if AL8: b2 = align8(fix_hazards(b2))
        main += Seq().label("%s_LOOP" % RN).l + b2 + Seq()("s_cmp_lt_u32 s6, s%d" % S_TL)("s_cbranch_scc1 %s_LOOP" % RN)("s_branch %s_S1" % RN).l
        z = Seq(); z.label("%s_PV" % RN)
        if SKIP: z("s_bitcmp0_b32 s%d, 5" % S_ROW0); z("s_cbranch_scc1 %s_PE" % RN)
        for n in range(DRD): z.ext([rd_frag("V", n, n)])
        z("s_branch %s_S2" % RN)
        lz, _ = resolve_waits(z.l, st1)
        main += lz
        if SKIP:
            z = Seq(); z.label("%s_PE" % RN)
            for n in range(8): z.ext([rd_frag("V", n, 24 + n)])
            z("s_branch %s_E2" % RN)
            lz, _ = resolve_waits(z.l, st1)
            main += lz
            b, s3 = resolve_waits(iteration(role, "E1", rares), s1); s3.vm = []
            main += Seq().label("%s_E1" % RN).l + b + Seq()("s_add_u32 s%d, s%d, 1" % (S_T, S_T)).l
            z = Seq()
            s3.lg = [entry(rd_frag("V", n, 24 + n)) for n in range(8)]
            b, s4 = resolve_waits(iteration(role, "E2", rares), s3)
            main += Seq().label("%s_E2" % RN).l + b + Seq()("s_branch %s_EP" % RN).l
        b, s3 = resolve_waits(iteration(role, "S1", rares), s1); s3.vm = []
        main += Seq().label("%s_S1" % RN).l
        if SKIP: main += Seq()("s_bitcmp0_b32 s%d, 5" % S_ROW0)("s_cbranch_scc1 %s_E1" % RN).l
        main += b + Seq()("s_add_u32 s%d, s%d, 1" % (S_T, S_T)).l
        b, s4 = resolve_waits(iteration(role, "S2", rares), s3); s4.vm = []
        main += Seq().label("%s_S2" % RN).l + b + Seq().label("%s_EP" % RN)("s_nop 7").l
        e = Seq()
        if stamp: e.ext(STAMP(24)); e.ext(RSTAMP(63))
        vFL, vFO, vFN = 4, 5, 6
        if role == 0:
            e("s_setprio 0")
            e("v_lshrrev_b32 v%d, 2, v%d" % (vFO, vL16)); e("v_mov_b32 v%d, s%d" % (vFN, S_HUGE)); e("v_cmp_gt_u32 vcc, 8, v%d" % vLANE)
            e("v_cndmask_b32 v%d, v%d, v%d, vcc" % (vFO, vFN, vFO)); e("v_cndmask_b32 v%d, 0, 1, vcc" % vFN)
            e("s_lshl_b32 s14, s%d, 7" % S_H); e("s_add_u32 s14, s14, %d" % FL_KP)
            poll_issue(e, vFL, vFO, SRD_WS, "s14")
        if W32:
            red1(e, vLs, "v_add_f32", 4)
            e("v_rcp_f32 v%d, v%d" % (vLs, vLs)); e("v_and_b32 v4, 16, v%d" % vLANE); e("v_cmp_ne_u32 vcc, 0, v4")
            e("v_cndmask_b32 v4, v%d, v%d, vcc" % (vG[0], vG[1])); e("v_mul_f32 v4, v4, v%d" % vLs); e("v_mov_b32 v5, v4")
            e("s_lshl_b32 s6, s%d, 14" % S_H); e("s_add_u32 s6, s6, s%d" % S_AP)
            for js in range(4):
                for t_ in range(2):
                    t = FR + 4 * ((2 * js + t_) % 8)
                    for hb in range(2):
                        a = O + 16 * js + 4 * (t_ + 2 * hb)
                        e("v_pk_mul_f32 %s, %s, v[4:5]" % (vr(a, 2), vr(a, 2))); e("v_pk_mul_f32 %s, %s, v[4:5]" % (vr(a + 2, 2), vr(a + 2, 2)))
                        e("v_cvt_pk_bf16_f32 v%d, v%d, v%d" % (t + 2 * hb, a, a + 1)); e("v_cvt_pk_bf16_f32 v%d, v%d, v%d" % (t + 2 * hb + 1, a + 2, a + 3))
                    e("buffer_store_dwordx4 %s, v%d, %s, s6 offen offset:%d sc1" % (vr(t, 4), vLs + 1, sr(SRD_WS, 4), 512 * t_))
                if js < 3: e("s_add_u32 s6, s6, 4096")
        else:
            red2(e, vLs, vLs + 1, "v_add_f32", E_)
            for qb in range(2):
                e("v_rcp_f32 v%d, v%d" % (vLs + qb, vLs + qb)); e("v_mul_f32 v%d, v%d, v%d" % (E_ + 2 * qb, vLs + qb, vG[qb])); e("v_mov_b32 v%d, v%d" % (E_ + 2 * qb + 1, E_ + 2 * qb))
            e("s_lshl_b32 s6, s%d, 14" % S_H); e("s_add_u32 s6, s6, s%d" % S_AP)
            for js in range(4):
                for qb in range(2):
                    t = FR + 4 * ((2 * js + qb) % 8)
                    for hb in range(2):
                        a = O + 8 * (2 * js + hb) + 4 * qb
                        e("v_pk_mul_f32 %s, %s, %s" % (vr(a, 2), vr(a, 2), vr(E_ + 2 * qb, 2))); e("v_pk_mul_f32 %s, %s, %s" % (vr(a + 2, 2), vr(a + 2, 2), vr(E_ + 2 * qb, 2)))
                        e("v_cvt_pk_bf16_f32 v%d, v%d, v%d" % (t + 2 * hb, a, a + 1)); e("v_cvt_pk_bf16_f32 v%d, v%d, v%d" % (t + 2 * hb + 1, a + 2, a + 3))
                    e("buffer_store_dwordx4 %s, v%d, %s, s6 offen offset:%d sc1" % (vr(t, 4), vL16, sr(SRD_WS, 4), 1024 * qb))
                if js < 3: e("s_add_u32 s6, s6, 4096")
        ST(e, 25)
        if role == 0:
            e("s_sub_u32 s6, s%d, %d" % (S_J, JLO)); e("s_cmp_ge_u32 s6, %d" % JN); e("s_cbranch_scc1 A_LD")
            e("s_mul_i32 s8, s%d, %d" % (S_H, JN)); e("s_add_u32 s6, s6, s8"); e("s_lshl_b32 s6, s6, 2"); e("s_add_u32 s6, s6, s%d" % S_W); e("s_mul_i32 s%d, s6, %d" % (S_JU, sum(JG)))
            e("s_mov_b32 s%d, %d" % (S_WOSZ, 4096 * 1152)); e("s_mov_b32 s%d, 0x00020000" % (SRD_J + 3))
            mk_srd(e, SRD_WS2, P_WS, WS_WP + 16 * 37 * 9728)
            e("s_cmp_ge_u32 s%d, 2" % S_W); e("s_cbranch_scc1 A_J0")
            e("s_add_u32 s%d, s%d, 1" % (S_T, S_T)); e.ext(sync_block(0, "JP"))
            e.label("A_J0")
            assert sum(JG) * JN * 128 >= 5256 and sum(JG) * JN * 128 <= 6144
            jb = [j2(i, 56 + 4 * (i % 10), 96, 100 + (i % 10)) for i in range(sum(JG))]
            grp = [range(sum(JG[:k]), sum(JG[:k + 1])) for k in range(len(JG))]
            G_ = len(JG); nops = [(JG[k] if k < G_ else 0) + (JG[k - 1] if 1 <= k <= G_ else 0) for k in range(G_ + 3)]
            assert 2 * (JLO + JN - 1) + 2 + G_ + 2 < 31 - 2 * (JLO + JN - 1) - 3
            for st_ in range(G_ + 3):
                e("s_add_u32 s%d, s%d, 1" % (S_T, S_T))
                x_ = (nops[st_ - 1] if st_ >= 1 else 0) + (nops[st_ - 2] if st_ >= 2 else 0)
                e.ext(sync_block(0, "J%d" % st_, xtra=x_, strict=8 if st_ == G_ + 2 else None, always=True, prev=nops[st_ - 1] if st_ else 0))
                if 1 <= st_ <= G_:
                    e("s_waitcnt vmcnt(8)")
                    for i in grp[st_ - 1]: e.ext(jb[i][1])
                if st_ < G_:
                    for i in grp[st_]: e.ext(jb[i][0])
            z = arrive_byte(7, 24)
            e("s_cmp_lg_u32 s%d, 0" % S_W); e("s_cbranch_scc1 A_LD"); e.ext(z)
            e.label("A_LD")
            e("s_add_u32 s%d, s%d, 1" % (S_T, S_T)); e("s_cmp_ge_u32 s%d, s%d" % (S_T, S_TBM)); e("s_cbranch_scc1 A_FIN")
            e.ext(sync_block(0, "LD"))
            e("s_cmp_ge_u32 s%d, 2" % S_W); e("s_cbranch_scc1 A_LD")
            e("s_cmp_eq_u32 s%d, 3" % S_R); e("s_cbranch_scc0 A_N3")
            e("s_waitcnt vmcnt(0)")
            poll_issue(e, vFL, vFO, SRD_WS, "s14")
            e("s_branch A_LD")
            e.label("A_N3")
            e("s_cmp_eq_u32 s%d, 2" % S_R); e("s_cbranch_scc0 A_LD")
            e("s_waitcnt vmcnt(0)")
            poll_check(e, "P3A", vFL, vFN, vFO, SRD_WS, "s14")
            KR_ = 56
            e("s_mul_i32 s6, s%d, 49152" % S_H); e("s_mul_i32 s8, s%d, 3072" % S_W); e("s_add_u32 s6, s6, s8"); e("s_add_u32 s6, s6, %d" % WS_KVP)
            for p in range(8):
                for mu in range(3): e("buffer_load_dwordx4 %s, v%d, %s, s6 offen offset:%d sc1" % (vr(KR_ + 12 * p + 4 * mu, 4), vL16, sr(SRD_WS, 4), 1024 * mu))
                if p < 7: e("s_add_u32 s6, s6, 6144")
            for p in range(1, 8):
                for i in range(12): e("v_add_f32 v%d, v%d, v%d" % (KR_ + i, KR_ + i, KR_ + 12 * p + i))
            for i in range(6): e("v_cvt_pk_bf16_f32 v%d, v%d, v%d" % (FR + i, KR_ + 2 * i, KR_ + 2 * i + 1))
            e("v_mov_b32 v%d, 0" % (FR + 6)); e("v_mov_b32 v%d, 0" % (FR + 7))
            e("s_lshl_b32 s6, s%d, 11" % S_W); e("s_add_u32 s6, s6, %d" % KVX); e("v_add_u32 v21, s6, v%d" % vL16)
            e("ds_write_b128 v21, %s" % vr(FR, 4)); e("ds_write_b128 v21, %s offset:1024" % vr(FR + 4, 4))
            e("s_waitcnt lgkmcnt(0)")
            e("s_branch A_LD")
            e.label("A_FIN"); e("s_waitcnt vmcnt(0)"); e("s_branch F_FIN")
        le, _ = resolve_waits(e.l, s4)
        outl += main + le
        for rb in rares: cold += rb.l
    W32 = False
    e = Seq(); e.label("F_FIN"); e("s_setprio 0")
    e("s_waitcnt lgkmcnt(0)")
    e("v_lshrrev_b32 v4, 2, v%d" % vL16); poll_issue(e, 5, 4, SRD_DBG, "0")
    RAW, PH, PK, EE, T8, LQ, KF_, ND = 56, 72, 80, 96, 116, 120, 136, 152
    y = phi_gather(e, RAW, PH, RAW + 12, RAW + 13)
    e("v_add_u32 v6, %d, v%d" % (KVX, vL16))
    for i in range(4): e("ds_read_b128 %s, v6 offset:%d" % (vr(KF_ + 4 * i, 4), 1024 * i))
    e.ext(y)
    for mu in range(2):
        for rho in range(2): e("%s %s, %s, %s, 0" % (MF, vr(PK + 8 * mu + 4 * rho, 4), vr(PH + 4 * mu, 4), vr(TK + 4 * rho, 4)))
    softmax5(e, PK, EE, T8, LQ)
    for rho in range(2): e("v_mov_b32 v%d, 0" % (LQ + 8 * rho + 6)); e("v_mov_b32 v%d, 0" % (LQ + 8 * rho + 7))
    for rho in range(2):
        for nu in range(2):
            d = vr(ND + 8 * rho + 4 * nu, 4)
            e("%s %s, %s, %s, 0" % (MF, d, vr(KF_ + 8 * nu, 4), vr(LQ + 8 * rho, 4)))
            e("%s %s, %s, %s, %s" % (MF, d, vr(KF_ + 8 * nu + 4, 4), vr(LQ + 8 * rho + 4, 4), d))
    e("s_lshr_b32 s6, s%d, 1" % S_H); e("s_add_u32 s6, s6, 128"); e("s_lshl_b32 s6, s6, 12"); e("s_add_u32 s6, s6, s%d" % S_AP)
    e("s_and_b32 s8, s%d, 1" % S_H); e("s_lshl_b32 s8, s8, 9"); e("s_add_u32 s6, s6, s8")
    e("s_lshr_b32 s8, s%d, 4" % S_H); e("s_add_u32 s8, s8, 144"); e("s_lshl_b32 s8, s8, 12"); e("s_add_u32 s8, s8, s%d" % S_AP)
    e("s_lshr_b32 s9, s%d, 2" % S_H); e("s_and_b32 s9, s9, 3"); e("s_lshl_b32 s9, s9, 8"); e("s_add_u32 s8, s8, s9")
    e("s_and_b32 s9, s%d, 3" % S_H); e("s_lshl_b32 s9, s9, 2"); e("s_add_u32 s8, s8, s9")
    e("v_and_b32 v6, 15, v%d" % vLANE); e("v_lshlrev_b32 v6, 4, v6"); e("v_lshrrev_b32 v7, 4, v%d" % vLANE)
    e("v_lshl_add_u32 v10, v7, 7, v6"); e("v_and_b32 v9, 1, v7")
    e("v_mov_b32 v8, s%d" % S_HUGE); e("v_cmp_ne_u32 vcc, 1, v7"); e("v_cndmask_b32 v6, v6, v8, vcc")
    e("v_cmp_ne_u32 vcc, 0, v9"); e("v_cndmask_b32 v10, v10, v8, vcc")
    e("s_mov_b32 s9, 0x%x" % f2u(1e-6))
    for rho in range(2):
        n = ND + 8 * rho
        e("v_add_f32 v8, s9, v%d" % (n + 6)); e("v_rcp_f32 v8, v8"); e("v_sub_f32 v9, 1.0, v%d" % vG[rho]); e("v_mul_f32 v8, v8, v9")
        for i in range(6): e("v_mul_f32 v%d, v%d, v8" % (n + i, n + i))
        for i in range(2): e("v_cvt_pk_bf16_f32 v%d, v%d, v%d" % (n + i, n + 2 * i, n + 2 * i + 1))
        e("v_cvt_pk_bf16_f32 v%d, v%d, v%d" % (n + 4, n + 4, n + 5))
        e("v_mov_b32 v%d, v%d" % (n + 2, n)); e("v_mov_b32 v%d, v%d" % (n + 3, n + 1))
        e("v_permlane16_swap_b32 v%d, v%d" % (n, n + 2)); e("v_permlane16_swap_b32 v%d, v%d" % (n + 1, n + 3))
        e("buffer_store_dwordx4 %s, v10, %s, s6 offen offset:%d sc1" % (vr(n, 4), sr(SRD_WS, 4), 1024 * rho), tag="APS")
        e("buffer_store_dword v%d, v6, %s, s8 offen offset:%d sc1" % (n + 4, sr(SRD_WS, 4), 1024 * rho), tag="APS")
    ST(e, 26)
    if DIAG: e("v_writelane_b32 v0, s96, 40"); e("v_writelane_b32 v0, s98, 41"); e("v_writelane_b32 v0, s98, 42")
    SRD_W3, SRD_OUT, S_KQ, S_A, S_WM, S_G, S_SO, S_R16 = 56, 60, 64, 65, 68, 69, 72, 76
    WR0 = 65536; NS = 37; IMG = 9728
    e("s_and_b32 s%d, s2, 3" % S_KQ)
    e("s_lshl_b32 s8, s%d, 1" % S_J); e("s_sub_u32 s9, 30, s8"); e("s_bitcmp1_b32 s2, 2"); e("s_cselect_b32 s10, s9, s8")
    e("s_lshr_b32 s6, s%d, 2" % S_W); e("s_add_u32 s6, s6, s10"); e("s_mul_i32 s6, s6, %d" % (NSTEP * 4096)); e("s_lshl_b32 s8, s%d, 10" % S_RG)
    e("s_add_u32 s6, s6, s8"); e("s_add_u32 s6, s6, %d" % WS_AP)
    e("s_lshl_b32 s8, s%d, 17" % S_KQ); e("s_add_u32 s%d, s6, s8" % S_A)
    e("s_lshl_b32 s8, s%d, 14" % S_KQ); e("s_add_u32 s%d, s6, s8" % (S_A + 1)); e("s_add_u32 s%d, s%d, %d" % (S_A + 1, S_A + 1, 128 * 4096))
    e("s_lshl_b32 s8, s%d, 11" % S_KQ); e("s_add_u32 s8, s6, s8"); e("s_add_u32 s8, s8, %d" % (144 * 4096))
    e("s_bitcmp1_b32 s%d, 0" % S_KQ); e("s_cselect_b32 s%d, s%d, s8" % (S_A + 2, S_HUGE))
    e("s_cselect_b32 s9, 36, 37"); e("s_cselect_b32 s11, 8, 16")
    e("s_lshr_b32 s6, s2, 6"); e("s_lshl_b32 s6, s6, 2"); e("s_add_u32 s6, s6, s%d" % S_KQ); e("s_mul_i32 s6, s6, %d" % (37 * IMG)); e("s_add_u32 s6, s6, %d" % WS_WP)
    mk_srd(e, SRD_W3, P_WS, 0, add="s6"); e("s_mul_i32 s%d, s9, %d" % (SRD_W3 + 2, IMG))
    mk_srd(e, SRD_OUT, P_OUT, 2048 * 1152)
    e("s_lshl_b32 s%d, s%d, 10" % (S_WM, S_RG))
    vH, vT, vA, vO, vO5 = 18, 12, 14, 10, 11
    e("v_add_u32 v%d, s%d, v%d" % (vH, S_MB, vL16)); e("v_add_u32 v%d, s%d, v%d" % (vH + 1, S_WM, vL16))
    e("v_bfe_u32 v10, v%d, 2, 2" % vLANE); e("v_lshl_add_u32 v10, v7, 3, v10"); e("v_mul_u32_u24 v10, 288, v10"); e("v_lshl_add_u32 v10, v7, 7, v10")
    e("v_and_b32 v11, 3, v%d" % vLANE); e("v_lshl_add_u32 v10, v11, 3, v10")
    e("s_lshr_b32 s6, s%d, 2" % S_W); e("s_mul_i32 s6, s6, 160"); e("s_add_u32 s6, s6, %d" % WR0)
    e("v_add_u32 v%d, s6, v10" % vT); e("v_add_u32 v%d, %d, v%d" % (vT + 1, 4 * IMG, vT))
    e("s_lshl_b32 s6, s%d, 11" % S_RG); e("v_add_u32 v%d, s6, v%d" % (vA, vL16))
    assert JN == 5
    e("v_and_b32 v9, 7, v%d" % vLANE); e("v_cmp_eq_u32 vcc, 0, v9"); e("v_mov_b32 v9, 0x142020"); e("v_cndmask_b32 v6, 0, v9, vcc")
    poll_check(e, "P4", 5, 6, 4, SRD_DBG, "0")
    e("s_lshl_b32 s6, s%d, 3" % S_KQ); e("v_subrev_u32 v9, s6, v%d" % vLANE); e("v_cmp_gt_u32 vcc, s11, v9")
    e("v_mov_b32 v6, s%d" % S_HUGE); e("v_cndmask_b32 v4, v6, v4, vcc"); e("v_cndmask_b32 v6, 0, 1, vcc")
    e("s_lshl_b32 s11, s%d, 7" % S_J); e("s_add_u32 s11, s11, %d" % FL_AP)
    AG, WG, AC = 24, 40, 80
    S_ROT = 88
    for t in range(4):
        e("s_lshr_b32 s6, s2, %d" % (6 if ROT else 10)); e("s_add_u32 s6, s6, %d" % t); e("s_and_b32 s6, s6, 3"); e("s_lshl_b32 s6, s6, 15"); e("s_add_u32 s%d, s%d, s6" % (S_ROT + t, S_A))
    def dmaw(qq, nw=8):
        z = Seq(); base = (nw * qq) % 76
        sm = S_MB if nw == 8 else S_WM
        z("s_add_u32 m0, s%d, %d" % (sm, WR0 + base * 1024))
        if base + nw - 1 >= 76:
            z("s_sub_u32 s9, m0, %d" % (76 * 1024)); z("s_cmp_ge_u32 m0, %d" % (WR0 + 76 * 1024)); z("s_cselect_b32 m0, s9, m0")
        z("s_mov_b32 s9, %d" % (nw * qq * 1024))
        z("buffer_load_dwordx4 v%d, %s, s9 offen sc1 lds" % (vH if nw == 8 else vH + 1, sr(SRD_W3, 4)), tag="P%d" % (nw * qq // 4))
        return z
    def dmaa(n):
        z = Seq()
        z("s_add_u32 m0, s%d, %d" % (S_MB, (n % 8) * 8192))
        if n < 36: z("s_add_u32 s8, s%d, %d" % ((S_ROT + (n >> 3), (n & 7) * 4096) if n < 32 else (S_A + 1, (n - 32) * 4096)))
        z("buffer_load_dwordx4 v%d, %s, s%d offen sc1 lds" % (vL16, sr(SRD_WS, 4), 8 if n < 36 else S_A + 2), tag="Q%d" % n)
        return z
    def rds(n, nf):
        sl = n % 8; hi = sl >> 2; out = []
        for rho in range(2): out.append(Seq()("ds_read_b128 %s, v%d offset:%d" % (vr(AG + 8 * (n % 2) + 4 * rho, 4), vA, sl * 8192 + 1024 * rho)).l)
        for fi in range(nf):
            out.append(Seq()("\n".join("ds_read_b64_tr_b16 %s, v%d offset:%d" % (vr(WG + 20 * (n % 2) + 4 * fi + 2 * hh, 2), vT + hi, (sl & 3) * IMG + 32 * fi + 1152 * hh) for hh in range(2))).l)
        return out
    e.waitv("APS")
    e("s_barrier")
    fb = Seq(); fb("s_lshl_b32 s6, s%d, 7" % S_J); fb("s_lshl_b32 s8, s%d, 2" % S_H); fb("s_add_u32 s6, s6, s8"); fb("s_add_u32 s6, s6, %d" % FL_AP)
    e.ext(w7_block("F_FAP", flag_store(fb, 10, 11)))
    ST(e, 27)
    nq0 = 9; na0 = 8; NQ = 88
    for qq in range(nq0): e.ext(dmaw(qq))
    e("v_and_b32 v16, 15, v%d" % vLANE); e("s_lshl_b32 s6, s10, 6"); e("s_lshl_b32 s8, s%d, 5" % S_RG); e("s_add_u32 s6, s6, s8")
    e("v_add_u32 v16, s6, v16"); e("v_mul_u32_u24 v16, 1152, v16"); e("v_lshl_add_u32 v16, v7, 3, v16")
    e("s_lshr_b32 s6, s2, 6"); e("s_mul_i32 s6, s6, 288"); e("s_lshr_b32 s8, s%d, 2" % S_W); e("s_mul_i32 s8, s8, 160"); e("s_add_u32 s6, s6, s8")
    e("v_add_u32 v%d, s6, v16" % vO)
    e("s_mov_b32 s%d, %d" % (S_R16, 16 * 1152))
    px_group(e, S_G, 6)
    e("s_lshl_b32 s6, s%d, 5" % S_G); e("s_add_u32 s6, s6, s%d" % S_W); e("s_mul_i32 s6, s6, 5120"); e("s_add_u32 s10, s6, %d" % WS_PX)
    for t in range(4): e("s_add_u32 s%d, s10, %d" % (S_SO + t, t * 40960))
    z = Seq(); z("v_mov_b32 v5, 0")
    poll_check(z, "P5", 5, 6, 4, SRD_WS, "s11")
    e.ext(w7_block("F_P5", z, PW))
    e("s_barrier")
    ST(e, 28)
    for n in range(na0): e.ext(dmaa(n))
    def pub(m):
        z = Seq(); z.waitv(*(["P%d" % k for k in range(min(NQ - 1, (19 * m + 18) // 4) + 1)] + ["Q%d" % min(NS - 1, 2 * m + 1)]))
        if not K3L: z("s_waitcnt lgkmcnt(0)")
        z("s_barrier")
        return z.l
    e.ext(pub(0))
    e("s_cmp_ge_u32 s%d, 4" % S_W); e("s_cbranch_scc1 G_B")
    le, stp = resolve_waits(e.l, Pend(vm=[("vm_st", (), "APS")] * 8))
    tail = []
    for role in range(2):
        RN = "AB"[role]; nf = 5 - role; nb = 2 * nf; na = na0; nq = 2 * nq0
        e = Seq()
        if role: e.label("G_B")
        if GP & (4 << role): e("s_setprio 1")
        e.ext(flat(rds(0, nf)))
        later = []
        for n in range(NS):
            fill = {k: [] for k in range(nb)}
            for k, l in enumerate(later): fill[min(nb - 1, 2 + k)].append(l)
            later = []
            if n + 1 < NS:
                if n % 2 == 1:
                    m = (n + 1) // 2
                    if K3P: e.ext(pub(m))
                    else: fill[0].extend(pub(m))
                    k = nb - 3
                    while na < NS and na <= 2 * m + 7 - K3L: fill[k].extend(dmaa(na).l); na += 1; k = min(nb - 1, k + 1)
                    while nq < NQ and nq <= (19 * m + (62 if K3L else 72)) // 4:
                        if role: later.append(dmaw(nq, 4).l)
                        nq += 1
                rl = flat(rds(n + 1, nf)); per = [[] for _ in range(nb)]
                for k, x_ in enumerate(rl): per[k if k < nb else 2 * (k - nb) + 1].append(x_)
                order = {id(x_): k for k, x_ in enumerate(rl)}
                it = iter(rl); per = [[next(it) for _ in p_] for p_ in per]
                for k, l in enumerate(per): fill[k] = (fill[k] + l) if (k == 0 and n % 2 == 1) else (l + fill[k])
            fill = {k: [y_ for x_ in v_ for y_ in (x_ if isinstance(x_, list) else [x_])] for k, v_ in fill.items()}
            for fi in range(nf):
                for rho in range(2):
                    acc = vr(AC + 4 * (2 * fi + rho), 4)
                    e("%s %s, %s, %s, %s" % (MF, acc, vr(WG + 20 * (n % 2) + 4 * fi, 4), vr(AG + 8 * (n % 2) + 4 * rho, 4), "0" if n == 0 else acc))
                    e.ext(fill[2 * fi + rho])
            if n % 8 == 0 and n < 32: ST(e, 29 + n // 8)
        assert na == NS and nq == NQ, (na, nq)
        ST(e, 34)
        e("s_mul_i32 s6, s%d, 40960" % S_KQ); e("s_add_u32 s84, s6, s10"); e("s_add_u32 s85, s84, 4096")
        e("v_lshrrev_b32 v16, 1, v%d" % vL16)
        PKX = 120
        for b in range(nb):
            d = PKX + 4 * (b & 3) + 2 * (b >> 2) if b < 8 else PKX + 16 + 2 * (b - 8)
            e("v_cvt_pk_bf16_f32 v%d, v%d, v%d" % (d, AC + 4 * b, AC + 4 * b + 1)); e("v_cvt_pk_bf16_f32 v%d, v%d, v%d" % (d + 1, AC + 4 * b + 2, AC + 4 * b + 3))
        for o in range(4):
            e("s_cmp_eq_u32 s%d, %d" % (S_KQ, o)); e("s_cbranch_scc1 %s_XS%d" % (RN, o))
            e("buffer_store_dwordx4 %s, v%d, %s, s84 offen offset:%d sc1" % (vr(PKX + 4 * o, 4), vL16, sr(SRD_WS, 4), o * 1024), tag="OPT")
            if nb == 10 and o < 2: e("buffer_store_dwordx2 %s, v16, %s, s85 offen offset:%d sc1" % (vr(PKX + 16 + 2 * o, 2), sr(SRD_WS, 4), o * 512), tag="OPT")
            e.label("%s_XS%d" % (RN, o))
        e("s_mov_b32 s%d, 4000" % S_SPIN); e("s_mov_b32 s86, 0xffff0000")
        ST(e, 33)
        lz, stx = resolve_waits(e.l, stp); tail += lz
        for kq in range(4):
            z = Seq()
            if kq < 3: z("s_cmp_lg_u32 s%d, %d" % (S_KQ, kq)); z("s_cbranch_scc1 %s_XL%d" % (RN, kq))
            own = [b for b in range(nb) if b & 3 == kq]; srcs = [t for t in range(4) if t != kq]
            z.label("%s_XR%d" % (RN, kq))
            LD, SM_ = 24, 48
            for k, t in enumerate(srcs):
                z("buffer_load_dwordx4 %s, v%d, %s, s%d offen offset:%d sc1" % (vr(LD + 8 * k, 4), vL16, sr(SRD_WS, 4), S_SO + t, kq * 1024))
                if len(own) == 3:
                    z("s_add_u32 s6, s%d, 4096" % (S_SO + t))
                    z("buffer_load_dwordx2 %s, v16, %s, s6 offen offset:%d sc1" % (vr(LD + 8 * k + 4, 2), sr(SRD_WS, 4), kq * 512))
            for k in range(3):
                for i, b in enumerate(own):
                    for hh in range(2):
                        src = LD + 8 * k + 2 * i + hh
                        z("v_lshlrev_b32 v60, 16, v%d" % src); z("v_and_b32 v61, s86, v%d" % src)
                        for x in range(2):
                            dd = SM_ + 4 * i + 2 * hh + x
                            z("v_add_f32 v%d, v%d, v%d" % (dd, 60 + x, (AC + 4 * b + 2 * hh + x) if k == 0 else dd))
            n_ = 4 * len(own)
            z("v_add_f32 v62, v%d, v%d" % (SM_, SM_ + 1))
            for x in range(2, n_): z("v_add_f32 v62, v62, v%d" % (SM_ + x))
            z("v_cmp_u_f32 vcc, v62, v62"); z("s_cbranch_vccz %s_XK%d" % (RN, kq))
            z("s_sleep 4")
            z("s_sub_u32 s%d, s%d, 1" % (S_SPIN, S_SPIN)); z("s_cmp_lg_u32 s%d, 0" % S_SPIN); z("s_cbranch_scc1 %s_XR%d" % (RN, kq))
            z.label("%s_XK%d" % (RN, kq))
            for i, b in enumerate(own):
                t = SM_ + 4 * i
                z("v_cvt_pk_bf16_f32 v%d, v%d, v%d" % (t, t, t + 1)); z("v_cvt_pk_bf16_f32 v%d, v%d, v%d" % (t + 1, t + 2, t + 3))
                fi, rho = b >> 1, b & 1
                z("buffer_store_dwordx2 %s, v%d, %s, %s offen offset:%d" % (vr(t, 2), vO, sr(SRD_OUT, 4), "s%d" % S_R16 if rho else "0", 32 * fi))
            if kq < 3 or role == 0: z("s_branch F_XLD")
            if kq < 3: z.label("%s_XL%d" % (RN, kq))
            lz, _ = resolve_waits(z.l, stx); tail += lz
    e = Seq(); e.label("F_XLD")
    if stamp and os.environ.get("DBGOUT"):
        e.ext(STAMP(36)); e.ext(RSTAMP(61))
        e("s_lshl_b32 s6, s2, 3"); e("s_add_u32 s6, s6, s%d" % S_W); e("s_cmp_lg_u32 s6, %d" % int(os.environ["DBGOUT"])); e("s_cbranch_scc1 F_END")
        sel = [60, 62, 63, 61, 0, 1, 9, 20, 23, 24, 27, 28, 34, 36, 5, 14]
        for k, x_ in enumerate(sel): e("v_readlane_b32 s8, v0, %d" % x_); e("v_readlane_b32 s9, v0, %d" % (60 if x_ >= 60 else 0)); e("s_sub_u32 s8, s8, s9"); e("v_writelane_b32 v3, s8, %d" % k)
        e("v_lshrrev_b32 v4, 2, v%d" % vL16); e("s_mov_b64 exec, 0xffff")
        e("buffer_store_dword v3, v4, %s, 0 offen sc1" % sr(SRD_DBG, 4))
        e("s_endpgm")
    if stamp: e.ext(STAMP(35)); e("s_waitcnt vmcnt(0)"); e.ext(STAMP(36)); e.ext(RSTAMP(61)); e.ext(STAMPOUT(S_W, vLANE, SRD_WS, 6, base=1 << 20))
    e.label("F_END"); e("s_endpgm")
    return fix_hazards(outl + le + tail + e.l + Seq().label("F_COLD").l + cold)
```

```python
from gen_common import *
from gen_k1 import wg_decode, fmt_job
MF = "v_mfma_f32_16x16x32_bf16"
SLOT = 16384
PHL = 9 * SLOT
KVX = PHL + 2048
K2_LDS = KVX + 4096

S_H, S_J, S_W, S_ROW0 = 3, 4, 5, 7
SRD_WS, SRD_DBG, S_HUGE, S_TMP, S_RG, S_SPIN = 44, 48, 52, 53, 54, 55
SRD_CK, SRD_W, SRD_X, SRD_WB, SRD_GATE, SRD_WO = 56, 60, 64, 68, 72, 76
S_W4K, S_ST, M1, M2 = 80, 82, 88, 90
SRD_WQ, S_MW, S_MB, S_WBG, S_XB = 92, 96, 97, 98, 99
SRD_PHI, S_KG, S_VG, S_KL, S_VL, S_KR, S_T, S_TL, S_TBM, S_L2E, S_AP, S_C, S_R = 56, 60, 61, 62, 63, 64, 65, 66, 67, 68, 69, 70, 72
S_ST2 = 86
SRD_WS2, S_WOSZ, SRD_J, S_JU = 92, 81, 84, 73
MK = [74, 76, 78, 90]
vLANE, vL16, vWo, vWR, vBR, vKA, vVA, vQ, vLs, vPS, vTM, vNINF, vM5 = 1, 2, 3, 4, 12, 13, 14, 15, 17, 19, 21, 22, 23
vG = [3, 12]
FR, DB, Q, TK, O = 24, 160, 216, 248, 128
XRS = [88, 96, 104, 112, 120]
NXR = 5
FR2 = [120, 124, 192, 196, 200, 204, 208, 212]
def qacc(cb, rho):
    n = 2 * cb + rho
    return 56 + 4 * n if n < 8 else 128 + 4 * (n - 8)
P_, S_, NEGM, E_ = 56, 72, 104, 112
import os
DRD = 12; W2 = 4; E64 = 0; NRING = 16; NODMA = 0
SC = " sc1"
XROW = int(os.environ.get("XROW", 0))
LZ = int(os.environ.get("LZ", 0))
QP = int(os.environ.get("QP", 0))
HMAP = int(os.environ.get("HMAP", 1))
PW = int(os.environ.get("PW", 7))
SLP = int(os.environ.get("SLP", 2))
CT = int(os.environ.get("CT", 1))
T0P, T1P = eval(os.environ.get("TP", "(2, 60)"))
FASTJ = int(os.environ.get("FASTJ", 7))
FSP, LSP = eval(os.environ.get("SP", "(10, 20)"))
SKIP = int(os.environ.get("SKIP", 1))
K3L = int(os.environ.get("K3L", 0))
K3P = int(os.environ.get("K3P", 0))
LMIN = int(os.environ.get("LMIN", 0))
GP = int(os.environ.get("GP", 0))
XS0, XSP, XSB = eval(os.environ.get("XS", "(0, 1, 0)"))
B32 = int(os.environ.get("B32", 0))
SNT = 0x7FC17FC1
S_PXO = 13
JMODE = int(os.environ.get("JMODE", 1))
YSTEP = int(os.environ.get("YSTEP", 2))
AL8 = int(os.environ.get("AL8", 0))
ALN = int(os.environ.get("ALN", 4))
JLO, JN, JG = eval(os.environ.get("JCFG", "(1, 5, [3, 3, 3])"))
PRIO = int(os.environ.get("PRIO", 0))
PXW = int(os.environ.get("PXW", 0))
TLB = int(os.environ.get("TLB", 0))
YPOS = int(os.environ.get("YPOS", 158))
LPOS = int(os.environ.get("LPOS", 56))
LSTEP = int(os.environ.get("LSTEP", 2))
GAP = int(os.environ.get("GAP", 100))
TOUCH = int(os.environ.get("TOUCH", 1))
CODE_BYTES = 110 * 1024
S_TQ, vTQ = 55, 12
ROT = int(os.environ.get("ROT", 0))
K3BAR = int(os.environ.get("K3BAR", 4))
XQ = os.environ.get("XQ", "")
def freg(n):
    n %= NRING
    return FR + 4 * n if n < 8 else FR2[n - 8]
WS_FLG = 80 * MB
FL_KV, FL_KP, FL_AP, FL_PX = WS_FLG, WS_FLG + 4096, WS_FLG + 8192, WS_FLG + 16384
WS_PX = 96 * MB
WS_WH = WS_WP + 5 * MB
F_LDS = 163840

def red4(q, a, b, c, d, op, t0, t1, t2):
    q("v_permlane16_swap_b32 v%d, v%d" % (a, b)); q("v_permlane16_swap_b32 v%d, v%d" % (c, d))
    q("%s v%d, v%d, v%d" % (op, a, a, b)); q("%s v%d, v%d, v%d" % (op, c, c, d))
    q("v_permlane32_swap_b32 v%d, v%d" % (a, c))
    q("%s v%d, v%d, v%d" % (op, a, a, c))
    q("v_mov_b32 v%d, v%d" % (c, a))
    q("v_permlane32_swap_b32 v%d, v%d" % (a, c))
    q("v_mov_b32 v%d, v%d" % (b, a)); q("v_mov_b32 v%d, v%d" % (d, c))
    q("v_permlane16_swap_b32 v%d, v%d" % (a, b)); q("v_permlane16_swap_b32 v%d, v%d" % (c, d))

def red2(q, a, b, op, t):
    q("v_permlane16_swap_b32 v%d, v%d" % (a, b))
    q("%s v%d, v%d, v%d" % (op, a, a, b))
    q("v_mov_b32 v%d, v%d" % (t, a))
    q("v_permlane32_swap_b32 v%d, v%d" % (a, t))
    q("%s v%d, v%d, v%d" % (op, a, a, t))
    q("v_mov_b32 v%d, v%d" % (b, a))
    q("v_permlane16_swap_b32 v%d, v%d" % (a, b))

def phi_gather(q, raw, PH, va, vb):
    q("v_and_b32 v%d, 15, v%d" % (va, vLANE)); q("v_lshrrev_b32 v%d, 4, v%d" % (vb, vLANE))
    q("v_mul_u32_u24 v%d, 144, v%d" % (raw, vb)); q("v_add_u32 v%d, %d, v%d" % (raw, PHL, raw))
    q("v_mov_b32 v%d, 512" % vb)
    for (c, f) in ((0, 16), (4, 17), (8, 8), (12, 12)):
        q("v_cmp_eq_u32 vcc, %d, v%d" % (c, va)); q("v_cndmask_b32 v%d, v%d, %d, vcc" % (vb, vb, f))
    q("v_lshl_add_u32 v%d, v%d, 1, v%d" % (vb, vb, raw)); q("v_lshl_add_u32 v%d, v%d, 1, v%d" % (va, va, raw))
    for mu, a in ((0, va), (1, vb)):
        for i in range(6):
            q("ds_read_u16 v%d, v%d offset:%d" % (raw + 6 * mu + i, a, (i if i < 4 else 12 + i) * 36))
    y = Seq()
    for mu in range(2):
        for i in range(3): y("v_lshl_or_b32 v%d, v%d, 16, v%d" % (PH + 4 * mu + i, raw + 6 * mu + 2 * i + 1, raw + 6 * mu + 2 * i))
        y("v_mov_b32 v%d, 0" % (PH + 4 * mu + 3))
    return y

def softmax5(q, PK, EE, T, OUT):
    vals = [[PK + 4 * r + i for i in range(4)] + [PK + 8 + 4 * r] for r in range(2)]
    for r in range(2):
        v = vals[r]
        q("v_max3_f32 v%d, v%d, v%d, v%d" % (T + 2 * r, v[0], v[1], v[2])); q("v_max3_f32 v%d, -v%d, -v%d, -v%d" % (T + 2 * r + 1, v[0], v[1], v[2]))
        q("v_max3_f32 v%d, v%d, v%d, v%d" % (T + 2 * r, T + 2 * r, v[3], v[4])); q("v_max3_f32 v%d, v%d, -v%d, -v%d" % (T + 2 * r + 1, T + 2 * r + 1, v[3], v[4]))
    red4(q, T, T + 1, T + 2, T + 3, "v_max_f32", 0, 0, 0)
    for i in range(4): q("v_mul_f32 v%d, s%d, v%d" % (T + i, S_L2E, T + i))
    for r in range(2):
        for i in range(5):
            q("v_fma_f32 v%d, v%d, s%d, -v%d" % (EE + 10 * r + i, vals[r][i], S_L2E, T + 2 * r))
            q("v_fma_f32 v%d, -v%d, s%d, -v%d" % (EE + 10 * r + 5 + i, vals[r][i], S_L2E, T + 2 * r + 1))
    for i in range(20): q("v_exp_f32 v%d, v%d" % (EE + i, EE + i))
    for k in range(4): q("v_mul_f32 v%d, v%d, v%d" % (EE + 5 * k + 4, EE + 5 * k + 4, vM5))
    for k in range(4): q("v_add_f32 v%d, v%d, v%d" % (T + k, EE + 5 * k, EE + 5 * k + 1))
    for i in range(2, 5):
        for k in range(4): q("v_add_f32 v%d, v%d, v%d" % (T + k, T + k, EE + 5 * k + i))
    red4(q, T, T + 1, T + 2, T + 3, "v_add_f32", 0, 0, 0)
    for k in range(4): q("v_rcp_f32 v%d, v%d" % (T + k, T + k))
    for k in range(4):
        for i in range(5): q("v_mul_f32 v%d, v%d, v%d" % (EE + 5 * k + i, EE + 5 * k + i, T + k))
    for r in range(2):
        e = EE + 10 * r; o = OUT + 8 * r
        q("v_cvt_pk_bf16_f32 v%d, v%d, v%d" % (o, e, e + 1)); q("v_cvt_pk_bf16_f32 v%d, v%d, v%d" % (o + 1, e + 2, e + 3))
        q("v_cvt_pk_bf16_f32 v%d, v%d, v%d" % (o + 2, e + 5, e + 6)); q("v_cvt_pk_bf16_f32 v%d, v%d, v%d" % (o + 3, e + 7, e + 8))
        q("v_cvt_pk_bf16_f32 v%d, v%d, v%d" % (o + 4, e + 4, e + 9)); q("v_mov_b32 v%d, 0" % (o + 5))

W32 = False
MF32 = "v_mfma_f32_32x32x16_bf16"
E32 = 4
def red1(q, a, op, t):
    q("v_mov_b32 v%d, v%d" % (t, a)); q("v_permlane32_swap_b32 v%d, v%d" % (a, t)); q("%s v%d, v%d, v%d" % (op, a, a, t))

def sreg(buf, e):
    if W32: return S_ + 16 * buf + 4 * [0, 2, 1, 3][e >> 2] + (e & 3)
    qb, kb, r = e >> 3, (e >> 2) & 1, e & 3
    return S_ + 16 * buf + 8 * kb + 4 * qb + r

def mask_ops(buf, u):
    z = Seq()
    for e0 in range(0, 16, 4):
        for e in range(e0, e0 + 4):
            qb, kb, r = e >> 3, (e >> 2) & 1, e & 3
            key, th = (32 * u + 8 * [0, 2, 1, 3][e >> 2] + r, vQ) if W32 else (32 * u + 16 * kb + r, vQ + qb)
            z("v_cmp_gt_i32 s[%d:%d], %d, v%d" % (MK[e & 3], MK[e & 3] + 1, key, th))
        for e in range(e0, e0 + 4):
            z("v_cndmask_b32 v%d, v%d, v%d, s[%d:%d]" % (sreg(buf, e), sreg(buf, e), vNINF, MK[e & 3], MK[e & 3] + 1))
    return z

def sm_parts(buf):
    ex = []; post = []
    er = (lambda e: E32 + (e & 3)) if W32 else (lambda e: E_ + (e & 7))
    for e in range(16):
        ps = vPS if W32 else vPS + (e >> 3); k = e if W32 else e & 7
        ex.append(I("v_exp_f32 v%d, v%d" % (er(e), sreg(buf, e))))
        z = Seq()
        if k == 1: z("v_add_f32 v%d, v%d, v%d" % (ps, er(e - 1), er(e)))
        elif k > 1: z("v_add_f32 v%d, v%d, v%d" % (ps, ps, er(e)))
        if e & 1: z("v_cvt_pk_bf16_f32 v%d, v%d, v%d" % (P_ + 8 * buf + (e >> 1), er(e - 1), er(e)))
        post.append(z.l[::-1] if AL8 else z.l)
    return ex, post

def row_max(z, X, floor0):
    groups = [(E32, range(16))] if W32 else [(E_, range(8)), (E_ + 1, range(8, 16))]
    for d, es in groups:
        r = [sreg(X, e) for e in es] + (["0"] if floor0 else [])
        f = lambda x: x if x == "0" else "v%d" % x
        z("v_max3_f32 v%d, %s, %s, %s" % (d, f(r[0]), f(r[1]), f(r[2]))); r = r[3:]
        while len(r) >= 2: z("v_max3_f32 v%d, v%d, %s, %s" % (d, d, f(r[0]), f(r[1]))); r = r[2:]
        if r: z("v_max_f32 v%d, %s, v%d" % (d, f(r[0]), d))
    if W32: return [(E32, range(16), range(O, O + 64), range(NEGM, NEGM + 16), vLs)]
    return [(E_ + qb, range(8 * qb, 8 * qb + 8), [O + 8 * db + 4 * qb + i for db in range(8) for i in range(4)], range(NEGM + 4 * qb, NEGM + 4 * qb + 4), vLs + qb) for qb in range(2)]
def row_red(z, op):
    if W32: red1(z, E32, op, E32 + 1)
    else: red2(z, E_, E_ + 1, op, E_ + 2)

def rare_block(name, X, Y):
    z = Seq(); z.label(name); z("s_nop 12")
    G = row_max(z, X, True); row_red(z, "v_max_f32")
    for k, (d, es, os_, ng, l_) in enumerate(G):
        f = d + (2 if W32 else 4)
        z("v_exp_f32 v%d, -v%d" % (f, d))
        for e in es:
            z("v_sub_f32 v%d, v%d, v%d" % (sreg(X, e), sreg(X, e), d)); z("v_sub_f32 v%d, v%d, v%d" % (sreg(Y, e), sreg(Y, e), d))
        for r in ng: z("v_sub_f32 v%d, v%d, v%d" % (r, r, d))
        z("v_mul_f32 v%d, v%d, v%d" % (l_, l_, f))
        for r in os_: z("v_mul_f32 v%d, v%d, v%d" % (r, r, f))
    ex, post = sm_parts(X)
    for e in range(16):
        z.ext([ex[e]]); z("s_nop 0"); z.ext(post[e])
    z("s_nop 1")
    z("s_branch %s_R" % name)
    return z

def rd_frag(kind, idx, ring):
    base = vKA if kind == "K" else vVA
    off = 1024 * idx
    if W32: off = (idx >> 3) * 8192 + ((idx & 7) >> 1) * (1024 if kind == "K" else 2048) + (idx & 1) * 512
    return I("ds_read_b128 %s, v%d offset:%d" % (vr(freg(ring), 4), base, off))

def qk_mfmas(k, buf, ring, first_c):
    if W32:
        d = vr(S_ + 16 * buf, 16)
        return [I("%s %s, %s, %s, %s" % (MF32, d, vr(freg(ring), 4), vr(Q + 16 * (k & 1) + 4 * (k >> 1), 4), d if k else first_c(0)))]
    kb, js = k >> 2, k & 3
    out = []
    for qb in range(2):
        d = vr(S_ + 16 * buf + 8 * kb + 4 * qb, 4)
        c = d if js else first_c(qb)
        out.append(I("%s %s, %s, %s, %s" % (MF, d, vr(freg(ring), 4), vr(Q + 16 * qb + 4 * js, 4), c)))
    return out
def pv_mfmas(db, buf, ring):
    if W32:
        o = vr(O + 16 * (db >> 1), 16)
        return [I("%s %s, %s, %s, %s" % (MF32, o, vr(freg(ring), 4), vr(P_ + 8 * buf + 4 * (db & 1), 4), o))]
    return [I("%s %s, %s, %s, %s" % (MF, vr(O + 8 * db + 4 * qb, 4), vr(freg(ring), 4), vr(P_ + 8 * buf + 4 * qb, 4), vr(O + 8 * db + 4 * qb, 4))) for qb in range(2)]
NEGC = lambda qb: vr(NEGM, 16) if W32 else vr(NEGM + 4 * qb, 4)

def pkg(tag=None):
    z = Seq()
    for (sl, sg, hi) in ((S_VL, S_VG, 1), (S_KL, S_KG, 0)):
        z("s_mov_b32 m0, s%d" % sl)
        z("s_add_u32 s%d, s%d, %d" % (sl, sl, SLOT))
        for e in range(4):
            if not NODMA: z("buffer_load_dwordx4 v%d, %s, s%d offen offset:%d%s lds" % (vL16, sr(SRD_WS, 4), sg, 1024 * e, SC), tag=tag)
        z("s_add_u32 s%d, s%d, %d" % (sg, sg, SLOT))
        z("s_and_b32 s%d, s%d, 0xffff" % (sl, sl))
        if hi: z("s_or_b32 s%d, s%d, 0x10000" % (sl, sl))
    return z

DIAG = int(os.environ.get('DIAG', 0))
def tick(z, acc):
    z("s_memtime s[100:101]"); z("s_waitcnt lgkmcnt(0)")
    if acc is not None: z("s_sub_u32 s101, s100, s99"); z("s_add_u32 s%d, s%d, s101" % (acc, acc))
    z("s_mov_b32 s99, s100")
def sync_block(role, uid, cond=False, xtra=0, strict=None, always=False, prev=0, fq=FR):
    z = Seq()
    if DIAG: tick(z, None)
    if role == 0:
        z("s_sub_u32 s%d, s%d, s%d" % (S_R, S_TBM, S_T))
        if not always:
            z("s_cmp_ge_u32 s%d, 2" % S_R); z("s_cbranch_scc1 W12_%s" % uid)
            z("s_waitcnt vmcnt(4)")
        z.label("W12_%s" % uid)
        if strict is None:
            z("s_cmp_eq_u32 s%d, 4" % S_T); z("s_cbranch_scc1 W22_%s" % uid)
        z("s_waitcnt vmcnt(%d)" % (12 + xtra if strict is None else strict))
        if strict is None: z.label("W22_%s" % uid); z("s_waitcnt vmcnt(%d)" % (22 + xtra))
        if DIAG: tick(z, 96)
        z("s_barrier")
        if DIAG: tick(z, 98)
        if not always: z("s_cmp_lt_u32 s%d, 3" % S_R); z("s_cbranch_scc1 NP_%s" % uid)
        z("s_and_b32 s8, s%d, 3" % S_T); z("s_cmp_eq_u32 s8, 2"); z("s_cbranch_scc1 CQ_%s" % uid)
        z("s_cmp_lg_u32 s8, 1"); z("s_cbranch_scc1 NQ_%s" % uid)
        poll_issue(z, 9, 8, SRD_WS, "s15", tag="OPT")
        z("s_lshl_b32 s8, s%d, 8" % S_T); z("s_or_b32 s8, s8, s%d" % S_W)
        z("s_cmp_lg_u32 s8, %d" % (9 * 256)); z("s_cbranch_scc1 N9_%s" % uid)
        z.ext(arrive_byte(3, vTM)); z("s_branch NQ_%s" % uid)
        z.label("N9_%s" % uid)
        if not always:
            z("s_cmp_lg_u32 s8, 256"); z("s_cbranch_scc1 NQ_%s" % uid)
            fb = Seq(); fb("s_lshl_b32 s8, s%d, 2" % S_J); fb("s_add_u32 s8, s8, s15"); fb("s_add_u32 s8, s8, %d" % (FL_KP - FL_KV))
            z.ext(flag_store(fb, vTM, 0, so=8))
        z("s_branch NQ_%s" % uid)
        z.label("CQ_%s" % uid)
        z("s_add_u32 s8, s%d, 6" % S_T); z("s_lshr_b32 s8, s8, 2"); z("s_sub_u32 s8, 7, s8")
        z("v_cmp_eq_u32 vcc, s8, v%d" % vLANE); z("v_cndmask_b32 v7, 0, 1, vcc")
        z("s_waitcnt vmcnt(%d)" % (8 + prev))
        poll_check(z, "PQ_%s" % uid, 9, 7, 8, SRD_WS, "s15")
        z.label("NQ_%s" % uid)
        z.ext(pkg())
        z("s_sub_u32 s8, s%d, 2" % S_T); z("s_cmp_ge_u32 s8, 2"); z("s_cbranch_scc1 NP_%s" % uid)
        for i in range(4): z("v_mov_b32 v%d, 0x%x" % (fq + i, SNT))
        z("s_mul_i32 s8, s8, 20480"); z("s_add_u32 s8, s8, s%d" % S_PXO); z("s_add_u32 s9, s8, 4096")
        for i in range(5): z("buffer_store_dwordx4 %s, v%d, %s, s%d offen offset:%d sc1" % (vr(fq, 4), vL16, sr(SRD_WS, 4), 8 + i // 4, (i & 3) * 1024), tag="OPT")
        if LZ:
            z("s_lshl_b32 s8, s%d, 8" % S_T); z("s_or_b32 s8, s8, s%d" % S_W); z("s_cmp_lg_u32 s8, 512"); z("s_cbranch_scc1 NP_%s" % uid)
            z("s_lshr_b32 s8, s2, 3"); z("s_mul_i32 s8, s8, %d" % (NSTEP * 4096)); z("s_and_b32 s9, s2, 7"); z("s_lshl_b32 s9, s9, 10")
            z("s_add_u32 s8, s8, s9"); z("s_add_u32 s8, s8, %d" % (WS_AP + 144 * 4096))
            z("buffer_store_dwordx4 %s, v%d, %s, s8 offen sc1" % (vr(fq, 4), vL16, sr(SRD_WS, 4)), tag="OPT")
        z.label("NP_%s" % uid)
    else:
        if cond:
            z("s_cmp_eq_u32 s%d, s%d" % (S_T, S_TBM)); z("s_cbranch_scc1 NB_%s" % uid)
        z("s_waitcnt vmcnt(0)")
        z("s_barrier")
        if cond: z.label("NB_%s" % uid)
        if DIAG: tick(z, 98)
    return z

def adv(vreg):
    z = Seq()
    z("v_add_u32 v%d, 0x4000, v%d" % (vreg, vreg))
    if vreg == vKA: z("v_and_b32 v%d, 0xffff, v%d" % (vreg, vreg))
    else: z("v_and_or_b32 v%d, v%d, s%d, v%d" % (vreg, vreg, S_KR, vC64))
    return z

def check(name):
    z = Seq()
    if not W32: z("v_max_f32 v%d, v%d, v%d" % (vTM, vPS, vPS + 1))
    z("v_cmp_nle_f32 vcc, v%d, v%d" % (vPS if W32 else vTM, vTHR()))
    z("s_cbranch_vccnz %s" % name)
    z.label(name + "_R")
    return z
def ladd(qb): return I("v_add_f32 v%d, v%d, v%d" % (vLs + qb, vLs + qb, vPS + qb))
def ladds(): return [ladd(0)] if W32 else [ladd(0), ladd(1)]
vC64 = 10
def vTHR(): return 11

def place_sm(slots, lo, hi, buf, mask_u, chk, carry=True):
    ex, post = sm_parts(buf)
    n = hi - lo
    pre = mask_ops(buf, mask_u).l if mask_u is not None else []
    groups = [pre[8 * g:8 * g + 8] for g in range(4)]
    if carry:
        slots[lo]["post"].append(ladd(0))
        if not W32: slots[lo + (8 if n == 16 else 0)]["post"].append(ladd(1))
    for e in range(16):
        s = lo + (e * n) // 16
        if pre and e % 4 == 0: slots[s]["mid"].extend(groups[e // 4])
        slots[s]["mid"].append(ex[e])
        if W32 and n == 16: slots[s + 1]["post"].extend(post[e]) if s + 1 < hi else slots[s]["end"].extend(post[e])
        else: slots[s]["post"].extend(post[e])
    if chk: slots[hi - 1]["end"].extend(check(chk).l)

def emit_slots(slots, w2=False):
    out = []
    for n, s in enumerate(slots):
        out += s["pre"]
        if w2 and W2 and n % W2 == 0:
            w = I("v_nop"); w.kind = "touch"; w.rd = list(slots[n + W2 - 1]["m"][0].srcA); w.text = ""
            out.append(w)
        if len(s["m"]) == 1: out += s["m"] + s["rd"] + s["mid"] + s["post"] + s["end"]
        else: out += [s["m"][0]] + s["mid"] + [s["m"][1]] + s["rd"] + s["post"] + s["end"]
    return out
def mkslot(m): return {"pre": [], "m": m, "mid": [], "rd": [], "post": [], "end": []}

def iteration(role, var, rares):
    uid = "%s%s" % ("AB"[role], var)
    rb = 24 if var == "E2" else 0
    slots = []; plan = []
    if var not in ("S2", "E2"):
        for k in range(8): slots.append(mkslot(qk_mfmas(k, 0, len(slots), NEGC))); plan.append(("K", k))
    for db in range(8): slots.append(mkslot(pv_mfmas(db, 0, rb + len(slots)))); plan.append(("V", db))
    a_hi = len(slots)
    if var in ("S", "S1"):
        for k in range(8): slots.append(mkslot(qk_mfmas(k, 1, len(slots), NEGC))); plan.append(("K", 8 + k))
    if var != "E2":
        for db in range(8): slots.append(mkslot(pv_mfmas(db, 1, len(slots)))); plan.append(("V", 8 + db))
    N = len(slots)
    nxt = {"S": "K", "S1": "V", "S2": None, "E1": "V", "E2": None}[var]
    assert DRD > 8
    for n in range(N):
        g = n + DRD
        if g < N: slots[n]["rd"].append(rd_frag(plan[g][0], plan[g][1], g))
        elif nxt:
            if g == N:
                slots[n]["rd"].extend(sync_block(role, uid, fq=freg(N)).l)
            if nxt == "K" and g - N >= 8: slots[n]["rd"].append(rd_frag("V", g - N - 8, g))
            elif var != "E1" or g - N < 8: slots[n]["rd"].append(rd_frag(nxt, g - N, g))
    if nxt == "K":
        slots[N - DRD - 2]["post"].extend(adv(vKA).l)
        slots[N - DRD + 2]["post"].extend(adv(vVA).l)
    elif nxt == "V": slots[N - DRD - 1]["end"].extend(adv(vVA).l)
    if var == "S2": slots[9]["rd"].extend(sync_block(role, uid, cond=True).l)
    if var == "E2":
        slots[4]["rd"].extend(sync_block(role, uid, cond=True, fq=freg(rb)).l); slots[0]["post"].extend(ladds())
        return emit_slots(slots, True)
    place_sm(slots, 0, a_hi, 1, 1 if var == "S2" else None, "R%sa" % uid); rares.append(rare_block("R%sa" % uid, 1, 0))
    if var != "S2":
        if var == "E1": slots[a_hi]["post"].extend(ladds())
        place_sm(slots, a_hi, N, 0, 0 if var != "S" else None, "R%sb" % uid, carry=var != "E1"); rares.append(rare_block("R%sb" % uid, 0, 1))
    else:
        slots[a_hi]["post"].extend(ladds())
    if var == "S":
        slots[N - 3]["post"].extend(Seq()("s_add_u32 s%d, s%d, 1" % (S_T, S_T))("s_add_u32 s6, s%d, 1" % S_T).l)
    out = emit_slots(slots, True)
    return out

def poll_issue(z, vp, voff, srd, soff, tag="POLL"):
    z("buffer_load_dword v%d, v%d, %s, %s offen sc1" % (vp, voff, sr(srd, 4), soff), tag=tag)
def poll_check(z, name, vp, vneed, voff, srd, soff):
    z("v_and_b32 v%d, v%d, v%d" % (vp, vp, vneed)); z("v_cmp_ne_u32 vcc, v%d, v%d" % (vp, vneed))
    z("s_cbranch_vccz %s_OK" % name)
    z("s_mov_b32 s%d, 0x40000" % S_SPIN)
    z.label("%s_SP" % name)
    z("s_sleep %d" % SLP)
    z("buffer_load_dword v%d, v%d, %s, %s offen sc1" % (vp, voff, sr(srd, 4), soff), tag="OPT")
    z("s_waitcnt vmcnt(0)", tag="OPT")
    z("v_and_b32 v%d, v%d, v%d" % (vp, vp, vneed)); z("v_cmp_ne_u32 vcc, v%d, v%d" % (vp, vneed))
    z("s_cbranch_vccz %s_OK" % name)
    z("s_sub_u32 s%d, s%d, 1" % (S_SPIN, S_SPIN))
    z("s_cmp_lg_u32 s%d, 0" % S_SPIN)
    z("s_cbranch_scc1 %s_SP" % name)
    z.label("%s_OK" % name)
def w7_block(name, body, w=7):
    z = Seq(); z("s_cmp_lg_u32 s%d, %d" % (S_W, w)); z("s_cbranch_scc1 %s" % name); z.ext(body); z.label(name)
    return z
def flag_store(base_expr, va, vb, so=6):
    z = Seq(); z.ext(base_expr)
    z("v_mov_b32 v%d, 1" % va); z("s_mov_b64 exec, 1")
    z("buffer_store_dword v%d, off, %s, s%d sc1" % (va, sr(SRD_WS, 4), so), tag="OPT")
    z("s_mov_b64 exec, -1")
    return z
def arrive_byte(val, va):
    inc = {1: 1, 3: 0x100, 7: 0x10000}[val]
    z = Seq(); z("v_mov_b32 v%d, 0x%x" % (va, inc)); z("s_and_b32 s8, s2, 7"); z("s_lshl_b32 s8, s8, 5"); z("s_mov_b64 exec, 1")
    z("buffer_atomic_add v%d, off, %s, s8" % (va, sr(SRD_DBG, 4)), tag="OPT"); z("s_mov_b64 exec, -1")
    return z
def px_group(z, d, t):
    z("s_lshl_b32 s%d, s%d, 3" % (d, S_J)); z("s_and_b32 s%d, s2, 4" % t); z("s_add_u32 s%d, s%d, s%d" % (d, d, t))
    z("s_lshr_b32 s%d, s2, 6" % t); z("s_add_u32 s%d, s%d, s%d" % (d, d, t))
def px_flag(z, d, t):
    px_group(z, d, t); z("s_lshl_b32 s%d, s%d, 3" % (d, d)); z("s_add_u32 s%d, s%d, s%d" % (d, d, S_W)); z("s_lshl_b32 s%d, s%d, 7" % (d, d)); z("s_and_b32 s%d, s2, 3" % t); z("s_lshl_b32 s%d, s%d, 2" % (t, t))
    z("s_add_u32 s%d, s%d, s%d" % (d, d, t)); z("s_add_u32 s%d, s%d, %d" % (d, d, FL_PX))
flat = lambda g: [x for l in g for x in l]
def cp(s):
    out = []
    for x in (s.l if isinstance(s, Seq) else s):
        if isinstance(x, list): out.append(cp(x))
        elif x.kind == "waitv": out.append(x)
        else:
            n_ = I(x.text, tag=x.tag); n_.nowaw = x.nowaw; out.append(n_)
    return out

def code_touch(q):
    q("s_lshr_b32 s10, s2, 3"); q("s_lshl_b32 s10, s10, 13")
    q("s_getpc_b64 s[12:13]"); q.label("F_PC"); q("s_mov_b32 s14, F_COLD-F_PC"); q("s_mov_b32 s15, 0x00020000")
    q("s_cmp_lg_u32 s%d, 7" % S_W); q("s_cselect_b32 s10, s14, s10")
    q("v_lshlrev_b32 v24, 7, v%d" % vLANE)
    q("s_cmp_ge_u32 s10, s14"); q("s_cbranch_scc1 F_NCT")
    q("buffer_load_dword v31, v24, s[12:15], s10 offen", tag="OPT")
    q.label("F_NCT")

def gen_f(stamp=False):
    ST = (lambda z, i: z.ext(STAMP(i))) if stamp else (lambda z, i: None)
    q = Seq()
    vAo0, vAo1, vAR, JT, WF, NWF, AF, RW, CH, GT, ACC, WB = 13, 14, 15, 20, 32, 6, 56, 88, 104, 112, 128, 98304
    vWB, vGD, vGA, vBB = 19, 20, 21, [12, 16, 17, 18]
    q("s_cmp_ge_u32 s2, 256"); q("s_cbranch_scc1 F_END")
    load_args(q)
    wg_decode(q, S_H, S_J)
    if HMAP: q("s_and_b32 s%d, s2, 7" % S_H); q("s_lshl_b32 s%d, s%d, 2" % (S_H, S_H)); q("s_lshr_b32 s6, s2, 6"); q("s_add_u32 s%d, s%d, s6" % (S_H, S_H))
    q("v_lshrrev_b32 v20, 6, v0"); q("v_and_b32 v%d, 63, v0" % vLANE)
    q("v_readfirstlane_b32 s%d, v20" % S_W)
    if CT == 1: code_touch(q)
    q("s_and_b32 s%d, s%d, 3" % (S_RG, S_W))
    q("v_lshrrev_b32 v20, 3, v%d" % vLANE)
    q("s_xor_b32 s6, s%d, 7" % S_J); q("s_lshl_b32 s6, s6, 8"); q("s_lshl_b32 s8, s%d, 5" % S_W); q("s_add_u32 s6, s6, s8")
    q("v_add_u32 v20, s6, v20")
    q("v_lshrrev_b32 v21, 4, v%d" % vLANE); q("v_and_b32 v22, 7, v%d" % vLANE); q("v_xor_b32 v22, v21, v22")
    q("v_lshlrev_b32 v22, 4, v22"); q("v_lshl_add_u32 v%d, v20, 10, v22" % vAo0); q("v_xor_b32 v%d, 64, v%d" % (vAo1, vAo0))
    q("s_lshl_b32 s6, s%d, 3" % S_RG); q("v_add_u32 v20, s6, v21")
    q("s_and_b32 s6, s%d, 1" % S_RG); q("s_lshl_b32 s6, s6, 2"); q("v_add_u32 v22, s6, v21")
    q("v_lshlrev_b32 v22, 1, v22"); q("v_and_b32 v23, 15, v%d" % vLANE); q("v_xor_b32 v22, v22, v23")
    q("v_lshlrev_b32 v22, 4, v22"); q("v_lshl_add_u32 v%d, v20, 13, v22" % vWo)
    q("s_lshl_b32 s6, s%d, 8" % S_H); q("v_add_u32 v%d, s6, v%d" % (vWo, vWo))
    q("s_lshl_b32 s%d, s%d, 12" % (S_W4K, S_W)); q("s_lshl_b32 s%d, s%d, 11" % (S_MW, S_W))
    mk_srd(q, SRD_CK, P_CKV, 2048 * 1024)
    q("s_cmp_lt_u32 s%d, 4" % S_W)
    q("s_cselect_b32 s%d, s%d, s%d" % (SRD_W, P_UK, P_UV)); q("s_cselect_b32 s%d, s%d, s%d" % (SRD_W + 1, P_UK + 1, P_UV + 1))
    q("s_mov_b32 s%d, %d" % (SRD_W + 2, 512 * 8192)); q("s_mov_b32 s%d, 0x00020000" % (SRD_W + 3))
    if stamp: q.ext(STAMP(0)); q.ext(RSTAMP(60))
    def dma_a(I_, sec=0):
        g = []
        for e in range(4):
            z = Seq()
            if e == 0: z("s_add_u32 m0, s%d, %d" % (S_W4K, (I_ % 3) * 32768 + sec * 16384))
            z("s_mov_b32 s%d, %d" % (S_TMP, I_ * 128 + e * (8192 - 1024) + sec * 131072))
            z("buffer_load_dwordx4 v%d, %s, s%d offen offset:%d lds" % ([vAo0, vAo1][e & 1], sr(SRD_CK, 4), S_TMP, e * 1024), tag="A%d" % I_)
            g.append(z.l)
        return g
    def dma_w(i, sec=0):
        g = []
        for e in range(2):
            z = Seq()
            if e == 0: z("s_add_u32 m0, s%d, %d" % (S_MW, WB + (i % 4) * 16384 + sec * 8192))
            z("s_mov_b32 s%d, %d" % (S_TMP, i * 32 * 8192 + e * (4 * 8192 - 1024)))
            z("buffer_load_dwordx4 v%d, %s, s%d offen offset:%d lds" % (vWo, sr(SRD_X if sec else SRD_W, 4), S_TMP, e * 1024), tag="U%d" % i)
            g.append(z.l)
        return g
    q.ext(flat(dma_w(0))); q.ext(flat(dma_a(0))); q.ext(flat(dma_w(1)))
    q("s_barrier")
    q.ext(flat(dma_a(1))); q.ext(flat(dma_w(2))); q.ext(flat(dma_w(3))); q.ext(flat(dma_a(2)))
    if CT == 0: code_touch(q)
    else: q("s_mov_b32 s15, 0x00020000")
    mk_srd(q, SRD_X, P_X, 2048 * 1152); mk_srd(q, SRD_WB, P_WQKV, 576 * 3456); mk_srd(q, SRD_GATE, P_GATE, 1152)
    mk_srd(q, SRD_WS, P_WS, WS_SIZE); mk_srd(q, SRD_DBG, P_DBG, 256); mk_srd(q, SRD_WQ, P_WQ, 576 * 8192)
    q("s_mov_b32 s%d, 0x%x" % (S_HUGE, HUGE))
    q("v_lshlrev_b32 v%d, 4, v%d" % (vL16, vLANE))
    q("s_lshl_b32 s6, s2, 7"); q("s_add_u32 s6, s6, %d" % WS_FLG); q("s_cmp_ge_u32 s2, 72"); q("s_cselect_b32 s6, s%d, s6" % S_HUGE)
    q("s_cmp_lg_u32 s%d, 7" % S_W); q("s_cbranch_scc1 F_NCL")
    q("v_mov_b32 v22, 0"); q("v_lshrrev_b32 v20, 2, v%d" % vL16); q("s_mov_b32 exec_hi, 0")
    q("buffer_store_dword v22, v20, %s, s6 offen sc1" % sr(SRD_WS, 4), tag="OPT")
    q("s_mov_b64 exec, -1")
    q.label("F_NCL")
    q("v_and_b32 v20, 15, v%d" % vLANE); q("v_lshrrev_b32 v22, 1, v20"); q("v_xor_b32 v22, v22, v21")
    q("s_lshl_b32 s6, s%d, 6" % S_RG); q("v_add_u32 v20, s6, v20"); q("v_lshlrev_b32 v20, 7, v20")
    q("v_lshl_add_u32 v%d, v22, 4, v20" % vAR); q("v_xor_b32 v%d, 64, v%d" % (vAR + 1, vAR))
    q("v_add_u32 v%d, 0x10000, v%d" % (vAR + 2, vAR)); q("v_add_u32 v%d, 0x10000, v%d" % (vAR + 3, vAR + 1))
    q("v_bfe_u32 v20, v%d, 2, 2" % vLANE); q("v_lshl_add_u32 v22, v21, 3, v20"); q("v_lshlrev_b32 v22, 8, v22")
    q("v_and_b32 v23, 1, v21"); q("v_lshl_add_u32 v20, v23, 2, v20"); q("v_lshl_add_u32 v22, v20, 5, v22")
    q("v_and_b32 v20, 3, v%d" % vLANE); q("v_lshl_add_u32 v22, v20, 3, v22")
    q("s_lshr_b32 s6, s%d, 2" % S_W); q("s_lshl_b32 s6, s6, 13"); q("s_add_u32 s6, s6, %d" % WB)
    q("v_add_u32 v%d, s6, v22" % vWR)
    for cb in range(1, 8): q("v_xor_b32 v%d, %d, v%d" % (vWR + cb, 32 * cb, vWR))
    q("s_lshr_b32 s6, s%d, 2" % S_W); q("s_lshl_b32 s6, s6, 24"); q("s_lshl_b32 s8, s%d, 19" % S_H); q("s_add_u32 s6, s6, s8")
    q("s_xor_b32 s8, s%d, 7" % S_J); q("s_lshl_b32 s8, s8, 2"); q("s_add_u32 s8, s8, s%d" % S_RG); q("s_lshl_b32 s8, s8, 14"); q("s_add_u32 s%d, s6, s8" % S_ST)
    for i in range(1, 4): q("s_add_u32 s%d, s%d, %d" % (S_ST + i, S_ST, 4096 * i))
    q("s_sub_u32 s6, 15, s%d" % S_J); q("s_cmp_lt_u32 s%d, 4" % S_W); q("s_cselect_b32 s6, s%d, s6" % S_J)
    q("s_lshl_b32 s6, s6, 7"); q("s_lshl_b32 s8, s%d, 5" % S_RG); q("s_add_u32 s%d, s6, s8" % S_ROW0)
    q("s_lshl_b32 s%d, s%d, 10" % (S_MB, S_W))
    q("s_mul_i32 s6, s%d, %d" % (S_H, 576 * 128)); q("s_add_u32 s6, s6, s%d" % S_MB); q("s_add_u32 s%d, s6, %d" % (S_WBG, WS_WBF))
    q("s_lshr_b32 s6, s%d, 4" % S_ROW0); q("s_mul_i32 s6, s6, %d" % (18 * 1024)); q("s_add_u32 s%d, s6, %d" % (S_XB, WS_XF))

    def j1(k):
        z = Seq(); a, b = JT, JT + 1; d = 112 + 4 * k; tg = "OPT" if k == 2 else None
        z("s_lshr_b32 s8, s2, 1"); z("s_and_b32 s9, s2, 1"); z("s_mul_i32 s9, s9, 9")
        z("s_add_u32 s9, s9, %s" % ("s%d" % S_RG if k < 2 else "8"))
        if k == 1: z("s_add_u32 s9, s9, 4")
        z("v_lshrrev_b32 v%d, 2, v%d" % (a, vLANE)); z("s_lshl_b32 s10, s8, 4"); z("v_add_u32 v%d, s10, v%d" % (a, a))
        z("v_mul_u32_u24 v%d, 1152, v%d" % (a, a)); z("v_and_b32 v%d, 3, v%d" % (b, vLANE)); z("v_lshl_add_u32 v%d, v%d, 4, v%d" % (a, b, a))
        if k == 0: z("v_and_b32 v127, 15, v%d" % vLANE); z("v_lshlrev_b32 v127, 4, v127"); z("v_lshrrev_b32 v%d, 4, v%d" % (b, vLANE)); z("v_lshl_add_u32 v127, v%d, 2, v127" % b)
        z("s_lshl_b32 s10, s9, 6"); z("v_add_u32 v%d, s10, v%d" % (d, a))
        z("s_mul_i32 s8, s8, 18"); z("s_add_u32 s8, s8, s9"); z("s_lshl_b32 s8, s8, 10"); z("s_add_u32 s%d, s8, %d" % (86 + k, WS_XF))
        ld = Seq()("buffer_load_dwordx4 %s, v%d, %s, 0 offen" % (vr(d, 4), d, sr(SRD_X, 4)), tag=tg)
        y = Seq()
        for i in range(4): y("ds_bpermute_b32 v%d, v127, v%d" % (d + i, d + i), tag=tg)
        if k == 2: y("s_waitcnt lgkmcnt(0)", tag="OPT")
        y("buffer_store_dwordx4 %s, v%d, %s, s%d offen sc1" % (vr(d, 4), vL16, sr(SRD_WS, 4), 86 + k), tag=tg or "J13")
        return z, y, ld
    def j2(i, d, t0, dst):
        z = Seq(); t1, t2, t3 = t0 + 1, t0 + 2, t0 + 3
        z("s_add_u32 s8, s%d, %d" % (S_JU, i))
        z("s_mul_i32 s9, s8, 12769"); z("s_lshr_b32 s9, s9, 24")
        z("s_mul_i32 s10, s9, 1314"); z("s_sub_u32 s8, s8, s10")
        z("s_mul_i32 s10, s8, 7282"); z("s_lshr_b32 s10, s10, 16")
        z("s_mul_i32 s11, s10, 9"); z("s_sub_u32 s8, s8, s11"); z("s_lshl_b32 s8, s8, 6")
        z("v_add_u32 v%d, s8, v%d" % (t0, vLANE))
        z("v_mul_u32_u24 v%d, 3641, v%d" % (t1, t0)); z("v_lshrrev_b32 v%d, 16, v%d" % (t1, t1))
        z("v_mul_u32_u24 v%d, 18, v%d" % (t2, t1)); z("v_sub_u32 v%d, v%d, v%d" % (t2, t0, t2))
        z("v_lshrrev_b32 v%d, 3, v%d" % (t3, t1)); z("v_lshl_add_u32 v%d, v%d, 3, v%d" % (t0, t3, t0))
        z("v_and_b32 v%d, 3, v%d" % (d, t1)); z("v_lshl_add_u32 v%d, v%d, 2, v%d" % (t3, t3, d))
        z("v_bfe_u32 v%d, v%d, 2, 1" % (d, t1)); z("v_lshl_add_u32 v%d, v%d, 4, v%d" % (t3, d, t3))
        z("s_lshl_b32 s8, s10, 5")
        for k in range(3): z("s_mov_b32 s%d, s%d" % (SRD_J + k, [P_WO, P_WO + 1, S_WOSZ][k]))
        z("s_cmp_lt_u32 s10, 128"); z("s_cbranch_scc1 J2_%d" % i)
        z("s_mov_b32 s%d, s%d" % (SRD_J, P_WO2)); z("s_mov_b32 s%d, s%d" % (SRD_J + 1, P_WO2 + 1)); z("s_mov_b32 s%d, %d" % (SRD_J + 2, 576 * 1152))
        z("v_lshrrev_b32 v%d, 4, v%d" % (t3, t1)); z("v_lshl_add_u32 v%d, v%d, 1, v%d" % (t3, t3, t1))
        z("s_mul_i32 s8, s10, 36"); z("s_sub_u32 s8, s8, %d" % (36 * 128))
        z("s_cmp_lt_u32 s10, 144"); z("s_cbranch_scc1 J2_%d" % i)
        z("v_lshrrev_b32 v%d, 1, v%d" % (t3, t1)); z("v_mul_u32_u24 v%d, 18, v%d" % (t3, t3)); z("v_and_b32 v%d, 1, v%d" % (t1, t1)); z("v_add_u32 v%d, v%d, v%d" % (t3, t3, t1))
        z("s_mul_i32 s8, s10, 288"); z("s_sub_u32 s8, s8, %d" % (288 * 144 - 16))
        z.label("J2_%d" % i)
        z("v_add_u32 v%d, s8, v%d" % (t3, t3)); z("v_mul_u32_u24 v%d, 1152, v%d" % (t3, t3)); z("v_lshl_add_u32 v%d, v%d, 4, v%d" % (t3, t2, t3))
        z("s_mul_i32 s8, s9, 288")
        z("buffer_load_dwordx4 %s, v%d, %s, s8 offen" % (vr(d, 4), t3, sr(SRD_J, 4)))
        z("s_lshr_b32 s8, s10, 5"); z("s_mul_i32 s8, s8, 37")
        z("s_lshl_b32 s11, s9, %d" % (3 if ROT else 8)); z("s_sub_u32 s11, s10, s11"); z("s_and_b32 s11, s11, 31"); z("s_add_u32 s8, s8, s11")
        z("s_sub_u32 s11, s10, 128"); z("s_lshr_b32 s6, s11, 2"); z("s_mul_i32 s6, s6, 37"); z("s_and_b32 s11, s11, 3"); z("s_add_u32 s6, s6, s11"); z("s_add_u32 s6, s6, 32")
        z("s_cmp_ge_u32 s10, 128"); z("s_cselect_b32 s8, s6, s8")
        z("s_mul_i32 s6, s10, 74"); z("s_sub_u32 s6, s6, %d" % (74 * 144 - 36))
        z("s_cmp_ge_u32 s10, 144"); z("s_cselect_b32 s8, s6, s8")
        z("s_mul_i32 s9, s9, 148"); z("s_add_u32 s9, s9, s8")
        z("s_mul_i32 s9, s9, 9728"); z("s_add_u32 s9, s9, %d" % WS_WP)
        z("v_lshlrev_b32 v%d, 4, v%d" % (t0, t0)); z("v_add_u32 v%d, s9, v%d" % (dst, t0))
        y = Seq()
        y("buffer_store_dwordx4 %s, v%d, %s, 0 offen sc1" % (vr(d, 4), dst, sr(SRD_WS2, 4)))
        return z, y
    def j3(ps):
        z = Seq(); d = RW + 8 * ps; tg = "OPT" if ps == 2 else None
        t0, t1, t2, t3, dst = JT + 1, JT + 2, JT + 3, JT + 9, 124 + ps
        z("s_mul_i32 s8, s2, 9"); z("s_add_u32 s8, s8, %s" % ("s%d" % S_RG if ps < 2 else "8"))
        if ps == 1: z("s_add_u32 s8, s8, 4")
        z("s_lshr_b32 s9, s8, 2"); z("s_and_b32 s8, s8, 3"); z("s_lshl_b32 s8, s8, 3")
        z("v_lshrrev_b32 v%d, 3, v%d" % (t0, vLANE)); z("v_add_u32 v%d, s8, v%d" % (t0, t0))
        z("s_bfe_u32 s10, s9, 0x10001"); z("s_bfe_u32 s11, s9, 0x10003"); z("s_lshl_b32 s11, s11, 1"); z("s_or_b32 s10, s10, s11"); z("s_lshl_b32 s10, s10, 1")
        z("v_and_b32 v%d, 7, v%d" % (t1, vLANE)); z("v_xor_b32 v%d, s10, v%d" % (t2, t1))
        z("s_lshl_b32 s8, s9, 7"); z("s_add_u32 s8, s8, %d" % WS_WBF)
        z("v_mul_u32_u24 v%d, %d, v%d" % (dst, 576 * 128, t0)); z("v_lshl_add_u32 v%d, v%d, 4, v%d" % (dst, t2, dst)); z("v_add_u32 v%d, s8, v%d" % (dst, dst))
        z("s_mul_i32 s8, s9, 3456")
        z("v_mul_u32_u24 v%d, 36, v%d" % (t2, t0)); z("v_add_u32 v%d, s8, v%d" % (d + 5, t2))
        z("s_lshl_b32 s8, s9, 1"); z("v_mov_b32 v%d, s8" % (d + 6)); z("v_mov_b32 v%d, v%d" % (d + 7, t1))
        for k in range(4): z("v_mov_b32 v%d, 0" % (d + k))
        z("v_lshrrev_b32 v%d, 1, v%d" % (t0, t1)); z("v_and_b32 v%d, 1, v%d" % (t3, t1)); z("v_lshl_add_u32 v%d, v%d, 4, v%d" % (t2, t3, d + 5))
        z("v_mov_b32 v%d, 2304" % t3); z("v_cmp_eq_u32 vcc, 1, v%d" % t0); z("v_cndmask_b32 v%d, 0, v%d, vcc" % (t3, t3)); z("v_add_u32 v%d, v%d, v%d" % (t2, t2, t3))
        z("v_mov_b32 v%d, 1152" % t3); z("v_cmp_eq_u32 vcc, 2, v%d" % t0); z("v_cndmask_b32 v%d, 0, v%d, vcc" % (t3, t3)); z("v_add_u32 v%d, v%d, v%d" % (d + 4, t2, t3))
        ld = Seq()
        ld("v_cmp_eq_u32 vcc, 6, v%d" % (d + 7)); ld("v_cmp_gt_u32 s[8:9], 6, v%d" % (d + 7)); ld("s_mov_b64 exec, vcc")
        ld("buffer_load_ushort v%d, v%d, %s, 0 offen" % (d + 3, d + 6, sr(SRD_GATE, 4)), tag=tg)
        for k in range(3): ld("buffer_load_dword v%d, v%d, %s, 0 offen offset:%d" % (d + k, d + 5, sr(SRD_WB, 4), 1152 * k + 32), tag=tg)
        ld("s_mov_b64 exec, s[8:9]")
        x = I("buffer_load_dwordx4 %s, v%d, %s, 0 offen" % (vr(d, 4), d + 4, sr(SRD_WB, 4)), tag=tg); x.nowaw = True
        ld.l.append(x)
        ld("s_mov_b64 exec, -1")
        y = Seq()
        y("buffer_store_dwordx4 %s, v%d, %s, 0 offen sc1" % (vr(d, 4), dst, sr(SRD_WS, 4)), tag=tg or "J13")
        return z, y, ld
    def touch(n, dst):
        g = Seq()
        g("s_lshr_b32 s8, s2, 3"); g("s_lshl_b32 s8, s8, 2"); g("s_add_u32 s8, s8, s%d" % S_RG)
        g("s_lshr_b32 s10, s8, 3"); g("s_add_u32 s10, s10, 4"); g("s_lshl_b32 s10, s10, 18")
        g("s_bfe_u32 s11, s8, 0x20001"); g("s_lshl_b32 s11, s11, %d" % (8 if HMAP else 11)); g("s_add_u32 s10, s10, s11")
        g("s_and_b32 s11, s2, 7"); g("s_lshl_b32 s11, s11, %d" % (10 if HMAP else 8)); g("s_add_u32 s10, s10, s11")
        g("s_bitcmp1_b32 s8, 0"); g("s_cselect_b32 s12, s%d, s%d" % (P_UV, P_UK)); g("s_cselect_b32 s13, s%d, s%d" % (P_UV + 1, P_UK + 1)); g("s_mov_b32 s14, s%d" % (SRD_W + 2))
        g("v_lshrrev_b32 v24, 1, v%d" % vLANE); g("v_lshlrev_b32 v24, 13, v24"); g("v_and_b32 v25, 1, v%d" % vLANE); g("v_lshl_add_u32 v24, v25, 7, v24")
        g("s_cmp_ge_u32 s8, 96"); g("s_cbranch_scc1 F_NTW")
        g("buffer_load_dword v%d, v24, s[12:15], s10 offen" % dst, tag="OPT")
        g.label("F_NTW")
        return g.l
    def touch_wq(n, dst):
        g = Seq()
        g("s_lshr_b32 s8, s2, 3"); g("s_lshl_b32 s8, s8, 2"); g("s_add_u32 s8, s8, s%d" % S_RG); g("s_add_u32 s8, s8, %d" % (128 * n)); g("s_lshl_b32 s8, s8, 15")
        g("v_and_b32 v24, 1, v%d" % vLANE); g("v_lshlrev_b32 v24, 7, v24"); g("v_lshrrev_b32 v25, 4, v%d" % vLANE); g("v_lshl_add_u32 v24, v25, 13, v24")
        g("v_bfe_u32 v25, v%d, 2, 2" % vLANE); g("v_lshl_add_u32 v24, v25, %d, v24" % (8 if HMAP else 11)); g("s_and_b32 s11, s2, 7"); g("s_lshl_b32 s11, s11, %d" % (10 if HMAP else 8)); g("v_add_u32 v24, s11, v24")
        g("buffer_load_dword v%d, v24, %s, s8 offen" % (dst, sr(SRD_WQ, 4)))
        return g.l

    q("s_cmp_ge_u32 s%d, 4" % S_W); q("s_cbranch_scc1 F_B")
    pre, st0 = resolve_waits(q.l)
    outl = list(pre); cold = []
    WQS = [4, 5, 7, 1, 2, 3, 4, 5, 7]
    WBS = [6 * SLOT, 6 * SLOT + 8192, 0, 8192, 8 * SLOT, 8 * SLOT + 8192, 6 * SLOT, 6 * SLOT + 8192, 9 * SLOT + 8192]
    global W32
    for role in range(2):
        RN = "AB"[role]
        W32 = bool(role == 1 and B32)
        r = Seq()
        if role == 1: r.label("F_B")
        if GP & (1 << role): r("s_setprio 1")
        def dma_wq(i):
            g = []
            for e in range(2):
                z = Seq()
                if e == 0: z("s_add_u32 m0, s%d, %d" % (S_MW, WQS[i] * SLOT))
                z("s_mov_b32 s%d, %d" % (S_TMP, (i * 64 + role * 32) * 8192 + e * (4 * 8192 - 1024)))
                z("buffer_load_dwordx4 v%d, %s, s%d offen offset:%d lds" % (vWo, sr(SRD_WQ, 4), S_TMP, e * 1024), tag="W%d" % i)
                g.append(z.l)
            return g
        def dma_wb(i):
            z = Seq()
            z("s_add_u32 m0, s%d, %d" % (S_MB, WBS[i])); z("s_add_u32 s%d, s%d, %d" % (S_TMP, S_WBG, i * 8192))
            z("buffer_load_dwordx4 v%d, %s, s%d offen sc1 lds" % (vL16, sr(SRD_WS, 4), S_TMP), tag="W%d" % i)
            return [z.l]
        def ld_x(ks):
            g = []
            for rr in range(2):
                z = Seq()
                z("s_add_u32 s%d, s%d, %d" % (S_TMP, S_XB, (rr * 18 + ks) * 1024))
                z("buffer_load_dwordx4 %s, v%d, %s, s%d offen sc1" % (vr(XRS[ks % NXR] + 4 * rr, 4), vL16, sr(SRD_WS, 4), S_TMP))
                g.append(z.l)
            return g
        NM = 512
        extra = {f: [] for f in range(NM)}
        streams = []
        def spread(lst, a, per=int(os.environ.get("PER", 1))):
            streams.append([y_ for x_ in lst for y_ in (x_ if isinstance(x_, list) else [x_])])
            for k, ins in enumerate(lst): extra[a + k // per].extend(ins if isinstance(ins, list) else [ins])
            return a + (len(lst) + per - 1) // per
        def rd_w(i, cb):
            w = WF + 4 * ((8 * i + cb) % NWF); off = (i % 4) * 16384
            return Seq()("ds_read_b64_tr_b16 %s, v%d offset:%d" % (vr(w, 2), vWR + cb, off))("ds_read_b64_tr_b16 %s, v%d offset:%d" % (vr(w + 2, 2), vWR + cb, off + 1024)).l
        def rd_a(i, rbk):
            sl = (i >> 1) % 3
            base = vAR + (i & 1) + (2 if sl == 2 else 0); off = (32768 if sl == 1 else 0) + rbk * 2048
            return Seq()("ds_read_b128 %s, v%d offset:%d" % (vr(AF + 16 * (i & 1) + 4 * rbk, 4), base, off)).l
        B1, B2 = int(os.environ.get('B1', 8)), 10
        def arrive(name, fill, ta=30, tb=31):
            z = Seq(); z("v_mov_b32 v%d, s%d" % (ta, S_HUGE)); fill(z, ta, tb); z("v_mov_b32 v%d, 1" % tb)
            z("buffer_atomic_add v%d, v%d, %s, 0 offen" % (tb, ta, sr(SRD_DBG, 4)), tag="OPT")
            return w7_block(name, z).l
        def fill1(z, ta, tb):
            z("s_and_b32 s11, s2, 7"); z("s_lshl_b32 s11, s11, 2"); z("s_add_u32 s11, s11, 224"); z("v_mov_b32 v%d, s11" % tb)
            z("v_cmp_eq_u32 vcc, 0, v%d" % vLANE); z("v_cndmask_b32 v%d, v%d, v%d, vcc" % (ta, ta, tb))
        def fill2(z, ta, tb):
            z("s_and_b32 s11, s2, 7"); z("s_lshl_b32 s11, s11, 2"); z("s_add_u32 s11, s11, 192"); z("v_mov_b32 v%d, s11" % tb)
            z("v_cmp_eq_u32 vcc, 0, v%d" % vLANE); z("v_cndmask_b32 v%d, v%d, v%d, vcc" % (ta, ta, tb))
        def publish1(i):
            z = Seq(); tags = ["U%d" % i] + (["A%d" % (i >> 1)] if i % 2 == 0 else [])
            if i == B1: tags += ["J13"]
            z.waitv(*tags)
            if i == 14 and role == 1:
                y_ = Seq(); y_("s_waitcnt vmcnt(4)", tag="OPT"); poll_check(y_, "P1", 26, 25, 24, SRD_DBG, "0"); z.ext(w7_block("F_P1C", y_))
            z("s_barrier")
            if i % 2 == 0: ST(z, 1 + i // 2)
            return z.l
        DW = 4
        for i in range(16):
            for cb in range(8):
                n = 8 * i + cb - DW
                if n >= 0:
                    if cb == 0: extra[4 * n].extend(publish1(i))
                    t_ = rd_w(i, cb); extra[4 * n].insert(len(extra[4 * n]) if cb == 0 else 0, t_[0]); extra[4 * n + 1].insert(0, t_[1])
            if i > 0:
                for rbk in range(4): extra[32 * (i - 1) + 18 + 4 * rbk].insert(0, rd_a(i, rbk)[0])
                g = []
                if i == 12 and role == 1:
                    z = Seq()
                    z("v_lshrrev_b32 v24, 2, v%d" % vL16); z("v_and_b32 v25, 7, v%d" % vLANE); z("v_cmp_eq_u32 vcc, 0, v25"); z("v_cndmask_b32 v25, 0, 32, vcc")
                    poll_issue(z, 26, 24, SRD_DBG, "0", tag="OPT")
                    g.append(w7_block("F_P1I", z).l)
                if role == 0:
                    if i + 2 < 16 and i >= 2: g += dma_w(i + 2) + dma_w(i + 2, 1)
                    if i % 2 == 1 and i >= 3 and (i >> 1) + 2 < 8: g += dma_a((i >> 1) + 2) + dma_a((i >> 1) + 2, 1)
                if i == 13: g += dma_wq(0) + dma_wq(1)
                if i == 14: g += dma_wb(0) + dma_wb(1)
                if i == 15: g += dma_wq(2) + dma_wq(3) + dma_wb(2) + dma_wb(3)
                if role == 1 and i == B1: g.append(w7_block("F_AR1", arrive_byte(1, 30)).l)
                for k, l in enumerate(g): extra[32 * (i - 1) + 17 + (2 if len(g) < 8 else 1) * k].extend(l)
        if role == 0: mk_srd(r, SRD_X, P_UV, 512 * 8192)
        else:
            J = [j1(k) for k in range(3)] + [j3(k) for k in range(3)]
            if TOUCH > 1: extra[T0P].extend(touch(0, 27))
            w4 = lambda nm, k: Seq()("s_cmp_lg_u32 s%d, 4" % S_W)("s_cbranch_scc1 %s" % nm).l + cp(J[2][k]) + cp(J[5][k]) + Seq().label(nm).l
            lds_ = [w4("F_Z4", 2)] + [cp(J[k][2]) for k in (0, 1, 3, 4)]
            if JMODE == 0:
                p = 2
                for x_ in J: p = spread(cp(x_[0]), p, 2)
                p = max(p, LMIN)
                for l in lds_: extra[p].extend(l); p += LSTEP
            else:
                for x_ in J: r.ext(cp(x_[0]))
                for l in lds_: r.ext(l)
                p = 0
            p += GAP
            for l in [cp(J[4][1]), w4("F_Y4", 1)] + [cp(J[k][1]) for k in (0, 1, 3)]: extra[p].extend(l); p += YSTEP
            assert p < 32 * (B1 - 1) + 8, p
            p = max(p, QP)
            if TOUCH: extra[p + 8].extend(touch_wq(0, 29)); extra[p + 16].extend(Seq()("s_cmp_ge_u32 s2, 32")("s_cbranch_scc1 F_TQ").l + [I(x.text, tag="OPT") for x in touch_wq(1, 19)] + Seq().label("F_TQ").l)
        for ks in range(5):
            for k, l in enumerate(ld_x(ks)): extra[32 * 13 + 24 + 4 * ks + 2 * k].extend(l)
        r.ext(publish1(0))
        for rbk in range(4): r.ext(rd_a(0, rbk))
        for cb in range(DW): r.ext(rd_w(0, cb))
        for f in range(NM):
            i, cb, rbk = f >> 5, (f >> 2) & 7, f & 3
            acc = vr(ACC + 4 * (4 * cb + rbk), 4); w = vr(WF + 4 * ((8 * i + cb) % NWF), 4); a = vr(AF + 16 * (i & 1) + 4 * rbk, 4)
            ops = (w, a) if role == 0 else (a, w)
            r("%s %s, %s, %s, %s" % (MF, acc, ops[0], ops[1], "0" if i == 0 else acc))
            r.ext(extra[f])
        ST(r, 9)
        NF = 216
        extra = {f: [] for f in range(2 * NF)}
        FO = [(n // 12, n % 12) for n in range(192)] + [(k, p) for k in (16, 17) for p in range(8, 12)] + [(k, p) for k in (16, 17) for p in range(8)]
        def rd_q(n):
            ks, ph = FO[n]; s1 = ks & 1; w = FR + 4 * (n % 8)
            if ph < 8:
                return Seq()("ds_read_b64_tr_b16 %s, v%d offset:%d" % (vr(w, 2), vWR + ph, s1 * 8192))("ds_read_b64_tr_b16 %s, v%d offset:%d" % (vr(w + 2, 2), vWR + ph, s1 * 8192 + 1024)).l
            return Seq()("ds_read_b64_tr_b16 %s, v%d offset:%d" % (vr(w, 2), vBB[ph - 8], s1 * 4096))("ds_read_b64_tr_b16 %s, v%d offset:%d" % (vr(w + 2, 2), vBB[ph - 8], s1 * 4096 + 512)).l
        BKV = 5
        def publish(i):
            z = Seq()
            d = ((WQS[i] - WQS[i - 1]) * SLOT if i else WQS[0] * SLOT - WB - role * 8192) & 0xffffffff
            for cb in range(8):
                if "r" not in XQ or i == 0: z("v_add_u32 v%d, 0x%x, v%d" % (vWR + cb, d, vWR + cb))
            if i and "r" in XQ: pass
            elif i:
                for b in vBB: z("v_add_u32 v%d, 0x%x, v%d" % (b, (WBS[i] - WBS[i - 1]) & 0xffffffff, b))
            else:
                z("v_lshrrev_b32 v13, 4, v%d" % vLANE); z("v_bfe_u32 v14, v%d, 2, 2" % vLANE); z("v_lshl_add_u32 v15, v13, 3, v14"); z("v_lshlrev_b32 v15, 7, v15")
                z("v_lshrrev_b32 v14, 1, v14"); z("v_and_b32 v13, 1, v13"); z("v_lshl_add_u32 v14, v13, 1, v14"); z("v_lshl_add_u32 v15, v14, 5, v15")
                z("v_and_b32 v14, 3, v%d" % vLANE); z("v_lshl_add_u32 v15, v14, 3, v15"); z("v_add_u32 v%d, %d, v15" % (vBB[0], WBS[0]))
                for b in range(1, 4): z("v_xor_b32 v%d, %d, v%d" % (vBB[b], 32 * b, vBB[0]))
            z.waitv(*(["W%d" % i] + (["KVS"] if i == BKV else [])))
            z("s_barrier")
            ST(z, 10 + i)
            return z.l
        def kv_obj(kind, t, slot):
            z = Seq()
            z("s_add_u32 m0, s%d, %d" % (S_W4K, slot * SLOT)); z("s_add_u32 s%d, s%d, %d" % (S_TMP, S_KG if kind == "K" else S_VG, t * SLOT))
            for e in range(4): z("buffer_load_dwordx4 v%d, %s, s%d offen offset:%d sc1 lds" % (vL16, sr(SRD_WS, 4), S_TMP, 1024 * e), tag="%s%d" % (kind, t))
            return [z.l]
        phl = Seq()
        phl("s_mul_i32 s6, s%d, 648" % S_H); mk_srd(phl, SRD_PHI, P_PHI, 648, add="s6")
        phl("s_lshl_b32 s6, s%d, 8" % S_W); phl("s_add_u32 m0, s6, %d" % PHL); phl("v_lshrrev_b32 v13, 2, v%d" % vL16)
        phl("buffer_load_dword v13, %s, s6 offen lds" % sr(SRD_PHI, 4), tag="W5")
        DWQ = 5
        after = {0: dma_wq(4) + dma_wb(4) + dma_wq(5) + dma_wb(5) + [phl.l], 2: dma_wq(6) + dma_wb(8), 3: dma_wq(7) + dma_wb(6) + dma_wb(7), 4: dma_wq(8)}
        if role == 1:
            fb = Seq(); fb("s_lshl_b32 s6, s%d, 7" % S_H); fb("s_lshl_b32 s8, s%d, 2" % S_J); fb("s_add_u32 s6, s6, s8"); fb("s_add_u32 s6, s6, %d" % FL_KV)
            fbe = Seq().ext(cp(fb)); fbe("s_cmp_ge_u32 s%d, %d" % (S_J, FASTJ)); fbe("s_cselect_b32 s6, s6, s%d" % S_HUGE)
            after[BKV] = [w7_block("F_FKV", flag_store(fbe, 13, 14)).l]
            fkv_late = w7_block("F_FKV2", flag_store(fb, 8, 9))
        else:
            z = Seq()
            z("v_lshrrev_b32 v13, 2, v%d" % vL16); z("v_mov_b32 v15, s%d" % S_HUGE); z("v_xor_b32 v14, 7, v%d" % vLANE); z("v_cmp_gt_u32 vcc, %d, v14" % (8 - FASTJ))
            z("v_cndmask_b32 v13, v15, v13, vcc"); z("v_cndmask_b32 v15, 0, 1, vcc")
            z("s_lshl_b32 s9, s%d, 7" % S_H); z("s_add_u32 s9, s9, %d" % FL_KV)
            poll_issue(z, 14, 13, SRD_WS, "s9")
            after[6] = [z.l]
            z = Seq(); poll_check(z, "P2A", 14, 15, 13, SRD_WS, "s9")
            after[7] = [z.l] + kv_obj("K", 0, 0) + kv_obj("K", 1, 1)
            after[8] = kv_obj("V", 0, 4) + kv_obj("K", 2, 2)
        for n in range(DWQ, NF):
            pos = 2 * (n - DWQ)
            if n % 24 == 0:
                extra[pos].extend(publish(n // 24))
                for k, l in enumerate(after.get(n // 24, [])): extra[pos + 2 + k].extend(l)
            t_ = rd_q(n); extra[pos].insert(len(extra[pos]) if n % 24 == 0 else 0, t_[0]); extra[pos + 1].insert(0, t_[1])
        for k, l in enumerate(after[0]): extra[1 + k].extend(l)
        pk = Seq(); sts = []
        order = list(range(8, 16)) + list(range(8))
        free = []
        for n in order:
            if role == 0:
                j, rbk = n >> 2, n & 3
                b0, b1 = ACC + 4 * (8 * j + rbk), ACC + 4 * (8 * j + 4 + rbk); fi = 4 * rbk + j
            else:
                cb, u = n >> 1, n & 1
                b0, b1 = ACC + 4 * (4 * cb + 2 * u), ACC + 4 * (4 * cb + 2 * u + 1); fi = 8 * u + cb
            if n >= 8: t = b0; free.append(b1)
            else: t = free.pop(0)
            pk("v_cvt_pk_bf16_f32 v%d, v%d, v%d" % (t, b0, b0 + 1)); pk("v_cvt_pk_bf16_f32 v%d, v%d, v%d" % (t + 1, b0 + 2, b0 + 3))
            pk("v_cvt_pk_bf16_f32 v%d, v%d, v%d" % (t + 2, b1, b1 + 1)); pk("v_cvt_pk_bf16_f32 v%d, v%d, v%d" % (t + 3, b1 + 2, b1 + 3))
            sts.append((t, fi))
        sts.sort()
        mkst = lambda t, fi, base, tag: I("buffer_store_dwordx4 %s, v%d, %s, s%d offen offset:%d%s" % (vr(t, 4), vL16, sr(SRD_WS, 4), base + (fi >> 2), (fi & 3) * 1024, os.environ.get("KVF", " sc1")), tag=tag)
        for k, (t, fi) in enumerate(sts):
            for (pos, br, nm) in ((8 + FSP * k, "scc0", "E"), (13 + LSP * k, "scc1", "L")):
                z = Seq(); z("s_cmp_ge_u32 s%d, %d" % (S_J, FASTJ))
                if nm == "E" and os.environ.get("OOL"):
                    z("s_cbranch_scc1 KO%s%d" % (RN, k)); z.label("KS%sE%d" % (RN, k))
                    cold += Seq().label("KO%s%d" % (RN, k)).l + [mkst(t, fi, S_ST, "OPT")] + Seq()("s_branch KS%sE%d" % (RN, k)).l
                else:
                    z("s_cbranch_%s KS%s%s%d" % (br, RN, nm, k))
                    z.ext([mkst(t, fi, S_ST, "OPT")]); z.label("KS%s%s%d" % (RN, nm, k))
                if "s" not in XQ: extra[pos].extend(z.l)
        for ks in range(18 - NXR):
            for k, l in enumerate(ld_x(ks + NXR)):
                if ks == (8 + 15 * FSP) // 24: l[-1].tag = "KVS"
                if "x" not in XQ: extra[24 * ks + 24 + XS0 + XSP * k + XSB * role].extend(l)
        z = Seq()
        z("s_lshl_b32 s6, s%d, 19" % S_H); z("s_add_u32 s%d, s6, s%d" % (S_KG, S_W4K)); z("s_add_u32 s%d, s%d, %d" % (S_VG, S_KG, WS_VF))
        z("s_lshr_b32 s%d, s%d, 6" % (S_TL, S_ROW0))
        z("s_lshl_b32 s6, s%d, 1" % S_J); z("s_sub_u32 s%d, 31, s6" % S_TBM)
        c = f2u(LOG2E / (128 ** 0.5))
        z("s_mov_b32 s%d, 0x%x" % (S_C, c)); z("s_mov_b32 s%d, 0x%x" % (S_C + 1, c)); z("s_mov_b32 s%d, 0x%x" % (S_L2E, f2u(LOG2E)))
        z("s_mul_i32 s6, s%d, %d" % (S_TL, NSTEP * 4096)); z("s_lshr_b32 s8, s%d, 4" % S_ROW0); z("s_and_b32 s8, s8, 3"); z("s_lshl_b32 s8, s8, 10")
        z("s_add_u32 s6, s6, s8"); z("s_add_u32 s%d, s6, %d" % (S_AP, WS_AP))
        z("v_lshrrev_b32 v22, 4, v%d" % vLANE); z("v_cmp_gt_u32 vcc, 2, v22"); z("v_cndmask_b32 v%d, 0, 1.0, vcc" % vM5)
        z("v_mov_b32 v%d, 0xff800000" % vNINF)
        streams.append(z.l)
        for k, ins in enumerate(z.l): extra[200 + k].append(ins)
        RAW, PH = 192, 208
        z = Seq(); y = phi_gather(z, RAW, PH, RAW + 12, RAW + 13); streams.append(z.l)
        for k, ins in enumerate(z.l): extra[340 + k].append(ins)
        U, VM, PK, EE, T8, LK = 88, 112, 216, 160, 120, 192
        blk = lambda b, rho: DB + 4 * (2 * b + rho)
        t_ = Seq(); t_.ext(y)
        t_("v_and_b32 v%d, 15, v%d" % (T8, vLANE)); t_("v_lshlrev_b32 v%d, 2, v%d" % (T8, T8)); t_("v_add_u32 v%d, 64, v%d" % (T8, T8))
        for rho in range(2):
            t, u = TK + 4 * rho, U + 4 * rho
            for (d, b) in ((u, 2), (t + 2, 3)):
                t_("v_cvt_pk_bf16_f32 v%d, v%d, v%d" % (d, blk(b, rho), blk(b, rho) + 1)); t_("v_cvt_pk_bf16_f32 v%d, v%d, v%d" % (d + 1, blk(b, rho) + 2, blk(b, rho) + 3))
            t_("v_mov_b32 v%d, v%d" % (u + 2, t + 3)); t_("v_mov_b32 v%d, v%d" % (u + 3, t + 2))
        for rho in range(2): t_("ds_bpermute_b32 v%d, v%d, v%d" % (vG[rho], T8, blk(3, rho) + 2))
        for mu in range(2):
            for rho in range(2): t_("%s %s, %s, %s, 0" % (MF, vr(PK + 8 * mu + 4 * rho, 4), vr(PH + 4 * mu, 4), vr(U + 4 * rho, 4)))
        for rho in range(2):
            t = TK + 4 * rho
            for (d, b) in ((t, 0), (VM + 4 * rho, 1)):
                t_("v_cvt_pk_bf16_f32 v%d, v%d, v%d" % (d, blk(b, rho), blk(b, rho) + 1)); t_("v_cvt_pk_bf16_f32 v%d, v%d, v%d" % (d + 1, blk(b, rho) + 2, blk(b, rho) + 3))
            t_("v_mov_b32 v%d, v%d" % (VM + 4 * rho + 2, t + 2)); t_("v_mov_b32 v%d, 0x3f80" % (VM + 4 * rho + 3))
        for rho in range(2):
            g = vG[rho]
            t_("v_mul_f32 v%d, s%d, v%d" % (g, S_L2E, g)); t_("v_exp_f32 v%d, -v%d" % (g, g)); t_("v_add_f32 v%d, 1.0, v%d" % (g, g)); t_("v_rcp_f32 v%d, v%d" % (g, g))
        softmax5(t_, PK, EE, T8, LK)
        streams.append(t_.l)
        t0_ = 2 * 200 + 2; span = 2 * NF - t0_
        for k, ins in enumerate(t_.l): extra[t0_ + (k * span) // len(t_.l)].append(ins)
        r.ext(publish(0))
        for n in range(DWQ): r.ext(rd_q(n))
        r.ext(pk)
        for n in range(NF):
            ks, ph = FO[n]
            for rho in range(2):
                acc = vr(qacc(ph, rho) if ph < 8 else (DB + 4 * (2 * (ph - 8) + rho)), 4)
                r("%s %s, %s, %s, %s" % (MF, acc, vr(FR + 4 * (n % 8), 4), vr(XRS[ks % NXR] + 4 * rho, 4), "0" if ks == 0 else acc))
                xl = extra[2 * n + rho]
                if "d" in XQ and 48 <= 2 * n < 300: xl = [x_ for x_ in xl if x_.kind != "dma"]
                if "b" in XQ and 48 <= 2 * n < 300: xl = [x_ for x_ in xl if x_.kind != "barrier"]
                r.ext(xl)
        ST(r, 20)
        vF = 4
        FB0 = 6 * SLOT
        r("v_and_b32 v6, 15, v%d" % vLANE); r("v_lshrrev_b32 v7, 4, v%d" % vLANE)
        r("s_mul_i32 s6, s%d, 5376" % S_W); r("s_add_u32 s6, s6, %d" % FB0)
        r("v_mul_u32_u24 v8, 168, v6"); r("v_lshl_add_u32 v8, v7, 3, v8"); r("v_add_u32 v%d, s6, v8" % vF)
        if W32:
            r("v_lshlrev_b32 v9, 4, v6"); r("v_lshrrev_b32 v8, 1, v7"); r("v_lshl_add_u32 v9, v8, 8, v9"); r("v_and_b32 v8, 1, v7")
            r("v_lshl_add_u32 v%d, v8, 12, v9" % vKA); r("v_lshl_add_u32 v%d, v8, 10, v9" % (vLs + 1))
        else: r("v_mov_b32 v%d, v%d" % (vKA, vL16))
        if role == 0: r.waitv("K0")
        else: r("s_waitcnt vmcnt(0)")
        r("s_barrier")
        for rho in range(2):
            for b in range(3): r("ds_write_b64 v%d, %s offset:%d" % (vF, vr(LK + 8 * rho + 2 * b, 2), 2688 * rho + 32 * b), tag="FW")
            for b in range(2): r("ds_write_b64 v%d, %s offset:%d" % (vF, vr(VM + 4 * rho + 2 * b, 2), 2688 * rho + 96 + 32 * b), tag="FW")
        if role == 0: r.ext(flat(kv_obj("V", 1, 5)))
        else: r.ext(fkv_late)
        for n in range(8): r.ext([rd_frag("K", n, n)])
        for qb in range(2):
            for js in range(4):
                for hb in range(2):
                    a = qacc(2 * js + hb, qb)
                    r("v_pk_mul_f32 %s, %s, s[%d:%d]" % (vr(a, 2), vr(a, 2), S_C, S_C + 1)); r("v_pk_mul_f32 %s, %s, s[%d:%d]" % (vr(a + 2, 2), vr(a + 2, 2), S_C, S_C + 1))
                    d = Q + 16 * qb + 4 * js + 2 * hb
                    r("v_cvt_pk_bf16_f32 v%d, v%d, v%d" % (d, a, a + 1)); r("v_cvt_pk_bf16_f32 v%d, v%d, v%d" % (d + 1, a + 2, a + 3))
        if W32:
            for op in ("v_permlane16_swap_b32", "v_permlane32_swap_b32"):
                for i in range(16): r("%s v%d, v%d" % (op, Q + i, Q + 16 + i))
            r("v_and_b32 v8, 31, v%d" % vLANE); r("v_lshrrev_b32 v9, 5, v%d" % vLANE); r("v_lshlrev_b32 v9, 2, v9"); r("v_sub_u32 v8, v8, v9")
            r("v_add_u32 v%d, s%d, v8" % (vQ, S_ROW0)); r("v_mov_b32 v%d, 0" % vLs)
        else:
            r("v_lshlrev_b32 v8, 2, v7"); r("v_sub_u32 v8, v6, v8")
            r("v_add_u32 v%d, s%d, v8" % (vQ, S_ROW0)); r("v_add_u32 v%d, 16, v%d" % (vQ + 1, vQ))
            r("v_mov_b32 v%d, 0" % vLs); r("v_mov_b32 v%d, 0" % (vLs + 1))
        r("v_mov_b32 v%d, 0x44800000" % vTHR())
        r("s_mov_b32 s%d, 0xffff" % S_KR); r("v_mov_b32 v%d, 0x10000" % vC64); r("v_add_u32 v%d, 0x10000, v%d" % (vVA, vLs + 1 if W32 else vL16)); r("s_mov_b32 s%d, 0" % S_T)
        CA, CB, CD, ZR = 128, 160, 64, 68
        r("s_cmp_ge_u32 s%d, 3" % S_W); r("s_cselect_b32 s6, 1, 0"); r("s_mul_i32 s8, s6, 3"); r("s_sub_u32 s8, s%d, s8" % S_W)
        r("v_bfe_u32 v8, v%d, 2, 2" % vLANE); r("v_lshl_add_u32 v8, v7, 3, v8")
        r("v_and_b32 v9, 3, v%d" % vLANE); r("v_lshlrev_b32 v9, 3, v9")
        r("v_mul_u32_u24 v21, 168, v8"); r("v_add_u32 v21, v21, v9")
        r("s_lshl_b32 s9, s8, 5"); r("s_add_u32 s9, s9, %d" % FB0); r("v_add_u32 v4, s9, v21")
        r("s_lshl_b32 s9, s6, 5"); r("s_add_u32 s9, s9, %d" % (FB0 + 96)); r("v_add_u32 v6, s9, v21")
        for i in range(4): r("v_mov_b32 v%d, 0" % (ZR + i))
        ST(r, 21)
        r.waitv("FW")
        r("s_barrier")
        ST(r, 22)
        if role == 0:
            r("v_lshrrev_b32 v8, 2, v%d" % vL16); r("v_mov_b32 v7, s%d" % S_HUGE); r("v_cmp_gt_u32 vcc, 8, v%d" % vLANE)
            r("v_cndmask_b32 v8, v7, v8, vcc"); r("v_cmp_eq_u32 vcc, 6, v%d" % vLANE); r("v_cndmask_b32 v7, 0, 1, vcc")
            r("s_lshl_b32 s15, s%d, 7" % S_H); r("s_add_u32 s15, s15, %d" % FL_KV)
        for n in range(8, DRD): r.ext([rd_frag("K", n, n)])
        crd = []
        for ks in range(8):
            for (dst, a) in ((CA, 4), (CB, 6)):
                crd += Seq()("ds_read_b64_tr_b16 %s, v%d offset:%d" % (vr(dst + 4 * ks, 2), a, 5376 * ks))("ds_read_b64_tr_b16 %s, v%d offset:%d" % (vr(dst + 4 * ks + 2, 2), a, 5376 * ks + 4 * 168)).l
        slots = []
        for k in range(8): slots.append(mkslot(qk_mfmas(k, 0, k, lambda qb: "0")))
        for n in range(8):
            if n + DRD < 16: slots[n]["rd"].append(rd_frag("K", n + DRD, n + DRD))
            slots[n]["mid"].extend(crd[4 * n:4 * n + 2]); slots[n]["rd"].extend(crd[4 * n + 2:4 * n + 4])
        if W32: slots[7]["end"].append(I("s_nop 3"))
        r.ext(emit_slots(slots))
        for ks in range(8): r("%s %s, %s, %s, %s" % (MF, vr(CD, 4), vr(CA + 4 * ks, 4), vr(CB + 4 * ks, 4), "0" if ks == 0 else vr(CD, 4)))
        r("s_cmp_lg_u32 s%d, 0" % S_TL); r("s_cbranch_scc1 %s_NM" % RN)
        r("s_nop 4")
        r.ext(mask_ops(0, 0))
        r.label("%s_NM" % RN)
        G0 = row_max(r, 0, False)
        r("s_lshl_b32 s9, s%d, 3" % S_H); r("s_add_u32 s9, s9, s%d" % S_J); r("s_mul_i32 s9, s9, 6144"); r("s_add_u32 s9, s9, s%d" % S_MB); r("s_add_u32 s9, s9, %d" % WS_KVP)
        if role == 1: r("s_cmp_ge_u32 s%d, 6" % S_W); r("s_cselect_b32 s9, s%d, s9" % S_HUGE)
        zs = [I("%s %s, %s, %s, 0" % (MF, vr(O + 4 * i, 4), vr(ZR, 4), vr(ZR, 4))) for i in range(16)]
        z = Seq(); row_red(z, "v_max_f32")
        z("buffer_store_dwordx4 %s, v%d, %s, s9 offen sc1" % (vr(CD, 4), vL16, sr(SRD_WS, 4)))
        for (d, es, os_, ng, l_) in G0:
            for x_ in ng: z("v_sub_f32 v%d, 0, v%d" % (x_, d))
        for (d, es, os_, ng, l_) in G0:
            for e_ in es: z("v_sub_f32 v%d, v%d, v%d" % (sreg(0, e_), sreg(0, e_), d))
        r.ext(interleave([[x_] for x_ in zs], z.l))
        r("s_lshl_b32 s6, s%d, 6" % S_TL)
        r("v_subrev_u32 v%d, s6, v%d" % (vQ, vQ))
        if not W32: r("v_subrev_u32 v%d, s6, v%d" % (vQ + 1, vQ + 1))
        if role == 0 and FASTJ == 7: poll_issue(r, 9, 8, SRD_WS, "s15")
        slots = []
        for k in range(8): slots.append(mkslot(qk_mfmas(k, 1, 8 + k, NEGC)))
        place_sm(slots, 0, 8, 0, None, None, carry=False)
        r.ext(emit_slots(slots))
        r.waitv("K1", "V0")
        r("s_barrier")
        if role == 0:
            r("s_add_u32 s%d, s%d, %d" % (S_KL, S_W4K, 3 * SLOT)); r("s_add_u32 s%d, s%d, %d" % (S_VL, S_W4K, 6 * SLOT))
            r("s_add_u32 s%d, s%d, %d" % (S_KG, S_KG, 3 * SLOT)); r("s_add_u32 s%d, s%d, %d" % (S_VG, S_VG, 2 * SLOT))
            px_group(r, S_PXO, 8); r("s_lshl_b32 s%d, s%d, 2" % (S_PXO, S_PXO)); r("s_and_b32 s8, s2, 3"); r("s_add_u32 s%d, s%d, s8" % (S_PXO, S_PXO))
            r("s_mul_i32 s%d, s%d, 40960" % (S_PXO, S_PXO)); r("s_mul_i32 s8, s%d, 5120" % S_W); r("s_add_u32 s%d, s%d, s8" % (S_PXO, S_PXO)); r("s_add_u32 s%d, s%d, %d" % (S_PXO, S_PXO, WS_PX))
            r("s_mov_b32 m0, s%d" % S_KL)
            for e in range(4): r("buffer_load_dwordx4 v%d, %s, s%d offen offset:%d sc1 lds" % (vL16, sr(SRD_WS, 4), S_KG, 1024 * e))
            r("s_add_u32 s%d, s%d, %d" % (S_KG, S_KG, SLOT)); r("s_mov_b32 s%d, s%d" % (S_KL, S_W4K))
            if FASTJ == 7: poll_check(r, "P2B", 9, 7, 8, SRD_WS, "s15")
            r.ext(pkg())
        if GP & 3: r("s_setprio 0")
        if (role == 1 and PRIO) or PRIO == 2: r("s_setprio 1")
        if stamp: r.ext(STAMP(23)); r.ext(RSTAMP(62))
        if DIAG: r("s_mov_b32 s96, 600"); r("s_mov_b32 s98, 600")
        main, st1 = resolve_waits(r.l, st0)
        verify_streams(main, streams, "f")
        st1.vm = []
        rares = []
        z = Seq()
        z("s_cmp_eq_u32 s%d, 0" % S_TL); z("s_cbranch_scc1 %s_PV" % RN)
        z.ext(adv(vKA))
        for n in range(DRD): z.ext([rd_frag("K", n, n) if n < 8 else rd_frag("V", n - 8, n)])
        z("s_cmp_le_u32 s%d, 1" % S_TL); z("s_cbranch_scc1 %s_S1" % RN)
        lz, stl = resolve_waits(z.l, st1)
        main += lz
        tmp = []
        b1, s1 = resolve_waits(iteration(role, "S", tmp), stl); s1.vm = []
        b2, s2 = resolve_waits(iteration(role, "S", rares), s1); s2.vm = []
        assert [x.text for x in b1] == [x.text for x in b2] and s1.sig() == s2.sig(), "loop not steady"
        if ALN >= 0: main += Seq()(".p2align 6").l + [I("s_nop 0") for _ in range(ALN)]
        if AL8: b2 = align8(fix_hazards(b2))
        main += Seq().label("%s_LOOP" % RN).l + b2 + Seq()("s_cmp_lt_u32 s6, s%d" % S_TL)("s_cbranch_scc1 %s_LOOP" % RN)("s_branch %s_S1" % RN).l
        z = Seq(); z.label("%s_PV" % RN)
        if SKIP: z("s_bitcmp0_b32 s%d, 5" % S_ROW0); z("s_cbranch_scc1 %s_PE" % RN)
        for n in range(DRD): z.ext([rd_frag("V", n, n)])
        z("s_branch %s_S2" % RN)
        lz, _ = resolve_waits(z.l, st1)
        main += lz
        if SKIP:
            z = Seq(); z.label("%s_PE" % RN)
            for n in range(8): z.ext([rd_frag("V", n, 24 + n)])
            z("s_branch %s_E2" % RN)
            lz, _ = resolve_waits(z.l, st1)
            main += lz
            b, s3 = resolve_waits(iteration(role, "E1", rares), s1); s3.vm = []
            main += Seq().label("%s_E1" % RN).l + b + Seq()("s_add_u32 s%d, s%d, 1" % (S_T, S_T)).l
            z = Seq()
            s3.lg = [entry(rd_frag("V", n, 24 + n)) for n in range(8)]
            b, s4 = resolve_waits(iteration(role, "E2", rares), s3)
            main += Seq().label("%s_E2" % RN).l + b + Seq()("s_branch %s_EP" % RN).l
        b, s3 = resolve_waits(iteration(role, "S1", rares), s1); s3.vm = []
        main += Seq().label("%s_S1" % RN).l
        if SKIP: main += Seq()("s_bitcmp0_b32 s%d, 5" % S_ROW0)("s_cbranch_scc1 %s_E1" % RN).l
        main += b + Seq()("s_add_u32 s%d, s%d, 1" % (S_T, S_T)).l
        b, s4 = resolve_waits(iteration(role, "S2", rares), s3); s4.vm = []
        main += Seq().label("%s_S2" % RN).l + b + Seq().label("%s_EP" % RN)("s_nop 7").l
        e = Seq()
        if stamp: e.ext(STAMP(24)); e.ext(RSTAMP(63))
        vFL, vFO, vFN = 4, 5, 6
        if role == 0:
            e("s_setprio 0")
            e("v_lshrrev_b32 v%d, 2, v%d" % (vFO, vL16)); e("v_mov_b32 v%d, s%d" % (vFN, S_HUGE)); e("v_cmp_gt_u32 vcc, 8, v%d" % vLANE)
            e("v_cndmask_b32 v%d, v%d, v%d, vcc" % (vFO, vFN, vFO)); e("v_cndmask_b32 v%d, 0, 1, vcc" % vFN)
            e("s_lshl_b32 s14, s%d, 7" % S_H); e("s_add_u32 s14, s14, %d" % FL_KP)
            poll_issue(e, vFL, vFO, SRD_WS, "s14")
        if W32:
            red1(e, vLs, "v_add_f32", 4)
            e("v_rcp_f32 v%d, v%d" % (vLs, vLs)); e("v_and_b32 v4, 16, v%d" % vLANE); e("v_cmp_ne_u32 vcc, 0, v4")
            e("v_cndmask_b32 v4, v%d, v%d, vcc" % (vG[0], vG[1])); e("v_mul_f32 v4, v4, v%d" % vLs); e("v_mov_b32 v5, v4")
            e("s_lshl_b32 s6, s%d, 14" % S_H); e("s_add_u32 s6, s6, s%d" % S_AP)
            for js in range(4):
                for t_ in range(2):
                    t = FR + 4 * ((2 * js + t_) % 8)
                    for hb in range(2):
                        a = O + 16 * js + 4 * (t_ + 2 * hb)
                        e("v_pk_mul_f32 %s, %s, v[4:5]" % (vr(a, 2), vr(a, 2))); e("v_pk_mul_f32 %s, %s, v[4:5]" % (vr(a + 2, 2), vr(a + 2, 2)))
                        e("v_cvt_pk_bf16_f32 v%d, v%d, v%d" % (t + 2 * hb, a, a + 1)); e("v_cvt_pk_bf16_f32 v%d, v%d, v%d" % (t + 2 * hb + 1, a + 2, a + 3))
                    e("buffer_store_dwordx4 %s, v%d, %s, s6 offen offset:%d sc1" % (vr(t, 4), vLs + 1, sr(SRD_WS, 4), 512 * t_))
                if js < 3: e("s_add_u32 s6, s6, 4096")
        else:
            red2(e, vLs, vLs + 1, "v_add_f32", E_)
            for qb in range(2):
                e("v_rcp_f32 v%d, v%d" % (vLs + qb, vLs + qb)); e("v_mul_f32 v%d, v%d, v%d" % (E_ + 2 * qb, vLs + qb, vG[qb])); e("v_mov_b32 v%d, v%d" % (E_ + 2 * qb + 1, E_ + 2 * qb))
            e("s_lshl_b32 s6, s%d, 14" % S_H); e("s_add_u32 s6, s6, s%d" % S_AP)
            for js in range(4):
                for qb in range(2):
                    t = FR + 4 * ((2 * js + qb) % 8)
                    for hb in range(2):
                        a = O + 8 * (2 * js + hb) + 4 * qb
                        e("v_pk_mul_f32 %s, %s, %s" % (vr(a, 2), vr(a, 2), vr(E_ + 2 * qb, 2))); e("v_pk_mul_f32 %s, %s, %s" % (vr(a + 2, 2), vr(a + 2, 2), vr(E_ + 2 * qb, 2)))
                        e("v_cvt_pk_bf16_f32 v%d, v%d, v%d" % (t + 2 * hb, a, a + 1)); e("v_cvt_pk_bf16_f32 v%d, v%d, v%d" % (t + 2 * hb + 1, a + 2, a + 3))
                    e("buffer_store_dwordx4 %s, v%d, %s, s6 offen offset:%d sc1" % (vr(t, 4), vL16, sr(SRD_WS, 4), 1024 * qb))
                if js < 3: e("s_add_u32 s6, s6, 4096")
        ST(e, 25)
        if role == 0:
            e("s_sub_u32 s6, s%d, %d" % (S_J, JLO)); e("s_cmp_ge_u32 s6, %d" % JN); e("s_cbranch_scc1 A_LD")
            e("s_mul_i32 s8, s%d, %d" % (S_H, JN)); e("s_add_u32 s6, s6, s8"); e("s_lshl_b32 s6, s6, 2"); e("s_add_u32 s6, s6, s%d" % S_W); e("s_mul_i32 s%d, s6, %d" % (S_JU, sum(JG)))
            e("s_mov_b32 s%d, %d" % (S_WOSZ, 4096 * 1152)); e("s_mov_b32 s%d, 0x00020000" % (SRD_J + 3))
            mk_srd(e, SRD_WS2, P_WS, WS_WP + 16 * 37 * 9728)
            e("s_cmp_ge_u32 s%d, 2" % S_W); e("s_cbranch_scc1 A_J0")
            e("s_add_u32 s%d, s%d, 1" % (S_T, S_T)); e.ext(sync_block(0, "JP"))
            e.label("A_J0")
            assert sum(JG) * JN * 128 >= 5256 and sum(JG) * JN * 128 <= 6144
            jb = [j2(i, 56 + 4 * (i % 10), 96, 100 + (i % 10)) for i in range(sum(JG))]
            grp = [range(sum(JG[:k]), sum(JG[:k + 1])) for k in range(len(JG))]
            G_ = len(JG); nops = [(JG[k] if k < G_ else 0) + (JG[k - 1] if 1 <= k <= G_ else 0) for k in range(G_ + 3)]
            assert 2 * (JLO + JN - 1) + 2 + G_ + 2 < 31 - 2 * (JLO + JN - 1) - 3
            for st_ in range(G_ + 3):
                e("s_add_u32 s%d, s%d, 1" % (S_T, S_T))
                x_ = (nops[st_ - 1] if st_ >= 1 else 0) + (nops[st_ - 2] if st_ >= 2 else 0)
                e.ext(sync_block(0, "J%d" % st_, xtra=x_, strict=8 if st_ == G_ + 2 else None, always=True, prev=nops[st_ - 1] if st_ else 0))
                if 1 <= st_ <= G_:
                    e("s_waitcnt vmcnt(8)")
                    for i in grp[st_ - 1]: e.ext(jb[i][1])
                if st_ < G_:
                    for i in grp[st_]: e.ext(jb[i][0])
            z = arrive_byte(7, 24)
            e("s_cmp_lg_u32 s%d, 0" % S_W); e("s_cbranch_scc1 A_LD"); e.ext(z)
            e.label("A_LD")
            e("s_add_u32 s%d, s%d, 1" % (S_T, S_T)); e("s_cmp_ge_u32 s%d, s%d" % (S_T, S_TBM)); e("s_cbranch_scc1 A_FIN")
            e.ext(sync_block(0, "LD"))
            e("s_cmp_ge_u32 s%d, 2" % S_W); e("s_cbranch_scc1 A_LD")
            e("s_cmp_eq_u32 s%d, 3" % S_R); e("s_cbranch_scc0 A_N3")
            e("s_waitcnt vmcnt(0)")
            poll_issue(e, vFL, vFO, SRD_WS, "s14")
            e("s_branch A_LD")
            e.label("A_N3")
            e("s_cmp_eq_u32 s%d, 2" % S_R); e("s_cbranch_scc0 A_LD")
            e("s_waitcnt vmcnt(0)")
            poll_check(e, "P3A", vFL, vFN, vFO, SRD_WS, "s14")
            KR_ = 56
            e("s_mul_i32 s6, s%d, 49152" % S_H); e("s_mul_i32 s8, s%d, 3072" % S_W); e("s_add_u32 s6, s6, s8"); e("s_add_u32 s6, s6, %d" % WS_KVP)
            for p in range(8):
                for mu in range(3): e("buffer_load_dwordx4 %s, v%d, %s, s6 offen offset:%d sc1" % (vr(KR_ + 12 * p + 4 * mu, 4), vL16, sr(SRD_WS, 4), 1024 * mu))
                if p < 7: e("s_add_u32 s6, s6, 6144")
            for p in range(1, 8):
                for i in range(12): e("v_add_f32 v%d, v%d, v%d" % (KR_ + i, KR_ + i, KR_ + 12 * p + i))
            for i in range(6): e("v_cvt_pk_bf16_f32 v%d, v%d, v%d" % (FR + i, KR_ + 2 * i, KR_ + 2 * i + 1))
            e("v_mov_b32 v%d, 0" % (FR + 6)); e("v_mov_b32 v%d, 0" % (FR + 7))
            e("s_lshl_b32 s6, s%d, 11" % S_W); e("s_add_u32 s6, s6, %d" % KVX); e("v_add_u32 v21, s6, v%d" % vL16)
            e("ds_write_b128 v21, %s" % vr(FR, 4)); e("ds_write_b128 v21, %s offset:1024" % vr(FR + 4, 4))
            e("s_waitcnt lgkmcnt(0)")
            e("s_branch A_LD")
            e.label("A_FIN"); e("s_waitcnt vmcnt(0)"); e("s_branch F_FIN")
        le, _ = resolve_waits(e.l, s4)
        outl += main + le
        for rb in rares: cold += rb.l
    W32 = False
    e = Seq(); e.label("F_FIN"); e("s_setprio 0")
    e("s_waitcnt lgkmcnt(0)")
    e("v_lshrrev_b32 v4, 2, v%d" % vL16); poll_issue(e, 5, 4, SRD_DBG, "0")
    RAW, PH, PK, EE, T8, LQ, KF_, ND = 56, 72, 80, 96, 116, 120, 136, 152
    y = phi_gather(e, RAW, PH, RAW + 12, RAW + 13)
    e("v_add_u32 v6, %d, v%d" % (KVX, vL16))
    for i in range(4): e("ds_read_b128 %s, v6 offset:%d" % (vr(KF_ + 4 * i, 4), 1024 * i))
    e.ext(y)
    for mu in range(2):
        for rho in range(2): e("%s %s, %s, %s, 0" % (MF, vr(PK + 8 * mu + 4 * rho, 4), vr(PH + 4 * mu, 4), vr(TK + 4 * rho, 4)))
    softmax5(e, PK, EE, T8, LQ)
    for rho in range(2): e("v_mov_b32 v%d, 0" % (LQ + 8 * rho + 6)); e("v_mov_b32 v%d, 0" % (LQ + 8 * rho + 7))
    for rho in range(2):
        for nu in range(2):
            d = vr(ND + 8 * rho + 4 * nu, 4)
            e("%s %s, %s, %s, 0" % (MF, d, vr(KF_ + 8 * nu, 4), vr(LQ + 8 * rho, 4)))
            e("%s %s, %s, %s, %s" % (MF, d, vr(KF_ + 8 * nu + 4, 4), vr(LQ + 8 * rho + 4, 4), d))
    e("s_lshr_b32 s6, s%d, 1" % S_H); e("s_add_u32 s6, s6, 128"); e("s_lshl_b32 s6, s6, 12"); e("s_add_u32 s6, s6, s%d" % S_AP)
    e("s_and_b32 s8, s%d, 1" % S_H); e("s_lshl_b32 s8, s8, 9"); e("s_add_u32 s6, s6, s8")
    e("s_lshr_b32 s8, s%d, 4" % S_H); e("s_add_u32 s8, s8, 144"); e("s_lshl_b32 s8, s8, 12"); e("s_add_u32 s8, s8, s%d" % S_AP)
    e("s_lshr_b32 s9, s%d, 2" % S_H); e("s_and_b32 s9, s9, 3"); e("s_lshl_b32 s9, s9, 8"); e("s_add_u32 s8, s8, s9")
    e("s_and_b32 s9, s%d, 3" % S_H); e("s_lshl_b32 s9, s9, 2"); e("s_add_u32 s8, s8, s9")
    e("v_and_b32 v6, 15, v%d" % vLANE); e("v_lshlrev_b32 v6, 4, v6"); e("v_lshrrev_b32 v7, 4, v%d" % vLANE)
    e("v_lshl_add_u32 v10, v7, 7, v6"); e("v_and_b32 v9, 1, v7")
    e("v_mov_b32 v8, s%d" % S_HUGE); e("v_cmp_ne_u32 vcc, 1, v7"); e("v_cndmask_b32 v6, v6, v8, vcc")
    e("v_cmp_ne_u32 vcc, 0, v9"); e("v_cndmask_b32 v10, v10, v8, vcc")
    assert JN == 5
    e("v_and_b32 v11, 7, v%d" % vLANE); e("v_cmp_eq_u32 vcc, 0, v11"); e("v_mov_b32 v11, 0x142020"); e("v_cndmask_b32 v13, 0, v11, vcc")
    poll_check(e, "P4", 5, 13, 4, SRD_DBG, "0")
    e("s_mov_b32 s9, 0x%x" % f2u(1e-6))
    for rho in range(2):
        n = ND + 8 * rho
        e("v_add_f32 v8, s9, v%d" % (n + 6)); e("v_rcp_f32 v8, v8"); e("v_sub_f32 v9, 1.0, v%d" % vG[rho]); e("v_mul_f32 v8, v8, v9")
        for i in range(6): e("v_mul_f32 v%d, v%d, v8" % (n + i, n + i))
        for i in range(2): e("v_cvt_pk_bf16_f32 v%d, v%d, v%d" % (n + i, n + 2 * i, n + 2 * i + 1))
        e("v_cvt_pk_bf16_f32 v%d, v%d, v%d" % (n + 4, n + 4, n + 5))
        e("v_mov_b32 v%d, v%d" % (n + 2, n)); e("v_mov_b32 v%d, v%d" % (n + 3, n + 1))
        e("v_permlane16_swap_b32 v%d, v%d" % (n, n + 2)); e("v_permlane16_swap_b32 v%d, v%d" % (n + 1, n + 3))
        e("buffer_store_dwordx4 %s, v10, %s, s6 offen offset:%d sc1" % (vr(n, 4), sr(SRD_WS, 4), 1024 * rho), tag="APS")
        e("buffer_store_dword v%d, v6, %s, s8 offen offset:%d sc1" % (n + 4, sr(SRD_WS, 4), 1024 * rho), tag="APS")
    ST(e, 26)
    if DIAG: e("v_writelane_b32 v0, s96, 40"); e("v_writelane_b32 v0, s98, 41"); e("v_writelane_b32 v0, s98, 42")
    SRD_W3, SRD_OUT, S_KQ, S_A, S_WM, S_G, S_SO, S_R16 = 56, 60, 64, 65, 68, 69, 72, 76
    WR0 = 65536; NS = 37; IMG = 9728
    e("s_and_b32 s%d, s2, 3" % S_KQ)
    e("s_lshl_b32 s8, s%d, 1" % S_J); e("s_sub_u32 s9, 30, s8"); e("s_bitcmp1_b32 s2, 2"); e("s_cselect_b32 s10, s9, s8")
    e("s_lshr_b32 s6, s%d, 2" % S_W); e("s_add_u32 s6, s6, s10"); e("s_mul_i32 s6, s6, %d" % (NSTEP * 4096)); e("s_lshl_b32 s8, s%d, 10" % S_RG)
    e("s_add_u32 s6, s6, s8"); e("s_add_u32 s6, s6, %d" % WS_AP)
    e("s_lshl_b32 s8, s%d, 17" % S_KQ); e("s_add_u32 s%d, s6, s8" % S_A)
    e("s_lshl_b32 s8, s%d, 14" % S_KQ); e("s_add_u32 s%d, s6, s8" % (S_A + 1)); e("s_add_u32 s%d, s%d, %d" % (S_A + 1, S_A + 1, 128 * 4096))
    e("s_lshl_b32 s8, s%d, 11" % S_KQ); e("s_add_u32 s8, s6, s8"); e("s_add_u32 s8, s8, %d" % (144 * 4096))
    e("s_bitcmp1_b32 s%d, 0" % S_KQ); e("s_cselect_b32 s%d, s%d, s8" % (S_A + 2, S_HUGE))
    e("s_cselect_b32 s9, 36, 37"); e("s_cselect_b32 s11, 8, 16")
    e("s_lshr_b32 s6, s2, 6"); e("s_lshl_b32 s6, s6, 2"); e("s_add_u32 s6, s6, s%d" % S_KQ); e("s_mul_i32 s6, s6, %d" % (37 * IMG)); e("s_add_u32 s6, s6, %d" % WS_WP)
    mk_srd(e, SRD_W3, P_WS, 0, add="s6"); e("s_mul_i32 s%d, s9, %d" % (SRD_W3 + 2, IMG))
    mk_srd(e, SRD_OUT, P_OUT, 2048 * 1152)
    e("s_lshl_b32 s%d, s%d, 10" % (S_WM, S_RG))
    vH, vT, vA, vO, vO5 = 18, 12, 14, 10, 11
    e("v_add_u32 v%d, s%d, v%d" % (vH, S_MB, vL16)); e("v_add_u32 v%d, s%d, v%d" % (vH + 1, S_WM, vL16))
    e("v_bfe_u32 v10, v%d, 2, 2" % vLANE); e("v_lshl_add_u32 v10, v7, 3, v10"); e("v_mul_u32_u24 v10, 288, v10"); e("v_lshl_add_u32 v10, v7, 7, v10")
    e("v_and_b32 v11, 3, v%d" % vLANE); e("v_lshl_add_u32 v10, v11, 3, v10")
    e("s_lshr_b32 s6, s%d, 2" % S_W); e("s_mul_i32 s6, s6, 160"); e("s_add_u32 s6, s6, %d" % WR0)
    e("v_add_u32 v%d, s6, v10" % vT); e("v_add_u32 v%d, %d, v%d" % (vT + 1, 4 * IMG, vT))
    e("s_lshl_b32 s6, s%d, 11" % S_RG); e("v_add_u32 v%d, s6, v%d" % (vA, vL16))
    e("s_lshl_b32 s6, s%d, 3" % S_KQ); e("v_subrev_u32 v9, s6, v%d" % vLANE); e("v_cmp_gt_u32 vcc, s11, v9")
    e("v_mov_b32 v6, s%d" % S_HUGE); e("v_cndmask_b32 v4, v6, v4, vcc"); e("v_cndmask_b32 v6, 0, 1, vcc")
    e("s_lshl_b32 s11, s%d, 7" % S_J); e("s_add_u32 s11, s11, %d" % FL_AP)
    AG, WG, AC = 24, 40, 80
    S_ROT = 88
    for t in range(4):
        e("s_lshr_b32 s6, s2, %d" % (6 if ROT else 10)); e("s_add_u32 s6, s6, %d" % t); e("s_and_b32 s6, s6, 3"); e("s_lshl_b32 s6, s6, 15"); e("s_add_u32 s%d, s%d, s6" % (S_ROT + t, S_A))
    def dmaw(qq, nw=8):
        z = Seq(); base = (nw * qq) % 76
        sm = S_MB if nw == 8 else S_WM
        z("s_add_u32 m0, s%d, %d" % (sm, WR0 + base * 1024))
        if base + nw - 1 >= 76:
            z("s_sub_u32 s9, m0, %d" % (76 * 1024)); z("s_cmp_ge_u32 m0, %d" % (WR0 + 76 * 1024)); z("s_cselect_b32 m0, s9, m0")
        z("s_mov_b32 s9, %d" % (nw * qq * 1024))
        z("buffer_load_dwordx4 v%d, %s, s9 offen sc1 lds" % (vH if nw == 8 else vH + 1, sr(SRD_W3, 4)), tag="P%d" % (nw * qq // 4))
        return z
    def dmaa(n):
        z = Seq()
        z("s_add_u32 m0, s%d, %d" % (S_MB, (n % 8) * 8192))
        if n < 36: z("s_add_u32 s8, s%d, %d" % ((S_ROT + (n >> 3), (n & 7) * 4096) if n < 32 else (S_A + 1, (n - 32) * 4096)))
        z("buffer_load_dwordx4 v%d, %s, s%d offen sc1 lds" % (vL16, sr(SRD_WS, 4), 8 if n < 36 else S_A + 2), tag="Q%d" % n)
        return z
    def rds(n, nf):
        sl = n % 8; hi = sl >> 2; out = []
        for rho in range(2): out.append(Seq()("ds_read_b128 %s, v%d offset:%d" % (vr(AG + 8 * (n % 2) + 4 * rho, 4), vA, sl * 8192 + 1024 * rho)).l)
        for fi in range(nf):
            out.append(Seq()("\n".join("ds_read_b64_tr_b16 %s, v%d offset:%d" % (vr(WG + 20 * (n % 2) + 4 * fi + 2 * hh, 2), vT + hi, (sl & 3) * IMG + 32 * fi + 1152 * hh) for hh in range(2))).l)
        return out
    e.waitv("APS")
    e("s_barrier")
    fb = Seq(); fb("s_lshl_b32 s6, s%d, 7" % S_J); fb("s_lshl_b32 s8, s%d, 2" % S_H); fb("s_add_u32 s6, s6, s8"); fb("s_add_u32 s6, s6, %d" % FL_AP)
    e.ext(w7_block("F_FAP", flag_store(fb, 10, 11)))
    ST(e, 27)
    nq0 = 9; na0 = 8; NQ = 88
    for qq in range(nq0): e.ext(dmaw(qq))
    e("v_and_b32 v16, 15, v%d" % vLANE); e("s_lshl_b32 s6, s10, 6"); e("s_lshl_b32 s8, s%d, 5" % S_RG); e("s_add_u32 s6, s6, s8")
    e("v_add_u32 v16, s6, v16"); e("v_mul_u32_u24 v16, 1152, v16"); e("v_lshl_add_u32 v16, v7, 3, v16")
    e("s_lshr_b32 s6, s2, 6"); e("s_mul_i32 s6, s6, 288"); e("s_lshr_b32 s8, s%d, 2" % S_W); e("s_mul_i32 s8, s8, 160"); e("s_add_u32 s6, s6, s8")
    e("v_add_u32 v%d, s6, v16" % vO)
    e("s_mov_b32 s%d, %d" % (S_R16, 16 * 1152))
    px_group(e, S_G, 6)
    e("s_lshl_b32 s6, s%d, 5" % S_G); e("s_add_u32 s6, s6, s%d" % S_W); e("s_mul_i32 s6, s6, 5120"); e("s_add_u32 s10, s6, %d" % WS_PX)
    for t in range(4): e("s_add_u32 s%d, s10, %d" % (S_SO + t, t * 40960))
    z = Seq(); z("v_mov_b32 v5, 0")
    poll_check(z, "P5", 5, 6, 4, SRD_WS, "s11")
    e.ext(w7_block("F_P5", z, PW))
    e("s_barrier")
    ST(e, 28)
    for n in range(na0): e.ext(dmaa(n))
    def pub(m):
        z = Seq(); z.waitv(*(["P%d" % k for k in range(min(NQ - 1, (19 * m + 18) // 4) + 1)] + ["Q%d" % min(NS - 1, 2 * m + 1)]))
        if not K3L: z("s_waitcnt lgkmcnt(0)")
        z("s_barrier")
        return z.l
    e.ext(pub(0))
    e("s_cmp_ge_u32 s%d, 4" % S_W); e("s_cbranch_scc1 G_B")
    le, stp = resolve_waits(e.l, Pend(vm=[("vm_st", (), "APS")] * 8))
    tail = []
    for role in range(2):
        RN = "AB"[role]; nf = 5 - role; nb = 2 * nf; na = na0; nq = 2 * nq0
        e = Seq()
        if role: e.label("G_B")
        if GP & (4 << role): e("s_setprio 1")
        e.ext(flat(rds(0, nf)))
        later = []
        for n in range(NS):
            fill = {k: [] for k in range(nb)}
            for k, l in enumerate(later): fill[min(nb - 1, 2 + k)].append(l)
            later = []
            if n + 1 < NS:
                if n % 2 == 1:
                    m = (n + 1) // 2
                    if K3P: e.ext(pub(m))
                    else: fill[0].extend(pub(m))
                    k = nb - 3
                    while na < NS and na <= 2 * m + 7 - K3L: fill[k].extend(dmaa(na).l); na += 1; k = min(nb - 1, k + 1)
                    while nq < NQ and nq <= (19 * m + (62 if K3L else 72)) // 4:
                        if role: later.append(dmaw(nq, 4).l)
                        nq += 1
                rl = flat(rds(n + 1, nf)); per = [[] for _ in range(nb)]
                for k, x_ in enumerate(rl): per[k if k < nb else 2 * (k - nb) + 1].append(x_)
                order = {id(x_): k for k, x_ in enumerate(rl)}
                it = iter(rl); per = [[next(it) for _ in p_] for p_ in per]
                for k, l in enumerate(per): fill[k] = (fill[k] + l) if (k == 0 and n % 2 == 1) else (l + fill[k])
            fill = {k: [y_ for x_ in v_ for y_ in (x_ if isinstance(x_, list) else [x_])] for k, v_ in fill.items()}
            for fi in range(nf):
                for rho in range(2):
                    acc = vr(AC + 4 * (2 * fi + rho), 4)
                    e("%s %s, %s, %s, %s" % (MF, acc, vr(WG + 20 * (n % 2) + 4 * fi, 4), vr(AG + 8 * (n % 2) + 4 * rho, 4), "0" if n == 0 else acc))
                    e.ext(fill[2 * fi + rho])
            if n % 8 == 0 and n < 32: ST(e, 29 + n // 8)
        assert na == NS and nq == NQ, (na, nq)
        ST(e, 34)
        if XROW:
            e("s_cmp_eq_u32 s%d, s%d" % (S_KQ, S_RG)); e("s_cbranch_scc1 %s_XF" % RN)
            e("s_mul_i32 s6, s%d, 40960" % S_KQ); e("s_add_u32 s84, s6, s10"); e("s_add_u32 s85, s84, 4096")
            PKX = 120
            for fi in range(nf):
                d = PKX + 4 * fi
                for x in range(4): e("v_cvt_pk_bf16_f32 v%d, v%d, v%d" % (d + x, AC + 8 * fi + 2 * x, AC + 8 * fi + 2 * x + 1))
                e("buffer_store_dwordx4 %s, v%d, %s, s%d offen offset:%d sc1" % (vr(d, 4), vL16, sr(SRD_WS, 4), 84 + (fi >> 2), (fi & 3) * 1024), tag="OPT")
            e("s_branch F_XLD")
            e.label("%s_XF" % RN)
            for k in range(3):
                e("s_add_u32 s6, s%d, %d" % (S_KQ, k + 1)); e("s_and_b32 s6, s6, 3"); e("s_mul_i32 s6, s6, 40960"); e("s_add_u32 s%d, s6, s10" % (S_SO + k))
            e("s_mov_b32 s%d, 4000" % S_SPIN); e("s_mov_b32 s86, 0xffff0000"); e("s_mov_b32 s87, 0x%x" % SNT)
            ST(e, 33)
            LD, SM_ = 120, 24
            e.label("%s_XR" % RN)
            for k in range(3):
                for fi in range(nf):
                    if fi == 4: e("s_add_u32 s6, s%d, 4096" % (S_SO + k))
                    e("buffer_load_dwordx4 %s, v%d, %s, s%d offen offset:%d sc1" % (vr(LD + 20 * k + 4 * fi, 4), vL16, sr(SRD_WS, 4), 6 if fi == 4 else S_SO + k, (fi & 3) * 1024))
            e("s_mov_b64 s[88:89], 0")
            for k in range(3):
                for fi in range(nf): e("v_cmp_eq_u32 vcc, s87, v%d" % (LD + 20 * k + 4 * fi + 3)); e("s_or_b64 s[88:89], s[88:89], vcc")
            e("s_cmp_lg_u64 s[88:89], 0"); e("s_cbranch_scc1 %s_XT" % RN)
            for k in range(3):
                for x in range(4 * nf):
                    t = 64 + 2 * (x & 3)
                    e("v_lshlrev_b32 v%d, 16, v%d" % (t, LD + 20 * k + x)); e("v_and_b32 v%d, s86, v%d" % (t + 1, LD + 20 * k + x))
                    e("v_pk_add_f32 %s, %s, %s" % (vr(SM_ + 2 * x, 2), vr(t, 2), vr((AC if k == 0 else SM_) + 2 * x, 2)))
            e("v_pk_add_f32 v[64:65], %s, %s" % (vr(SM_, 2), vr(SM_ + 2, 2)))
            for x in range(2, 4 * nf): e("v_pk_add_f32 v[64:65], v[64:65], %s" % vr(SM_ + 2 * x, 2))
            e("v_cmp_u_f32 vcc, v64, v65"); e("s_cbranch_vccz %s_XK" % RN)
            e.label("%s_XT" % RN)
            e("s_sleep 2")
            e("s_sub_u32 s%d, s%d, 1" % (S_SPIN, S_SPIN)); e("s_cmp_lg_u32 s%d, 0" % S_SPIN); e("s_cbranch_scc1 %s_XR" % RN)
            e.label("%s_XK" % RN)
            for b in range(nb):
                t = SM_ + 4 * b
                e("v_cvt_pk_bf16_f32 v%d, v%d, v%d" % (t, t, t + 1)); e("v_cvt_pk_bf16_f32 v%d, v%d, v%d" % (t + 1, t + 2, t + 3))
                e("buffer_store_dwordx2 %s, v%d, %s, %s offen offset:%d" % (vr(t, 2), vO, sr(SRD_OUT, 4), "s%d" % S_R16 if b & 1 else "0", 32 * (b >> 1)))
            if role == 0: e("s_branch F_XLD")
            lz, stx = resolve_waits(e.l, stp); tail += lz
            continue
        e("s_mul_i32 s6, s%d, 40960" % S_KQ); e("s_add_u32 s84, s6, s10"); e("s_add_u32 s85, s84, 4096")
        e("v_lshrrev_b32 v16, 1, v%d" % vL16)
        PKX = 120
        for b in range(nb):
            d = PKX + 4 * (b & 3) + 2 * (b >> 2) if b < 8 else PKX + 16 + 2 * (b - 8)
            e("v_cvt_pk_bf16_f32 v%d, v%d, v%d" % (d, AC + 4 * b, AC + 4 * b + 1)); e("v_cvt_pk_bf16_f32 v%d, v%d, v%d" % (d + 1, AC + 4 * b + 2, AC + 4 * b + 3))
        for o in range(4):
            e("s_cmp_eq_u32 s%d, %d" % (S_KQ, o)); e("s_cbranch_scc1 %s_XS%d" % (RN, o))
            e("buffer_store_dwordx4 %s, v%d, %s, s84 offen offset:%d sc1" % (vr(PKX + 4 * o, 4), vL16, sr(SRD_WS, 4), o * 1024), tag="OPT")
            if nb == 10 and o < 2: e("buffer_store_dwordx2 %s, v16, %s, s85 offen offset:%d sc1" % (vr(PKX + 16 + 2 * o, 2), sr(SRD_WS, 4), o * 512), tag="OPT")
            e.label("%s_XS%d" % (RN, o))
        e("s_mov_b32 s%d, 4000" % S_SPIN); e("s_mov_b32 s86, 0xffff0000")
        ST(e, 33)
        lz, stx = resolve_waits(e.l, stp); tail += lz
        for kq in range(4):
            z = Seq()
            if kq < 3: z("s_cmp_lg_u32 s%d, %d" % (S_KQ, kq)); z("s_cbranch_scc1 %s_XL%d" % (RN, kq))
            own = [b for b in range(nb) if b & 3 == kq]; srcs = [t for t in range(4) if t != kq]
            z.label("%s_XR%d" % (RN, kq))
            LD, SM_ = 24, 48
            for k, t in enumerate(srcs):
                z("buffer_load_dwordx4 %s, v%d, %s, s%d offen offset:%d sc1" % (vr(LD + 8 * k, 4), vL16, sr(SRD_WS, 4), S_SO + t, kq * 1024))
                if len(own) == 3:
                    z("s_add_u32 s6, s%d, 4096" % (S_SO + t))
                    z("buffer_load_dwordx2 %s, v16, %s, s6 offen offset:%d sc1" % (vr(LD + 8 * k + 4, 2), sr(SRD_WS, 4), kq * 512))
            for k in range(3):
                for i, b in enumerate(own):
                    for hh in range(2):
                        src = LD + 8 * k + 2 * i + hh
                        z("v_lshlrev_b32 v60, 16, v%d" % src); z("v_and_b32 v61, s86, v%d" % src)
                        for x in range(2):
                            dd = SM_ + 4 * i + 2 * hh + x
                            z("v_add_f32 v%d, v%d, v%d" % (dd, 60 + x, (AC + 4 * b + 2 * hh + x) if k == 0 else dd))
            n_ = 4 * len(own)
            z("v_add_f32 v62, v%d, v%d" % (SM_, SM_ + 1))
            for x in range(2, n_): z("v_add_f32 v62, v62, v%d" % (SM_ + x))
            z("v_cmp_u_f32 vcc, v62, v62"); z("s_cbranch_vccz %s_XK%d" % (RN, kq))
            z("s_sleep 4")
            z("s_sub_u32 s%d, s%d, 1" % (S_SPIN, S_SPIN)); z("s_cmp_lg_u32 s%d, 0" % S_SPIN); z("s_cbranch_scc1 %s_XR%d" % (RN, kq))
            z.label("%s_XK%d" % (RN, kq))
            for i, b in enumerate(own):
                t = SM_ + 4 * i
                z("v_cvt_pk_bf16_f32 v%d, v%d, v%d" % (t, t, t + 1)); z("v_cvt_pk_bf16_f32 v%d, v%d, v%d" % (t + 1, t + 2, t + 3))
                fi, rho = b >> 1, b & 1
                z("buffer_store_dwordx2 %s, v%d, %s, %s offen offset:%d" % (vr(t, 2), vO, sr(SRD_OUT, 4), "s%d" % S_R16 if rho else "0", 32 * fi))
            if kq < 3 or role == 0: z("s_branch F_XLD")
            if kq < 3: z.label("%s_XL%d" % (RN, kq))
            lz, _ = resolve_waits(z.l, stx); tail += lz
    e = Seq(); e.label("F_XLD")
    if stamp and os.environ.get("DBGOUT"):
        e.ext(STAMP(36)); e.ext(RSTAMP(61))
        e("s_lshl_b32 s6, s2, 3"); e("s_add_u32 s6, s6, s%d" % S_W); e("s_cmp_lg_u32 s6, %d" % int(os.environ["DBGOUT"])); e("s_cbranch_scc1 F_END")
        sel = [60, 62, 63, 61, 0, 1, 9, 20, 23, 24, 27, 28, 34, 36, 5, 14]
        for k, x_ in enumerate(sel): e("v_readlane_b32 s8, v0, %d" % x_); e("v_readlane_b32 s9, v0, %d" % (60 if x_ >= 60 else 0)); e("s_sub_u32 s8, s8, s9"); e("v_writelane_b32 v3, s8, %d" % k)
        e("v_lshrrev_b32 v4, 2, v%d" % vL16); e("s_mov_b64 exec, 0xffff")
        e("buffer_store_dword v3, v4, %s, 0 offen sc1" % sr(SRD_DBG, 4))
        e("s_endpgm")
    if stamp: e.ext(STAMP(35)); e("s_waitcnt vmcnt(0)"); e.ext(STAMP(36)); e.ext(RSTAMP(61)); e.ext(STAMPOUT(S_W, vLANE, SRD_WS, 6, base=1 << 20))
    e.label("F_END"); e("s_endpgm")
    return fix_hazards(outl + le + tail + e.l + Seq().label("F_COLD").l + cold)
```
